```python
import torch

def _softmax(x, axis=-1):
    return torch.softmax(x, dim=axis)
def _gelu(x):
    return torch.nn.functional.gelu(x, approximate="tanh")
def _silu(x):
    return torch.nn.functional.silu(x)
def _sigmoid(x):
    return torch.sigmoid(x)
def _layernorm(x, axis=-1, eps=1e-5):
    m = x.mean(dim=axis, keepdim=True)
    v = x.var(dim=axis, keepdim=True, unbiased=False)
    return (x - m) / torch.sqrt(v + eps)
def _scatter_add(tgt, idx, src, axis=0):
    return tgt.clone().index_add_(axis, idx, src)
def _segment_sum(src, seg, n):
    out = torch.zeros((n,) + src.shape[1:], dtype=src.dtype)
    return out.index_add_(0, seg, src)
def _pad(x, pw):
    flat = tuple(v for pair in reversed(pw) for v in pair)
    return torch.nn.functional.pad(x, flat)

kernel_name = 'parallel_sum__ssm_conv_s5__geglu_ffn__prompt'

def setup_inputs():

    _w = (lambda a: (lambda t: t.to(torch.bfloat16) if t.is_floating_point() else t)(torch.as_tensor(a)))
    def _A_setup():
        B, S, D = 1, 2048, 576
        P = D
        Lambda_re = -0.5 * (lambda _x: torch.exp(torch.as_tensor(_x)))((lambda *s: torch.randn(*s, dtype=torch.bfloat16) * 0.8)(P))
        Lambda_im = (lambda *s: torch.randn(*s, dtype=torch.bfloat16) * 0.8)(P) * 1.0
        B_re = (lambda *s: torch.randn(*s, dtype=torch.bfloat16) * 0.8)(P, D) * (D ** -0.5)
        B_im = (lambda *s: torch.randn(*s, dtype=torch.bfloat16) * 0.8)(P, D) * (D ** -0.5)
        C_re = (lambda *s: torch.randn(*s, dtype=torch.bfloat16) * 0.8)(D, P) * (P ** -0.5)
        C_im = (lambda *s: torch.randn(*s, dtype=torch.bfloat16) * 0.8)(D, P) * (P ** -0.5)
        log_dt = (lambda *s: torch.randn(*s, dtype=torch.bfloat16) * 0.8)(P) * 0.3 - 2.0
        Dskip = (lambda *s: torch.randn(*s, dtype=torch.bfloat16) * 0.8)(D)
        return {
            "x": _w((lambda *s: torch.randn(*s, dtype=torch.bfloat16) * 0.05)(B, S, D)),
            "Lambda_re": _w(Lambda_re),
            "Lambda_im": _w(Lambda_im),
            "B_re": _w(B_re),
            "B_im": _w(B_im),
            "C_re": _w(C_re),
            "C_im": _w(C_im),
            "log_dt": _w(log_dt),
            "Dskip": _w(Dskip),
        }
    _A_in = _A_setup()

    def _B_setup():
        B, S, D, F = 1, 2048, 576, 4608
        return {
            "x": _w((lambda *s: torch.randn(*s, dtype=torch.bfloat16) * 0.05)(B, S, D)),
            "w_gate": _w((lambda *s: torch.randn(*s, dtype=torch.bfloat16) * 0.05)(D, F)),
            "w_up": _w((lambda *s: torch.randn(*s, dtype=torch.bfloat16) * 0.05)(D, F)),
            "w_down": _w((lambda *s: torch.randn(*s, dtype=torch.bfloat16) * 0.05)(F, D)),
        }
    _B_in = _B_setup()

    return {
        "A_x": _A_in["x"],
        "A_Lambda_re": _A_in["Lambda_re"],
        "A_Lambda_im": _A_in["Lambda_im"],
        "A_B_re": _A_in["B_re"],
        "A_B_im": _A_in["B_im"],
        "A_C_re": _A_in["C_re"],
        "A_C_im": _A_in["C_im"],
        "A_log_dt": _A_in["log_dt"],
        "A_Dskip": _A_in["Dskip"],
        "B_x": _B_in["x"],
        "B_w_gate": _B_in["w_gate"],
        "B_w_up": _B_in["w_up"],
        "B_w_down": _B_in["w_down"],
    }

def reference(A_x, A_Lambda_re, A_Lambda_im, A_B_re, A_B_im, A_C_re, A_C_im, A_log_dt, A_Dskip, B_x, B_w_gate, B_w_up, B_w_down):
    def _A_ref(x, Lambda_re, Lambda_im, B_re, B_im, C_re, C_im, log_dt, Dskip):
        Bsz, L, H = x.shape
        Lam = Lambda_re + 1j * Lambda_im
        Bmat = B_re + 1j * B_im
        Cmat = C_re + 1j * C_im
        dt = torch.exp(log_dt)
        Lam_bar = torch.exp(dt * Lam)
        B_bar = ((Lam_bar - 1.0) / Lam)[:, None] * Bmat
        Bu = torch.einsum("bld,pd->blp", x + 0j, B_bar)
        h = torch.zeros_like(Bu[:, 0, :])
        hs = []
        for t in range(L):
            h = Lam_bar[None, :] * h + Bu[:, t, :]
            hs.append(h)
        hseq = torch.stack(hs, 1)
        y = 2.0 * torch.einsum("blp,dp->bld", hseq, Cmat).real + x * Dskip[None, None, :]
        return y

    def _B_ref(x, w_gate, w_up, w_down):
        return (_gelu(x @ w_gate) * (x @ w_up)) @ w_down

    x = A_x
    xn = _layernorm(x, axis=-1)
    return x + _A_ref(xn, A_Lambda_re, A_Lambda_im, A_B_re, A_B_im, A_C_re, A_C_im, A_log_dt, A_Dskip) + _B_ref(xn, B_w_gate, B_w_up, B_w_down)
```

```python
import re

REG_RE = re.compile(r"\b([vas])(\d+)\b|\b([vas])\[(\d+):(\d+)\]|\b(vcc|exec|m0|scc)\b")
TRANS = ("v_exp_f32", "v_log_f32", "v_rcp_f32", "v_rsq_f32", "v_sqrt_f32", "v_sin_f32", "v_cos_f32")


def regs_of(tok):
    out = []
    for m in REG_RE.finditer(tok):
        if m.group(1):
            out.append((m.group(1), int(m.group(2))))
        elif m.group(3):
            out += [(m.group(3), i) for i in range(int(m.group(4)), int(m.group(5)) + 1)]
        else:
            out.append((m.group(6), 0))
    return out


def split_ops(s):
    ops, depth, cur = [], 0, ""
    for ch in s:
        if ch in "[(":
            depth += 1
        elif ch in "])":
            depth -= 1
        if ch == "," and depth == 0:
            ops.append(cur.strip())
            cur = ""
        else:
            cur += ch
    if cur.strip():
        ops.append(cur.strip())
    return ops


class Ins:
    __slots__ = ("text", "mn", "kind", "reads", "writes", "tag", "srcc", "srcab", "wide_store", "dpp", "opts")

    def __init__(self, text, tag=None):
        self.text = text
        self.tag = tag
        self.srcc = []
        self.srcab = []
        self.wide_store = False
        self.dpp = False
        t = text.split(";")[0].strip()
        if t.endswith(":") or t.startswith("."):
            self.mn, self.kind, self.reads, self.writes = t, "label", [], []
            return
        parts = t.split(None, 1)
        mn = parts[0]
        self.mn = mn
        rest = parts[1] if len(parts) > 1 else ""
        ops = split_ops(rest)
        R, W = [], []
        allr = lambda xs: [r for o in xs for r in regs_of(o)]
        if mn.startswith("v_mfma"):
            self.kind = "mfma"
            W = regs_of(ops[0])
            self.srcab = regs_of(ops[1]) + regs_of(ops[2])
            self.srcc = regs_of(ops[3])
            R = self.srcab + self.srcc
        elif mn.startswith("v_"):
            self.kind = "valu"
            base = mn.replace("_e32", "").replace("_e64", "")
            if base in TRANS:
                self.kind = "trans"
            if "_dpp" in mn or "quad_perm" in rest or "row_" in rest:
                self.dpp = True
            if mn.startswith("v_permlane"):
                self.kind = "permlane"
                W = allr(ops[:2])
                R = allr(ops[:2])
            elif mn.startswith("v_cmp"):
                W = regs_of(ops[0])
                R = allr(ops[1:])
            else:
                W = regs_of(ops[0])
                R = allr(ops[1:])
                if mn.startswith(("v_fmac", "v_dot2c", "v_pk_fmac")) or self.dpp:
                    R = R + W
                if mn.startswith("v_dot"):
                    self.kind = "dot"
            R = R + [("exec", 0)]
        elif mn.startswith("buffer_load"):
            if re.search(r"\blds\b", rest):
                self.kind = "dma"
                R = allr(ops) + [("m0", 0)]
            else:
                self.kind = "vload"
                W = regs_of(ops[0])
                R = allr(ops[1:])
        elif mn.startswith("buffer_store"):
            self.kind = "vstore"
            R = allr(ops)
            self.wide_store = mn.endswith(("x3", "x4"))
            self.srcc = regs_of(ops[0])
        elif mn.startswith("buffer_atomic"):
            if re.search(r"\bsc0\b", rest):
                self.kind = "vload"
                W = regs_of(ops[0])
            else:
                self.kind = "vstore"
            R = allr(ops)
        elif mn in ("buffer_inv", "buffer_wbl2"):
            self.kind = "vstore"
        elif mn.startswith(("ds_read", "ds_bpermute", "ds_permute", "ds_swizzle")):
            self.kind = "dsread"
            W = regs_of(ops[0])
            R = allr(ops[1:])
        elif mn.startswith("ds_"):
            self.kind = "dswrite"
            R = allr(ops)
        elif mn.startswith(("s_load", "s_memtime", "s_memrealtime")):
            self.kind = "smem"
            W = regs_of(ops[0])
            R = allr(ops[1:])
        elif mn == "s_waitcnt":
            self.kind = "waitcnt"
        elif mn == "s_nop":
            self.kind = "nop"
        elif mn in ("s_barrier", "s_sleep", "s_setprio", "s_endpgm"):
            self.kind = "other"
        elif mn.startswith(("s_cbranch", "s_branch")):
            self.kind = "branch"
        elif mn.startswith("s_cmp"):
            self.kind = "salu"
            R = allr(ops)
            W = [("scc", 0)]
        elif mn.startswith("s_"):
            self.kind = "salu"
            W = regs_of(ops[0])
            R = allr(ops[1:])
            if "saveexec" in mn:
                W = W + [("exec", 0)]
        elif mn == "@waitvm":
            self.kind = "waitvm"
        elif mn == "@waitlgkm":
            self.kind = "waitlgkm"
        else:
            raise ValueError("unknown instruction: " + text)
        self.reads, self.writes = R, W


class Prog:
    def __init__(self):
        self.ins = []

    def __call__(self, text, tag=None):
        for line in text.strip().split("\n"):
            line = line.strip()
            if line and not line.startswith(";"):
                self.ins.append(Ins(line, tag))

    def extend(self, lst):
        self.ins.extend(lst)

    def waitvm(self, tag):
        i = Ins("@waitvm")
        i.tag = tag
        self.ins.append(i)

    def waitlgkm(self, tag):
        i = Ins("@waitlgkm")
        i.tag = tag
        self.ins.append(i)

    _last = [None]
    def stamp(self, k, real=False):
        import os
        if not os.environ.get("STAMPS"):
            return
        if Prog._last[0] is not None:
            self(f"s_mov_b32 s{84 + Prog._last[0]}, s80")
        Prog._last[0] = k
        self(f"{'s_memrealtime' if real else 's_memtime'} s[80:81]")

    def dump_stamps(self, n, srd, base, vtmp=0, keep=False):
        import os
        if not os.environ.get("STAMPS"):
            return
        self(f"s_mov_b32 s{84 + Prog._last[0]}, s80")
        Prog._last[0] = None
        self("s_mov_b64 exec, 1")
        self(f"s_lshl_b32 s78, s2, 2")
        self(f"s_add_u32 s78, s78, s79")
        self(f"s_lshl_b32 s78, s78, 6")
        self(f"s_add_u32 s78, s78, {base}")
        self(f"v_mov_b32 v{vtmp}, 0")
        for k in range(16):
            self(f"v_mov_b32 v{vtmp+1}, s{84 + k}")
            self(f"buffer_store_dword v{vtmp+1}, v{vtmp}, s[{srd}:{srd+3}], s78 offen offset:{4*k}")

    def finalize(self):
        out = self._waits(self.ins)
        out = self._hazards(out)
        return "\n".join(("" if i.kind == "label" else "    ") + i.text for i in out) + "\n"

    def _waits(self, ins):
        out = []
        vm = []
        lg = []

        def do_wait(nvm=None, nlg=None):
            s = "s_waitcnt"
            if nvm is not None:
                nvm = min(nvm, 63)
                s += " vmcnt(%d)" % nvm
                del vm[: max(0, len(vm) - nvm)]
            if nlg is not None:
                nlg = min(nlg, 15)
                s += " lgkmcnt(%d)" % nlg
                del lg[: max(0, len(lg) - nlg)]
            out.append(Ins(s))

        for i in ins:
            if i.kind in ("label", "branch"):
                pend_vm = any(e[0] for e in vm)
                pend_lg = any(e[0] for e in lg)
                if pend_vm or pend_lg:
                    do_wait(0 if pend_vm else None, 0 if pend_lg else None)
                if i.kind == "label" and not i.text.startswith("."):
                    vm.clear()
                    lg.clear()
                out.append(i)
                continue
            if i.kind == "waitvm":
                idx = max((k for k, e in enumerate(vm) if e[1] == i.tag), default=-1)
                if idx >= 0:
                    do_wait(nvm=len(vm) - 1 - idx)
                continue
            if i.kind == "waitlgkm":
                idx = max((k for k, e in enumerate(lg) if e[1] == i.tag), default=-1)
                if idx >= 0:
                    if any(e[2] for e in lg):
                        do_wait(nlg=0)
                    else:
                        do_wait(nlg=len(lg) - 1 - idx)
                continue
            if i.kind == "waitcnt":
                m = re.search(r"vmcnt\((\d+)\)", i.text)
                if m:
                    del vm[: max(0, len(vm) - int(m.group(1)))]
                m = re.search(r"lgkmcnt\((\d+)\)", i.text)
                if m:
                    n = int(m.group(1))
                    if n == 0 or not any(e[2] for e in lg):
                        del lg[: max(0, len(lg) - n)]
                out.append(i)
                continue
            touched = set(i.reads) | set(i.writes)
            nvm = nlg = None
            idx = max((k for k, e in enumerate(vm) if e[0] & touched), default=-1)
            if idx >= 0:
                nvm = len(vm) - 1 - idx
            idx = max((k for k, e in enumerate(lg) if e[0] & touched), default=-1)
            if idx >= 0:
                nlg = 0 if any(e[2] for e in lg) else len(lg) - 1 - idx
            if i.kind in ("vload", "vstore", "dma") and len(vm) >= 63:
                nvm = 62 if nvm is None else min(nvm, 62)
            if nvm is not None or nlg is not None:
                do_wait(nvm, nlg)
            out.append(i)
            if i.kind == "vload":
                vm.append((set(i.writes), i.tag))
            elif i.kind in ("vstore", "dma"):
                vm.append((set(), i.tag))
            elif i.kind == "dsread":
                lg.append((set(i.writes), i.tag, False))
            elif i.kind == "dswrite":
                lg.append((set(), i.tag, False))
            elif i.kind == "smem":
                lg.append((set(i.writes), i.tag, True))
            if len(vm) > 63:
                raise ValueError("more than 63 vector-memory ops outstanding at: " + i.text)
        return out

    def _hazards(self, ins):
        out = []
        pos = 0
        valu_w = {}
        trans_w = {}
        dot_w = {}
        mfma_w = {}
        mfma_c = {}
        store_d = {}
        m0_w = -100
        VAL = ("valu", "trans", "dot", "permlane")
        for i in ins:
            if i.kind == "label":
                out.append(i)
                continue
            need = 0

            def req(p, ws):
                nonlocal need
                need = max(need, ws - (pos - p - 1))

            if i.kind == "mfma":
                for r in i.reads:
                    if r in valu_w:
                        req(valu_w[r], 2)
                    if r in dot_w:
                        req(dot_w[r][0], 3)
                for r in i.srcab:
                    if r in mfma_w:
                        req(mfma_w[r][0], 12)
                for r in i.srcc:
                    if r in mfma_w and mfma_w[r][1] != tuple(i.srcc):
                        req(mfma_w[r][0], 10)
                if not i.srcc:
                    for r in i.writes:
                        if r in mfma_w:
                            req(mfma_w[r][0], 12)
                if ("exec", 0) in valu_w:
                    req(valu_w[("exec", 0)], 4)
            elif i.kind in VAL:
                for r in list(i.reads) + list(i.writes):
                    if r in mfma_w:
                        req(mfma_w[r][0], 12)
                for r in i.writes:
                    if r in mfma_c:
                        req(mfma_c[r], 7)
                    if r in store_d:
                        req(store_d[r], 2)
                for r in i.reads:
                    if r in trans_w and i.kind != "trans":
                        req(trans_w[r], 1)
                    if r[0] in ("s", "vcc") and r in valu_w:
                        req(valu_w[r], 4 if i.mn.startswith(("v_readlane", "v_writelane")) else 2)
                    if (i.kind == "permlane" or i.dpp) and r in valu_w and r[0] == "v":
                        req(valu_w[r], 2)
                    if i.mn.startswith(("v_readfirstlane", "v_readlane")) and r in valu_w and r[0] == "v":
                        req(valu_w[r], 1)
                for r in list(i.reads) + list(i.writes):
                    if r in dot_w:
                        p, mn = dot_w[r]
                        same_acc = (mn == i.mn and r in i.writes)
                        if not same_acc:
                            req(p, 3)
            elif i.kind in ("vload", "vstore", "dma", "dsread", "dswrite"):
                for r in list(i.reads) + list(i.writes):
                    if r in mfma_w:
                        req(mfma_w[r][0], 12)
                    if r in dot_w:
                        req(dot_w[r][0], 3)
                for r in i.reads:
                    if r[0] == "s" and r in valu_w:
                        req(valu_w[r], 5)
                    if r in trans_w:
                        req(trans_w[r], 1)
                for r in i.writes:
                    if r in store_d:
                        req(store_d[r], 1)
                    if r in mfma_c:
                        req(mfma_c[r], 7)
                if i.kind == "dma":
                    req(m0_w, 1)
            elif i.kind in ("salu", "smem", "branch"):
                for r in i.reads:
                    if r in valu_w:
                        req(valu_w[r], 2)
            while need > 0:
                n = min(need, 16)
                out.append(Ins("s_nop %d" % (n - 1)))
                pos += n
                need -= n
            out.append(i)
            if i.kind == "mfma":
                for r in i.writes:
                    mfma_w[r] = (pos, tuple(i.writes))
                for r in i.srcc:
                    mfma_c[r] = pos
            elif i.kind in VAL:
                for r in i.writes:
                    valu_w[r] = pos
                    mfma_w.pop(r, None)
                    if i.kind == "trans":
                        trans_w[r] = pos
                    else:
                        trans_w.pop(r, None)
                    if i.kind == "dot":
                        dot_w[r] = (pos, i.mn)
                    else:
                        dot_w.pop(r, None)
            elif i.kind == "vstore" and i.wide_store:
                for r in i.srcc:
                    store_d[r] = pos
            elif i.kind == "salu":
                for r in i.writes:
                    if r == ("m0", 0):
                        m0_w = pos
                    valu_w.pop(r, None)
            if i.kind == "nop":
                pos += int(i.text.split()[1]) + 1
            else:
                pos += 1
        return out


def interleave(main, fill, start=0, end=None, per=None):
    idx = [k for k, i in enumerate(main) if i.kind == "mfma"]
    if end is None:
        end = len(idx)
    slots = idx[start:end]
    n = len(slots)
    out = []
    fi = 0
    slot_of = {k: j for j, k in enumerate(slots)}
    for k, i in enumerate(main):
        out.append(i)
        if k in slot_of:
            j = slot_of[k]
            if per is None:
                tgt = (len(fill) * (j + 1) + n - 1) // n
            else:
                tgt = min(len(fill), per * (j + 1))
            if j == n - 1:
                tgt = len(fill)
            while fi < tgt:
                out.append(fill[fi])
                fi += 1
    assert fi == len(fill)
    return out


def icost(i):
    if i.kind in ("trans", "permlane"):
        return 8
    if i.kind in ("waitvm", "waitlgkm", "label"):
        return 0 if i.kind == "label" else 4
    return 4


def interleave2(main, fill, start=0, end=None, budget=24):
    idx = [k for k, i in enumerate(main) if i.kind == "mfma"]
    if end is None:
        end = len(idx)
    gaps = []
    for j in range(start, end):
        lo = idx[j]
        hi = idx[j + 1] if j + 1 < len(idx) else len(main)
        used = sum(icost(i) for i in main[lo + 1:hi])
        gaps.append((hi, max(2, budget - used)))
    total_slack = sum(g[1] for g in gaps)
    total_fill = sum(icost(i) for i in fill)
    ins_at = {}
    fi = 0
    cum_s = 0
    cum_f = 0
    for n, (hi, sl) in enumerate(gaps):
        cum_s += sl
        tgt = total_fill * cum_s / total_slack
        L = []
        while fi < len(fill) and (cum_f + icost(fill[fi]) / 2 <= tgt or n == len(gaps) - 1):
            L.append(fill[fi])
            cum_f += icost(fill[fi])
            fi += 1
        ins_at[hi] = L
    out = []
    for k, i in enumerate(main):
        if k in ins_at:
            out += ins_at[k]
        out.append(i)
    if len(main) in ins_at:
        out += ins_at[len(main)]
    assert fi == len(fill)
    return out


def kernel_text(name, body, vgpr, agpr=0, sgpr=96):
    acc = (vgpr + 3) // 4 * 4
    total = acc + agpr if agpr else vgpr
    return f"""
.text
.globl {name}
.p2align 8
.type {name},@function
{name}:
{body}
.section .rodata,"a"
.p2align 6
.amdhsa_kernel {name}
  .amdhsa_next_free_vgpr {total}
  .amdhsa_next_free_sgpr {sgpr}
  .amdhsa_accum_offset {acc}
  .amdhsa_group_segment_fixed_size 0
  .amdhsa_kernarg_size 128
  .amdhsa_user_sgpr_count 2
  .amdhsa_user_sgpr_kernarg_segment_ptr 1
  .amdhsa_system_sgpr_workgroup_id_x 1
  .amdhsa_float_denorm_mode_32 3
.end_amdhsa_kernel
"""
```

```python
import struct, os
from asmlib import *
from layout import *


def f2u(x):
    return "0x%08x" % struct.unpack("<I", struct.pack("<f", x))[0]


LOG2E = 1.4426950408889634
INV2PI = 0.15915494309189535


def srd(P, d, lo, hi, nbytes):
    P(f"s_mov_b32 s{d}, s{lo}")
    P(f"s_and_b32 s{d+1}, s{hi}, 0xffff")
    P(f"s_mov_b32 s{d+2}, {nbytes}")
    P(f"s_mov_b32 s{d+3}, 0x00020000")


def bf16r(P, dst, src):
    P(f"v_cvt_pk_bf16_f32 v{dst}, v{src}, v{src}")
    P(f"v_lshlrev_b32 v{dst}, 16, v{dst}")


def emit_param_loads(P, voff, r, s_lre, s_lim, s_ldt):
    P(f"buffer_load_ushort v{r}, v{voff}, s[{s_lre}:{s_lre+3}], 0 offen")
    P(f"buffer_load_ushort v{r+1}, v{voff}, s[{s_lim}:{s_lim+3}], 0 offen")
    P(f"buffer_load_ushort v{r+2}, v{voff}, s[{s_ldt}:{s_ldt+3}], 0 offen")


def emit_params(P, r):
    P(f"v_lshlrev_b32 v{r}, 16, v{r}")
    P(f"v_lshlrev_b32 v{r+1}, 16, v{r+1}")
    P(f"v_lshlrev_b32 v{r+2}, 16, v{r+2}")
    P(f"v_mul_f32 v{r+2}, {f2u(LOG2E)}, v{r+2}")
    P(f"v_exp_f32 v{r+2}, v{r+2}")
    bf16r(P, r + 2, r + 2)
    P(f"v_mul_f32 v{r+3}, v{r+2}, v{r+1}")
    P(f"v_mul_f32 v{r+2}, v{r+2}, v{r}")
    P(f"v_mul_f32 v{r+3}, {f2u(INV2PI)}, v{r+3}")
    P(f"v_mul_f32 v{r+2}, {f2u(LOG2E)}, v{r+2}")


def emit_pow(P, n, a2, rev, ore, oim, t):
    if n == 1:
        P(f"v_exp_f32 v{t}, v{a2}")
        P(f"v_fract_f32 v{oim}, v{rev}")
    else:
        ns = n if isinstance(n, str) else f2u(float(n))
        P(f"v_mul_f32 v{t}, {ns}, v{a2}")
        P(f"v_mul_f32 v{oim}, {ns}, v{rev}")
        P(f"v_exp_f32 v{t}, v{t}")
        P(f"v_fract_f32 v{oim}, v{oim}")
    P(f"v_cos_f32 v{ore}, v{oim}")
    P(f"v_sin_f32 v{oim}, v{oim}")
    P(f"v_mul_f32 v{ore}, v{t}, v{ore}")
    P(f"v_mul_f32 v{oim}, v{t}, v{oim}")


def prefetch(P, vt):
    KPF = int(os.environ.get("KPF", "320"))
    if KPF == 0:
        return
    srd(P, 68, 64, 65, 576 * 9216)
    srd(P, 72, 66, 67, 576 * 9216)
    P(f"""
    s_lshr_b32 s76, s2, 3
    s_lshl_b32 s76, s76, 4
    v_lshrrev_b32 v{vt}, 4, v0
    v_add_u32 v{vt}, s76, v{vt}
    v_bfe_u32 v{vt+1}, v0, 2, 2
    s_and_b32 s77, s2, 1
    s_lshl_b32 s77, s77, 2
    v_add_u32 v{vt+1}, s77, v{vt+1}
    v_mul_u32_u24 v{vt+1}, 1152, v{vt+1}
    v_and_b32 v{vt+2}, 3, v0
    v_lshl_add_u32 v{vt+1}, v{vt+2}, 8, v{vt+1}
    v_cmp_gt_u32 vcc, {KPF}, v{vt}
    v_mul_u32_u24 v{vt}, 9216, v{vt}
    v_add_u32 v{vt}, v{vt}, v{vt+1}
    v_mov_b32 v{vt+1}, -1
    v_cndmask_b32 v{vt}, v{vt+1}, v{vt}, vcc
    """)
    for m in range(2):
        i = Ins(f"buffer_store_dword v{vt+2+m}, v{vt}, s[{68+4*m}:{71+4*m}], 0 offen")
        i.text = f"buffer_load_dword v{vt+2+m}, v{vt}, s[{68+4*m}:{71+4*m}], 0 offen"
        P.ins.append(i)
    if int(os.environ.get("BPF", "1")):
        P(f"""
        s_lshr_b32 s76, s2, 3
        s_lshl_b32 s76, s76, 4
        v_lshrrev_b32 v{vt}, 4, v0
        v_add_u32 v{vt}, s76, v{vt}
        v_cmp_gt_u32 vcc, 144, v{vt}
        s_bfe_u32 s76, s2, 0x20001
        s_mul_i32 s76, s76, 144
        v_add_u32 v{vt}, s76, v{vt}
        v_bfe_u32 v{vt+1}, v0, 2, 2
        v_add_u32 v{vt+1}, s77, v{vt+1}
        v_mul_u32_u24 v{vt+1}, 1152, v{vt+1}
        v_mul_u32_u24 v{vt}, 9216, v{vt}
        v_add_u32 v{vt}, v{vt}, v{vt+1}
        v_and_b32 v{vt+1}, 3, v0
        v_lshl_add_u32 v{vt}, v{vt+1}, 8, v{vt}
        v_add_u32 v{vt}, 128, v{vt}
        v_mov_b32 v{vt+1}, -1
        v_cndmask_b32 v{vt}, v{vt+1}, v{vt}, vcc
        """)
        for m in range(2):
            i = Ins(f"buffer_store_dword v{vt+2+m}, v{vt}, s[{68+4*m}:{71+4*m}], 0 offen")
            i.text = f"buffer_load_dword v{vt+2+m}, v{vt}, s[{68+4*m}:{71+4*m}], 0 offen"
            P.ins.append(i)
    EPF = int(os.environ.get("EPF", "576"))
    if EPF == 0:
        return
    P(f"""
    s_lshr_b32 s76, s2, 3
    s_mul_i32 s76, s76, 18
    v_lshrrev_b32 v{vt}, 2, v0
    v_cmp_gt_u32 vcc, 18, v{vt}
    v_add_u32 v{vt}, s76, v{vt}
    v_and_b32 v{vt+1}, 3, v0
    v_add_u32 v{vt+1}, s77, v{vt+1}
    v_mul_u32_u24 v{vt+1}, 1152, v{vt+1}
    v_mul_u32_u24 v{vt}, 9216, v{vt}
    v_add_u32 v{vt}, v{vt}, v{vt+1}
    v_add_u32 v{vt}, 1024, v{vt}
    v_mov_b32 v{vt+1}, -1
    v_cndmask_b32 v{vt}, v{vt+1}, v{vt}, vcc
    """)
    for m in range(2):
        i = Ins(f"buffer_store_dword v{vt+2+m}, v{vt}, s[{68+4*m}:{71+4*m}], 0 offen")
        i.text = f"buffer_load_dword v{vt+2+m}, v{vt}, s[{68+4*m}:{71+4*m}], 0 offen"
        P.ins.append(i)


def gen_k1():
    P = Prog()
    P("s_cmp_ge_u32 s2, 256")
    P("s_cbranch_scc1 K1_END")
    P.stamp(0, real=True)
    P.stamp(1)
    P("v_lshrrev_b32 v1, 6, v0")
    P("v_readfirstlane_b32 s79, v1")
    P("s_load_dwordx8 s[36:43], s[0:1], 0")
    P("s_load_dwordx2 s[44:45], s[0:1], 32")
    P("s_load_dwordx2 s[46:47], s[0:1], 56")
    P("s_load_dwordx2 s[48:49], s[0:1], 120")
    P("s_load_dwordx4 s[64:67], s[0:1], 80")
    P("s_waitcnt lgkmcnt(0)")
    srd(P, 8, 36, 37, 2048 * 1152)
    srd(P, 20, 48, 49, WS_BYTES)
    P("s_cmp_ge_u32 s2, 192")
    P("s_cbranch_scc1 K1_LN")

    srd(P, 24, 38, 39, 1152)
    srd(P, 28, 40, 41, 1152)
    srd(P, 32, 46, 47, 1152)
    P("""
    s_and_b32 s50, s2, 7
    s_lshl_b32 s50, s50, 1
    s_lshr_b32 s51, s2, 3
    s_and_b32 s51, s51, 1
    s_add_u32 s50, s50, s51
    s_lshr_b32 s51, s2, 4
    s_mul_i32 s52, s51, 48
    v_lshrrev_b32 v1, 6, v0
    v_and_b32 v2, 63, v0
    """)
    P("v_readfirstlane_b32 s53, v1")
    P("s_cmp_lt_u32 s53, 2")
    P("s_cselect_b32 s12, s42, s44")
    P("s_cselect_b32 s13, s43, s45")
    P("s_and_b32 s13, s13, 0xffff")
    P(f"s_mov_b32 s14, {576*1152}")
    P("s_mov_b32 s15, 0x00020000")
    P("""
    v_lshrrev_b32 v3, 3, v2
    v_and_b32 v4, 7, v2
    v_lshrrev_b32 v5, 1, v3
    v_xor_b32 v6, v4, v5
    v_lshlrev_b32 v6, 4, v6
    s_lshl_b32 s54, s50, 7
    s_lshl_b32 s55, s53, 5
    s_add_u32 s54, s54, s55
    v_add_u32 v7, s54, v3
    v_mul_u32_u24 v7, 1152, v7
    v_add_u32 v8, v7, v6
    v_xor_b32 v9, 64, v8
    s_and_b32 s55, s53, 1
    s_lshl_b32 s56, s55, 3
    s_add_u32 s56, s56, s52
    v_add_u32 v7, s56, v3
    v_mul_u32_u24 v7, 1152, v7
    v_add_u32 v10, v7, v6
    s_lshl_b32 s56, s55, 6
    v_xor_b32 v10, s56, v10
    s_lshl_b32 s57, s53, 12
    s_lshl_b32 s58, s53, 10
    """)
    SLOT = 28672
    NSLOT = 5

    def issue_stage(st):
        slot = (st % NSLOT) * SLOT
        for j in range(4):
            P(f"s_add_u32 m0, s57, {slot + j*1024}")
            P(f"s_movk_i32 s59, {0}") if False else None
            P(f"s_mov_b32 s59, {st*128 + j*9216}")
            P(f"buffer_load_dwordx4 v{8 + (j & 1)}, s[8:11], s59 offen lds", tag=("st", st))
        for q in range(3):
            P(f"s_add_u32 m0, s58, {slot + 16384 + q*4096}")
            P(f"s_mov_b32 s59, {st*128 + q*18432}")
            P(f"buffer_load_dwordx4 v10, s[12:15], s59 offen lds", tag=("st", st))

    PR = 16
    P("""
    v_and_b32 v11, 15, v2
    v_add_u32 v11, s52, v11
    v_lshlrev_b32 v11, 1, v11
    v_add_u32 v12, 32, v11
    v_add_u32 v13, 64, v11
    """)
    for q in range(3):
        emit_param_loads(P, 11 + q, PR + 8 * q, 24, 28, 32)
    for st in range(NSLOT):
        issue_stage(st)
    prefetch(P, 186)
    AA = 40
    AB = 52
    P(f"""
    v_and_b32 v3, 31, v2
    v_lshrrev_b32 v4, 5, v2
    v_bfe_u32 v5, v3, 2, 1
    v_lshlrev_b32 v5, 4, v5
    v_lshrrev_b32 v6, 3, v3
    v_lshl_add_u32 v5, v6, 2, v5
    v_and_b32 v6, 3, v3
    v_add_u32 v5, v5, v6
    v_bfe_u32 v6, v5, 1, 3
    v_xor_b32 v6, v6, v4
    v_lshlrev_b32 v6, 4, v6
    v_lshl_add_u32 v6, v5, 7, v6
    v_add_u32 v{AA}, s57, v6
    v_bfe_u32 v6, v3, 1, 3
    v_xor_b32 v6, v6, v4
    v_lshlrev_b32 v6, 4, v6
    v_lshl_add_u32 v6, v3, 7, v6
    v_add_u32 v{AB}, 16384, v6
    """)
    for base in (AA, AB):
        for s in range(1, 4):
            P(f"v_xor_b32 v{base+s}, {32*s}, v{base}")
        for reg in range(1, 3):
            for s in range(4):
                P(f"v_add_u32 v{base+4*reg+s}, {reg*2*SLOT}, v{base+s}")
    ACC = 64
    FR = 112
    SUM, SQ = 176, 177
    SB = 178
    ONES = 181
    P(f"v_mov_b32 v{ONES}, 0x3f803f80")
    for r in (SUM, SQ, SB, SB + 1, SB + 2):
        P(f"v_mov_b32 v{r}, 0")
    for q in range(3):
        emit_params(P, PR + 8 * q)
    for q in range(3):
        r = PR + 8 * q
        emit_pow(P, 1, r + 2, r + 3, r + 4, r + 5, 6)
        P(f"""
        v_add_f32 v6, -1.0, v{r+4}
        v_mul_f32 v7, v{r}, v{r}
        v_fmac_f32 v7, v{r+1}, v{r+1}
        v_rcp_f32 v7, v7
        v_mul_f32 v{r+6}, v6, v{r}
        v_add_f32 v7, v7, v7
        v_fmac_f32 v{r+6}, v{r+5}, v{r+1}
        v_mul_f32 v{r+7}, v{r+5}, v{r}
        v_fma_f32 v{r+7}, -v6, v{r+1}, v{r+7}
        v_mul_f32 v{r+6}, v{r+6}, v7
        v_mul_f32 v{r+7}, v{r+7}, v7
        """)
    for st in range(9):
        P.waitvm(("st", st))
        P("s_barrier")
        if st in (0, 2, 4):
            P.stamp(2 + st // 2)
        if st >= 1 and st + NSLOT - 1 <= 8:
            issue_stage(st + NSLOT - 1)
        sl = st % NSLOT
        reg, off = sl // 2, (sl % 2) * SLOT
        for s in range(4):
            f = FR + 16 * s
            P(f"ds_read_b128 v[{f}:{f+3}], v{AA+4*reg+s} offset:{off}")
            for q in range(3):
                P(f"ds_read_b128 v[{f+4+4*q}:{f+7+4*q}], v{AB+4*reg+s} offset:{off + 4096*q}")
        for s in range(4):
            f = FR + 16 * s
            for q in range(3):
                a = ACC + 16 * q
                c = "0" if (st == 0 and s == 0) else f"v[{a}:{a+15}]"
                P(f"v_mfma_f32_32x32x16_bf16 v[{a}:{a+15}], v[{f}:{f+3}], v[{f+4+4*q}:{f+7+4*q}], {c}")
                if os.environ.get("NODOT"):
                    continue
                for d in range(4):
                    P(f"v_dot2c_f32_bf16 v{SB+q}, v{f+4+4*q+d}, v{ONES}")
                if q == 0:
                    for d in range(4):
                        P(f"v_dot2c_f32_bf16 v{SUM}, v{f+d}, v{ONES}")
                if q == 1:
                    for d in range(4):
                        P(f"v_dot2c_f32_bf16 v{SQ}, v{f+d}, v{f+d}")
    P.stamp(5)
    T = 112
    XTRA = NSLOT * SLOT
    for k, r in enumerate((SUM, SQ, SB, SB + 1, SB + 2)):
        P(f"v_mov_b32 v{T+k}, v{r}")
    for k, r in enumerate((SUM, SQ, SB, SB + 1, SB + 2)):
        P(f"v_permlane32_swap_b32 v{r}, v{T+k}")
    for k, r in enumerate((SUM, SQ, SB, SB + 1, SB + 2)):
        P(f"v_add_f32 v{r}, v{r}, v{T+k}")
    P(f"""
    v_mul_f32 v{SUM}, {f2u(1.0/576)}, v{SUM}
    v_mul_f32 v{SQ}, {f2u(1.0/576)}, v{SQ}
    v_fma_f32 v{SQ}, -v{SUM}, v{SUM}, v{SQ}
    v_max_f32 v{SQ}, 0, v{SQ}
    """)
    bf16r(P, SUM, SUM)
    bf16r(P, SQ, SQ)
    P(f"v_add_f32 v{SQ}, {f2u(1e-5)}, v{SQ}")
    bf16r(P, SQ, SQ)
    P(f"v_sqrt_f32 v{SQ}, v{SQ}")
    bf16r(P, SQ, SQ)
    P(f"v_rcp_f32 v{T}, v{SQ}")
    P(f"v_mul_f32 v{T+1}, v{T}, v{SUM}")
    P(f"""
    s_lshl_b32 s59, s53, 8
    s_add_u32 s59, s59, {XTRA}
    v_lshlrev_b32 v6, 3, v5
    v_add_u32 v6, s59, v6
    ds_write_b64 v6, v[{T}:{T+1}]
    v_lshrrev_b32 v7, 4, v2
    v_lshlrev_b32 v12, 6, v7
    v_add_u32 v12, s59, v12
    s_waitcnt lgkmcnt(0)
    """)
    ST = 120
    for k in range(4):
        P(f"ds_read_b128 v[{ST+4*k}:{ST+4*k+3}], v12 offset:{16*k}")
    SBI = 182
    for q in range(3):
        P(f"v_mov_b32 v{SBI+q}, v{SB+q}")
    for q in range(3):
        P(f"v_permlane16_swap_b32 v{SB+q}, v{SBI+q}")
    P(f"""
    s_lshl_b32 s59, s50, 2
    s_add_u32 s59, s59, s53
    s_mul_i32 s59, s59, 36
    s_mul_i32 s60, s51, 3
    s_add_u32 s59, s59, s60
    s_lshl_b32 s59, s59, 12
    s_add_u32 s59, s59, {WS_BU}
    v_lshlrev_b32 v13, 4, v2
    """)
    AGG = XTRA + 1024
    L8A = AGG + 6144
    P(f"""
    v_and_b32 v14, 15, v2
    v_lshlrev_b32 v15, 3, v14
    v_add_u32 v15, {L8A}, v15
    v_lshlrev_b32 v14, 7, v14
    v_lshl_add_u32 v14, v7, 3, v14
    s_lshl_b32 s60, s53, 5
    s_add_u32 s60, s60, {AGG}
    v_add_u32 v14, s60, v14
    """)
    for q in range(3):
        a = ACC + 16 * q
        r = PR + 8 * q
        for k in range(8):
            P(f"v_permlane16_swap_b32 v{a+k}, v{a+8+k}")
        P(f"""
        v_mul_f32 v136, v{r+6}, v{SB+q}
        v_fma_f32 v136, -v{r+7}, v{SBI+q}, v136
        v_mul_f32 v137, v{r+6}, v{SBI+q}
        v_fmac_f32 v137, v{r+7}, v{SB+q}
        """)
        for k in range(8):
            re_, im_ = a + k, a + 8 + k
            rt, rm = ST + 2 * k, ST + 2 * k + 1
            P(f"""
            v_mul_f32 v138, v{r+6}, v{re_}
            v_mul_f32 v139, v{r+6}, v{im_}
            v_fma_f32 v138, -v{r+7}, v{im_}, v138
            v_fmac_f32 v139, v{r+7}, v{re_}
            v_mul_f32 v{re_}, v{rt}, v138
            v_mul_f32 v{im_}, v{rt}, v139
            v_fma_f32 v{re_}, -v{rm}, v136, v{re_}
            v_fma_f32 v{im_}, -v{rm}, v137, v{im_}
            """)
            if k == 0:
                P(f"v_mov_b32 v140, v{re_}")
                P(f"v_mov_b32 v141, v{im_}")
            else:
                P(f"""
                v_fma_f32 v142, v{r+4}, v140, v{re_}
                v_fma_f32 v143, v{r+4}, v141, v{im_}
                v_fma_f32 v142, -v{r+5}, v141, v142
                v_fma_f32 v141, v{r+5}, v140, v143
                v_mov_b32 v140, v142
                """)
        P(f"ds_write_b64 v14, v[140:141] offset:{q*2048}")
        for k in range(4):
            P(f"s_add_u32 s60, s59, {q*4096 + k*1024}")
            P(f"buffer_store_dwordx4 v[{a+4*k}:{a+4*k+3}], v13, s[20:23], s60 offen")
        emit_pow(P, 8, r + 2, r + 3, 144, 145, 146)
        P(f"ds_write_b64 v15, v[144:145] offset:{q*128}")
    P("s_waitcnt lgkmcnt(0)")
    P("s_barrier")
    P.stamp(6)
    P("s_waitcnt vmcnt(0)") if os.environ.get("STAMPS") else None
    P.stamp(7)
    P.stamp(8, real=True)
    P.dump_stamps(9, 20, WS_DBG, 190)
    P("s_mov_b64 exec, -1") if os.environ.get("STAMPS") else None
    P(f"""
    v_cmp_gt_u32 vcc, 48, v0
    s_and_saveexec_b64 s[62:63], vcc
    s_cbranch_execz K1_END
    v_lshlrev_b32 v3, 7, v0
    v_add_u32 v3, {AGG}, v3
    v_lshlrev_b32 v4, 3, v0
    v_add_u32 v5, {L8A}, v4
    ds_read_b64 v[6:7], v5
    """)
    for k in range(8):
        P(f"ds_read_b128 v[{16+4*k}:{19+4*k}], v3 offset:{16*k}")
    P(f"""
    s_mul_i32 s59, s50, {16*576*8}
    s_lshl_b32 s60, s52, 3
    s_add_u32 s59, s59, s60
    s_add_u32 s59, s59, {WS_E8}
    v_mov_b32 v8, 0
    v_mov_b32 v9, 0
    """)
    cur = 8
    for j in range(16):
        P(f"s_add_u32 s61, s59, {j*576*8}")
        P(f"buffer_store_dwordx2 v[{cur}:{cur+1}], v4, s[20:23], s61 offen")
        nxt = 48 + 2 * j
        P(f"""
        v_fma_f32 v{nxt}, v6, v{cur}, v{16+2*j}
        v_fma_f32 v{nxt+1}, v6, v{cur+1}, v{17+2*j}
        v_fma_f32 v{nxt}, -v7, v{cur+1}, v{nxt}
        v_fma_f32 v{nxt+1}, v7, v{cur}, v{nxt+1}
        """)
        cur = nxt
    P(f"""
    s_mul_i32 s59, s50, {576*8}
    s_add_u32 s59, s59, s60
    s_add_u32 s59, s59, {WS_A128}
    buffer_store_dwordx2 v[{cur}:{cur+1}], v4, s[20:23], s59 offen
    s_branch K1_END
    """)

    P("K1_LN:")
    P(f"""
    s_sub_u32 s50, s2, 192
    s_and_b32 s51, s50, 6
    s_lshl_b32 s51, s51, 3
    s_lshr_b32 s52, s50, 3
    s_lshl_b32 s52, s52, 1
    s_add_u32 s51, s51, s52
    v_lshrrev_b32 v1, 3, v0
    v_and_b32 v2, 7, v0
    s_lshl_b32 s52, s51, 5
    v_add_u32 v3, s52, v1
    v_mul_u32_u24 v3, 1152, v3
    v_lshl_add_u32 v3, v2, 4, v3
    s_mov_b32 s53, {32*1152}
    """)
    RAW = 8
    F = 80
    for t in range(2):
        for j in range(9):
            so = "0" if t == 0 else "s53"
            P(f"buffer_load_dwordx4 v[{RAW+36*t+4*j}:{RAW+36*t+4*j+3}], v3, s[8:11], {so} offen offset:{128*j}")
    prefetch(P, 160)
    P(f"""
    s_mul_i32 s52, s50, {18*CNT_STRIDE}
    s_add_u32 s52, s52, {WS_CNT}
    v_mul_u32_u24 v4, {CNT_STRIDE}, v0
    v_mov_b32 v5, -1
    v_cmp_gt_u32 vcc, 18, v0
    v_cndmask_b32 v4, v5, v4, vcc
    v_mov_b32 v5, 0
    buffer_store_dword v5, v4, s[20:23], s52 offen
    """)
    P(f"""
    v_lshrrev_b32 v4, 1, v2
    v_lshlrev_b32 v4, 10, v4
    v_and_b32 v5, 1, v2
    v_lshl_add_u32 v4, v5, 9, v4
    v_lshl_add_u32 v4, v1, 4, v4
    s_mul_i32 s52, s51, 36864
    s_and_b32 s53, s50, 1
    s_mul_i32 s53, s53, {XNF_BYTES}
    s_add_u32 s52, s52, s53
    """)

    def reduce8():
        P("""
        v_add_f32 v152, v152, v153
        v_add_f32_dpp v152, v152, v152 quad_perm:[1,0,3,2] row_mask:0xf bank_mask:0xf
        v_add_f32_dpp v152, v152, v152 quad_perm:[2,3,0,1] row_mask:0xf bank_mask:0xf
        v_add_f32_dpp v152, v152, v152 row_half_mirror row_mask:0xf bank_mask:0xf
        """)
    for t in range(2):
        R = RAW + 36 * t
        for d in range(36):
            P(f"v_lshlrev_b32 v{F+2*d}, 16, v{R+d}")
            P(f"v_and_b32 v{F+2*d+1}, 0xffff0000, v{R+d}")
            if d == 1:
                P(f"v_pk_add_f32 v[152:153], v[{F}:{F+1}], v[{F+2}:{F+3}]")
            elif d > 1:
                P(f"v_pk_add_f32 v[152:153], v[152:153], v[{F+2*d}:{F+2*d+1}]")
        reduce8()
        P(f"v_mul_f32 v154, {f2u(-1.0/576)}, v152")
        for d in range(36):
            P(f"v_pk_add_f32 v[156:157], v[{F+2*d}:{F+2*d+1}], v[154:155] op_sel_hi:[1,0]")
            if d == 0:
                P(f"v_pk_mul_f32 v[152:153], v[156:157], v[156:157]")
            else:
                P(f"v_pk_fma_f32 v[152:153], v[156:157], v[156:157], v[152:153]")
        reduce8()
        P(f"v_mul_f32 v158, {f2u(1.0/576)}, v152")
        bf16r(P, 154, 154)
        bf16r(P, 158, 158)
        P(f"v_add_f32 v158, {f2u(1e-5)}, v158")
        bf16r(P, 158, 158)
        P("v_sqrt_f32 v158, v158")
        bf16r(P, 158, 158)
        P("v_rcp_f32 v158, v158")
        for j in range(9):
            for d in range(4 * j, 4 * j + 4):
                a_, b_ = F + 2 * d, F + 2 * d + 1
                P(f"""
                v_pk_add_f32 v[{a_}:{b_}], v[{a_}:{b_}], v[154:155] op_sel_hi:[1,0]
                v_cvt_pk_bf16_f32 v{b_}, v{a_}, v{b_}
                v_lshlrev_b32 v{a_}, 16, v{b_}
                v_and_b32 v{b_}, 0xffff0000, v{b_}
                v_pk_mul_f32 v[{a_}:{b_}], v[{a_}:{b_}], v[158:159] op_sel_hi:[1,0]
                v_cvt_pk_bf16_f32 v{R+d}, v{a_}, v{b_}
                """)
            P(f"s_add_u32 s53, s52, {WS_XNF + 36864*t + 4096*j}")
            P(f"buffer_store_dwordx4 v[{R+4*j}:{R+4*j+3}], v4, s[20:23], s53 offen")
    P.stamp(2)
    P("s_waitcnt vmcnt(0)") if os.environ.get("STAMPS") else None
    P.stamp(3)
    P.stamp(8, real=True)
    P.dump_stamps(9, 20, WS_DBG, 190)
    P("K1_END:")
    P("s_endpgm")
    return kernel_text("k1_kernel", P.finalize(), vgpr=192, sgpr=102), NSLOT * SLOT + 1024 + 6144 + 512
```

```python
import os, math
from asmlib import *
from layout import *
from k1 import srd, f2u, bf16r, emit_param_loads, emit_params, emit_pow, LOG2E

SLOT = 16384
E_BASE = 9 * SLOT
SCR = 9 * SLOT
LDS_BYTES = 10 * SLOT

V_LANE16 = 1
V_D4 = 2
V_DE = 4
V_R4 = 5
V_RE = 9
V_RE2 = 15
V_C0 = 10
V_T = 11
XV = 16
ACC = 48
WF = 208
NWF = 5
DIST = 4


def xreg(j, s):
    n = s * 2 + j
    if n < 64:
        return f"a[{4*n}:{4*n+3}]"
    n -= 64
    return f"v[{XV+4*n}:{XV+4*n+3}]"


def epilogue(slot, sreg, foff, halves=(0, 1), part="all"):
    E = Prog()
    if part == "store":
        for j in halves:
            a = ACC + 32 * slot + 16 * j
            E(f"s_add_u32 s71, s{sreg+j}, {foff}")
            E(f"buffer_store_dwordx4 v[{a}:{a+3}], v{V_LANE16}, s[20:23], s71 offen{os.environ.get('HST', '')}")
        return E.ins
    for j in halves:
        a = ACC + 32 * slot + 16 * j
        for e in range(8):
            g, u, t = a + e, a + 8 + e, V_T + (e & 1)
            E(f"""
            v_mul_f32 v{t}, v{g}, v{g}
            v_fma_f32 v{t}, v{t}, s70, v{V_C0}
            v_mul_f32 v{t}, v{g}, v{t}
            v_exp_f32 v{t}, v{t}
            v_mul_f32 v{u}, v{g}, v{u}
            v_add_f32 v{t}, 1.0, v{t}
            v_rcp_f32 v{g}, v{t}
            """)
            if e >= 1:
                E(f"v_mul_f32 v{u-1}, v{u-1}, v{g-1}")
            if e >= 2 and e % 2 == 0:
                E(f"v_cvt_pk_bf16_f32 v{a+(e-2)//2}, v{u-2}, v{u-1}")
        if part == "all":
            E(f"s_add_u32 s71, s{sreg+j}, {foff}")
        E(f"v_mul_f32 v{a+15}, v{a+15}, v{a+7}")
        E(f"v_cvt_pk_bf16_f32 v{a+3}, v{a+14}, v{a+15}")
        if part == "all":
            E(f"buffer_store_dwordx4 v[{a}:{a+3}], v{V_LANE16}, s[20:23], s71 offen{os.environ.get('HST', '')}")
    return E.ins


def cfma(E, ore, oim, a, bre, bim, cre, cim):
    E(f"""
    v_fma_f32 v{ore}, v{a}, v{bre}, v{cre}
    v_fma_f32 v{oim}, v{a}, v{bim}, v{cim}
    v_fma_f32 v{ore}, -v{a+1}, v{bim}, v{ore}
    v_fmac_f32 v{oim}, v{a+1}, v{bre}
    """)


def fixup():
    BU = ACC + 128
    T0, T1, A2, REV, T2, T3 = 228, 229, 230, 231, 232, 233
    L1, CAR, AG, E8, VE, VG, VW, VR = 234, 236, 238, 246, 254, 255, 13, 14
    FRG = AG
    C = Prog()
    C(f"""
    s_lshr_b32 s74, s2, 3
    s_lshl_b32 s75, s53, 5
    s_add_u32 s75, s75, s74
    s_cmp_lt_u32 s75, 72
    s_cselect_b32 s74, 0, 0x40000000
    s_and_b32 s76, s2, 7
    s_lshl_b32 s76, s76, 1
    s_cmp_ge_u32 s75, 36
    s_cselect_b32 s77, 1, 0
    s_add_u32 s76, s76, s77
    s_mul_i32 s77, s77, 36
    s_sub_u32 s75, s75, s77
    s_min_u32 s75, s75, 35
    """)
    npre = len(C.ins)
    C(f"""
    v_and_b32 v{VE}, 15, v0
    s_lshl_b32 s77, s75, 4
    v_add_u32 v{VE}, s77, v{VE}
    v_lshlrev_b32 v{T2}, 1, v{VE}
    v_lshlrev_b32 v{VE}, 3, v{VE}
    v_lshrrev_b32 v{VG}, 4, v0
    """)
    emit_param_loads(C, T2, T0, 24, 28, 32)
    C(f"""
    v_lshlrev_b32 v{T3}, 2, v{VG}
    s_sub_u32 s77, s76, 1
    v_sub_u32 v{T3}, s77, v{T3}
    v_mov_b32 v{L1}, 0x7fffffff
    s_add_u32 s78, s74, {WS_A128}
    """)
    for i in range(4):
        C(f"""
        v_subrev_u32 v{T2}, {i}, v{T3}
        v_cmp_gt_i32 vcc, 0, v{T2}
        v_mul_u32_u24 v{T2}, {576*8}, v{T2}
        v_add_u32 v{T2}, v{T2}, v{VE}
        v_cndmask_b32 v{T2}, v{T2}, v{L1}, vcc
        buffer_load_dwordx2 v[{AG+2*i}:{AG+2*i+1}], v{T2}, s[20:23], s78 offen
        """)
    C(f"""
    v_mul_u32_u24 v{T2}, {576*8}, v{VG}
    v_add_u32 v{VE}, v{T2}, v{VE}
    s_mul_i32 s78, s76, {16*576*8}
    s_add_u32 s78, s78, s74
    s_add_u32 s78, s78, {WS_E8}
    """)
    for u in range(4):
        C(f"buffer_load_dwordx2 v[{E8+2*u}:{E8+2*u+1}], v{VE}, s[20:23], s78 offen")
        if u < 3:
            C(f"s_add_u32 s78, s78, {4*576*8}")
    C(f"""
    s_mul_i32 s44, s76, {4*36}
    s_add_u32 s44, s44, s75
    s_lshl_b32 s44, s44, 12
    s_add_u32 s44, s44, s74
    s_add_u32 s44, s44, {WS_BU}
    s_mul_i32 s45, s76, {4*360}
    s_add_u32 s45, s45, s75
    s_lshl_b32 s45, s45, 10
    s_add_u32 s45, s45, s74
    s_add_u32 s45, s45, {WS_HF + 288*1024}
    """)

    def bu_load(u):
        b = BU + 16 * (u & 1)
        C(f"s_add_u32 s78, s44, {u*36*4096}")
        for q in range(4):
            C(f"buffer_load_dwordx4 v[{b+4*q}:{b+4*q+3}], v{V_LANE16}, s[20:23], s78 offen offset:{1024*q}")
    nld = len(C.ins)
    C(f"""
    s_lshl_b32 s77, s53, 11
    s_add_u32 s77, s77, {SCR}
    v_and_b32 v{VW}, 15, v0
    v_lshlrev_b32 v{VW}, 6, v{VW}
    v_lshl_add_u32 v{VW}, v{VG}, 4, v{VW}
    v_add_u32 v{VW}, s77, v{VW}
    v_lshrrev_b32 v{VR}, 5, v0
    v_lshlrev_b32 v{VR}, 3, v{VR}
    v_bfe_u32 v{T2}, v0, 2, 2
    v_add_u32 v{VR}, v{VR}, v{T2}
    v_lshlrev_b32 v{VR}, 6, v{VR}
    v_bfe_u32 v{T2}, v0, 4, 1
    v_lshl_add_u32 v{VR}, v{T2}, 5, v{VR}
    v_and_b32 v{T2}, 3, v0
    v_lshl_add_u32 v{VR}, v{T2}, 3, v{VR}
    v_add_u32 v{VR}, s77, v{VR}
    v_cvt_f32_u32 v{VG}, v{VG}
    """)
    emit_params(C, T0)
    emit_pow(C, 128, A2, REV, L1, L1 + 1, T0)
    C(f"v_mul_f32 v{T1}, {f2u(512.0)}, v{VG}")
    emit_pow(C, f"v{T1}", A2, REV, T2, T3, T0)
    cfma(C, AG + 4, AG + 5, L1, AG + 6, AG + 7, AG + 4, AG + 5)
    cfma(C, AG + 2, AG + 3, L1, AG + 4, AG + 5, AG + 2, AG + 3)
    cfma(C, AG + 0, AG + 1, L1, AG + 2, AG + 3, AG + 0, AG + 1)
    C(f"""
    v_mul_f32 v{CAR}, v{T2}, v{AG}
    v_mul_f32 v{CAR+1}, v{T2}, v{AG+1}
    v_fma_f32 v{CAR}, -v{T3}, v{AG+1}, v{CAR}
    v_fmac_f32 v{CAR+1}, v{T3}, v{AG}
    """)
    emit_pow(C, 1, A2, REV, L1, L1 + 1, T0)
    for pl in ("v_permlane16_swap_b32", "v_permlane32_swap_b32"):
        C(f"""
        v_mov_b32 v{T0}, v{CAR}
        v_mov_b32 v{T1}, v{CAR+1}
        {pl} v{CAR}, v{T0}
        {pl} v{CAR+1}, v{T1}
        v_add_f32 v{CAR}, v{CAR}, v{T0}
        v_add_f32 v{CAR+1}, v{CAR+1}, v{T1}
        """)
    for u in range(4):
        C(f"v_mov_b32 v{T1}, {f2u(32.0*u)}")
        C(f"v_fmac_f32 v{T1}, {f2u(8.0)}, v{VG}")
        emit_pow(C, f"v{T1}", A2, REV, T2, T3, T0)
        e = E8 + 2 * u
        cfma(C, e, e + 1, T2, CAR, CAR + 1, e, e + 1)
    ncar = len(C.ins)
    bu_load(0)
    bu_load(1)
    nbu = len(C.ins)
    for u in range(4):
        b = BU + 16 * (u & 1)
        e = E8 + 2 * u
        pre, pim = e, e + 1
        for k in range(8):
            cfma(C, b + k, b + 8 + k, L1, pre, pim, b + k, b + 8 + k)
            pre, pim = b + k, b + 8 + k
        for k in range(4):
            C(f"v_cvt_pk_bf16_f32 v{b+k}, v{b+2*k}, v{b+2*k+1}")
        for k in range(4):
            C(f"v_cvt_pk_bf16_f32 v{b+8+k}, -v{b+8+2*k}, -v{b+8+2*k+1}")
        C(f"""
        ds_write_b128 v{VW}, v[{b}:{b+3}]
        ds_write_b128 v{VW}, v[{b+8}:{b+11}] offset:1024
        ds_read_b64_tr_b16 v[{FRG}:{FRG+1}], v{VR}
        ds_read_b64_tr_b16 v[{FRG+2}:{FRG+3}], v{VR} offset:256
        ds_read_b64_tr_b16 v[{FRG+4}:{FRG+5}], v{VR} offset:1024
        ds_read_b64_tr_b16 v[{FRG+6}:{FRG+7}], v{VR} offset:1280
        s_add_u32 s77, s45, {u*360*1024}
        s_add_u32 s73, s45, {u*360*1024 + 36*1024}
        """)
        if u + 2 < 4:
            bu_load(u + 2)
        C(f"""
        buffer_store_dwordx4 v[{FRG}:{FRG+3}], v{V_LANE16}, s[20:23], s77 offen
        buffer_store_dwordx4 v[{FRG+4}:{FRG+7}], v{V_LANE16}, s[20:23], s73 offen
        """)
    return C.ins[:nld], C.ins[nld:ncar], C.ins[ncar:nbu], C.ins[nbu:]


def gen_k2():
    P = Prog()
    P("s_cmp_ge_u32 s2, 256")
    P("s_cbranch_scc1 K2_END")
    P.stamp(0, real=True)
    P.stamp(1)
    P("s_load_dwordx4 s[36:39], s[0:1], 80")
    P("s_load_dwordx2 s[48:49], s[0:1], 120")
    P("s_load_dwordx4 s[40:43], s[0:1], 8")
    P("s_load_dwordx2 s[46:47], s[0:1], 56")
    P("""
    v_lshrrev_b32 v2, 6, v0
    v_and_b32 v0, 63, v0
    v_readfirstlane_b32 s53, v2
    s_and_b32 s52, s2, 1
    s_lshr_b32 s50, s2, 4
    s_lshl_b32 s51, s52, 4
    s_add_u32 s50, s50, s51
    s_and_b32 s51, s2, 6
    s_bfe_u32 s54, s2, 0x10003
    s_add_u32 s51, s51, s54
    s_mov_b32 s79, s53
    """)
    P(f"v_lshlrev_b32 v{V_LANE16}, 4, v0")
    P(f"""
    s_lshl_b32 s54, s51, 3
    s_lshl_b32 s55, s53, 1
    s_add_u32 s54, s54, s55
    s_mul_i32 s64, s54, 36864
    s_mul_i32 s55, s52, {XNF_BYTES}
    s_add_u32 s64, s64, s55
    s_add_u32 s65, s64, 36864
    s_lshr_b32 s57, s50, 2
    s_and_b32 s58, s50, 3
    s_mul_i32 s66, s54, {360*1024}
    s_mul_i32 s55, s57, {36*1024}
    s_add_u32 s66, s66, s55
    s_add_u32 s66, s66, {WS_HF}
    s_lshl_b32 s55, s58, 10
    s_add_u32 s68, s66, s55
    s_add_u32 s68, s68, {32*1024}
    s_add_u32 s69, s68, {360*1024}
    s_lshl_b32 s55, s58, 13
    s_add_u32 s66, s66, s55
    s_add_u32 s67, s66, {360*1024}
    s_mul_i32 s56, s57, 1152
    s_lshl_b32 s55, s58, 5
    s_add_u32 s72, s56, s55
    s_add_u32 s72, s72, 1024
    s_lshl_b32 s55, s58, 8
    s_add_u32 s56, s56, s55
    s_mov_b32 s70, {f2u(-2.0*math.sqrt(2.0/math.pi)*LOG2E*0.044715)}
    v_mov_b32 v{V_C0}, {f2u(-2.0*math.sqrt(2.0/math.pi)*LOG2E)}
    """)
    P(f"""
    v_lshrrev_b32 v14, 3, v0
    v_and_b32 v15, 2, v14
    v_bfe_u32 v{V_D4}, v0, 1, 2
    v_xor_b32 v{V_D4}, v{V_D4}, v15
    v_lshlrev_b32 v{V_D4}, 5, v{V_D4}
    v_and_b32 v15, 1, v0
    v_lshl_add_u32 v{V_D4}, v15, 4, v{V_D4}
    s_lshl_b32 s57, s53, 4
    v_add_u32 v14, s57, v14
    v_mul_u32_u24 v14, 9216, v14
    v_add_u32 v{V_D4}, v{V_D4}, v14
    v_xor_b32 v{V_D4+1}, 32, v{V_D4}
    v_lshrrev_b32 v14, 1, v0
    s_lshl_b32 s57, s53, 1
    s_and_b32 s57, s57, 4
    v_xor_b32 v14, s57, v14
    v_mul_u32_u24 v14, 9216, v14
    v_lshl_add_u32 v{V_DE}, v15, 4, v14
    s_lshl_b32 s61, s53, 11
    """)
    P("s_waitcnt lgkmcnt(0)")
    srd(P, 8, 36, 37, 576 * 9216)
    srd(P, 12, 38, 39, 576 * 9216)
    srd(P, 20, 48, 49, WS_BYTES)

    slotA = [0, 1, 2, 3, 4, 0, 1, 2, 3]
    slotB = [5, 6, 7, 8, 4, 0, 1, 2, 3]
    freeB = [None, None, None, None, 4, 5, 6, 7, 8]

    def dma4(grp, kb):
        slot = (slotA if grp == 0 else slotB)[kb] * SLOT
        out = []
        for m in range(2):
            for i in range(2):
                D = Prog()
                D(f"s_add_u32 m0, s61, {slot + m*8192 + i*1024}")
                D(f"s_add_u32 s59, s56, {(kb*64 + i*8)*9216 + grp*128}")
                D(f"buffer_load_dwordx4 v{V_D4+m}, s[{8+4*m}:{11+4*m}], s59 offen lds", tag=("W", grp, kb))
                out.append((D.ins, 8))
        return out

    def dmaE(kb):
        D = Prog()
        D(f"s_add_u32 m0, s60, {(kb % 4)*4096}")
        D(f"s_add_u32 s59, s72, {kb*64*9216}")
        D(f"buffer_load_dwordx4 v{V_DE}, s[16:19], s59 offen lds", tag=("W", 1, kb))
        return [(D.ins, 32)]

    def xloads(kb):
        out = []
        for s in range(4):
            for j in range(2):
                D = Prog()
                D(f"s_add_u32 s62, s{64+j}, {WS_XNF + kb*4096}")
                D(f"buffer_load_dwordx4 {xreg(j, kb*4+s)}, v{V_LANE16}, s[20:23], s62 offen offset:{s*1024}")
                out.append((D.ins, 8))
        return out

    PRE = int(os.environ.get("K2PRE", "2"))
    for kb in range(PRE):
        for ins, _ in dma4(0, kb) + xloads(kb):
            P.extend(ins)
    srd(P, 24, 40, 41, 1152)
    srd(P, 28, 42, 43, 1152)
    srd(P, 32, 46, 47, 1152)
    P(f"""
    s_cmp_lt_u32 s53, 2
    s_cselect_b32 s16, s8, s12
    s_cselect_b32 s17, s9, s13
    s_mov_b32 s18, {576*9216}
    s_mov_b32 s19, 0x00020000
    s_and_b32 s57, s53, 1
    s_mul_i32 s55, s57, {32*9216}
    s_add_u32 s72, s72, s55
    s_lshl_b32 s60, s53, 10
    s_add_u32 s60, s60, {E_BASE}
    """)
    P(f"""
    v_and_b32 v14, 1, v0
    v_lshlrev_b32 v14, 4, v14
    v_bfe_u32 v15, v0, 1, 1
    v_lshl_add_u32 v14, v15, 3, v14
    v_lshrrev_b32 v15, 5, v0
    v_lshlrev_b32 v15, 3, v15
    v_bfe_u32 v{WF}, v0, 2, 2
    v_add_u32 v15, v15, v{WF}
    v_bfe_u32 v{WF+1}, v0, 4, 1
    v_and_b32 v{WF}, 2, v{WF}
    v_xor_b32 v{WF}, v{WF}, v{WF+1}
    v_lshl_add_u32 v{V_R4}, v15, 7, v14
    v_lshl_add_u32 v{V_R4}, v{WF+1}, 13, v{V_R4}
    v_lshl_add_u32 v{V_R4}, v{WF}, 5, v{V_R4}
    v_xor_b32 v{V_R4+1}, 32, v{V_R4}
    v_xor_b32 v{V_R4+2}, 64, v{V_R4}
    v_xor_b32 v{V_R4+3}, 96, v{V_R4}
    v_lshl_add_u32 v{V_RE}, v15, 5, v14
    v_lshl_add_u32 v{V_RE}, v{WF+1}, 11, v{V_RE}
    v_lshl_add_u32 v{V_RE}, v{WF+1}, 7, v{V_RE}
    v_add_u32 v{V_RE}, {E_BASE}, v{V_RE}
    v_xor_b32 v{V_RE2}, 128, v{V_RE}
    """)
    fx_pre, fx_car, fx_bu, fx_rec = fixup()
    if os.environ.get("NOFX"):
        fx_pre, fx_car, fx_bu, fx_rec = [], [], [], []
    P.extend(fx_pre)
    phases = [
        [("A", 0, 0), ("A", 1, 1), ("A", 2, 2), ("A", 3, 3)],
        [("E", 0, 4), ("B", 0, 0)],
        [("B", 1, 1)],
        [("B", 2, 2)],
        [("B", 3, 3)],
    ]
    frags = []
    unit = 0
    for ph, tiles in enumerate(phases):
        for kb in range(9):
            order = [(s_, t) for s_ in range(4) for t in tiles]
            if (ph == 0 and kb == 8) or (ph == 1 and kb == 0):
                order = [(s_, tiles[0]) for s_ in range(4)] + [(s_, t) for s_ in range(4) for t in tiles[1:]]
            for s_, (buf, g, sl) in order:
                frags.append(dict(ph=ph, buf=buf, kb=kb, s=s_, g=g, slot=sl, ks=kb * 4 + s_, unit=unit))
            unit += 1
    bar_units = set(range(0, 18)) | {19}
    items = []
    for kb in range(PRE, 9):
        rel = -1 if kb < 5 else kb - 5 + 2
        for ins, ln in dma4(0, kb):
            items.append([16 * kb - 1, rel, ins, ln])
        for ins, ln in xloads(kb):
            items.append([16 * kb, -1, ins, ln])
    for kb in range(9):
        rel = -1 if freeB[kb] is None else freeB[kb] + 2
        for ins, ln in dma4(1, kb):
            items.append([144 + 8 * kb, rel, ins, ln])
        rel = -1 if kb < 4 else 9 + (kb - 4) + 2
        for ins, ln in dmaE(kb):
            items.append([144 + 8 * kb - 1, rel, ins, ln])
    items.sort(key=lambda x: x[0])
    released = [-1]
    seen = set()
    region = [0]

    def frag_read(M, n, part):
        f = frags[n]
        u = f["unit"]
        if u not in seen:
            seen.add(u)
            if u in bar_units:
                M.waitvm(("W", 0 if f["buf"] == "A" else 1, f["kb"]))
                M("s_barrier")
                released[0] = u
                if u in (1, 3, 5, 7, 9, 11, 13, 15, 17):
                    M.stamp(3 + u // 2)
        b = WF + 4 * (n % NWF)
        if f["buf"] == "E":
            off = (f["kb"] % 4) * 4096 + f["s"] * 16 * 32
            base = V_RE if part == 0 else V_RE2
        else:
            sl = (slotA if f["buf"] == "A" else slotB)[f["kb"]]
            reg = sl // 3
            if reg != region[0]:
                d = (reg - region[0]) * 3 * SLOT
                for g in range(4):
                    M(f"v_add_u32 v{V_R4+g}, {d & 0xffffffff}, v{V_R4+g}")
                region[0] = reg
            base = V_R4 + f["g"]
            off = (sl % 3) * SLOT + f["s"] * 16 * 128 + part * 512
        M(f"ds_read_b64_tr_b16 v[{b+2*part}:{b+2*part+1}], v{base} offset:{off}")

    for n in range(DIST):
        frag_read(P, n, 0)
        frag_read(P, n, 1)
    P.stamp(2)
    CR0 = float(os.environ.get("CR0", "6.3"))
    CR1 = float(os.environ.get("CR1", "6.6"))
    credit = 0.0
    cur_ph = 0
    B = Prog()
    phase_lists = []
    late = []
    for n, f in enumerate(frags):
        if f["ph"] != cur_ph:
            phase_lists.append(B.ins)
            B = Prog()
            cur_ph = f["ph"]
        b = WF + 4 * (n % NWF)
        credit = min(credit + (CR0 if f["ph"] == 0 else CR1), 16.0)
        for j in range(2):
            a = ACC + 32 * f["slot"] + 16 * j
            c = "0" if f["ks"] == 0 else f"v[{a}:{a+15}]"
            B(f"v_mfma_f32_32x32x16_bf16 v[{a}:{a+15}], v[{b}:{b+3}], {xreg(j, f['ks'])}, {c}")
            if n + DIST < len(frags):
                frag_read(B, n + DIST, j)
            if j == 1 and credit > 0:
                for k, it in enumerate(items):
                    if it[1] <= released[0]:
                        B.extend(it[2])
                        credit -= it[3]
                        late.append(it[0] - n)
                        del items[k]
                        break
    phase_lists.append(B.ins)
    assert not items, len(items)
    if os.environ.get("VERB"):
        print("lead (frags) of loads:", late)
    A_ = lambda t, **k: epilogue(t, 66, 1024 * t, **k)
    B_ = lambda t, **k: epilogue(t, 66, 4096 + 1024 * t, **k)
    L0, L1_ = phase_lists[0], phase_lists[1]
    n0 = sum(1 for i in L0 if i.kind == "mfma")
    L = L0 + L1_
    n01 = sum(1 for i in L if i.kind == "mfma")
    L = interleave2(L, fx_car, start=96, end=n0 - 26)
    L = interleave2(L, A_(0), start=n0 - 23, end=n0 + 7)
    L = interleave2(L, A_(1, part="calc") + A_(2, part="calc") + A_(3, part="calc") + A_(1, part="store"), start=n0 + 8, end=n01 - 1)
    P.extend(L)
    P.stamp(12)
    nr = len(fx_rec)
    c1, c2 = int(nr * 0.12), int(nr * 0.40)
    fills = [epilogue(4, 68, 0) + fx_bu + A_(2, part="store") + A_(3, part="store") + B_(0, halves=(0,)) + fx_rec[:c1],
             B_(0, halves=(1,)) + fx_rec[c1:c2] + B_(1), fx_rec[c2:] + B_(2)]
    for k in range(3):
        L = phase_lists[2 + k]
        nm = sum(1 for i in L if i.kind == "mfma")
        P.extend(interleave2(L, fills[k], start=1, end=nm - 1))
        if k >= 1:
            P.stamp(12 + k)
    P.extend(B_(3))
    P.stamp(15, real=True)
    P.dump_stamps(9, 20, WS_DBG, 14)
    P("K2_END:")
    P("s_endpgm")
    return kernel_text("k2_kernel", P.finalize(), vgpr=256, agpr=256, sgpr=102), LDS_BYTES
```

```python
import os, math
from asmlib import *
from layout import *
from k1 import srd, f2u

STG = 24576
NS = 6
LDS_BYTES = NS * STG

V_LANE16 = 1
V_D = 2
V_D1 = 3
V_RB = 4
V_T = 10
HV = 16
ACC = 48
WF = 144
NWF = 8
DIST = 6
PB = 176


def hreg(ks):
    if ks < 64:
        return f"a[{4*ks}:{4*ks+3}]"
    n = ks - 64
    return f"v[{HV+4*n}:{HV+4*n+3}]"


def main_loop(P, ssm):
    def dma(kb):
        slot = (kb % NS) * STG
        out = []
        for i in range(6):
            D = Prog()
            if not ssm:
                D(f"s_add_u32 m0, s61, {slot + (i >> 1)*8192 + (i & 1)*1024}")
                D(f"s_add_u32 s59, s56, {(kb*64 + (i & 1)*8)*1152 + (i >> 1)*128}")
                D(f"buffer_load_dwordx4 v{V_D}, s[8:11], s59 offen lds", tag=("W", kb))
            else:
                srdn = 8 if kb < 9 else 12
                D(f"s_add_u32 m0, s61, {slot + i*1024}")
                D(f"s_add_u32 s59, s56, {i*8*1152 + (kb % 9)*128}")
                D(f"buffer_load_dwordx4 v{V_D + (i & 1)}, s[{srdn}:{srdn+3}], s59 offen lds", tag=("W", kb))
            out.append((D.ins, 8))
        return out

    def hloads(kb):
        out = []
        for s in range(4):
            D = Prog()
            D(f"s_add_u32 s62, s64, {kb*4096}")
            D(f"buffer_load_dwordx4 {hreg(kb*4+s)}, v{V_LANE16}, s[20:23], s62 offen offset:{s*1024}")
            out.append((D.ins, 8))
        return out

    PRE = int(os.environ.get("K3PRE", "2"))
    for kb in range(PRE):
        for ins, _ in dma(kb) + hloads(kb):
            P.extend(ins)
    frags = [dict(kb=kb, s=s, g=g) for kb in range(18) for s in range(4) for g in range(6)]
    items = []
    for kb in range(PRE, 18):
        rel = -1 if kb < NS else kb - NS + 2
        for ins, ln in dma(kb):
            items.append([24 * kb - 1, rel, ins, ln])
        for ins, ln in hloads(kb):
            items.append([24 * kb, -1, ins, ln])
    items.sort(key=lambda x: x[0])
    seen = set()
    released = [-1]
    region = [0]

    def frag_read(M, n):
        f = frags[n]
        kb = f["kb"]
        if kb not in seen:
            seen.add(kb)
            M.waitvm(("W", kb))
            M("s_barrier")
            released[0] = kb
            if kb % 2 == 1 and not ssm:
                M.stamp(3 + kb // 2)
        sl = kb % NS
        reg = sl // 2
        if reg != region[0]:
            d = (reg - region[0]) * 2 * STG
            for g in range(4 if ssm else 6):
                M(f"v_add_u32 v{V_RB+g}, {d & 0xffffffff}, v{V_RB+g}")
            region[0] = reg
        b = WF + 4 * (n % NWF)
        off = (sl % 2) * STG
        if not ssm:
            off += f["s"] * 16 * 128
            M(f"ds_read_b64_tr_b16 v[{b}:{b+1}], v{V_RB+f['g']} offset:{off}")
            M(f"ds_read_b64_tr_b16 v[{b+2}:{b+3}], v{V_RB+f['g']} offset:{off+512}")
        else:
            ph = 5 if f["g"] == 0 else (f["g"] + 4) % 5
            M(f"ds_read_b128 v[{b}:{b+3}], v{V_RB+f['s']} offset:{off + ph*4096}")

    for n in range(DIST):
        frag_read(P, n)
    if not ssm:
        P.stamp(2)
    CR = float(os.environ.get("CR3", "3.4"))
    credit = 0.0
    for n, f in enumerate(frags):
        b = WF + 4 * (n % NWF)
        a = ACC + 16 * f["g"]
        ks = f["kb"] * 4 + f["s"]
        c = "0" if ks == 0 else f"v[{a}:{a+15}]"
        P(f"v_mfma_f32_32x32x16_bf16 v[{a}:{a+15}], v[{b}:{b+3}], {hreg(ks)}, {c}")
        if n + DIST < len(frags):
            frag_read(P, n + DIST)
        credit = min(credit + CR, 12.0)
        if credit > 0:
            for k, it in enumerate(items):
                if it[1] <= released[0]:
                    P.extend(it[2])
                    credit -= it[3]
                    del items[k]
                    break
    assert not items


def gen_k3():
    P = Prog()
    P("s_cmp_ge_u32 s2, 240")
    P("s_cbranch_scc1 K3_END")
    P.stamp(0, real=True)
    P.stamp(1)
    P("s_load_dwordx4 s[36:39], s[0:1], 96")
    P("s_load_dwordx4 s[40:43], s[0:1], 40")
    P("s_load_dwordx2 s[48:49], s[0:1], 120")
    P("s_load_dwordx2 s[44:45], s[0:1], 0")
    P("s_load_dwordx2 s[46:47], s[0:1], 64")
    P(f"""
    v_lshrrev_b32 v2, 6, v0
    v_and_b32 v0, 63, v0
    v_readfirstlane_b32 s53, v2
    v_lshlrev_b32 v{V_LANE16}, 4, v0
    s_lshr_b32 s54, s2, 3
    s_and_b32 s55, s2, 7
    s_mov_b32 s79, s53
    """)
    P("""
    s_and_b32 s50, s55, 6
    s_lshl_b32 s50, s50, 1
    s_and_b32 s57, s54, 3
    s_add_u32 s50, s50, s57
    s_and_b32 s51, s55, 1
    s_lshl_b32 s51, s51, 1
    s_bfe_u32 s57, s54, 0x10002
    s_add_u32 s51, s51, s57
    s_lshr_b32 s52, s54, 3
    s_lshl_b32 s57, s55, 1
    s_and_b32 s58, s54, 1
    s_add_u32 s57, s57, s58
    s_bfe_u32 s58, s54, 0x20001
    s_cmp_ge_u32 s54, 24
    s_cselect_b32 s50, s57, s50
    s_cselect_b32 s51, 4, s51
    s_cselect_b32 s52, s58, s52
    """)
    P(f"""
    s_lshl_b32 s57, s50, 2
    s_add_u32 s57, s57, s53
    s_mul_i32 s64, s57, 360
    s_mul_i32 s58, s51, 72
    s_add_u32 s64, s64, s58
    s_lshl_b32 s64, s64, 10
    s_add_u32 s64, s64, {WS_HF}
    s_mov_b32 s63, s57
    """)
    P("s_waitcnt lgkmcnt(0)")
    srd(P, 20, 48, 49, WS_BYTES)
    P("s_cmp_eq_u32 s51, 4")
    P("s_cbranch_scc1 K3_SSM")
    srd(P, 8, 36, 37, 4608 * 1152)
    P(f"""
    v_lshrrev_b32 v10, 3, v0
    v_bfe_u32 v11, v0, 4, 1
    v_lshlrev_b32 v11, 2, v11
    v_and_b32 v12, 7, v0
    v_xor_b32 v12, v12, v11
    s_lshl_b32 s57, s53, 4
    v_add_u32 v10, s57, v10
    v_mul_u32_u24 v10, 1152, v10
    v_lshl_add_u32 v{V_D}, v12, 4, v10
    s_mul_i32 s56, s51, {1152*1152}
    s_mul_i32 s57, s52, 384
    s_add_u32 s56, s56, s57
    s_lshl_b32 s61, s53, 11
    """)
    P(f"""
    v_lshrrev_b32 v10, 5, v0
    v_lshlrev_b32 v10, 3, v10
    v_bfe_u32 v11, v0, 2, 2
    v_add_u32 v10, v10, v11
    v_lshlrev_b32 v10, 7, v10
    v_bfe_u32 v11, v0, 3, 1
    v_lshl_add_u32 v10, v11, 6, v10
    v_and_b32 v11, 1, v0
    v_lshl_add_u32 v10, v11, 5, v10
    v_bfe_u32 v11, v0, 4, 1
    v_lshl_add_u32 v10, v11, 4, v10
    v_bfe_u32 v11, v0, 1, 1
    v_lshl_add_u32 v10, v11, 3, v10
    v_xor_b32 v{V_RB}, 64, v10
    v_add_u32 v{V_RB}, 16384, v{V_RB}
    """)
    for L in range(1, 6):
        P(f"""
        s_add_u32 s57, s51, {L}
        s_cmp_ge_u32 s57, 5
        s_cselect_b32 s58, 5, 0
        s_sub_u32 s57, s57, s58
        s_and_b32 s58, s57, 1
        s_lshl_b32 s58, s58, 6
        s_lshr_b32 s57, s57, 1
        s_lshl_b32 s57, s57, 13
        v_xor_b32 v{V_RB+L}, s58, v10
        v_add_u32 v{V_RB+L}, s57, v{V_RB+L}
        """)
    main_loop(P, False)
    P("s_branch K3_RED")
    P("K3_SSM:")
    srd(P, 8, 40, 41, 576 * 1152)
    srd(P, 12, 42, 43, 576 * 1152)
    P(f"""
    v_lshrrev_b32 v10, 3, v0
    v_lshrrev_b32 v11, 1, v10
    v_and_b32 v12, 7, v0
    v_xor_b32 v12, v12, v11
    s_mul_i32 s57, s53, 48
    v_add_u32 v10, s57, v10
    v_mul_u32_u24 v10, 1152, v10
    v_lshl_add_u32 v{V_D}, v12, 4, v10
    v_xor_b32 v{V_D1}, 64, v{V_D}
    s_mul_i32 s56, s52, {192*1152}
    s_mul_i32 s61, s53, 6144
    """)
    P(f"""
    v_and_b32 v10, 31, v0
    v_bfe_u32 v11, v10, 2, 1
    v_lshlrev_b32 v11, 4, v11
    v_lshrrev_b32 v12, 3, v10
    v_lshl_add_u32 v11, v12, 2, v11
    v_and_b32 v12, 3, v10
    v_add_u32 v11, v11, v12
    v_bfe_u32 v12, v11, 1, 3
    v_lshrrev_b32 v10, 5, v0
    v_xor_b32 v12, v12, v10
    v_lshlrev_b32 v12, 4, v12
    v_lshl_add_u32 v{V_RB}, v11, 7, v12
    v_xor_b32 v{V_RB+1}, 32, v{V_RB}
    v_xor_b32 v{V_RB+2}, 64, v{V_RB}
    v_xor_b32 v{V_RB+3}, 96, v{V_RB}
    """)
    main_loop(P, True)
    P("K3_RED:")
    P.stamp(12)
    srd(P, 8, 44, 45, 2048 * 1152)
    srd(P, 12, 46, 47, 1152)
    srd(P, 16, 38, 39, 2048 * 576 * 4)
    P(f"""
    s_mul_i32 s54, s50, 3
    s_add_u32 s54, s54, s52
    s_mul_i32 s65, s54, {6*5*16384}
    s_lshl_b32 s57, s53, 12
    s_add_u32 s65, s65, s57
    s_add_u32 s65, s65, {WS_PART}
    s_lshl_b32 s66, s51, 14
    s_add_u32 s66, s66, s65
    s_nop 7
    """)
    SC = os.environ.get("PSC", " sc0 sc1")
    for L in range(1, 5):
        P(f"""
        s_add_u32 s57, s51, {L}
        s_cmp_ge_u32 s57, 5
        s_cselect_b32 s58, 5, 0
        s_sub_u32 s57, s57, s58
        s_mul_i32 s57, s57, {5*16384}
        s_add_u32 s57, s57, s66
        """)
        for q in range(4):
            a = ACC + 16 * L + 4 * q
            P(f"buffer_store_dwordx4 v[{a}:{a+3}], v{V_LANE16}, s[20:23], s57 offen offset:{1024*q}{SC}")
    P(f"s_add_u32 s57, s66, {5*5*16384}")
    for q in range(4):
        a = ACC + 4 * q
        P(f"buffer_store_dwordx4 v[{a}:{a+3}], v{V_LANE16}, s[20:23], s57 offen offset:{1024*q}{SC}")
    P(f"""
    v_and_b32 v10, 31, v0
    v_lshrrev_b32 v11, 5, v0
    s_lshl_b32 s57, s63, 5
    v_add_u32 v12, s57, v10
    v_mul_u32_u24 v13, 1152, v12
    v_lshl_add_u32 v13, v11, 5, v13
    v_lshlrev_b32 v14, 5, v11
    v_lshlrev_b32 v15, 4, v10
    v_lshl_add_u32 v15, v11, 10, v15
    v_lshlrev_b32 v12, 1, v13
    s_mul_i32 s67, s52, 384
    s_mul_i32 s68, s63, 36864
    s_mul_i32 s57, s52, {12*1024}
    s_add_u32 s68, s68, s57
    s_add_u32 s68, s68, {WS_XNF}
    """)

    def resid_loads(R, sphys):
        P(f"""
        s_lshl_b32 s57, s{sphys}, 6
        s_add_u32 s57, s57, s67
        s_lshl_b32 s58, s{sphys}, 11
        s_add_u32 s58, s58, s68
        buffer_load_dwordx4 v[{R}:{R+3}], v13, s[8:11], s57 offen
        buffer_load_dwordx4 v[{R+4}:{R+7}], v13, s[8:11], s57 offen offset:16
        buffer_load_dwordx4 v[{R+8}:{R+11}], v15, s[20:23], s58 offen
        buffer_load_dwordx4 v[{R+12}:{R+15}], v15, s[20:23], s58 offen offset:512
        buffer_load_dwordx4 v[{R+16}:{R+19}], v14, s[12:15], s57 offen
        buffer_load_dwordx4 v[{R+20}:{R+23}], v14, s[12:15], s57 offen offset:16
        """)

    def resid_add(R, a):
        for k in range(8):
            x, xn, dd = R + k, R + 8 + k, R + 16 + k
            P(f"""
            v_lshlrev_b32 v10, 16, v{xn}
            v_and_b32 v{xn}, 0xffff0000, v{xn}
            v_lshlrev_b32 v11, 16, v{dd}
            v_and_b32 v{dd}, 0xffff0000, v{dd}
            v_mul_f32 v10, v10, v11
            v_mul_f32 v{xn}, v{xn}, v{dd}
            v_cvt_pk_bf16_f32 v{xn}, v10, v{xn}
            v_lshlrev_b32 v10, 16, v{xn}
            v_and_b32 v{xn}, 0xffff0000, v{xn}
            v_lshlrev_b32 v11, 16, v{x}
            v_and_b32 v{x}, 0xffff0000, v{x}
            v_add_f32 v10, v10, v11
            v_add_f32 v{xn}, v{xn}, v{x}
            v_add_f32 v{a+2*k}, v{a+2*k}, v10
            v_add_f32 v{a+2*k+1}, v{a+2*k+1}, v{xn}
            """)
    RS = WF
    resid_loads(RS, 51)
    resid_add(RS, ACC + 80)
    P(f"""
    s_waitcnt vmcnt(0)
    s_lshl_b32 s57, s54, 2
    s_add_u32 s57, s57, s53
    s_mul_i32 s69, s57, {CNT_STRIDE}
    s_add_u32 s69, s69, {WS_CNT}
    v_mov_b32 v10, 0
    v_mov_b32 v11, 1
    s_mov_b64 exec, 1
    buffer_atomic_add v11, v10, s[20:23], s69 offen sc1
    s_mov_b32 s70, 0
    """)
    P.stamp(13)
    P("s_waitcnt lgkmcnt(0)")
    P("K3_POLL:")
    P(f"""
    buffer_load_dword v11, v10, s[20:23], s69 offen sc0 sc1
    s_waitcnt vmcnt(0)
    v_readfirstlane_b32 s71, v11
    s_add_u32 s70, s70, 1
    s_cmp_ge_u32 s71, 5
    s_cbranch_scc1 K3_GO
    s_sleep 1
    s_cmp_lt_u32 s70, 200000
    s_cbranch_scc1 K3_POLL
    """)
    P("K3_GO:")
    P("s_mov_b64 exec, -1")
    P.stamp(14)

    def reduce_tile(a, sphys):
        P(f"s_mul_i32 s72, s{sphys}, {5*16384}")
        P(f"s_add_u32 s72, s72, s65")
        for i in range(1, 5):
            P(f"""
            s_add_u32 s57, s51, {i}
            s_cmp_ge_u32 s57, 5
            s_cselect_b32 s58, 5, 0
            s_sub_u32 s57, s57, s58
            s_lshl_b32 s57, s57, 14
            s_add_u32 s57, s57, s72
            """)
            for q in range(4):
                r = PB + 16 * (i - 1) + 4 * q
                P(f"buffer_load_dwordx4 v[{r}:{r+3}], v{V_LANE16}, s[20:23], s57 offen offset:{1024*q} sc0 sc1")
        for i in range(4):
            for k in range(16):
                P(f"v_add_f32 v{a+k}, v{a+k}, v{PB+16*i+k}")
        P(f"""
        s_lshl_b32 s57, s{sphys}, 7
        s_lshl_b32 s58, s67, 1
        s_add_u32 s57, s57, s58
        """)
        for q in range(4):
            P(f"buffer_store_dwordx4 v[{a+4*q}:{a+4*q+3}], v12, s[16:19], s57 offen offset:{16*q}")
    reduce_tile(ACC + 80, 51)
    P("s_cmp_lg_u32 s51, s53")
    P("s_cbranch_scc1 K3_FIN")
    P("s_mov_b32 s73, 5")
    resid_loads(RS, 73)
    resid_add(RS, ACC)
    reduce_tile(ACC, 73)
    P("K3_FIN:")
    P.stamp(15, real=True)
    P.dump_stamps(9, 20, WS_DBG, 10)
    P("K3_END:")
    P("s_endpgm")
    return kernel_text("k3_kernel", P.finalize(), vgpr=256, agpr=256, sgpr=102), LDS_BYTES
```

```python
WS_BYTES = 268435456
WS_XNF  = 0
XNF_BYTES = 64*36*1024
WS_HF   = 0x00900000
WS_BU   = 0x02000000
WS_E8   = 0x03000000
WS_A128 = 0x03200000
WS_CNT  = 0x03300000
WS_PART = 0x04000000
CNT_STRIDE = 64
WS_DBG  = 0x03400000
WS_STAT = 0x03280000
WS_RES  = 0x03500000
WS_AGG  = 0x03000000
WS_ZREC = 0x03050000
WS_MBX  = 0x03060000
```

```python
import struct, os
from asmlib import *
from layout import *


def f2u(x):
    return "0x%08x" % struct.unpack("<I", struct.pack("<f", x))[0]


LOG2E = 1.4426950408889634
INV2PI = 0.15915494309189535


def srd(P, d, lo, hi, nbytes):
    P(f"s_mov_b32 s{d}, s{lo}")
    P(f"s_and_b32 s{d+1}, s{hi}, 0xffff")
    P(f"s_mov_b32 s{d+2}, {nbytes}")
    P(f"s_mov_b32 s{d+3}, 0x00020000")


def bf16r(P, dst, src):
    P(f"v_cvt_pk_bf16_f32 v{dst}, v{src}, v{src}")
    P(f"v_lshlrev_b32 v{dst}, 16, v{dst}")


def emit_param_loads(P, voff, r, s_lre, s_lim, s_ldt):
    P(f"buffer_load_ushort v{r}, v{voff}, s[{s_lre}:{s_lre+3}], 0 offen")
    P(f"buffer_load_ushort v{r+1}, v{voff}, s[{s_lim}:{s_lim+3}], 0 offen")
    P(f"buffer_load_ushort v{r+2}, v{voff}, s[{s_ldt}:{s_ldt+3}], 0 offen")


def emit_params(P, r):
    P(f"v_lshlrev_b32 v{r}, 16, v{r}")
    P(f"v_lshlrev_b32 v{r+1}, 16, v{r+1}")
    P(f"v_lshlrev_b32 v{r+2}, 16, v{r+2}")
    P(f"v_mul_f32 v{r+2}, {f2u(LOG2E)}, v{r+2}")
    P(f"v_exp_f32 v{r+2}, v{r+2}")
    bf16r(P, r + 2, r + 2)
    P(f"v_mul_f32 v{r+3}, v{r+2}, v{r+1}")
    P(f"v_mul_f32 v{r+2}, v{r+2}, v{r}")
    P(f"v_mul_f32 v{r+3}, {f2u(INV2PI)}, v{r+3}")
    P(f"v_mul_f32 v{r+2}, {f2u(LOG2E)}, v{r+2}")


def emit_pow(P, n, a2, rev, ore, oim, t):
    if n == 1:
        P(f"v_exp_f32 v{t}, v{a2}")
        P(f"v_fract_f32 v{oim}, v{rev}")
    else:
        ns = n if isinstance(n, str) else f2u(float(n))
        P(f"v_mul_f32 v{t}, {ns}, v{a2}")
        P(f"v_mul_f32 v{oim}, {ns}, v{rev}")
        P(f"v_exp_f32 v{t}, v{t}")
        P(f"v_fract_f32 v{oim}, v{oim}")
    P(f"v_cos_f32 v{ore}, v{oim}")
    P(f"v_sin_f32 v{oim}, v{oim}")
    P(f"v_mul_f32 v{ore}, v{t}, v{ore}")
    P(f"v_mul_f32 v{oim}, v{t}, v{oim}")


def touch(P, vdst, vaddr, srdn):
    i = Ins(f"buffer_store_dword v{vdst}, v{vaddr}, s[{srdn}:{srdn+3}], 0 offen")
    i.text = f"buffer_load_dword v{vdst}, v{vaddr}, s[{srdn}:{srdn+3}], 0 offen"
    P.ins.append(i)


def prefetch(P, vt):
    KPF = int(os.environ.get("KPF", "128"))
    srd(P, 68, 64, 65, 576 * 9216)
    srd(P, 72, 66, 67, 576 * 9216)
    P("s_and_b32 s77, s2, 1")
    P("s_lshl_b32 s77, s77, 2")
    if KPF:
        P(f"""
        s_lshr_b32 s76, s2, 3
        s_lshl_b32 s76, s76, 4
        v_lshrrev_b32 v{vt}, 4, v0
        v_add_u32 v{vt}, s76, v{vt}
        v_bfe_u32 v{vt+1}, v0, 2, 2
        v_add_u32 v{vt+1}, s77, v{vt+1}
        v_mul_u32_u24 v{vt+1}, 1152, v{vt+1}
        v_and_b32 v{vt+2}, 3, v0
        v_lshl_add_u32 v{vt+1}, v{vt+2}, 8, v{vt+1}
        v_cmp_gt_u32 vcc, {KPF}, v{vt}
        v_mul_u32_u24 v{vt}, 9216, v{vt}
        v_add_u32 v{vt}, v{vt}, v{vt+1}
        v_mov_b32 v{vt+1}, -1
        v_cndmask_b32 v{vt}, v{vt+1}, v{vt}, vcc
        """)
        for m in range(2):
            touch(P, vt + 3, vt, 68 + 4 * m)
    if int(os.environ.get("PF2", "1")):
        P(f"""
        s_lshr_b32 s76, s2, 3
        s_lshl_b32 s76, s76, 2
        v_lshrrev_b32 v{vt}, 6, v0
        v_add_u32 v{vt}, s76, v{vt}
        v_mul_u32_u24 v{vt}, 41, v{vt}
        v_and_b32 v{vt+1}, 63, v0
        v_cmp_gt_u32 vcc, 41, v{vt+1}
        v_add_u32 v{vt}, v{vt}, v{vt+1}
        v_mov_b32 v{vt+1}, 5184
        v_cndmask_b32 v{vt}, v{vt+1}, v{vt}, vcc
        v_cmp_gt_u32 vcc, 5184, v{vt}
        s_mov_b32 s76, {(2**32 + 35)//36}
        v_mul_hi_u32 v{vt+1}, v{vt}, s76
        v_mul_u32_u24 v{vt+2}, 36, v{vt+1}
        v_sub_u32 v{vt}, v{vt}, v{vt+2}
        v_lshlrev_b32 v{vt}, 7, v{vt}
        s_bfe_u32 s76, s2, 0x20001
        s_mul_i32 s76, s76, 144
        v_add_u32 v{vt+1}, s76, v{vt+1}
        v_mul_u32_u24 v{vt+1}, 9216, v{vt+1}
        v_add_u32 v{vt}, v{vt}, v{vt+1}
        s_mul_i32 s76, s77, 1152
        v_add_u32 v{vt}, s76, v{vt}
        v_mov_b32 v{vt+1}, -1
        v_cndmask_b32 v{vt}, v{vt+1}, v{vt}, vcc
        """)
        for m in range(2):
            touch(P, vt + 3, vt, 68 + 4 * m)
    if int(os.environ.get("EPF", "1")):
        P(f"""
        s_lshr_b32 s76, s2, 3
        s_mul_i32 s76, s76, 18
        v_lshrrev_b32 v{vt}, 2, v0
        v_cmp_gt_u32 vcc, 18, v{vt}
        v_add_u32 v{vt}, s76, v{vt}
        v_and_b32 v{vt+1}, 3, v0
        v_add_u32 v{vt+1}, s77, v{vt+1}
        v_mul_u32_u24 v{vt+1}, 1152, v{vt+1}
        v_mul_u32_u24 v{vt}, 9216, v{vt}
        v_add_u32 v{vt}, v{vt}, v{vt+1}
        v_add_u32 v{vt}, 1024, v{vt}
        v_mov_b32 v{vt+1}, -1
        v_cndmask_b32 v{vt}, v{vt+1}, v{vt}, vcc
        """)
        for m in range(2):
            touch(P, vt + 3, vt, 68 + 4 * m)
    if int(os.environ.get("PF3", "1")):
        P("s_load_dwordx2 s[64:65], s[0:1], 96")
        P("s_load_dwordx4 s[4:7], s[0:1], 40")
        P(f"""
        s_lshl_b32 s76, s2, 2
        v_lshrrev_b32 v{vt}, 6, v0
        v_add_u32 v{vt}, s76, v{vt}
        v_and_b32 v{vt+1}, 63, v0
        v_mad_u32_u24 v{vt+2}, v{vt}, 6, v{vt+1}
        v_mad_u32_u24 v{vt}, v{vt}, 41, v{vt+1}
        v_lshlrev_b32 v{vt}, 7, v{vt}
        v_lshlrev_b32 v{vt+2}, 7, v{vt+2}
        v_cmp_gt_u32 vcc, 41, v{vt+1}
        v_cndmask_b32 v{vt}, -1, v{vt}, vcc
        v_cmp_gt_u32 vcc, 6, v{vt+1}
        v_cndmask_b32 v{vt+2}, -1, v{vt+2}, vcc
        """)
        srd(P, 68, 64, 65, 4608 * 1152)
        touch(P, vt + 3, vt, 68)
        srd(P, 72, 4, 5, 576 * 1152)
        touch(P, vt + 3, vt + 2, 72)
        srd(P, 68, 6, 7, 576 * 1152)
        touch(P, vt + 3, vt + 2, 68)


def gen_k1():
    P = Prog()
    P("s_cmp_ge_u32 s2, 256")
    P("s_cbranch_scc1 K1_END")
    P.stamp(0, real=True)
    P.stamp(1)
    P("v_lshrrev_b32 v1, 6, v0")
    P("v_readfirstlane_b32 s79, v1")
    P("s_load_dwordx8 s[36:43], s[0:1], 0")
    P("s_load_dwordx2 s[44:45], s[0:1], 32")
    P("s_load_dwordx2 s[46:47], s[0:1], 56")
    P("s_load_dwordx2 s[48:49], s[0:1], 120")
    P("s_load_dwordx4 s[64:67], s[0:1], 80")
    P("s_waitcnt lgkmcnt(0)")
    srd(P, 8, 36, 37, 2048 * 1152)
    srd(P, 20, 48, 49, WS_BYTES)
    P("s_cmp_ge_u32 s2, 192")
    P("s_cbranch_scc1 K1_LN")

    srd(P, 24, 38, 39, 1152)
    srd(P, 28, 40, 41, 1152)
    srd(P, 32, 46, 47, 1152)
    P("""
    s_and_b32 s50, s2, 7
    s_lshl_b32 s50, s50, 1
    s_lshr_b32 s51, s2, 3
    s_and_b32 s51, s51, 1
    s_add_u32 s50, s50, s51
    s_lshr_b32 s51, s2, 4
    s_mul_i32 s52, s51, 48
    v_lshrrev_b32 v1, 6, v0
    v_and_b32 v2, 63, v0
    """)
    P("v_readfirstlane_b32 s53, v1")
    P("s_cmp_lt_u32 s53, 2")
    P("s_cselect_b32 s12, s42, s44")
    P("s_cselect_b32 s13, s43, s45")
    P("s_and_b32 s13, s13, 0xffff")
    P(f"s_mov_b32 s14, {576*1152}")
    P("s_mov_b32 s15, 0x00020000")
    P("""
    v_lshrrev_b32 v3, 3, v2
    v_and_b32 v4, 7, v2
    v_lshrrev_b32 v5, 1, v3
    v_xor_b32 v6, v4, v5
    v_lshlrev_b32 v6, 4, v6
    s_lshl_b32 s54, s50, 7
    s_lshl_b32 s55, s53, 5
    s_add_u32 s54, s54, s55
    v_add_u32 v7, s54, v3
    v_mul_u32_u24 v7, 1152, v7
    v_add_u32 v8, v7, v6
    v_xor_b32 v9, 64, v8
    s_and_b32 s55, s53, 1
    s_lshl_b32 s56, s55, 3
    s_add_u32 s56, s56, s52
    v_add_u32 v7, s56, v3
    v_mul_u32_u24 v7, 1152, v7
    v_add_u32 v10, v7, v6
    s_lshl_b32 s56, s55, 6
    v_xor_b32 v10, s56, v10
    s_lshl_b32 s57, s53, 12
    s_lshl_b32 s58, s53, 10
    """)
    SLOT = 28672
    NSLOT = 5

    ROT1 = int(os.environ.get("ROT1", "1"))
    P(f"""
    s_and_b32 s61, s50, 1
    s_lshl_b32 s61, s61, 2
    s_add_u32 s61, s61, s51
    s_cmp_ge_u32 s61, 9
    s_cselect_b32 s60, 9, 0
    s_sub_u32 s61, s61, s60
    s_mul_i32 s61, s61, {128*ROT1}
    """)

    def issue_stage(st):
        slot = (st % NSLOT) * SLOT
        if st:
            P("s_add_u32 s61, s61, 128")
            P("s_cmp_ge_u32 s61, 1152")
            P("s_cselect_b32 s61, 0, s61")
        for j in range(4):
            P(f"s_add_u32 m0, s57, {slot + j*1024}")
            P(f"s_add_u32 s59, s61, {j*9216}")
            P(f"buffer_load_dwordx4 v{8 + (j & 1)}, s[8:11], s59 offen lds", tag=("st", st))
        for q in range(3):
            P(f"s_add_u32 m0, s58, {slot + 16384 + q*4096}")
            P(f"s_add_u32 s59, s61, {q*18432}")
            P(f"buffer_load_dwordx4 v10, s[12:15], s59 offen lds", tag=("st", st))

    PR = 16
    P("""
    v_and_b32 v11, 15, v2
    v_add_u32 v11, s52, v11
    v_lshlrev_b32 v11, 1, v11
    v_add_u32 v12, 32, v11
    v_add_u32 v13, 64, v11
    """)
    for q in range(3):
        emit_param_loads(P, 11 + q, PR + 8 * q, 24, 28, 32)
    for st in range(NSLOT):
        issue_stage(st)
    AA = 40
    AB = 52
    P(f"""
    v_and_b32 v3, 31, v2
    v_lshrrev_b32 v4, 5, v2
    v_bfe_u32 v5, v3, 2, 1
    v_lshlrev_b32 v5, 4, v5
    v_lshrrev_b32 v6, 3, v3
    v_lshl_add_u32 v5, v6, 2, v5
    v_and_b32 v6, 3, v3
    v_add_u32 v5, v5, v6
    v_bfe_u32 v6, v5, 1, 3
    v_xor_b32 v6, v6, v4
    v_lshlrev_b32 v6, 4, v6
    v_lshl_add_u32 v6, v5, 7, v6
    v_add_u32 v{AA}, s57, v6
    v_bfe_u32 v6, v3, 1, 3
    v_xor_b32 v6, v6, v4
    v_lshlrev_b32 v6, 4, v6
    v_lshl_add_u32 v6, v3, 7, v6
    v_add_u32 v{AB}, 16384, v6
    s_lshl_b32 s59, s53, 5
    v_xor_b32 v{AA}, s59, v{AA}
    v_xor_b32 v{AB}, s59, v{AB}
    """)
    for base in (AA, AB):
        for s in range(1, 4):
            P(f"v_xor_b32 v{base+s}, {32*s}, v{base}")
        for reg in range(1, 3):
            for s in range(4):
                P(f"v_add_u32 v{base+4*reg+s}, {reg*2*SLOT}, v{base+s}")
    ACC = 64
    FR = 112
    SUM, SQ = 240, 241
    SB = 242
    ONES = 245
    P(f"v_mov_b32 v{ONES}, 0x3f803f80")
    for r in (SUM, SQ, SB, SB + 1, SB + 2):
        P(f"v_mov_b32 v{r}, 0")
    for q in range(3):
        emit_params(P, PR + 8 * q)
    for q in range(3):
        r = PR + 8 * q
        emit_pow(P, 1, r + 2, r + 3, r + 4, r + 5, 6)
        P(f"""
        v_add_f32 v6, -1.0, v{r+4}
        v_mul_f32 v7, v{r}, v{r}
        v_fmac_f32 v7, v{r+1}, v{r+1}
        v_rcp_f32 v7, v7
        v_mul_f32 v{r+6}, v6, v{r}
        v_add_f32 v7, v7, v7
        v_fmac_f32 v{r+6}, v{r+5}, v{r+1}
        v_mul_f32 v{r+7}, v{r+5}, v{r}
        v_fma_f32 v{r+7}, -v6, v{r+1}, v{r+7}
        v_mul_f32 v{r+6}, v{r+6}, v7
        v_mul_f32 v{r+7}, v{r+7}, v7
        """)
    def reads(st):
        P.waitvm(("st", st))
        P("s_barrier")
        if st in (0, 2, 4):
            P.stamp(2 + st // 2)
        sl = st % NSLOT
        reg, off = sl // 2, (sl % 2) * SLOT
        for s in range(4):
            f = FR + 64 * (st & 1) + 16 * s
            P(f"ds_read_b128 v[{f}:{f+3}], v{AA+4*reg+s} offset:{off}")
            for q in range(3):
                P(f"ds_read_b128 v[{f+4+4*q}:{f+7+4*q}], v{AB+4*reg+s} offset:{off + 4096*q}")
    reads(0)
    for st in range(9):
        F0 = FR + 64 * (st & 1)
        for s in range(4):
            f = F0 + 16 * s
            for d in range(4):
                P(f"v_dot2c_f32_bf16 v{SUM}, v{f+d}, v{ONES}")
                P(f"v_dot2c_f32_bf16 v{SQ}, v{f+d}, v{f+d}")
            if s == 0:
                for q in range(3):
                    for d in range(4):
                        P(f"v_dot2c_f32_bf16 v{SB+q}, v{f+4+4*q+d}, v{ONES}")
        P("s_waitcnt lgkmcnt(0)")
        if st + 1 < 9:
            reads(st + 1)
            if st + NSLOT <= 8:
                issue_stage(st + NSLOT)
            if st + NSLOT == 8:
                prefetch(P, 246)
        for s in range(4):
            f = F0 + 16 * s
            for q in range(3):
                a = ACC + 16 * q
                c = "0" if (st == 0 and s == 0) else f"v[{a}:{a+15}]"
                P(f"v_mfma_f32_32x32x16_bf16 v[{a}:{a+15}], v[{f}:{f+3}], v[{f+4+4*q}:{f+7+4*q}], {c}")
    P.stamp(5)
    T = 112
    XTRA = NSLOT * SLOT
    for k, r in enumerate((SUM, SQ, SB, SB + 1, SB + 2)):
        P(f"v_mov_b32 v{T+k}, v{r}")
    for k, r in enumerate((SUM, SQ, SB, SB + 1, SB + 2)):
        P(f"v_permlane32_swap_b32 v{r}, v{T+k}")
    for k, r in enumerate((SUM, SQ, SB, SB + 1, SB + 2)):
        P(f"v_add_f32 v{r}, v{r}, v{T+k}")
    P(f"""
    v_mul_f32 v{SUM}, {f2u(1.0/576)}, v{SUM}
    v_mul_f32 v{SQ}, {f2u(1.0/576)}, v{SQ}
    v_fma_f32 v{SQ}, -v{SUM}, v{SUM}, v{SQ}
    v_max_f32 v{SQ}, 0, v{SQ}
    """)
    bf16r(P, SUM, SUM)
    bf16r(P, SQ, SQ)
    P(f"v_add_f32 v{SQ}, {f2u(1e-5)}, v{SQ}")
    bf16r(P, SQ, SQ)
    P(f"v_sqrt_f32 v{SQ}, v{SQ}")
    bf16r(P, SQ, SQ)
    P(f"v_rcp_f32 v{T}, v{SQ}")
    P(f"v_mul_f32 v{T+1}, v{T}, v{SUM}")
    P(f"""
    s_lshl_b32 s59, s53, 8
    s_add_u32 s59, s59, {XTRA}
    v_lshlrev_b32 v6, 3, v5
    v_add_u32 v6, s59, v6
    ds_write_b64 v6, v[{T}:{T+1}]
    v_lshrrev_b32 v7, 4, v2
    v_lshlrev_b32 v12, 6, v7
    v_add_u32 v12, s59, v12
    s_waitcnt lgkmcnt(0)
    """)
    ST = 120
    for k in range(4):
        P(f"ds_read_b128 v[{ST+4*k}:{ST+4*k+3}], v12 offset:{16*k}")
    SBI = 250
    SBL = XTRA + 1024 + 6144 + 512
    P(f"""
    v_and_b32 v136, 31, v2
    v_lshlrev_b32 v136, 4, v136
    s_lshl_b32 s60, s53, 2
    s_add_u32 s60, s60, {SBL}
    v_add_u32 v136, s60, v136
    v_and_b32 v137, 15, v2
    v_lshlrev_b32 v137, 4, v137
    v_add_u32 v137, {SBL}, v137
    """)
    for q in range(3):
        P(f"ds_write_b32 v136, v{SB+q} offset:{512*q}")
    P("s_waitcnt lgkmcnt(0)")
    P("s_barrier")
    for q in range(3):
        P(f"ds_read_b128 v[{144+8*q}:{147+8*q}], v137 offset:{512*q}")
        P(f"ds_read_b128 v[{148+8*q}:{151+8*q}], v137 offset:{512*q+256}")
    for q in range(3):
        for k, d in enumerate((SB + q, SBI + q)):
            r = 144 + 8 * q + 4 * k
            P(f"""
            v_add_f32 v{r}, v{r}, v{r+1}
            v_add_f32 v{r+2}, v{r+2}, v{r+3}
            v_add_f32 v{d}, v{r}, v{r+2}
            """)
    P(f"""
    s_lshl_b32 s59, s50, 2
    s_add_u32 s59, s59, s53
    s_mul_i32 s59, s59, 36
    s_mul_i32 s60, s51, 3
    s_add_u32 s59, s59, s60
    s_lshl_b32 s59, s59, 12
    s_add_u32 s59, s59, {WS_BU}
    v_lshlrev_b32 v13, 4, v2
    """)
    AGG = XTRA + 1024
    L8A = AGG + 6144
    P(f"""
    v_and_b32 v14, 15, v2
    v_lshlrev_b32 v15, 3, v14
    v_add_u32 v15, {L8A}, v15
    v_lshlrev_b32 v14, 7, v14
    v_lshl_add_u32 v14, v7, 3, v14
    s_lshl_b32 s60, s53, 5
    s_add_u32 s60, s60, {AGG}
    v_add_u32 v14, s60, v14
    """)
    for q in range(3):
        a = ACC + 16 * q
        r = PR + 8 * q
        for k in range(8):
            P(f"v_permlane16_swap_b32 v{a+k}, v{a+8+k}")
        P(f"""
        v_mul_f32 v136, v{r+6}, v{SB+q}
        v_fma_f32 v136, -v{r+7}, v{SBI+q}, v136
        v_mul_f32 v137, v{r+6}, v{SBI+q}
        v_fmac_f32 v137, v{r+7}, v{SB+q}
        """)
        for k in range(8):
            re_, im_ = a + k, a + 8 + k
            rt, rm = ST + 2 * k, ST + 2 * k + 1
            P(f"""
            v_mul_f32 v138, v{r+6}, v{re_}
            v_mul_f32 v139, v{r+6}, v{im_}
            v_fma_f32 v138, -v{r+7}, v{im_}, v138
            v_fmac_f32 v139, v{r+7}, v{re_}
            v_mul_f32 v{re_}, v{rt}, v138
            v_mul_f32 v{im_}, v{rt}, v139
            v_fma_f32 v{re_}, -v{rm}, v136, v{re_}
            v_fma_f32 v{im_}, -v{rm}, v137, v{im_}
            """)
            if k == 0:
                P(f"v_mov_b32 v140, v{re_}")
                P(f"v_mov_b32 v141, v{im_}")
            else:
                P(f"""
                v_fma_f32 v142, v{r+4}, v140, v{re_}
                v_fma_f32 v143, v{r+4}, v141, v{im_}
                v_fma_f32 v142, -v{r+5}, v141, v142
                v_fma_f32 v141, v{r+5}, v140, v143
                v_mov_b32 v140, v142
                """)
        P(f"ds_write_b64 v14, v[140:141] offset:{q*2048}")
        for k in range(4):
            P(f"s_add_u32 s60, s59, {q*4096 + k*1024}")
            P(f"buffer_store_dwordx4 v[{a+4*k}:{a+4*k+3}], v13, s[20:23], s60 offen")
        emit_pow(P, 8, r + 2, r + 3, 144, 145, 146)
        P(f"ds_write_b64 v15, v[144:145] offset:{q*128}")
    P("s_waitcnt lgkmcnt(0)")
    P("s_barrier")
    P.stamp(6)
    P("s_waitcnt vmcnt(0)") if os.environ.get("STAMPS") else None
    P.stamp(7)
    P.stamp(15, real=True)
    P.dump_stamps(9, 20, WS_DBG + 0x20000, 190)
    P("s_mov_b64 exec, -1") if os.environ.get("STAMPS") else None
    P(f"""
    v_cmp_gt_u32 vcc, 48, v0
    s_and_saveexec_b64 s[62:63], vcc
    s_cbranch_execz K1_END
    v_lshlrev_b32 v3, 7, v0
    v_add_u32 v3, {AGG}, v3
    v_lshlrev_b32 v4, 3, v0
    v_add_u32 v5, {L8A}, v4
    ds_read_b64 v[6:7], v5
    """)
    for k in range(8):
        P(f"ds_read_b128 v[{16+4*k}:{19+4*k}], v3 offset:{16*k}")
    P(f"""
    s_mul_i32 s59, s50, {16*576*8}
    s_lshl_b32 s60, s52, 3
    s_add_u32 s59, s59, s60
    s_add_u32 s59, s59, {WS_E8}
    v_mov_b32 v8, 0
    v_mov_b32 v9, 0
    """)
    cur = 8
    for j in range(16):
        P(f"s_add_u32 s61, s59, {j*576*8}")
        P(f"buffer_store_dwordx2 v[{cur}:{cur+1}], v4, s[20:23], s61 offen")
        nxt = 48 + 2 * j
        P(f"""
        v_fma_f32 v{nxt}, v6, v{cur}, v{16+2*j}
        v_fma_f32 v{nxt+1}, v6, v{cur+1}, v{17+2*j}
        v_fma_f32 v{nxt}, -v7, v{cur+1}, v{nxt}
        v_fma_f32 v{nxt+1}, v7, v{cur}, v{nxt+1}
        """)
        cur = nxt
    P(f"""
    s_mul_i32 s59, s50, {576*8}
    s_add_u32 s59, s59, s60
    s_add_u32 s59, s59, {WS_A128}
    buffer_store_dwordx2 v[{cur}:{cur+1}], v4, s[20:23], s59 offen
    s_branch K1_END
    """)

    P("K1_LN:")
    Prog._last[0] = 1
    P(f"""
    s_sub_u32 s50, s2, 192
    s_and_b32 s51, s50, 6
    s_lshl_b32 s51, s51, 3
    s_lshr_b32 s52, s50, 3
    s_lshl_b32 s52, s52, 1
    s_add_u32 s51, s51, s52
    v_lshrrev_b32 v1, 3, v0
    v_and_b32 v2, 7, v0
    s_lshl_b32 s52, s51, 5
    v_add_u32 v3, s52, v1
    v_mul_u32_u24 v3, 1152, v3
    v_lshl_add_u32 v3, v2, 4, v3
    s_mov_b32 s53, {32*1152}
    """)
    RAW = 8
    F = 80
    for t in range(2):
        for j in range(9):
            so = "0" if t == 0 else "s53"
            P(f"buffer_load_dwordx4 v[{RAW+36*t+4*j}:{RAW+36*t+4*j+3}], v3, s[8:11], {so} offen offset:{128*j}")
    prefetch(P, 160)
    P(f"""
    s_mul_i32 s52, s50, {18*CNT_STRIDE}
    s_add_u32 s52, s52, {WS_CNT}
    v_mul_u32_u24 v4, {CNT_STRIDE}, v0
    v_mov_b32 v5, -1
    v_cmp_gt_u32 vcc, 18, v0
    v_cndmask_b32 v4, v5, v4, vcc
    v_mov_b32 v5, 0
    buffer_store_dword v5, v4, s[20:23], s52 offen
    """)
    P(f"""
    v_lshrrev_b32 v4, 1, v2
    v_lshlrev_b32 v4, 10, v4
    v_and_b32 v5, 1, v2
    v_lshl_add_u32 v4, v5, 9, v4
    v_lshl_add_u32 v4, v1, 4, v4
    s_mul_i32 s52, s51, 36864
    s_and_b32 s53, s50, 1
    s_mul_i32 s53, s53, {XNF_BYTES}
    s_add_u32 s52, s52, s53
    """)

    def reduce8():
        P("""
        v_add_f32 v152, v152, v153
        v_add_f32_dpp v152, v152, v152 quad_perm:[1,0,3,2] row_mask:0xf bank_mask:0xf
        v_add_f32_dpp v152, v152, v152 quad_perm:[2,3,0,1] row_mask:0xf bank_mask:0xf
        v_add_f32_dpp v152, v152, v152 row_half_mirror row_mask:0xf bank_mask:0xf
        """)
    for t in range(2):
        R = RAW + 36 * t
        for d in range(36):
            P(f"v_lshlrev_b32 v{F+2*d}, 16, v{R+d}")
            P(f"v_and_b32 v{F+2*d+1}, 0xffff0000, v{R+d}")
            if d == 1:
                P(f"v_pk_add_f32 v[152:153], v[{F}:{F+1}], v[{F+2}:{F+3}]")
            elif d > 1:
                P(f"v_pk_add_f32 v[152:153], v[152:153], v[{F+2*d}:{F+2*d+1}]")
        reduce8()
        P(f"v_mul_f32 v154, {f2u(-1.0/576)}, v152")
        for d in range(36):
            P(f"v_pk_add_f32 v[156:157], v[{F+2*d}:{F+2*d+1}], v[154:155] op_sel_hi:[1,0]")
            if d == 0:
                P(f"v_pk_mul_f32 v[152:153], v[156:157], v[156:157]")
            else:
                P(f"v_pk_fma_f32 v[152:153], v[156:157], v[156:157], v[152:153]")
        reduce8()
        P(f"v_mul_f32 v158, {f2u(1.0/576)}, v152")
        bf16r(P, 154, 154)
        bf16r(P, 158, 158)
        P(f"v_add_f32 v158, {f2u(1e-5)}, v158")
        bf16r(P, 158, 158)
        P("v_sqrt_f32 v158, v158")
        bf16r(P, 158, 158)
        P("v_rcp_f32 v158, v158")
        for j in range(9):
            for d in range(4 * j, 4 * j + 4):
                a_, b_ = F + 2 * d, F + 2 * d + 1
                P(f"""
                v_pk_add_f32 v[{a_}:{b_}], v[{a_}:{b_}], v[154:155] op_sel_hi:[1,0]
                v_cvt_pk_bf16_f32 v{b_}, v{a_}, v{b_}
                v_lshlrev_b32 v{a_}, 16, v{b_}
                v_and_b32 v{b_}, 0xffff0000, v{b_}
                v_pk_mul_f32 v[{a_}:{b_}], v[{a_}:{b_}], v[158:159] op_sel_hi:[1,0]
                v_cvt_pk_bf16_f32 v{R+d}, v{a_}, v{b_}
                """)
            P(f"s_add_u32 s53, s52, {WS_XNF + 36864*t + 4096*j}")
            P(f"buffer_store_dwordx4 v[{R+4*j}:{R+4*j+3}], v4, s[20:23], s53 offen")
    P.stamp(2)
    P("s_waitcnt vmcnt(0)") if os.environ.get("STAMPS") else None
    P.stamp(3)
    P.stamp(15, real=True)
    P.dump_stamps(9, 20, WS_DBG + 0x20000, 190)
    P("K1_END:")
    P("s_endpgm")
    return kernel_text("k1_kernel", P.finalize(), vgpr=256, sgpr=102), NSLOT * SLOT + 1024 + 6144 + 512 + 1536
```

```python
import os, math
from asmlib import *
from layout import *
from k1 import srd, f2u, bf16r, emit_param_loads, emit_params, emit_pow, LOG2E

SLOT = 16384
E_BASE = 9 * SLOT
SCR = 9 * SLOT
LDS_BYTES = 10 * SLOT

V_LANE16 = 1
V_D4 = 2
V_DE = 4
V_R4 = 5
V_RE = 9
V_RE2 = 15
V_C0 = 10
V_T = 11
XV = 16
ACC = 48
WF = 208
NWF = 5
DIST = 4


def xreg(j, s):
    n = s * 2 + j
    if n < 64:
        return f"a[{4*n}:{4*n+3}]"
    n -= 64
    return f"v[{XV+4*n}:{XV+4*n+3}]"


def epilogue(slot, sreg, foff, halves=(0, 1), part="all"):
    E = Prog()
    if part == "store":
        for j in halves:
            a = ACC + 32 * slot + 16 * j
            E(f"s_add_u32 s71, s{sreg+j}, {foff}")
            E(f"buffer_store_dwordx4 v[{a}:{a+3}], v{V_LANE16}, s[20:23], s71 offen{os.environ.get('HST', '')}")
        return E.ins
    for j in halves:
        a = ACC + 32 * slot + 16 * j
        for e in range(8):
            g, u, t = a + e, a + 8 + e, V_T + (e & 1)
            E(f"""
            v_mul_f32 v{t}, v{g}, v{g}
            v_fma_f32 v{t}, v{t}, s70, v{V_C0}
            v_mul_f32 v{t}, v{g}, v{t}
            v_exp_f32 v{t}, v{t}
            v_mul_f32 v{u}, v{g}, v{u}
            v_add_f32 v{t}, 1.0, v{t}
            v_rcp_f32 v{g}, v{t}
            """)
            if e >= 1:
                E(f"v_mul_f32 v{u-1}, v{u-1}, v{g-1}")
            if e >= 2 and e % 2 == 0:
                E(f"v_cvt_pk_bf16_f32 v{a+(e-2)//2}, v{u-2}, v{u-1}")
        if part == "all":
            E(f"s_add_u32 s71, s{sreg+j}, {foff}")
        E(f"v_mul_f32 v{a+15}, v{a+15}, v{a+7}")
        E(f"v_cvt_pk_bf16_f32 v{a+3}, v{a+14}, v{a+15}")
        if part == "all":
            E(f"buffer_store_dwordx4 v[{a}:{a+3}], v{V_LANE16}, s[20:23], s71 offen{os.environ.get('HST', '')}")
    return E.ins


def cfma(E, ore, oim, a, bre, bim, cre, cim):
    E(f"""
    v_fma_f32 v{ore}, v{a}, v{bre}, v{cre}
    v_fma_f32 v{oim}, v{a}, v{bim}, v{cim}
    v_fma_f32 v{ore}, -v{a+1}, v{bim}, v{ore}
    v_fmac_f32 v{oim}, v{a+1}, v{bre}
    """)


def fixup():
    BU = ACC + 128
    T0, T1, A2, REV, T2, T3 = 228, 229, 230, 231, 232, 233
    L1, CAR, AG, E8, VE, VG, VW, VR = 234, 236, 238, 246, 254, 255, 13, 14
    FRG = AG
    C = Prog()
    C(f"""
    s_lshr_b32 s74, s2, 3
    s_lshl_b32 s75, s53, 5
    s_add_u32 s75, s75, s74
    s_cmp_lt_u32 s75, 72
    s_cselect_b32 s74, 0, 0x40000000
    s_and_b32 s76, s2, 7
    s_lshl_b32 s76, s76, 1
    s_cmp_ge_u32 s75, 36
    s_cselect_b32 s77, 1, 0
    s_add_u32 s76, s76, s77
    s_mul_i32 s77, s77, 36
    s_sub_u32 s75, s75, s77
    s_min_u32 s75, s75, 35
    """)
    npre = len(C.ins)
    C(f"""
    v_and_b32 v{VE}, 15, v0
    s_lshl_b32 s77, s75, 4
    v_add_u32 v{VE}, s77, v{VE}
    v_lshlrev_b32 v{T2}, 1, v{VE}
    v_lshlrev_b32 v{VE}, 3, v{VE}
    v_lshrrev_b32 v{VG}, 4, v0
    """)
    emit_param_loads(C, T2, T0, 24, 28, 32)
    C(f"""
    v_lshlrev_b32 v{T3}, 2, v{VG}
    s_sub_u32 s77, s76, 1
    v_sub_u32 v{T3}, s77, v{T3}
    v_mov_b32 v{L1}, 0x7fffffff
    s_add_u32 s78, s74, {WS_A128}
    """)
    for i in range(4):
        C(f"""
        v_subrev_u32 v{T2}, {i}, v{T3}
        v_cmp_gt_i32 vcc, 0, v{T2}
        v_mul_u32_u24 v{T2}, {576*8}, v{T2}
        v_add_u32 v{T2}, v{T2}, v{VE}
        v_cndmask_b32 v{T2}, v{T2}, v{L1}, vcc
        buffer_load_dwordx2 v[{AG+2*i}:{AG+2*i+1}], v{T2}, s[20:23], s78 offen
        """)
    C(f"""
    v_mul_u32_u24 v{T2}, {576*8}, v{VG}
    v_add_u32 v{VE}, v{T2}, v{VE}
    s_mul_i32 s78, s76, {16*576*8}
    s_add_u32 s78, s78, s74
    s_add_u32 s78, s78, {WS_E8}
    """)
    for u in range(4):
        C(f"buffer_load_dwordx2 v[{E8+2*u}:{E8+2*u+1}], v{VE}, s[20:23], s78 offen")
        if u < 3:
            C(f"s_add_u32 s78, s78, {4*576*8}")
    C(f"""
    s_mul_i32 s44, s76, {4*36}
    s_add_u32 s44, s44, s75
    s_lshl_b32 s44, s44, 12
    s_add_u32 s44, s44, s74
    s_add_u32 s44, s44, {WS_BU}
    s_mul_i32 s45, s76, {4*360}
    s_add_u32 s45, s45, s75
    s_lshl_b32 s45, s45, 10
    s_add_u32 s45, s45, s74
    s_add_u32 s45, s45, {WS_HF + 288*1024}
    """)

    def bu_load(u):
        b = BU + 16 * (u & 1)
        C(f"s_add_u32 s78, s44, {u*36*4096}")
        for q in range(4):
            C(f"buffer_load_dwordx4 v[{b+4*q}:{b+4*q+3}], v{V_LANE16}, s[20:23], s78 offen offset:{1024*q}")
    nld = len(C.ins)
    C(f"""
    s_lshl_b32 s77, s53, 11
    s_add_u32 s77, s77, {SCR}
    v_and_b32 v{VW}, 15, v0
    v_lshlrev_b32 v{VW}, 6, v{VW}
    v_lshl_add_u32 v{VW}, v{VG}, 4, v{VW}
    v_add_u32 v{VW}, s77, v{VW}
    v_lshrrev_b32 v{VR}, 5, v0
    v_lshlrev_b32 v{VR}, 3, v{VR}
    v_bfe_u32 v{T2}, v0, 2, 2
    v_add_u32 v{VR}, v{VR}, v{T2}
    v_lshlrev_b32 v{VR}, 6, v{VR}
    v_bfe_u32 v{T2}, v0, 4, 1
    v_lshl_add_u32 v{VR}, v{T2}, 5, v{VR}
    v_and_b32 v{T2}, 3, v0
    v_lshl_add_u32 v{VR}, v{T2}, 3, v{VR}
    v_add_u32 v{VR}, s77, v{VR}
    v_cvt_f32_u32 v{VG}, v{VG}
    """)
    emit_params(C, T0)
    emit_pow(C, 128, A2, REV, L1, L1 + 1, T0)
    C(f"v_mul_f32 v{T1}, {f2u(512.0)}, v{VG}")
    emit_pow(C, f"v{T1}", A2, REV, T2, T3, T0)
    cfma(C, AG + 4, AG + 5, L1, AG + 6, AG + 7, AG + 4, AG + 5)
    cfma(C, AG + 2, AG + 3, L1, AG + 4, AG + 5, AG + 2, AG + 3)
    cfma(C, AG + 0, AG + 1, L1, AG + 2, AG + 3, AG + 0, AG + 1)
    C(f"""
    v_mul_f32 v{CAR}, v{T2}, v{AG}
    v_mul_f32 v{CAR+1}, v{T2}, v{AG+1}
    v_fma_f32 v{CAR}, -v{T3}, v{AG+1}, v{CAR}
    v_fmac_f32 v{CAR+1}, v{T3}, v{AG}
    """)
    emit_pow(C, 1, A2, REV, L1, L1 + 1, T0)
    for pl in ("v_permlane16_swap_b32", "v_permlane32_swap_b32"):
        C(f"""
        v_mov_b32 v{T0}, v{CAR}
        v_mov_b32 v{T1}, v{CAR+1}
        {pl} v{CAR}, v{T0}
        {pl} v{CAR+1}, v{T1}
        v_add_f32 v{CAR}, v{CAR}, v{T0}
        v_add_f32 v{CAR+1}, v{CAR+1}, v{T1}
        """)
    for u in range(4):
        C(f"v_mov_b32 v{T1}, {f2u(32.0*u)}")
        C(f"v_fmac_f32 v{T1}, {f2u(8.0)}, v{VG}")
        emit_pow(C, f"v{T1}", A2, REV, T2, T3, T0)
        e = E8 + 2 * u
        cfma(C, e, e + 1, T2, CAR, CAR + 1, e, e + 1)
    ncar = len(C.ins)
    bu_load(0)
    bu_load(1)
    nbu = len(C.ins)
    for u in range(4):
        b = BU + 16 * (u & 1)
        e = E8 + 2 * u
        pre, pim = e, e + 1
        for k in range(8):
            cfma(C, b + k, b + 8 + k, L1, pre, pim, b + k, b + 8 + k)
            pre, pim = b + k, b + 8 + k
        for k in range(4):
            C(f"v_cvt_pk_bf16_f32 v{b+k}, v{b+2*k}, v{b+2*k+1}")
        for k in range(4):
            C(f"v_cvt_pk_bf16_f32 v{b+8+k}, -v{b+8+2*k}, -v{b+8+2*k+1}")
        C(f"""
        ds_write_b128 v{VW}, v[{b}:{b+3}]
        ds_write_b128 v{VW}, v[{b+8}:{b+11}] offset:1024
        ds_read_b64_tr_b16 v[{FRG}:{FRG+1}], v{VR}
        ds_read_b64_tr_b16 v[{FRG+2}:{FRG+3}], v{VR} offset:256
        ds_read_b64_tr_b16 v[{FRG+4}:{FRG+5}], v{VR} offset:1024
        ds_read_b64_tr_b16 v[{FRG+6}:{FRG+7}], v{VR} offset:1280
        s_add_u32 s77, s45, {u*360*1024}
        s_add_u32 s73, s45, {u*360*1024 + 36*1024}
        """)
        if u + 2 < 4:
            bu_load(u + 2)
        C(f"""
        buffer_store_dwordx4 v[{FRG}:{FRG+3}], v{V_LANE16}, s[20:23], s77 offen
        buffer_store_dwordx4 v[{FRG+4}:{FRG+7}], v{V_LANE16}, s[20:23], s73 offen
        """)
    return C.ins[:nld], C.ins[nld:ncar], C.ins[ncar:nbu], C.ins[nbu:]


def touch_k3():
    mode = os.environ.get("W3PF", "0")
    T = Prog()
    if mode == "0":
        return [], []
    pre = Prog()
    pre("s_load_dwordx2 s[82:83], s[0:1], 96")
    pre("s_load_dwordx4 s[100:101+2], s[0:1], 40") if False else None
    T(f"""
    s_lshr_b32 s77, s2, 3
    s_lshl_b32 s77, s77, 2
    s_add_u32 s77, s77, s53
    s_lshl_b32 s77, s77, 13
    v_lshlrev_b32 v229, 7, v0
    v_add_u32 v229, s77, v229
    """)
    def ld(srdn, soff):
        i = Ins(f"buffer_store_dword v228, v229, s[{srdn}:{srdn+3}], {soff} offen")
        i.text = f"buffer_load_dword v228, v229, s[{srdn}:{srdn+3}], {soff} offen"
        T.ins.append(i)
    HALF = 2304 * 1152
    if mode == "l2":
        T(f"""
        s_mul_i32 s77, s52, {HALF}
        s_add_u32 s24, s36, s77
        s_addc_u32 s25, s37, 0
        s_and_b32 s25, s25, 0xffff
        s_mov_b32 s26, {HALF}
        """)
        for i in range(3):
            T(f"s_mov_b32 s77, {i*8192*128}")
            ld(24, "s77")
        for k, (lo, hi) in enumerate(((38, 39), (40, 41))):
            d = 28 + 4 * k
            T(f"s_mov_b32 s{d}, s{lo}\ns_and_b32 s{d+1}, s{hi}, 0xffff\ns_mov_b32 s{d+2}, {576*1152}")
            ld(d, "0")
    else:
        Q = HALF // 4
        T(f"""
        s_and_b32 s77, s2, 7
        s_lshr_b32 s78, s77, 1
        s_lshl_b32 s77, s52, 2
        s_add_u32 s77, s77, s78
        s_mul_i32 s77, s77, {Q}
        s_add_u32 s24, s36, s77
        s_addc_u32 s25, s37, 0
        s_and_b32 s25, s25, 0xffff
        s_mov_b32 s26, {Q}
        """)
        ld(24, "0")
        E8_ = 576 * 1152 // 8
        for k, (lo, hi) in enumerate(((38, 39), (40, 41))):
            d = 28 + 4 * k
            T(f"""
            s_and_b32 s77, s2, 7
            s_mul_i32 s77, s77, {E8_}
            s_add_u32 s{d}, s{lo}, s77
            s_addc_u32 s{d+1}, s{hi}, 0
            s_and_b32 s{d+1}, s{d+1}, 0xffff
            s_mov_b32 s{d+2}, {E8_}
            """)
            ld(d, "0")
    return [], T.ins


def gen_k2():
    P = Prog()
    P("s_cmp_ge_u32 s2, 256")
    P("s_cbranch_scc1 K2_END")
    P.stamp(0, real=True)
    P.stamp(1)
    P("s_load_dwordx4 s[36:39], s[0:1], 80")
    P("s_load_dwordx2 s[48:49], s[0:1], 120")
    P("s_load_dwordx4 s[40:43], s[0:1], 8")
    P("s_load_dwordx2 s[46:47], s[0:1], 56")
    P("""
    v_lshrrev_b32 v2, 6, v0
    v_and_b32 v0, 63, v0
    v_readfirstlane_b32 s53, v2
    s_and_b32 s52, s2, 1
    s_lshr_b32 s50, s2, 4
    s_lshl_b32 s51, s52, 4
    s_add_u32 s50, s50, s51
    s_and_b32 s51, s2, 6
    s_bfe_u32 s54, s2, 0x10003
    s_add_u32 s51, s51, s54
    s_mov_b32 s79, s53
    """)
    P(f"v_lshlrev_b32 v{V_LANE16}, 4, v0")
    P(f"""
    s_lshl_b32 s54, s51, 3
    s_lshl_b32 s55, s53, 1
    s_add_u32 s54, s54, s55
    s_mul_i32 s64, s54, 36864
    s_mul_i32 s55, s52, {XNF_BYTES}
    s_add_u32 s64, s64, s55
    s_add_u32 s65, s64, 36864
    s_lshr_b32 s57, s50, 2
    s_and_b32 s58, s50, 3
    s_mul_i32 s66, s54, {360*1024}
    s_mul_i32 s55, s57, {36*1024}
    s_add_u32 s66, s66, s55
    s_add_u32 s66, s66, {WS_HF}
    s_lshl_b32 s55, s58, 10
    s_add_u32 s68, s66, s55
    s_add_u32 s68, s68, {32*1024}
    s_add_u32 s69, s68, {360*1024}
    s_lshl_b32 s55, s58, 13
    s_add_u32 s66, s66, s55
    s_add_u32 s67, s66, {360*1024}
    s_mul_i32 s56, s57, 1152
    s_lshl_b32 s55, s58, 5
    s_add_u32 s72, s56, s55
    s_add_u32 s72, s72, 1024
    s_lshl_b32 s55, s58, 8
    s_add_u32 s56, s56, s55
    s_mov_b32 s70, {f2u(-2.0*math.sqrt(2.0/math.pi)*LOG2E*0.044715)}
    v_mov_b32 v{V_C0}, {f2u(-2.0*math.sqrt(2.0/math.pi)*LOG2E)}
    """)
    P(f"""
    v_lshrrev_b32 v14, 3, v0
    v_and_b32 v15, 2, v14
    v_bfe_u32 v{V_D4}, v0, 1, 2
    v_xor_b32 v{V_D4}, v{V_D4}, v15
    v_lshlrev_b32 v{V_D4}, 5, v{V_D4}
    v_and_b32 v15, 1, v0
    v_lshl_add_u32 v{V_D4}, v15, 4, v{V_D4}
    s_lshl_b32 s57, s53, 4
    v_add_u32 v14, s57, v14
    v_mul_u32_u24 v14, 9216, v14
    v_add_u32 v{V_D4}, v{V_D4}, v14
    v_xor_b32 v{V_D4+1}, 32, v{V_D4}
    v_lshrrev_b32 v14, 1, v0
    s_lshl_b32 s57, s53, 1
    s_and_b32 s57, s57, 4
    v_xor_b32 v14, s57, v14
    v_mul_u32_u24 v14, 9216, v14
    v_lshl_add_u32 v{V_DE}, v15, 4, v14
    s_lshl_b32 s61, s53, 11
    """)
    P("s_waitcnt lgkmcnt(0)")
    srd(P, 8, 36, 37, 576 * 9216)
    srd(P, 12, 38, 39, 576 * 9216)
    srd(P, 20, 48, 49, WS_BYTES)

    slotA = [0, 1, 2, 3, 4, 0, 1, 2, 3]
    slotB = [5, 6, 7, 8, 4, 0, 1, 2, 3]
    freeB = [None, None, None, None, 4, 5, 6, 7, 8]

    def dma4(grp, kb):
        slot = (slotA if grp == 0 else slotB)[kb] * SLOT
        out = []
        for m in range(2):
            for i in range(2):
                D = Prog()
                D(f"s_add_u32 m0, s61, {slot + m*8192 + i*1024}")
                D(f"s_add_u32 s59, s56, {(kb*64 + i*8)*9216 + grp*128}")
                D(f"buffer_load_dwordx4 v{V_D4+m}, s[{8+4*m}:{11+4*m}], s59 offen lds", tag=("W", grp, kb))
                out.append((D.ins, 8))
        return out

    def dmaE(kb):
        D = Prog()
        D(f"s_add_u32 m0, s60, {(kb % 4)*4096}")
        D(f"s_add_u32 s59, s72, {kb*64*9216}")
        D(f"buffer_load_dwordx4 v{V_DE}, s[16:19], s59 offen lds", tag=("W", 1, kb))
        return [(D.ins, 32)]

    def xloads(kb):
        out = []
        for s in range(4):
            for j in range(2):
                D = Prog()
                D(f"s_add_u32 s62, s{64+j}, {WS_XNF + kb*4096}")
                D(f"buffer_load_dwordx4 {xreg(j, kb*4+s)}, v{V_LANE16}, s[20:23], s62 offen offset:{s*1024}")
                out.append((D.ins, 8))
        return out

    PRE = int(os.environ.get("K2PRE", "2"))
    for kb in range(PRE):
        for ins, _ in dma4(0, kb) + xloads(kb):
            P.extend(ins)
    srd(P, 24, 40, 41, 1152)
    srd(P, 28, 42, 43, 1152)
    srd(P, 32, 46, 47, 1152)
    P(f"""
    s_cmp_lt_u32 s53, 2
    s_cselect_b32 s16, s8, s12
    s_cselect_b32 s17, s9, s13
    s_mov_b32 s18, {576*9216}
    s_mov_b32 s19, 0x00020000
    s_and_b32 s57, s53, 1
    s_mul_i32 s55, s57, {32*9216}
    s_add_u32 s72, s72, s55
    s_lshl_b32 s60, s53, 10
    s_add_u32 s60, s60, {E_BASE}
    """)
    P(f"""
    v_and_b32 v14, 1, v0
    v_lshlrev_b32 v14, 4, v14
    v_bfe_u32 v15, v0, 1, 1
    v_lshl_add_u32 v14, v15, 3, v14
    v_lshrrev_b32 v15, 5, v0
    v_lshlrev_b32 v15, 3, v15
    v_bfe_u32 v{WF}, v0, 2, 2
    v_add_u32 v15, v15, v{WF}
    v_bfe_u32 v{WF+1}, v0, 4, 1
    v_and_b32 v{WF}, 2, v{WF}
    v_xor_b32 v{WF}, v{WF}, v{WF+1}
    v_lshl_add_u32 v{V_R4}, v15, 7, v14
    v_lshl_add_u32 v{V_R4}, v{WF+1}, 13, v{V_R4}
    v_lshl_add_u32 v{V_R4}, v{WF}, 5, v{V_R4}
    v_xor_b32 v{V_R4+1}, 32, v{V_R4}
    v_xor_b32 v{V_R4+2}, 64, v{V_R4}
    v_xor_b32 v{V_R4+3}, 96, v{V_R4}
    v_lshl_add_u32 v{V_RE}, v15, 5, v14
    v_lshl_add_u32 v{V_RE}, v{WF+1}, 11, v{V_RE}
    v_lshl_add_u32 v{V_RE}, v{WF+1}, 7, v{V_RE}
    v_add_u32 v{V_RE}, {E_BASE}, v{V_RE}
    v_xor_b32 v{V_RE2}, 128, v{V_RE}
    """)
    fx_pre, fx_car, fx_bu, fx_rec = fixup()
    if os.environ.get("NOFX"):
        fx_pre, fx_car, fx_bu, fx_rec = [], [], [], []
    P.extend(fx_pre)
    phases = [
        [("A", 0, 0), ("A", 1, 1), ("A", 2, 2), ("A", 3, 3)],
        [("E", 0, 4), ("B", 0, 0)],
        [("B", 1, 1)],
        [("B", 2, 2)],
        [("B", 3, 3)],
    ]
    frags = []
    unit = 0
    for ph, tiles in enumerate(phases):
        for kb in range(9):
            order = [(s_, t) for s_ in range(4) for t in tiles]
            if (ph == 0 and kb == 8) or (ph == 1 and kb == 0):
                order = [(s_, tiles[0]) for s_ in range(4)] + [(s_, t) for s_ in range(4) for t in tiles[1:]]
            for s_, (buf, g, sl) in order:
                frags.append(dict(ph=ph, buf=buf, kb=kb, s=s_, g=g, slot=sl, ks=kb * 4 + s_, unit=unit))
            unit += 1
    bar_units = set(range(0, 18)) | {19}
    items = []
    for kb in range(PRE, 9):
        rel = -1 if kb < 5 else kb - 5 + 2
        for ins, ln in dma4(0, kb):
            items.append([16 * kb - 1, rel, ins, ln])
        for ins, ln in xloads(kb):
            items.append([16 * kb, -1, ins, ln])
    for kb in range(9):
        rel = -1 if freeB[kb] is None else freeB[kb] + 2
        for ins, ln in dma4(1, kb):
            items.append([144 + 8 * kb, rel, ins, ln])
        rel = -1 if kb < 4 else 9 + (kb - 4) + 2
        for ins, ln in dmaE(kb):
            items.append([144 + 8 * kb - 1, rel, ins, ln])
    items.sort(key=lambda x: x[0])
    released = [-1]
    seen = set()
    region = [0]

    def frag_read(M, n, part):
        f = frags[n]
        u = f["unit"]
        if u not in seen:
            seen.add(u)
            if u in bar_units:
                M.waitvm(("W", 0 if f["buf"] == "A" else 1, f["kb"]))
                M("s_barrier")
                released[0] = u
                if u in (1, 3, 5, 7, 9, 11, 13, 15, 17):
                    M.stamp(3 + u // 2)
        b = WF + 4 * (n % NWF)
        if f["buf"] == "E":
            off = (f["kb"] % 4) * 4096 + f["s"] * 16 * 32
            base = V_RE if part == 0 else V_RE2
        else:
            sl = (slotA if f["buf"] == "A" else slotB)[f["kb"]]
            reg = sl // 3
            if reg != region[0]:
                d = (reg - region[0]) * 3 * SLOT
                for g in range(4):
                    M(f"v_add_u32 v{V_R4+g}, {d & 0xffffffff}, v{V_R4+g}")
                region[0] = reg
            base = V_R4 + f["g"]
            off = (sl % 3) * SLOT + f["s"] * 16 * 128 + part * 512
        M(f"ds_read_b64_tr_b16 v[{b+2*part}:{b+2*part+1}], v{base} offset:{off}")

    for n in range(DIST):
        frag_read(P, n, 0)
        frag_read(P, n, 1)
    P.stamp(2)
    CR0 = float(os.environ.get("CR0", "6.3"))
    CR1 = float(os.environ.get("CR1", "6.6"))
    credit = 0.0
    cur_ph = 0
    B = Prog()
    phase_lists = []
    late = []
    for n, f in enumerate(frags):
        if f["ph"] != cur_ph:
            phase_lists.append(B.ins)
            B = Prog()
            cur_ph = f["ph"]
        b = WF + 4 * (n % NWF)
        credit = min(credit + (CR0 if f["ph"] == 0 else CR1), 16.0)
        for j in range(2):
            a = ACC + 32 * f["slot"] + 16 * j
            c = "0" if f["ks"] == 0 else f"v[{a}:{a+15}]"
            B(f"v_mfma_f32_32x32x16_bf16 v[{a}:{a+15}], v[{b}:{b+3}], {xreg(j, f['ks'])}, {c}")
            if n + DIST < len(frags):
                frag_read(B, n + DIST, j)
            assert not items or items[0][0] > n + DIST + 1, ("load issued too late", n, items[0][0])
            if j == 1 and credit > 0:
                for k, it in enumerate(items):
                    if it[1] <= released[0]:
                        B.extend(it[2])
                        credit -= it[3]
                        late.append(it[0] - n)
                        del items[k]
                        break
    phase_lists.append(B.ins)
    assert not items, len(items)
    if os.environ.get("VERB"):
        print("lead (frags) of loads:", late)
    A_ = lambda t, **k: epilogue(t, 66, 1024 * t, **k)
    B_ = lambda t, **k: epilogue(t, 66, 4096 + 1024 * t, **k)
    L0, L1_ = phase_lists[0], phase_lists[1]
    n0 = sum(1 for i in L0 if i.kind == "mfma")
    L = L0 + L1_
    n01 = sum(1 for i in L if i.kind == "mfma")
    L = interleave2(L, fx_car, start=96, end=n0 - 26)
    L = interleave2(L, A_(0), start=n0 - 23, end=n0 + 7)
    L = interleave2(L, A_(1, part="calc") + A_(2, part="calc") + A_(3, part="calc") + A_(1, part="store"), start=n0 + 8, end=n01 - 1)
    P.extend(L)
    P.stamp(12)
    _, tk3 = touch_k3()
    if tk3:
        P("s_load_dwordx2 s[36:37], s[0:1], 96")
        P("s_load_dwordx2 s[38:39], s[0:1], 40")
        P("s_load_dwordx2 s[40:41], s[0:1], 48")
    nr = len(fx_rec)
    c1, c2 = int(nr * 0.12), int(nr * 0.40)
    fills = [epilogue(4, 68, 0) + fx_bu + A_(2, part="store") + A_(3, part="store") + B_(0, halves=(0,)) + fx_rec[:c1],
             B_(0, halves=(1,)) + fx_rec[c1:c2] + B_(1), fx_rec[c2:] + B_(2)]
    for k in range(3):
        L = phase_lists[2 + k]
        nm = sum(1 for i in L if i.kind == "mfma")
        P.extend(interleave2(L, fills[k], start=1, end=nm - 1))
        if k == int(os.environ.get("TK3AT", "0")):
            P.extend(tk3)
        if k >= 1:
            P.stamp(12 + k)
    P.extend(B_(3))
    P.stamp(15, real=True)
    P.dump_stamps(9, 20, WS_DBG + (0x10000 if os.environ.get('ALLST') else 0), 14)
    P("K2_END:")
    P("s_endpgm")
    return kernel_text("k2_kernel", P.finalize(), vgpr=256, agpr=256, sgpr=102), LDS_BYTES
```

```python
import os, math
from asmlib import *
from layout import *
from k1 import srd, f2u

STG = 24576
NS = 6
LDS_BYTES = NS * STG

V_LANE16 = 1
V_D = 2
V_D1 = 3
V_RB = 4
V_T = 10
HV = 16
ACC = 48
WF = 144
NWF = 8
DIST = 6
PB = 176


def hreg(ks):
    if ks < 64:
        return f"a[{4*ks}:{4*ks+3}]"
    n = ks - 64
    return f"v[{HV+4*n}:{HV+4*n+3}]"


SC = os.environ.get("PSC", " sc0 sc1")


def publish(g):
    E = Prog()
    a = ACC + 16 * g
    for k in range(8):
        E(f"v_cvt_pk_bf16_f32 v{PB+8*g+k}, v{a+2*k}, v{a+2*k+1}")
        if k % 4 == 3:
            r = PB + 8 * g + k - 3
            E(f"buffer_store_dwordx4 v[{r}:{r+3}], v{V_LANE16}, s[20:23], s{24+g} offen offset:{1024*(k//4)}{SC}")
    return E.ins


def main_loop(P, ssm):
    def dma(kb):
        slot = (kb % NS) * STG
        out = []
        for i in range(6):
            D = Prog()
            if not ssm:
                D(f"s_add_u32 m0, s61, {slot + (i >> 1)*8192 + (i & 1)*1024}")
                D(f"s_add_u32 s59, s56, {(kb*64 + (i & 1)*8)*1152 + (i >> 1)*128}")
                D(f"buffer_load_dwordx4 v{V_D}, s[8:11], s59 offen lds", tag=("W", kb))
            else:
                srdn = 8 if kb < 9 else 12
                D(f"s_add_u32 m0, s61, {slot + i*1024}")
                D(f"s_add_u32 s59, s56, {i*8*1152 + (kb % 9)*128}")
                D(f"buffer_load_dwordx4 v{V_D + (i & 1)}, s[{srdn}:{srdn+3}], s59 offen lds", tag=("W", kb))
            out.append((D.ins, 8))
        return out

    def hloads(kb):
        out = []
        for s in range(4):
            D = Prog()
            D(f"s_add_u32 s62, s64, {kb*4096}")
            D(f"buffer_load_dwordx4 {hreg(kb*4+s)}, v{V_LANE16}, s[20:23], s62 offen offset:{s*1024}")
            out.append((D.ins, 8))
        return out

    PRE = int(os.environ.get("K3PRE", "2"))
    for kb in range(PRE):
        for ins, _ in dma(kb) + hloads(kb):
            P.extend(ins)
    NT = int(os.environ.get("K3NT", "1"))
    frags = [dict(kb=kb, s=s, g=g) for kb in range(18 - NT) for s in range(4) for g in range(6)]
    frags += [dict(kb=kb, s=s, g=g) for g in range(6) for kb in range(18 - NT, 18) for s in range(4)]
    items = []
    for kb in range(PRE, 18):
        rel = -1 if kb < NS else kb - NS + 2
        first = min(n for n, f in enumerate(frags) if f["kb"] == kb)
        for ins, ln in dma(kb):
            items.append([first - DIST - 1, rel, ins, ln])
        for ins, ln in hloads(kb):
            items.append([first, -1, ins, ln])
    items.sort(key=lambda x: x[0])
    seen = set()
    released = [-1]
    region = [0]

    def frag_read(M, n):
        f = frags[n]
        kb = f["kb"]
        if kb not in seen:
            seen.add(kb)
            M.waitvm(("W", kb))
            M("s_barrier")
            released[0] = kb
            if kb in (11, 13, 15, 17) and not ssm:
                M.stamp(3 + (kb - 11) // 2)
        sl = kb % NS
        reg = sl // 2
        if reg != region[0]:
            d = (reg - region[0]) * 2 * STG
            for g in range(4 if ssm else 6):
                M(f"v_add_u32 v{V_RB+g}, {d & 0xffffffff}, v{V_RB+g}")
            region[0] = reg
        b = WF + 4 * (n % NWF)
        off = (sl % 2) * STG
        if not ssm:
            off += f["s"] * 16 * 128
            M(f"ds_read_b64_tr_b16 v[{b}:{b+1}], v{V_RB+f['g']} offset:{off}")
            M(f"ds_read_b64_tr_b16 v[{b+2}:{b+3}], v{V_RB+f['g']} offset:{off+512}")
        else:
            ph = 5 if f["g"] == 0 else (f["g"] + 4) % 5
            M(f"ds_read_b128 v[{b}:{b+3}], v{V_RB+f['s']} offset:{off + ph*4096}")

    for n in range(DIST):
        frag_read(P, n)
    if not ssm:
        P.stamp(2)
    CR = float(os.environ.get("CR3", "3.4"))
    credit = 0.0
    P0 = P
    P = Prog()
    MINLEAD = int(os.environ.get("K3LEAD", "40"))
    leads = []
    for n, f in enumerate(frags):
        b = WF + 4 * (n % NWF)
        a = ACC + 16 * f["g"]
        ks = f["kb"] * 4 + f["s"]
        c = "0" if ks == 0 else f"v[{a}:{a+15}]"
        P(f"v_mfma_f32_32x32x16_bf16 v[{a}:{a+15}], v[{b}:{b+3}], {hreg(ks)}, {c}")
        if n + DIST < len(frags):
            frag_read(P, n + DIST)
        rem = len(frags) - 1 - n
        if not ssm and rem % (4 * NT) == 0 and 1 <= rem // (4 * NT) <= 5:
            P.stamp(12 - rem // (4 * NT))
        credit = min(credit + CR, 12.0)
        assert not items or items[0][0] > n + 1, ("load issued too late", n, items[0][0])
        if credit > 0 or (items and items[0][0] - n < MINLEAD):
            for k, it in enumerate(items):
                if it[1] <= released[0]:
                    leads.append(it[0] - n)
                    P.extend(it[2])
                    credit -= it[3]
                    del items[k]
                    break
    assert not items
    if os.environ.get("VERB"):
        print("K3 leads", leads)
    L = P.ins
    nm = len(frags)
    T = 4 * NT
    for g in range(5):
        e = nm - (5 - g) * T
        L = interleave2(L, publish(g), start=e + 1, end=min(e + T, nm) - 1)
    P0.extend(L)


def gen_k3():
    P = Prog()
    P("s_cmp_ge_u32 s2, 240")
    P("s_cbranch_scc1 K3_END")
    P.stamp(0, real=True)
    P.stamp(1)
    P("s_load_dwordx4 s[36:39], s[0:1], 96")
    P("s_load_dwordx4 s[40:43], s[0:1], 40")
    P("s_load_dwordx2 s[48:49], s[0:1], 120")
    P("s_load_dwordx2 s[44:45], s[0:1], 0")
    P("s_load_dwordx2 s[46:47], s[0:1], 64")
    P(f"""
    v_lshrrev_b32 v2, 6, v0
    v_and_b32 v0, 63, v0
    v_readfirstlane_b32 s53, v2
    v_lshlrev_b32 v{V_LANE16}, 4, v0
    s_lshr_b32 s54, s2, 3
    s_and_b32 s55, s2, 7
    s_mov_b32 s79, s53
    """)
    P("""
    s_and_b32 s50, s55, 6
    s_lshl_b32 s50, s50, 1
    s_and_b32 s57, s54, 3
    s_add_u32 s50, s50, s57
    s_and_b32 s51, s55, 1
    s_lshl_b32 s51, s51, 1
    s_bfe_u32 s57, s54, 0x10002
    s_add_u32 s51, s51, s57
    s_lshr_b32 s52, s54, 3
    s_lshl_b32 s57, s55, 1
    s_and_b32 s58, s54, 1
    s_add_u32 s57, s57, s58
    s_bfe_u32 s58, s54, 0x20001
    s_cmp_ge_u32 s54, 24
    s_cselect_b32 s50, s57, s50
    s_cselect_b32 s51, 4, s51
    s_cselect_b32 s52, s58, s52
    """)
    P(f"""
    s_lshl_b32 s57, s50, 2
    s_add_u32 s57, s57, s53
    s_mul_i32 s64, s57, 360
    s_mul_i32 s58, s51, 72
    s_add_u32 s64, s64, s58
    s_lshl_b32 s64, s64, 10
    s_add_u32 s64, s64, {WS_HF}
    s_mov_b32 s63, s57
    """)
    P(f"""
    s_mul_i32 s54, s50, 3
    s_add_u32 s54, s54, s52
    s_mul_i32 s65, s54, {6*5*8192}
    s_lshl_b32 s57, s53, 11
    s_add_u32 s65, s65, s57
    s_add_u32 s65, s65, {WS_PART}
    s_lshl_b32 s66, s51, 13
    s_add_u32 s66, s66, s65
    s_add_u32 s24, s66, {5*5*8192}
    """)
    for L in range(1, 5):
        P(f"""
        s_add_u32 s57, s51, {L}
        s_cmp_ge_u32 s57, 5
        s_cselect_b32 s58, 5, 0
        s_sub_u32 s57, s57, s58
        s_mul_i32 s57, s57, {5*8192}
        s_add_u32 s{24+L}, s57, s66
        """)
    P("s_waitcnt lgkmcnt(0)")
    srd(P, 20, 48, 49, WS_BYTES)
    P("s_cmp_eq_u32 s51, 4")
    P("s_cbranch_scc1 K3_SSM")
    srd(P, 8, 36, 37, 4608 * 1152)
    P(f"""
    v_lshrrev_b32 v10, 3, v0
    v_bfe_u32 v11, v0, 4, 1
    v_lshlrev_b32 v11, 2, v11
    v_and_b32 v12, 7, v0
    v_xor_b32 v12, v12, v11
    s_lshl_b32 s57, s53, 4
    v_add_u32 v10, s57, v10
    v_mul_u32_u24 v10, 1152, v10
    v_lshl_add_u32 v{V_D}, v12, 4, v10
    s_mul_i32 s56, s51, {1152*1152}
    s_mul_i32 s57, s52, 384
    s_add_u32 s56, s56, s57
    s_lshl_b32 s61, s53, 11
    """)
    P(f"""
    v_lshrrev_b32 v10, 5, v0
    v_lshlrev_b32 v10, 3, v10
    v_bfe_u32 v11, v0, 2, 2
    v_add_u32 v10, v10, v11
    v_lshlrev_b32 v10, 7, v10
    v_bfe_u32 v11, v0, 3, 1
    v_lshl_add_u32 v10, v11, 6, v10
    v_and_b32 v11, 1, v0
    v_lshl_add_u32 v10, v11, 5, v10
    v_bfe_u32 v11, v0, 4, 1
    v_lshl_add_u32 v10, v11, 4, v10
    v_bfe_u32 v11, v0, 1, 1
    v_lshl_add_u32 v10, v11, 3, v10
    v_xor_b32 v{V_RB}, 64, v10
    v_add_u32 v{V_RB}, 16384, v{V_RB}
    """)
    for L in range(1, 6):
        P(f"""
        s_add_u32 s57, s51, {L}
        s_cmp_ge_u32 s57, 5
        s_cselect_b32 s58, 5, 0
        s_sub_u32 s57, s57, s58
        s_and_b32 s58, s57, 1
        s_lshl_b32 s58, s58, 6
        s_lshr_b32 s57, s57, 1
        s_lshl_b32 s57, s57, 13
        v_xor_b32 v{V_RB+L}, s58, v10
        v_add_u32 v{V_RB+L}, s57, v{V_RB+L}
        """)
    main_loop(P, False)
    P("s_branch K3_RED")
    P("K3_SSM:")
    srd(P, 8, 40, 41, 576 * 1152)
    srd(P, 12, 42, 43, 576 * 1152)
    P(f"""
    v_lshrrev_b32 v10, 3, v0
    v_lshrrev_b32 v11, 1, v10
    v_and_b32 v12, 7, v0
    v_xor_b32 v12, v12, v11
    s_mul_i32 s57, s53, 48
    v_add_u32 v10, s57, v10
    v_mul_u32_u24 v10, 1152, v10
    v_lshl_add_u32 v{V_D}, v12, 4, v10
    v_xor_b32 v{V_D1}, 64, v{V_D}
    s_mul_i32 s56, s52, {192*1152}
    s_mul_i32 s61, s53, 6144
    """)
    P(f"""
    v_and_b32 v10, 31, v0
    v_bfe_u32 v11, v10, 2, 1
    v_lshlrev_b32 v11, 4, v11
    v_lshrrev_b32 v12, 3, v10
    v_lshl_add_u32 v11, v12, 2, v11
    v_and_b32 v12, 3, v10
    v_add_u32 v11, v11, v12
    v_bfe_u32 v12, v11, 1, 3
    v_lshrrev_b32 v10, 5, v0
    v_xor_b32 v12, v12, v10
    v_lshlrev_b32 v12, 4, v12
    v_lshl_add_u32 v{V_RB}, v11, 7, v12
    v_xor_b32 v{V_RB+1}, 32, v{V_RB}
    v_xor_b32 v{V_RB+2}, 64, v{V_RB}
    v_xor_b32 v{V_RB+3}, 96, v{V_RB}
    """)
    main_loop(P, True)
    P("K3_RED:")
    P.stamp(12)
    srd(P, 8, 44, 45, 2048 * 1152)
    srd(P, 12, 46, 47, 1152)
    srd(P, 16, 38, 39, 2048 * 576 * 4)
    P(f"""
    v_and_b32 v10, 31, v0
    v_lshrrev_b32 v11, 5, v0
    s_lshl_b32 s57, s63, 5
    v_add_u32 v12, s57, v10
    v_mul_u32_u24 v13, 1152, v12
    v_lshl_add_u32 v13, v11, 5, v13
    v_lshlrev_b32 v14, 5, v11
    v_lshlrev_b32 v15, 4, v10
    v_lshl_add_u32 v15, v11, 10, v15
    v_lshlrev_b32 v12, 1, v13
    s_mul_i32 s67, s52, 384
    s_mul_i32 s68, s63, 36864
    s_mul_i32 s57, s52, {12*1024}
    s_add_u32 s68, s68, s57
    s_add_u32 s68, s68, {WS_XNF}
    """)

    def resid_loads(R, sphys):
        P(f"""
        s_lshl_b32 s57, s{sphys}, 6
        s_add_u32 s57, s57, s67
        s_lshl_b32 s58, s{sphys}, 11
        s_add_u32 s58, s58, s68
        buffer_load_dwordx4 v[{R}:{R+3}], v13, s[8:11], s57 offen
        buffer_load_dwordx4 v[{R+4}:{R+7}], v13, s[8:11], s57 offen offset:16
        buffer_load_dwordx4 v[{R+8}:{R+11}], v15, s[20:23], s58 offen
        buffer_load_dwordx4 v[{R+12}:{R+15}], v15, s[20:23], s58 offen offset:512
        buffer_load_dwordx4 v[{R+16}:{R+19}], v14, s[12:15], s57 offen
        buffer_load_dwordx4 v[{R+20}:{R+23}], v14, s[12:15], s57 offen offset:16
        """)

    def resid_add(R, a):
        for k in range(8):
            x, xn, dd = R + k, R + 8 + k, R + 16 + k
            P(f"""
            v_lshlrev_b32 v10, 16, v{xn}
            v_and_b32 v{xn}, 0xffff0000, v{xn}
            v_lshlrev_b32 v11, 16, v{dd}
            v_and_b32 v{dd}, 0xffff0000, v{dd}
            v_mul_f32 v10, v10, v11
            v_mul_f32 v{xn}, v{xn}, v{dd}
            v_cvt_pk_bf16_f32 v{xn}, v10, v{xn}
            v_lshlrev_b32 v10, 16, v{xn}
            v_and_b32 v{xn}, 0xffff0000, v{xn}
            v_lshlrev_b32 v11, 16, v{x}
            v_and_b32 v{x}, 0xffff0000, v{x}
            v_add_f32 v10, v10, v11
            v_add_f32 v{xn}, v{xn}, v{x}
            v_add_f32 v{a+2*k}, v{a+2*k}, v10
            v_add_f32 v{a+2*k+1}, v{a+2*k+1}, v{xn}
            """)
    RS = WF
    resid_loads(RS, 51)
    resid_add(RS, ACC + 80)
    P(f"""
    s_waitcnt vmcnt(0)
    s_lshl_b32 s57, s54, 2
    s_add_u32 s57, s57, s53
    s_mul_i32 s69, s57, {CNT_STRIDE}
    s_add_u32 s69, s69, {WS_CNT}
    v_mov_b32 v10, 0
    v_mov_b32 v11, 1
    s_mov_b64 exec, 1
    buffer_atomic_add v11, v10, s[20:23], s69 offen sc1
    s_mov_b32 s70, 0
    """)
    P.stamp(13)
    P("s_waitcnt lgkmcnt(0)")
    P("K3_POLL:")
    P(f"""
    buffer_load_dword v11, v10, s[20:23], s69 offen sc0 sc1
    s_waitcnt vmcnt(0)
    v_readfirstlane_b32 s71, v11
    s_add_u32 s70, s70, 1
    s_cmp_ge_u32 s71, 5
    s_cbranch_scc1 K3_GO
    s_sleep 1
    s_cmp_lt_u32 s70, 200000
    s_cbranch_scc1 K3_POLL
    """)
    P("K3_GO:")
    P("s_mov_b64 exec, -1")
    P.stamp(14)

    def reduce_tile(a, sphys):
        P(f"s_mul_i32 s72, s{sphys}, {5*8192}")
        P(f"s_add_u32 s72, s72, s65")
        for i in range(1, 5):
            P(f"""
            s_add_u32 s57, s51, {i}
            s_cmp_ge_u32 s57, 5
            s_cselect_b32 s58, 5, 0
            s_sub_u32 s57, s57, s58
            s_lshl_b32 s57, s57, 13
            s_add_u32 s57, s57, s72
            """)
            for q in range(2):
                r = PB + 40 + 8 * (i - 1) + 4 * q
                P(f"buffer_load_dwordx4 v[{r}:{r+3}], v{V_LANE16}, s[20:23], s57 offen offset:{1024*q} sc0 sc1")
        for i in range(4):
            for k in range(8):
                r = PB + 40 + 8 * i + k
                P(f"""
                v_lshlrev_b32 v10, 16, v{r}
                v_and_b32 v{r}, 0xffff0000, v{r}
                v_add_f32 v{a+2*k}, v{a+2*k}, v10
                v_add_f32 v{a+2*k+1}, v{a+2*k+1}, v{r}
                """)
        P(f"""
        s_lshl_b32 s57, s{sphys}, 7
        s_lshl_b32 s58, s67, 1
        s_add_u32 s57, s57, s58
        """)
        for q in range(4):
            P(f"buffer_store_dwordx4 v[{a+4*q}:{a+4*q+3}], v12, s[16:19], s57 offen offset:{16*q}")
    reduce_tile(ACC + 80, 51)
    P("s_cmp_lg_u32 s51, s53")
    P("s_cbranch_scc1 K3_FIN")
    P("s_mov_b32 s73, 5")
    resid_loads(RS, 73)
    resid_add(RS, ACC)
    reduce_tile(ACC, 73)
    P("K3_FIN:")
    P.stamp(15, real=True)
    P.dump_stamps(9, 20, WS_DBG, 10)
    P("K3_END:")
    P("s_endpgm")
    return kernel_text("k3_kernel", P.finalize(), vgpr=256, agpr=256, sgpr=102), LDS_BYTES
```

```python
import re

REG_RE = re.compile(r"\b([vas])(\d+)\b|\b([vas])\[(\d+):(\d+)\]|\b(vcc|exec|m0|scc)\b")
TRANS = ("v_exp_f32", "v_log_f32", "v_rcp_f32", "v_rsq_f32", "v_sqrt_f32", "v_sin_f32", "v_cos_f32")


def regs_of(tok):
    out = []
    for m in REG_RE.finditer(tok):
        if m.group(1):
            out.append((m.group(1), int(m.group(2))))
        elif m.group(3):
            out += [(m.group(3), i) for i in range(int(m.group(4)), int(m.group(5)) + 1)]
        else:
            out.append((m.group(6), 0))
    return out


def split_ops(s):
    ops, depth, cur = [], 0, ""
    for ch in s:
        if ch in "[(":
            depth += 1
        elif ch in "])":
            depth -= 1
        if ch == "," and depth == 0:
            ops.append(cur.strip())
            cur = ""
        else:
            cur += ch
    if cur.strip():
        ops.append(cur.strip())
    return ops


class Ins:
    __slots__ = ("text", "mn", "kind", "reads", "writes", "tag", "srcc", "srcab", "wide_store", "dpp", "opts")

    def __init__(self, text, tag=None):
        self.text = text
        self.tag = tag
        self.srcc = []
        self.srcab = []
        self.wide_store = False
        self.dpp = False
        t = text.split(";")[0].strip()
        if t.endswith(":") or t.startswith("."):
            self.mn, self.kind, self.reads, self.writes = t, "label", [], []
            return
        parts = t.split(None, 1)
        mn = parts[0]
        self.mn = mn
        rest = parts[1] if len(parts) > 1 else ""
        ops = split_ops(rest)
        R, W = [], []
        allr = lambda xs: [r for o in xs for r in regs_of(o)]
        if mn.startswith("v_mfma"):
            self.kind = "mfma"
            W = regs_of(ops[0])
            self.srcab = regs_of(ops[1]) + regs_of(ops[2])
            self.srcc = regs_of(ops[3])
            R = self.srcab + self.srcc
        elif mn.startswith("v_"):
            self.kind = "valu"
            base = mn.replace("_e32", "").replace("_e64", "")
            if base in TRANS:
                self.kind = "trans"
            if "_dpp" in mn or "quad_perm" in rest or "row_" in rest:
                self.dpp = True
            if mn.startswith("v_permlane"):
                self.kind = "permlane"
                W = allr(ops[:2])
                R = allr(ops[:2])
            elif mn.startswith("v_cmp"):
                W = regs_of(ops[0])
                R = allr(ops[1:])
            else:
                W = regs_of(ops[0])
                R = allr(ops[1:])
                if mn.startswith(("v_fmac", "v_dot2c", "v_pk_fmac")) or self.dpp:
                    R = R + W
                if mn.startswith("v_dot"):
                    self.kind = "dot"
            R = R + [("exec", 0)]
        elif mn.startswith("buffer_load"):
            if re.search(r"\blds\b", rest):
                self.kind = "dma"
                R = allr(ops) + [("m0", 0)]
            else:
                self.kind = "vload"
                W = regs_of(ops[0])
                R = allr(ops[1:])
        elif mn.startswith("buffer_store"):
            self.kind = "vstore"
            R = allr(ops)
            self.wide_store = mn.endswith(("x3", "x4"))
            self.srcc = regs_of(ops[0])
        elif mn.startswith("buffer_atomic"):
            if re.search(r"\bsc0\b", rest):
                self.kind = "vload"
                W = regs_of(ops[0])
            else:
                self.kind = "vstore"
            R = allr(ops)
        elif mn in ("buffer_inv", "buffer_wbl2"):
            self.kind = "vstore"
        elif mn.startswith(("ds_read", "ds_bpermute", "ds_permute", "ds_swizzle")):
            self.kind = "dsread"
            W = regs_of(ops[0])
            R = allr(ops[1:])
        elif mn.startswith("ds_"):
            self.kind = "dswrite"
            R = allr(ops)
        elif mn.startswith(("s_load", "s_memtime", "s_memrealtime")):
            self.kind = "smem"
            W = regs_of(ops[0])
            R = allr(ops[1:])
        elif mn == "s_waitcnt":
            self.kind = "waitcnt"
        elif mn == "s_nop":
            self.kind = "nop"
        elif mn in ("s_barrier", "s_sleep", "s_setprio", "s_endpgm"):
            self.kind = "other"
        elif mn.startswith(("s_cbranch", "s_branch")):
            self.kind = "branch"
        elif mn.startswith("s_cmp"):
            self.kind = "salu"
            R = allr(ops)
            W = [("scc", 0)]
        elif mn.startswith("s_"):
            self.kind = "salu"
            W = regs_of(ops[0])
            R = allr(ops[1:])
            if "saveexec" in mn:
                W = W + [("exec", 0)]
        elif mn == "@waitvm":
            self.kind = "waitvm"
        elif mn == "@waitlgkm":
            self.kind = "waitlgkm"
        else:
            raise ValueError("unknown instruction: " + text)
        self.reads, self.writes = R, W


class Prog:
    def __init__(self):
        self.ins = []

    def __call__(self, text, tag=None):
        for line in text.strip().split("\n"):
            line = line.strip()
            if line and not line.startswith(";"):
                self.ins.append(Ins(line, tag))

    def extend(self, lst):
        self.ins.extend(lst)

    def waitvm(self, tag):
        i = Ins("@waitvm")
        i.tag = tag
        self.ins.append(i)

    def waitlgkm(self, tag):
        i = Ins("@waitlgkm")
        i.tag = tag
        self.ins.append(i)

    _last = [None]
    def stamp(self, k, real=False):
        import os
        if not os.environ.get("STAMPS"):
            return
        if Prog._last[0] is not None:
            self(f"s_mov_b32 s{84 + Prog._last[0]}, s80")
        Prog._last[0] = k
        self(f"{'s_memrealtime' if real else 's_memtime'} s[80:81]")

    def dump_stamps(self, n, srd, base, vtmp=0, keep=False):
        import os
        if not os.environ.get("STAMPS"):
            return
        self(f"s_mov_b32 s{84 + Prog._last[0]}, s80")
        Prog._last[0] = None
        self("s_mov_b64 exec, 1")
        self(f"s_lshl_b32 s78, s2, 2")
        self(f"s_add_u32 s78, s78, s79")
        self(f"s_lshl_b32 s78, s78, 6")
        self(f"s_add_u32 s78, s78, {base}")
        self(f"v_mov_b32 v{vtmp}, 0")
        for k in range(16):
            self(f"v_mov_b32 v{vtmp+1}, s{84 + k}")
            self(f"buffer_store_dword v{vtmp+1}, v{vtmp}, s[{srd}:{srd+3}], s78 offen offset:{4*k}")

    def finalize(self):
        out = self._waits(self.ins)
        out = self._hazards(out)
        return "\n".join(("" if i.kind == "label" else "    ") + i.text for i in out) + "\n"

    def _waits(self, ins):
        out = []
        vm = []
        lg = []

        def do_wait(nvm=None, nlg=None):
            s = "s_waitcnt"
            if nvm is not None:
                nvm = min(nvm, 63)
                s += " vmcnt(%d)" % nvm
                del vm[: max(0, len(vm) - nvm)]
            if nlg is not None:
                nlg = min(nlg, 15)
                s += " lgkmcnt(%d)" % nlg
                del lg[: max(0, len(lg) - nlg)]
            out.append(Ins(s))

        for i in ins:
            if i.kind == "branch" and i.tag == "keepall":
                snap = (list(vm), list(lg))
                out.append(i)
                continue
            if i.kind == "label" and i.tag == "nop":
                out.append(i)
                continue
            if i.kind == "label" and i.tag == "restore":
                vm[:] = snap[0]
                lg[:] = snap[1]
                out.append(i)
                continue
            if i.kind in ("label", "branch"):
                pend_vm = any(e[0] and e[1] != "keep" for e in vm)
                pend_lg = any(e[0] for e in lg)
                if pend_vm or pend_lg:
                    do_wait(0 if pend_vm else None, 0 if pend_lg else None)
                if i.kind == "label" and not i.text.startswith("."):
                    vm.clear()
                    lg.clear()
                out.append(i)
                continue
            if i.kind == "waitvm":
                idx = max((k for k, e in enumerate(vm) if e[1] == i.tag), default=-1)
                if idx >= 0:
                    do_wait(nvm=len(vm) - 1 - idx)
                continue
            if i.kind == "waitlgkm":
                idx = max((k for k, e in enumerate(lg) if e[1] == i.tag), default=-1)
                if idx >= 0:
                    if any(e[2] for e in lg):
                        do_wait(nlg=0)
                    else:
                        do_wait(nlg=len(lg) - 1 - idx)
                continue
            if i.kind == "waitcnt":
                m = re.search(r"vmcnt\((\d+)\)", i.text)
                if m:
                    del vm[: max(0, len(vm) - int(m.group(1)))]
                m = re.search(r"lgkmcnt\((\d+)\)", i.text)
                if m:
                    n = int(m.group(1))
                    if n == 0 or not any(e[2] for e in lg):
                        del lg[: max(0, len(lg) - n)]
                out.append(i)
                continue
            touched = set(i.reads) | set(i.writes)
            nvm = nlg = None
            idx = max((k for k, e in enumerate(vm) if e[0] & touched), default=-1)
            if idx >= 0:
                nvm = len(vm) - 1 - idx
            idx = max((k for k, e in enumerate(lg) if e[0] & touched), default=-1)
            if idx >= 0:
                nlg = 0 if any(e[2] for e in lg) else len(lg) - 1 - idx
            if i.kind in ("vload", "vstore", "dma") and len(vm) >= 63:
                nvm = 62 if nvm is None else min(nvm, 62)
            if nvm is not None or nlg is not None:
                do_wait(nvm, nlg)
            out.append(i)
            if i.kind == "vload":
                vm.append((set(i.writes), i.tag))
            elif i.kind in ("vstore", "dma"):
                vm.append((set(), i.tag))
            elif i.kind == "dsread":
                lg.append((set(i.writes), i.tag, False))
            elif i.kind == "dswrite":
                lg.append((set(), i.tag, False))
            elif i.kind == "smem":
                lg.append((set(i.writes), i.tag, True))
            if len(vm) > 63:
                raise ValueError("more than 63 vector-memory ops outstanding at: " + i.text)
        return out

    def _hazards(self, ins):
        out = []
        pos = 0
        valu_w = {}
        trans_w = {}
        dot_w = {}
        mfma_w = {}
        mfma_c = {}
        store_d = {}
        m0_w = -100
        VAL = ("valu", "trans", "dot", "permlane")
        for i in ins:
            if i.kind == "label":
                if i.tag == "restore":
                    pos, m0_w = hs[0], hs[1]
                    for d, sv in zip((valu_w, trans_w, dot_w, mfma_w, mfma_c, store_d), hs[2]):
                        d.clear()
                        d.update(sv)
                out.append(i)
                continue
            if i.kind == "branch" and i.tag == "keepall":
                hs = (pos + 1, m0_w, [dict(d) for d in (valu_w, trans_w, dot_w, mfma_w, mfma_c, store_d)])
            need = 0

            def req(p, ws):
                nonlocal need
                need = max(need, ws - (pos - p - 1))

            if i.kind == "mfma":
                for r in i.reads:
                    if r in valu_w:
                        req(valu_w[r], 2)
                    if r in dot_w:
                        req(dot_w[r][0], 3)
                for r in i.srcab:
                    if r in mfma_w:
                        req(mfma_w[r][0], 12)
                for r in i.srcc:
                    if r in mfma_w and mfma_w[r][1] != tuple(i.srcc):
                        req(mfma_w[r][0], 10)
                if not i.srcc:
                    for r in i.writes:
                        if r in mfma_w:
                            req(mfma_w[r][0], 12)
                if ("exec", 0) in valu_w:
                    req(valu_w[("exec", 0)], 4)
            elif i.kind in VAL:
                for r in list(i.reads) + list(i.writes):
                    if r in mfma_w:
                        req(mfma_w[r][0], 12)
                for r in i.writes:
                    if r in mfma_c:
                        req(mfma_c[r], 7)
                    if r in store_d:
                        req(store_d[r], 2)
                for r in i.reads:
                    if r in trans_w and i.kind != "trans":
                        req(trans_w[r], 1)
                    if r[0] in ("s", "vcc") and r in valu_w:
                        req(valu_w[r], 4 if i.mn.startswith(("v_readlane", "v_writelane")) else 2)
                    if (i.kind == "permlane" or i.dpp) and r in valu_w and r[0] == "v":
                        req(valu_w[r], 2)
                    if i.mn.startswith(("v_readfirstlane", "v_readlane")) and r in valu_w and r[0] == "v":
                        req(valu_w[r], 1)
                for r in list(i.reads) + list(i.writes):
                    if r in dot_w:
                        p, mn = dot_w[r]
                        same_acc = (mn == i.mn and r in i.writes)
                        if not same_acc:
                            req(p, 3)
            elif i.kind in ("vload", "vstore", "dma", "dsread", "dswrite"):
                for r in list(i.reads) + list(i.writes):
                    if r in mfma_w:
                        req(mfma_w[r][0], 12)
                    if r in dot_w:
                        req(dot_w[r][0], 3)
                for r in i.reads:
                    if r[0] == "s" and r in valu_w:
                        req(valu_w[r], 5)
                    if r in trans_w:
                        req(trans_w[r], 1)
                for r in i.writes:
                    if r in store_d:
                        req(store_d[r], 1)
                    if r in mfma_c:
                        req(mfma_c[r], 7)
                if i.kind == "dma":
                    req(m0_w, 1)
            elif i.kind in ("salu", "smem", "branch"):
                for r in i.reads:
                    if r in valu_w:
                        req(valu_w[r], 2)
            while need > 0:
                n = min(need, 16)
                out.append(Ins("s_nop %d" % (n - 1)))
                pos += n
                need -= n
            out.append(i)
            if i.kind == "mfma":
                for r in i.writes:
                    mfma_w[r] = (pos, tuple(i.writes))
                for r in i.srcc:
                    mfma_c[r] = pos
            elif i.kind in VAL:
                for r in i.writes:
                    valu_w[r] = pos
                    mfma_w.pop(r, None)
                    if i.kind == "trans":
                        trans_w[r] = pos
                    else:
                        trans_w.pop(r, None)
                    if i.kind == "dot":
                        dot_w[r] = (pos, i.mn)
                    else:
                        dot_w.pop(r, None)
            elif i.kind == "vstore" and i.wide_store:
                for r in i.srcc:
                    store_d[r] = pos
            elif i.kind == "salu":
                for r in i.writes:
                    if r == ("m0", 0):
                        m0_w = pos
                    valu_w.pop(r, None)
            if i.kind == "nop":
                pos += int(i.text.split()[1]) + 1
            else:
                pos += 1
        return out


def interleave(main, fill, start=0, end=None, per=None):
    idx = [k for k, i in enumerate(main) if i.kind == "mfma"]
    if end is None:
        end = len(idx)
    slots = idx[start:end]
    n = len(slots)
    out = []
    fi = 0
    slot_of = {k: j for j, k in enumerate(slots)}
    for k, i in enumerate(main):
        out.append(i)
        if k in slot_of:
            j = slot_of[k]
            if per is None:
                tgt = (len(fill) * (j + 1) + n - 1) // n
            else:
                tgt = min(len(fill), per * (j + 1))
            if j == n - 1:
                tgt = len(fill)
            while fi < tgt:
                out.append(fill[fi])
                fi += 1
    assert fi == len(fill)
    return out


def icost(i):
    if i.kind in ("trans", "permlane"):
        return 8
    if i.kind in ("waitvm", "waitlgkm", "label"):
        return 0 if i.kind == "label" else 4
    return 4


def interleave2(main, fill, start=0, end=None, budget=24):
    idx = [k for k, i in enumerate(main) if i.kind == "mfma"]
    if end is None:
        end = len(idx)
    gaps = []
    for j in range(start, end):
        lo = idx[j]
        hi = idx[j + 1] if j + 1 < len(idx) else len(main)
        used = sum(icost(i) for i in main[lo + 1:hi])
        gaps.append((hi, max(2, budget - used)))
    total_slack = sum(g[1] for g in gaps)
    total_fill = sum(icost(i) for i in fill)
    ins_at = {}
    fi = 0
    cum_s = 0
    cum_f = 0
    for n, (hi, sl) in enumerate(gaps):
        cum_s += sl
        tgt = total_fill * cum_s / total_slack
        L = []
        while fi < len(fill) and (cum_f + icost(fill[fi]) / 2 <= tgt or n == len(gaps) - 1):
            L.append(fill[fi])
            cum_f += icost(fill[fi])
            fi += 1
        ins_at[hi] = L
    out = []
    for k, i in enumerate(main):
        if k in ins_at:
            out += ins_at[k]
        out.append(i)
    if len(main) in ins_at:
        out += ins_at[len(main)]
    assert fi == len(fill)
    return out


def kernel_text(name, body, vgpr, agpr=0, sgpr=96):
    acc = (vgpr + 3) // 4 * 4
    total = acc + agpr if agpr else vgpr
    return f"""
.text
.globl {name}
.p2align 8
.type {name},@function
{name}:
{body}
.section .rodata,"a"
.p2align 6
.amdhsa_kernel {name}
  .amdhsa_next_free_vgpr {total}
  .amdhsa_next_free_sgpr {sgpr}
  .amdhsa_accum_offset {acc}
  .amdhsa_group_segment_fixed_size 0
  .amdhsa_kernarg_size 128
  .amdhsa_user_sgpr_count 2
  .amdhsa_user_sgpr_kernarg_segment_ptr 1
  .amdhsa_system_sgpr_workgroup_id_x 1
  .amdhsa_float_denorm_mode_32 3
.end_amdhsa_kernel
"""
```

```python
import struct, os
from asmlib import *
from layout import *


def f2u(x):
    return "0x%08x" % struct.unpack("<I", struct.pack("<f", x))[0]


LOG2E = 1.4426950408889634
INV2PI = 0.15915494309189535


def srd(P, d, lo, hi, nbytes):
    P(f"s_mov_b32 s{d}, s{lo}")
    P(f"s_and_b32 s{d+1}, s{hi}, 0xffff")
    P(f"s_mov_b32 s{d+2}, {nbytes}")
    P(f"s_mov_b32 s{d+3}, 0x00020000")


def bf16r(P, dst, src):
    P(f"v_cvt_pk_bf16_f32 v{dst}, v{src}, v{src}")
    P(f"v_lshlrev_b32 v{dst}, 16, v{dst}")


def emit_param_loads(P, voff, r, s_lre, s_lim, s_ldt):
    P(f"buffer_load_ushort v{r}, v{voff}, s[{s_lre}:{s_lre+3}], 0 offen")
    P(f"buffer_load_ushort v{r+1}, v{voff}, s[{s_lim}:{s_lim+3}], 0 offen")
    P(f"buffer_load_ushort v{r+2}, v{voff}, s[{s_ldt}:{s_ldt+3}], 0 offen")


def emit_params(P, r):
    P(f"v_lshlrev_b32 v{r}, 16, v{r}")
    P(f"v_lshlrev_b32 v{r+1}, 16, v{r+1}")
    P(f"v_lshlrev_b32 v{r+2}, 16, v{r+2}")
    P(f"v_mul_f32 v{r+2}, {f2u(LOG2E)}, v{r+2}")
    P(f"v_exp_f32 v{r+2}, v{r+2}")
    bf16r(P, r + 2, r + 2)
    P(f"v_mul_f32 v{r+3}, v{r+2}, v{r+1}")
    P(f"v_mul_f32 v{r+2}, v{r+2}, v{r}")
    P(f"v_mul_f32 v{r+3}, {f2u(INV2PI)}, v{r+3}")
    P(f"v_mul_f32 v{r+2}, {f2u(LOG2E)}, v{r+2}")


def emit_pow(P, n, a2, rev, ore, oim, t):
    if n == 1:
        P(f"v_exp_f32 v{t}, v{a2}")
        P(f"v_fract_f32 v{oim}, v{rev}")
    else:
        ns = n if isinstance(n, str) else f2u(float(n))
        P(f"v_mul_f32 v{t}, {ns}, v{a2}")
        P(f"v_mul_f32 v{oim}, {ns}, v{rev}")
        P(f"v_exp_f32 v{t}, v{t}")
        P(f"v_fract_f32 v{oim}, v{oim}")
    P(f"v_cos_f32 v{ore}, v{oim}")
    P(f"v_sin_f32 v{oim}, v{oim}")
    P(f"v_mul_f32 v{ore}, v{t}, v{ore}")
    P(f"v_mul_f32 v{oim}, v{t}, v{oim}")


def touch(P, vdst, vaddr, srdn):
    i = Ins(f"buffer_store_dword v{vdst}, v{vaddr}, s[{srdn}:{srdn+3}], 0 offen")
    i.text = f"buffer_load_dword v{vdst}, v{vaddr}, s[{srdn}:{srdn+3}], 0 offen"
    P.ins.append(i)


def prefetch_groups(vt):
    Q = Prog()
    prefetch(Q, vt)
    groups, cur = [], []
    ins = Q.ins
    for k, i in enumerate(ins):
        cur.append(i)
        if i.text.startswith("buffer_load") and not (k + 1 < len(ins) and ins[k + 1].text.startswith("buffer_load")):
            groups.append(cur)
            cur = []
    if cur:
        groups.append(cur)
    return groups


def prefetch(P, vt):
    KPF = int(os.environ.get("KPF", "0"))
    srd(P, 68, 64, 65, 576 * 9216)
    srd(P, 72, 66, 67, 576 * 9216)
    P(f"""
    s_and_b32 s77, s2, 1
    s_lshl_b32 s77, s77, 2
    s_lshr_b32 s76, s50, 3
    s_lshl_b32 s76, s76, 3
    s_add_u32 s76, s76, s79
    v_and_b32 v{vt+4}, 63, v0
    """)
    for r0 in range(0, KPF, 256):
        P(f"""
        s_lshl_b32 s4, s76, 2
        s_add_u32 s4, s4, {r0}
        v_lshrrev_b32 v{vt}, 4, v{vt+4}
        v_add_u32 v{vt}, s4, v{vt}
        v_bfe_u32 v{vt+1}, v{vt+4}, 2, 2
        v_add_u32 v{vt+1}, s77, v{vt+1}
        v_mul_u32_u24 v{vt+1}, 1152, v{vt+1}
        v_and_b32 v{vt+2}, 3, v{vt+4}
        v_lshl_add_u32 v{vt+1}, v{vt+2}, 8, v{vt+1}
        v_cmp_gt_u32 vcc, {KPF}, v{vt}
        v_mul_u32_u24 v{vt}, 9216, v{vt}
        v_add_u32 v{vt}, v{vt}, v{vt+1}
        v_cndmask_b32 v{vt}, -1, v{vt}, vcc
        """)
        for m in range(2):
            touch(P, vt + 3, vt, 68 + 4 * m)
    if int(os.environ.get("EPF", "0")):
        P(f"""
        s_mul_i32 s4, s76, 9
        v_lshrrev_b32 v{vt}, 2, v{vt+4}
        v_add_u32 v{vt}, s4, v{vt}
        v_and_b32 v{vt+1}, 3, v{vt+4}
        v_add_u32 v{vt+1}, s77, v{vt+1}
        v_mul_u32_u24 v{vt+1}, 1152, v{vt+1}
        v_mul_u32_u24 v{vt}, 9216, v{vt}
        v_add_u32 v{vt}, v{vt}, v{vt+1}
        v_add_u32 v{vt}, 1024, v{vt}
        v_cmp_gt_u32 vcc, 36, v{vt+4}
        v_cndmask_b32 v{vt}, -1, v{vt}, vcc
        """)
        for m in range(2):
            touch(P, vt + 3, vt, 68 + 4 * m)
    if int(os.environ.get("PF2", "0")):
        for i in range(2):
            P(f"""
            s_mul_i32 s4, s76, 81
            s_add_u32 s4, s4, {41*i}
            v_add_u32 v{vt}, s4, v{vt+4}
            s_mov_b32 s5, {(2**32 + 35)//36}
            v_mul_hi_u32 v{vt+1}, v{vt}, s5
            v_mul_u32_u24 v{vt+2}, 36, v{vt+1}
            v_sub_u32 v{vt}, v{vt}, v{vt+2}
            v_lshlrev_b32 v{vt}, 7, v{vt}
            s_bfe_u32 s4, s2, 0x20001
            s_mul_i32 s4, s4, 144
            v_add_u32 v{vt+1}, s4, v{vt+1}
            v_mul_u32_u24 v{vt+1}, 9216, v{vt+1}
            v_add_u32 v{vt}, v{vt}, v{vt+1}
            s_mul_i32 s4, s77, 1152
            v_add_u32 v{vt}, s4, v{vt}
            v_cmp_gt_u32 vcc, {41 - i}, v{vt+4}
            v_cndmask_b32 v{vt}, -1, v{vt}, vcc
            """)
            for m in range(2):
                touch(P, vt + 3, vt, 68 + 4 * m)
    if int(os.environ.get("PF3", "0")):
        P("s_load_dwordx2 s[64:65], s[0:1], 96")
        P("s_load_dwordx4 s[4:7], s[0:1], 40")
        P(f"""
        s_lshl_b32 s76, s50, 3
        s_add_u32 s76, s76, s79
        s_mul_i32 s77, s76, 81
        v_add_u32 v{vt}, s77, v{vt+4}
        v_lshlrev_b32 v{vt}, 7, v{vt}
        v_add_u32 v{vt+1}, {41*128}, v{vt}
        s_mul_i32 s77, s76, 11
        v_add_u32 v{vt+2}, s77, v{vt+4}
        v_lshlrev_b32 v{vt+2}, 7, v{vt+2}
        v_cmp_gt_u32 vcc, 41, v{vt+4}
        v_cndmask_b32 v{vt}, -1, v{vt}, vcc
        v_cndmask_b32 v{vt+1}, -1, v{vt+1}, vcc
        v_cmp_gt_u32 vcc, 11, v{vt+4}
        v_cndmask_b32 v{vt+2}, -1, v{vt+2}, vcc
        """)
        srd(P, 68, 64, 65, 4608 * 1152)
        touch(P, vt + 3, vt, 68)
        touch(P, vt + 3, vt + 1, 68)
        srd(P, 72, 4, 5, 576 * 1152)
        touch(P, vt + 3, vt + 2, 72)
        srd(P, 68, 6, 7, 576 * 1152)
        touch(P, vt + 3, vt + 2, 68)


def stream_pf(P, role, vt):
    NCW = int(os.environ.get("SPF_CW", "7"))
    NLN = int(os.environ.get("SPF_LN", "0")); NLD = int(os.environ.get("SPF_LD", "0")); INFL = int(os.environ.get("SPF_INFL", "6"))
    n = {"cw": NCW, "ln": NLN, "ld": NLD}[role]
    if n == 0:
        return []
    Q = Prog()
    srd(Q, 68, 64, 65, 576 * 9216)
    srd(Q, 72, 66, 67, 576 * 9216)
    if role == "ln":
        Q(f"s_lshl_b32 s76, s50, 3\ns_add_u32 s76, s76, s79\ns_add_u32 s76, s76, {NCW*768}")
    elif role == "cw":
        Q(f"s_lshl_b32 s76, s2, 2\ns_add_u32 s76, s76, s53")
    else:
        Q(f"s_lshl_b32 s76, s2, 2\ns_add_u32 s76, s76, s53\ns_add_u32 s76, s76, {NCW*768 + NLN*512}")
    Q(f"s_lshl_b32 s76, s76, 10\nv_and_b32 v{vt}, 63, v0\nv_lshlrev_b32 v{vt}, 4, v{vt}")
    groups = [Q.ins]
    k = 0
    for i in range(n):
        for m in range(2):
            G = Prog()
            G(f"s_add_u32 s77, s76, {i*(512 if role == 'ln' else 768)*1024}")
            I = Ins(f"buffer_store_dword v{vt}, v{vt}, s[{68+4*m}:{71+4*m}], s77 offen")
            I.text = f"buffer_load_dwordx4 v[{vt+2}:{vt+5}], v{vt}, s[{68+4*m}:{71+4*m}], s77 offen"
            G.ins.append(I)
            k += 1
            if role == "ln" and k >= INFL:
                G(f"s_waitcnt vmcnt({INFL-1})")
            groups.append(G.ins)
    return groups


def code_touch(P, lab, start, end, sd, vt, lane, sidx, back):
    P(f"s_getpc_b64 s[{sd}:{sd+1}]")
    P(f"{lab}:", tag="nop")
    if back:
        P(f"s_sub_u32 s{sd}, s{sd}, {lab}-{start}")
        P(f"s_subb_u32 s{sd+1}, s{sd+1}, 0")
    else:
        P(f"s_add_u32 s{sd}, s{sd}, {start}-{lab}")
        P(f"s_addc_u32 s{sd+1}, s{sd+1}, 0")
    P(f"""
    s_and_b32 s{sd+1}, s{sd+1}, 0xffff
    s_mov_b32 s{sd+2}, {end}-{start}
    s_mov_b32 s{sd+3}, 0x00020000
    v_lshlrev_b32 v{vt}, 7, v{lane}
    s_lshl_b32 s{sidx}, s{sidx}, 13
    v_add_u32 v{vt}, s{sidx}, v{vt}
    """)
    touch(P, vt + 1, vt, sd)


def gen_k1():
    P = Prog()
    P("s_cmp_ge_u32 s2, 256")
    P("s_cbranch_scc1 K1_END")
    P.stamp(0, real=True)
    P.stamp(1)
    P("v_lshrrev_b32 v1, 6, v0")
    P("v_readfirstlane_b32 s79, v1")
    P("s_load_dwordx8 s[36:43], s[0:1], 0")
    P("s_load_dwordx2 s[44:45], s[0:1], 32")
    P("s_load_dwordx2 s[46:47], s[0:1], 56")
    P("s_load_dwordx4 s[48:51], s[0:1], 112")
    P("s_load_dwordx4 s[64:67], s[0:1], 80")
    P("s_load_dwordx2 s[62:63], s[0:1], 64")
    P("v_and_b32 v2, 63, v0")
    P("s_and_b32 s53, s79, 3")
    if int(os.environ.get("CPF", "0")):
        P("s_cmp_lg_u32 s79, 0")
        P("s_cbranch_scc1 K1_NOCT", tag="keepall")
        P("s_lshr_b32 s3, s2, 3")
        code_touch(P, "K1_PC", "k1_kernel", "CODE_END", 4, 250, 2, 3, True)
        P("K1_NOCT:", tag="nop")
    P("s_waitcnt lgkmcnt(0)")
    srd(P, 8, 36, 37, 2048 * 1152)
    srd(P, 20, 50, 51, WS_BYTES)
    srd(P, 16, 48, 49, 256)
    P("s_cmp_ge_u32 s2, 192")
    P("s_cbranch_scc1 K1_LN")

    P("""
    s_and_b32 s50, s2, 4
    s_lshl_b32 s50, s50, 1
    s_bfe_u32 s51, s2, 0x30003
    s_add_u32 s50, s50, s51
    s_lshr_b32 s51, s2, 6
    s_and_b32 s52, s2, 3
    s_mul_i32 s52, s52, 3
    s_add_u32 s51, s51, s52
    s_mul_i32 s52, s51, 48
    s_lshl_b32 s57, s53, 12
    s_lshl_b32 s58, s53, 10
    """)
    SLOT = 28672
    NSLOT = 5
    XTRA = NSLOT * SLOT
    AGG = XTRA
    L8A = AGG + 6144
    SBL = L8A + 512
    STL = SBL + 1536
    AB = 52
    P(f"""
    v_and_b32 v3, 31, v2
    v_lshrrev_b32 v4, 5, v2
    v_bfe_u32 v6, v3, 1, 3
    v_xor_b32 v6, v6, v4
    v_lshlrev_b32 v6, 4, v6
    v_lshl_add_u32 v6, v3, 7, v6
    v_add_u32 v{AB}, 16384, v6
    """)
    P("s_cmp_ge_u32 s79, 4")
    P("s_cbranch_scc1 K1_LOAD")

    srd(P, 24, 38, 39, 1152)
    srd(P, 28, 40, 41, 1152)
    srd(P, 32, 46, 47, 1152)
    PR = 16
    P("""
    v_and_b32 v11, 15, v2
    v_add_u32 v11, s52, v11
    v_lshlrev_b32 v11, 1, v11
    v_add_u32 v12, 32, v11
    v_add_u32 v13, 64, v11
    """)
    for q in range(3):
        emit_param_loads(P, 11 + q, PR + 8 * q, 24, 28, 32)
    AA = 40
    P(f"""
    v_bfe_u32 v5, v3, 2, 1
    v_lshlrev_b32 v5, 4, v5
    v_lshrrev_b32 v6, 3, v3
    v_lshl_add_u32 v5, v6, 2, v5
    v_and_b32 v6, 3, v3
    v_add_u32 v5, v5, v6
    v_bfe_u32 v6, v5, 1, 3
    v_xor_b32 v6, v6, v4
    v_lshlrev_b32 v6, 4, v6
    v_lshl_add_u32 v6, v5, 7, v6
    v_add_u32 v{AA}, s57, v6
    """)
    for base in (AA, AB):
        for s in range(1, 4):
            P(f"v_xor_b32 v{base+s}, {32*s}, v{base}")
        for reg in range(1, 3):
            for s in range(4):
                P(f"v_add_u32 v{base+4*reg+s}, {reg*2*SLOT}, v{base+s}")
    ACC = 64
    FR = 112
    SB, SBI = 170, 174
    ST = 240
    PST = int(os.environ.get('PST', '6'))
    for q in range(3):
        emit_params(P, PR + 8 * q)
    for q in range(3):
        r = PR + 8 * q
        emit_pow(P, 1, r + 2, r + 3, r + 4, r + 5, 6)
        P(f"""
        v_add_f32 v6, -1.0, v{r+4}
        v_mul_f32 v7, v{r}, v{r}
        v_fmac_f32 v7, v{r+1}, v{r+1}
        v_rcp_f32 v7, v7
        v_mul_f32 v{r+6}, v6, v{r}
        v_add_f32 v7, v7, v7
        v_fmac_f32 v{r+6}, v{r+5}, v{r+1}
        v_mul_f32 v{r+7}, v{r+5}, v{r}
        v_fma_f32 v{r+7}, -v6, v{r+1}, v{r+7}
        v_mul_f32 v{r+6}, v{r+6}, v7
        v_mul_f32 v{r+7}, v{r+7}, v7
        """)
        emit_pow(P, 8, r + 2, r + 3, r, r + 1, 6)
    P(f"""
    v_lshrrev_b32 v7, 4, v2
    s_lshl_b32 s59, s50, 2
    s_add_u32 s59, s59, s53
    s_lshl_b32 s62, s53, 8
    s_add_u32 s62, s62, {STL}
    v_lshlrev_b32 v12, 6, v7
    v_add_u32 v12, s62, v12
    s_mul_i32 s59, s59, 36
    s_mul_i32 s60, s51, 3
    s_add_u32 s59, s59, s60
    s_lshl_b32 s59, s59, 12
    s_add_u32 s59, s59, {WS_BU}
    v_lshlrev_b32 v13, 4, v2
    v_and_b32 v14, 15, v2
    v_lshlrev_b32 v15, 3, v14
    v_add_u32 v15, {L8A}, v15
    v_lshlrev_b32 v8, 4, v14
    v_add_u32 v8, {SBL}, v8
    v_lshlrev_b32 v14, 7, v14
    v_lshl_add_u32 v14, v7, 3, v14
    s_lshl_b32 s60, s53, 5
    s_add_u32 s60, s60, {AGG}
    v_add_u32 v14, s60, v14
    """)
    for q in range(3):
        P(f"ds_write_b64 v15, v[{PR+8*q}:{PR+8*q+1}] offset:{q*128}")

    def reads(st):
        L = Prog()
        sl = st % NSLOT
        reg, off = sl // 2, (sl % 2) * SLOT
        for s in range(4):
            f = FR + 64 * (st & 1) + 16 * s
            L(f"ds_read_b128 v[{f}:{f+3}], v{AA+4*reg+s} offset:{off}")
            for q in range(3):
                L(f"ds_read_b128 v[{f+4+4*q}:{f+7+4*q}], v{AB+4*reg+s} offset:{off + 4096*q}")
        return L.ins

    def bar(st):
        P("s_waitcnt lgkmcnt(0)")
        P("s_barrier")
        P.stamp(3 + st)
    cwg = stream_pf(P, 'cw', 2)
    CW0 = int(os.environ.get("CW0", "2"))
    if cwg:
        P.extend(cwg.pop(0))
        for g in cwg[:CW0]:
            P.extend(g)
        cwg = cwg[CW0:]
    P.stamp(2)
    bar(0)
    P.extend(reads(0))
    for st in range(9):
        k = -(-len(cwg) // max(1, int(os.environ.get("CWN", "7")) - st)) if cwg else 0
        for g in cwg[:k]:
            P.extend(g)
        cwg = cwg[k:]
        F0 = FR + 64 * (st & 1)
        M = Prog()
        for s in range(4):
            f = F0 + 16 * s
            for q in range(3):
                a = ACC + 16 * q
                c = "0" if (st == 0 and s == 0) else f"v[{a}:{a+15}]"
                M(f"v_mfma_f32_32x32x16_bf16 v[{a}:{a+15}], v[{f}:{f+3}], v[{f+4+4*q}:{f+7+4*q}], {c}")
        if st + 1 < 9:
            bar(st + 1)
            P.extend(interleave(M.ins, reads(st + 1), start=0, end=8))
        else:
            P.extend(M.ins)
    P.stamp(12)
    P("s_barrier")
    for k in range(4):
        P(f"ds_read_b128 v[{ST+4*k}:{ST+4*k+3}], v12 offset:{16*k}")
    for q in range(3):
        P(f"ds_read_b128 v[{144+8*q}:{147+8*q}], v8 offset:{512*q}")
        P(f"ds_read_b128 v[{148+8*q}:{151+8*q}], v8 offset:{512*q+256}")
    for q in range(3):
        a = ACC + 16 * q
        for k in range(8):
            P(f"v_permlane16_swap_b32 v{a+k}, v{a+8+k}")
    for q in range(3):
        for k, d in enumerate((SB + q, SBI + q)):
            r = 144 + 8 * q + 4 * k
            P(f"""
            v_add_f32 v{r}, v{r}, v{r+1}
            v_add_f32 v{r+2}, v{r+2}, v{r+3}
            v_add_f32 v{d}, v{r}, v{r+2}
            """)
    for q in range(3):
        a = ACC + 16 * q
        r = PR + 8 * q
        P(f"""
        v_mul_f32 v136, v{r+6}, v{SB+q}
        v_fma_f32 v136, -v{r+7}, v{SBI+q}, v136
        v_mul_f32 v137, v{r+6}, v{SBI+q}
        v_fmac_f32 v137, v{r+7}, v{SB+q}
        """)
        hp = None
        for k in range(8):
            re_, im_ = a + k, a + 8 + k
            rt, rm = ST + 2 * k, ST + 2 * k + 1
            P(f"""
            v_mul_f32 v138, v{r+6}, v{re_}
            v_mul_f32 v139, v{r+6}, v{im_}
            v_fma_f32 v138, -v{r+7}, v{im_}, v138
            v_fmac_f32 v139, v{r+7}, v{re_}
            v_mul_f32 v{re_}, v{rt}, v138
            v_mul_f32 v{im_}, v{rt}, v139
            v_fma_f32 v{re_}, -v{rm}, v136, v{re_}
            v_fma_f32 v{im_}, -v{rm}, v137, v{im_}
            """)
            if k == 0:
                hp = (re_, im_)
            else:
                o = 140 + 2 * (k & 1)
                P(f"""
                v_fma_f32 v{o}, v{r+4}, v{hp[0]}, v{re_}
                v_fma_f32 v{o+1}, v{r+4}, v{hp[1]}, v{im_}
                v_fma_f32 v{o}, -v{r+5}, v{hp[1]}, v{o}
                v_fmac_f32 v{o+1}, v{r+5}, v{hp[0]}
                """)
                hp = (o, o + 1)
        P(f"ds_write_b64 v14, v[{hp[0]}:{hp[1]}] offset:{q*2048}")
        for k in range(4):
            P(f"s_add_u32 s60, s59, {q*4096 + k*1024}")
            P(f"buffer_store_dwordx4 v[{a+4*k}:{a+4*k+3}], v13, s[20:23], s60 offen{os.environ.get('BUST', '').replace('+', ' ')}")
    P("s_waitcnt lgkmcnt(0)")
    P("s_barrier")
    P.stamp(13)
    P.stamp(15, real=True)
    P.dump_stamps(9, 20, WS_DBG + 0x20000, 190)
    P("s_mov_b64 exec, -1") if os.environ.get("STAMPS") else None
    P(f"""
    v_cmp_gt_u32 vcc, 48, v0
    s_and_saveexec_b64 s[62:63], vcc
    s_cbranch_execz K1_END
    v_lshlrev_b32 v3, 7, v0
    v_add_u32 v3, {AGG}, v3
    v_lshlrev_b32 v10, 3, v0
    v_add_u32 v11, {L8A}, v10
    ds_read_b64 v[12:13], v11
    """)
    for k in range(8):
        P(f"ds_read_b128 v[{16+4*k}:{19+4*k}], v3 offset:{16*k}")
    P(f"""
    s_mul_i32 s59, s50, {16*576*8}
    s_lshl_b32 s60, s52, 3
    s_add_u32 s59, s59, s60
    s_add_u32 s59, s59, {WS_E8}
    v_mov_b32 v8, 0
    v_mov_b32 v9, 0
    """)
    cur = 8
    for j in range(16):
        P(f"s_add_u32 s61, s59, {j*576*8}")
        P(f"buffer_store_dwordx2 v[{cur}:{cur+1}], v10, s[20:23], s61 offen")
        nxt = 48 + 2 * j
        P(f"""
        v_fma_f32 v{nxt}, v12, v{cur}, v{16+2*j}
        v_fma_f32 v{nxt+1}, v12, v{cur+1}, v{17+2*j}
        v_fma_f32 v{nxt}, -v13, v{cur+1}, v{nxt}
        v_fma_f32 v{nxt+1}, v13, v{cur}, v{nxt+1}
        """)
        cur = nxt
    P(f"""
    s_mul_i32 s59, s50, {576*8}
    s_add_u32 s59, s59, s60
    s_add_u32 s59, s59, {WS_A128}
    buffer_store_dwordx2 v[{cur}:{cur+1}], v10, s[20:23], s59 offen
    s_branch K1_END
    """)

    P("K1_LOAD:")
    P("s_cmp_lt_u32 s53, 2")
    P("s_cselect_b32 s12, s42, s44")
    P("s_cselect_b32 s13, s43, s45")
    P("s_and_b32 s13, s13, 0xffff")
    P(f"s_mov_b32 s14, {576*1152}")
    P("s_mov_b32 s15, 0x00020000")
    ROT1 = int(os.environ.get("ROT1", "1"))
    P(f"""
    v_and_b32 v0, 255, v0
    v_lshrrev_b32 v3, 3, v2
    v_and_b32 v4, 7, v2
    v_lshrrev_b32 v5, 1, v3
    v_xor_b32 v6, v4, v5
    v_lshlrev_b32 v6, 4, v6
    s_lshl_b32 s54, s50, 7
    s_lshl_b32 s55, s53, 5
    s_add_u32 s54, s54, s55
    v_add_u32 v7, s54, v3
    v_mul_u32_u24 v7, 1152, v7
    v_add_u32 v8, v7, v6
    v_xor_b32 v9, 64, v8
    s_and_b32 s55, s53, 1
    s_lshl_b32 s56, s55, 3
    s_add_u32 s56, s56, s52
    v_add_u32 v7, s56, v3
    v_mul_u32_u24 v7, 1152, v7
    v_add_u32 v10, v7, v6
    s_lshl_b32 s56, s55, 6
    v_xor_b32 v10, s56, v10
    s_and_b32 s61, s50, 7
    s_lshr_b32 s60, s2, 6
    s_mul_i32 s60, s60, 3
    s_add_u32 s61, s61, s60
    s_cmp_ge_u32 s61, 9
    s_cselect_b32 s60, 9, 0
    s_sub_u32 s61, s61, s60
    s_mul_i32 s61, s61, {128*ROT1}
    """)

    def issue_stage(st):
        slot = (st % NSLOT) * SLOT
        if st:
            P("s_add_u32 s61, s61, 128")
            P("s_cmp_ge_u32 s61, 1152")
            P("s_cselect_b32 s61, 0, s61")
        for j in range(4):
            P(f"s_add_u32 m0, s57, {slot + j*1024}")
            P(f"s_add_u32 s59, s61, {j*9216}")
            P(f"buffer_load_dwordx4 v{8 + (j & 1)}, s[8:11], s59 offen lds", tag=("st", st))
        for q in range(3):
            P(f"s_add_u32 m0, s58, {slot + 16384 + q*4096}")
            P(f"s_add_u32 s59, s61, {q*18432}")
            P(f"buffer_load_dwordx4 v10, s[12:15], s59 offen lds", tag=("st", st))
    PRE1 = int(os.environ.get("PRE1", "2"))
    for st in range(PRE1):
        issue_stage(st)
    P(f"""
    s_lshl_b32 s59, s53, 5
    v_xor_b32 v{AB}, s59, v{AB}
    v_add_u32 v{AB+1}, {2*SLOT}, v{AB}
    v_add_u32 v{AB+2}, {4*SLOT}, v{AB}
    """)
    for q in range(6):
        P(f"v_mov_b32 v{32+q}, 0")
    nxt = PRE1
    groups = stream_pf(P, 'ld', 44)
    for st in range(9):
        P.waitvm(("st", st))
        P("s_waitcnt lgkmcnt(0)")
        P("s_barrier")
        sl = st % NSLOT
        for q in range(3):
            P(f"ds_read_b128 v[{16+4*q}:{19+4*q}], v{AB + sl//2} offset:{(sl % 2)*SLOT + 4096*q}")
        n_issue = 0
        while nxt <= min(8, st + NSLOT - 1) and n_issue < 2:
            issue_stage(nxt)
            nxt += 1
            n_issue += 1
        if nxt > 8 and n_issue == 0 and groups:
            k = -(-len(groups) // (9 - st))
            for g in groups[:k]:
                P.extend(g)
            groups = groups[k:]
        for q in range(3):
            for d in range(4):
                r = 16 + 4 * q + d
                P(f"""
                v_lshlrev_b32 v30, 16, v{r}
                v_and_b32 v31, 0xffff0000, v{r}
                v_add_f32 v{32+2*q}, v{32+2*q}, v30
                v_add_f32 v{33+2*q}, v{33+2*q}, v31
                """)
    assert not groups
    for q in range(3):
        P(f"v_add_f32 v{32+q*2}, v{32+2*q}, v{33+2*q}")
        P(f"v_mov_b32 v{33+2*q}, v{32+2*q}")
    for q in range(3):
        P(f"v_permlane32_swap_b32 v{32+2*q}, v{33+2*q}")
    P(f"""
    v_and_b32 v3, 31, v2
    v_lshlrev_b32 v3, 4, v3
    s_lshl_b32 s60, s53, 2
    s_add_u32 s60, s60, {SBL}
    v_add_u32 v3, s60, v3
    """)
    for q in range(3):
        P(f"v_add_f32 v{32+q*2}, v{32+2*q}, v{33+2*q}")
        P(f"ds_write_b32 v3, v{32+2*q} offset:{512*q}")
    P(f"""
    s_cmp_lg_u32 s53, 0
    s_cbranch_scc1 K1_LDONE
    s_and_b32 s63, s50, 7
    s_lshl_b32 s63, s63, 3
    s_lshr_b32 s60, s50, 3
    s_lshl_b32 s60, s60, 2
    s_add_u32 s63, s63, s60
    s_lshl_b32 s63, s63, 2
    v_and_b32 v9, 1, v2
    v_lshlrev_b32 v9, 3, v9
    s_mov_b32 s61, 0
    s_lshl_b32 s62, s50, 10
    s_add_u32 s62, s62, {WS_STAT}
    v_lshlrev_b32 v11, 4, v2
    """)
    P("K1_POLL:")
    P("""
    buffer_load_dword v10, v9, s[16:19], s63 offen sc0 sc1
    s_waitcnt vmcnt(0)
    v_cmp_ne_u32 vcc, 1, v10
    s_add_u32 s61, s61, 1
    s_nop 1
    s_cbranch_vccz K1_GO
    s_sleep 8
    s_cmp_lt_u32 s61, 100000
    s_cbranch_scc1 K1_POLL
    """)
    P("K1_GO:")
    P(f"""
    buffer_load_dwordx4 v[12:15], v11, s[20:23], s62 offen sc0 sc1
    v_add_u32 v11, {STL}, v11
    ds_write_b128 v11, v[12:15]
    """)
    P("K1_LDONE:")
    P("""
    s_waitcnt lgkmcnt(0)
    s_barrier
    s_barrier
    s_branch K1_END
    """)

    P("K1_LN:")
    Prog._last[0] = 1
    P(f"""
    s_sub_u32 s50, s2, 192
    s_and_b32 s51, s50, 4
    s_lshl_b32 s51, s51, 3
    s_lshr_b32 s52, s50, 3
    s_lshl_b32 s52, s52, 2
    s_add_u32 s51, s51, s52
    s_lshr_b32 s54, s79, 2
    s_add_u32 s51, s51, s54
    s_and_b32 s52, s50, 2
    s_add_u32 s28, s51, s52
    s_xor_b32 s52, s52, 2
    s_add_u32 s29, s51, s52
    s_and_b32 s53, s50, 3
    v_and_b32 v0, 255, v0
    v_lshrrev_b32 v1, 3, v0
    v_and_b32 v2, 7, v0
    v_mul_u32_u24 v3, 1152, v1
    v_lshl_add_u32 v3, v2, 4, v3
    s_mul_i32 s30, s28, {32*1152}
    s_mul_i32 s31, s29, {32*1152}
    """)
    R2 = [8, 184]
    F = 80
    XO = 176
    XN = 8
    DS = 44
    for ps in range(2):
        for j in range(9):
            P(f"buffer_load_dwordx4 v[{R2[ps]+4*j}:{R2[ps]+4*j+3}], v3, s[8:11], s{30+ps} offen offset:{128*j}")
    P(f"""
    s_lshl_b32 s52, s50, 1
    s_add_u32 s52, s52, s54
    s_mul_i32 s52, s52, {9*CNT_STRIDE}
    s_add_u32 s52, s52, {WS_CNT}
    v_mul_u32_u24 v4, {CNT_STRIDE}, v0
    v_cmp_gt_u32 vcc, 9, v0
    v_cndmask_b32 v4, -1, v4, vcc
    v_mov_b32 v5, 0
    buffer_store_dword v5, v4, s[20:23], s52 offen
    """)
    P(f"""
    v_lshrrev_b32 v4, 1, v2
    v_lshlrev_b32 v4, 10, v4
    v_and_b32 v5, 1, v2
    v_lshl_add_u32 v4, v5, 9, v4
    v_lshl_add_u32 v4, v1, 4, v4
    s_mul_i32 s55, s53, {XNF_BYTES}
    v_lshlrev_b32 v6, 3, v1
    v_cmp_eq_u32 vcc, 0, v2
    v_cndmask_b32 v6, -1, v6, vcc
    s_lshl_b32 s56, s28, 8
    s_add_u32 s56, s56, {WS_STAT}
    s_and_b32 s58, s53, 1
    s_cmp_eq_u32 s58, 0
    s_cselect_b32 s56, s56, 0x40000000
    s_lshl_b32 s57, s50, 2
    s_add_u32 s58, s58, s79
    s_cmp_eq_u32 s58, 0
    s_cselect_b32 s57, s57, 0x1000
    v_lshrrev_b32 v7, 2, v2
    v_lshlrev_b32 v7, 12, v7
    v_and_b32 v5, 1, v2
    v_lshl_add_u32 v7, v5, 11, v7
    v_bfe_u32 v5, v2, 1, 1
    v_lshl_add_u32 v7, v5, 9, v7
    v_lshl_add_u32 v7, v1, 4, v7
    """)

    def reduce8():
        P("""
        v_add_f32 v152, v152, v153
        v_add_f32_dpp v152, v152, v152 quad_perm:[1,0,3,2] row_mask:0xf bank_mask:0xf
        v_add_f32_dpp v152, v152, v152 quad_perm:[2,3,0,1] row_mask:0xf bank_mask:0xf
        v_add_f32_dpp v152, v152, v152 row_half_mirror row_mask:0xf bank_mask:0xf
        """)
    for ps in range(2):
        R = R2[ps]
        P(f"""
        s_mul_i32 s52, s{28+ps}, 36864
        s_add_u32 s52, s52, s55
        s_mul_i32 s60, s{28+ps}, {18*4096}
        s_add_u32 s60, s60, {WS_RES}
        """)
        for d in range(36):
            P(f"v_lshlrev_b32 v{F+2*d}, 16, v{R+d}")
            P(f"v_and_b32 v{F+2*d+1}, 0xffff0000, v{R+d}")
            if d == 1:
                P(f"v_pk_add_f32 v[152:153], v[{F}:{F+1}], v[{F+2}:{F+3}]")
            elif d > 1:
                P(f"v_pk_add_f32 v[152:153], v[152:153], v[{F+2*d}:{F+2*d+1}]")
        reduce8()
        P(f"v_mul_f32 v154, {f2u(-1.0/576)}, v152")
        for d in range(36):
            P(f"v_pk_add_f32 v[156:157], v[{F+2*d}:{F+2*d+1}], v[154:155] op_sel_hi:[1,0]")
            if d == 0:
                P(f"v_pk_mul_f32 v[152:153], v[156:157], v[156:157]")
            else:
                P(f"v_pk_fma_f32 v[152:153], v[156:157], v[156:157], v[152:153]")
        reduce8()
        P(f"v_mul_f32 v158, {f2u(1.0/576)}, v152")
        bf16r(P, 154, 154)
        bf16r(P, 158, 158)
        P(f"v_add_f32 v158, {f2u(1e-5)}, v158")
        bf16r(P, 158, 158)
        P("v_sqrt_f32 v158, v158")
        bf16r(P, 158, 158)
        P("v_rcp_f32 v158, v158")
        if ps == 0:
            P("v_mul_f32 v159, -v158, v154")
            P("buffer_store_dwordx2 v[158:159], v6, s[20:23], s56 offen sc0 sc1", tag="stat")
            P.stamp(2)
        for j in range(9):
            for d in range(4 * j, 4 * j + 4):
                a_, b_ = F + 2 * d, F + 2 * d + 1
                P(f"""
                v_pk_add_f32 v[{a_}:{b_}], v[{a_}:{b_}], v[154:155] op_sel_hi:[1,0]
                v_cvt_pk_bf16_f32 v{b_}, v{a_}, v{b_}
                v_lshlrev_b32 v{a_}, 16, v{b_}
                v_and_b32 v{b_}, 0xffff0000, v{b_}
                v_pk_mul_f32 v[{a_}:{b_}], v[{a_}:{b_}], v[158:159] op_sel_hi:[1,0]
                v_cvt_pk_bf16_f32 v{(XN + d) if ps == 1 else (XO+(d & 3)+4*(j & 1))}, v{a_}, v{b_}
                """)
            xo = XN + 4 * j if ps == 1 else XO + 4 * (j & 1)
            if ps == 0 and j == int(os.environ.get("SIGJ", "4")):
                P.waitvm("stat")
                P("""
                s_barrier
                v_mov_b32 v160, 0
                v_mov_b32 v161, 1
                s_mov_b64 exec, 1
                buffer_store_dword v161, v160, s[16:19], s57 offen sc0 sc1
                s_mov_b64 exec, -1
                """)
                P.stamp(3)
            P(f"s_add_u32 s61, s52, {WS_XNF + 4096*j}")
            P(f"buffer_store_dwordx4 v[{xo}:{xo+3}], v4, s[20:23], s61 offen")
    P.stamp(4)
    for g in stream_pf(P, 'ln', 162):
        P.extend(g)
    P("s_cmp_ge_u32 s79, 4")
    P("s_cbranch_scc1 K1_END")
    P("s_waitcnt vmcnt(0)") if os.environ.get("STAMPS") else None
    P.stamp(5)
    P.stamp(15, real=True)
    P.dump_stamps(9, 20, WS_DBG + 0x20000, 230)
    P("K1_END:")
    P("s_endpgm")
    return kernel_text("k1_kernel", P.finalize(), vgpr=256, sgpr=102), NSLOT * SLOT + 6144 + 512 + 1536 + 1024
```

```python
import os, math
from asmlib import *
from layout import *
from k1 import code_touch, srd, f2u, bf16r, emit_param_loads, emit_params, emit_pow, LOG2E

SLOT = 16384
E_BASE = 9 * SLOT
SCR = 9 * SLOT
LDS_BYTES = 10 * SLOT

V_LANE16 = 1
V_D4 = 2
V_DE = 4
V_R4 = 5
V_RE = 9
V_RE2 = 15
V_C0 = 10
V_T = 11
XV = 16
ACC = 48
WF = 208
NWF = 5
DIST = 4


def xreg(j, s):
    n = s * 2 + j
    if n < 64:
        return f"a[{4*n}:{4*n+3}]"
    n -= 64
    return f"v[{XV+4*n}:{XV+4*n+3}]"


def epilogue(slot, sreg, foff, halves=(0, 1), part="all"):
    E = Prog()
    if part == "store":
        for j in halves:
            a = ACC + 32 * slot + 16 * j
            E(f"s_add_u32 s71, s{sreg+j}, {foff}")
            E(f"buffer_store_dwordx4 v[{a}:{a+3}], v{V_LANE16}, s[20:23], s71 offen{os.environ.get('HST', '+sc1').replace('+', ' ')}")
        return E.ins
    for j in halves:
        a = ACC + 32 * slot + 16 * j
        for e in range(8):
            g, u, t = a + e, a + 8 + e, V_T + (e & 1)
            E(f"""
            v_mul_f32 v{t}, v{g}, v{g}
            v_fma_f32 v{t}, v{t}, s70, v{V_C0}
            v_mul_f32 v{t}, v{g}, v{t}
            v_exp_f32 v{t}, v{t}
            v_mul_f32 v{u}, v{g}, v{u}
            v_add_f32 v{t}, 1.0, v{t}
            v_rcp_f32 v{g}, v{t}
            """)
            if e >= 1:
                E(f"v_mul_f32 v{u-1}, v{u-1}, v{g-1}")
            if e >= 2 and e % 2 == 0:
                E(f"v_cvt_pk_bf16_f32 v{a+(e-2)//2}, v{u-2}, v{u-1}")
        if part == "all":
            E(f"s_add_u32 s71, s{sreg+j}, {foff}")
        E(f"v_mul_f32 v{a+15}, v{a+15}, v{a+7}")
        E(f"v_cvt_pk_bf16_f32 v{a+3}, v{a+14}, v{a+15}")
        if part == "all":
            E(f"buffer_store_dwordx4 v[{a}:{a+3}], v{V_LANE16}, s[20:23], s71 offen{os.environ.get('HST', '+sc1').replace('+', ' ')}")
    return E.ins


def cfma(E, ore, oim, a, bre, bim, cre, cim):
    E(f"""
    v_fma_f32 v{ore}, v{a}, v{bre}, v{cre}
    v_fma_f32 v{oim}, v{a}, v{bim}, v{cim}
    v_fma_f32 v{ore}, -v{a+1}, v{bim}, v{ore}
    v_fmac_f32 v{oim}, v{a+1}, v{bre}
    """)


def fixup():
    BU = ACC + 128
    T0, T1, A2, REV, T2, T3 = 228, 229, 230, 231, 232, 233
    L1, CAR, AG, E8, VE, VG, VW, VR = 234, 236, 238, 246, 254, 255, 13, 14
    FRG = AG
    C = Prog()
    C(f"""
    s_lshr_b32 s74, s2, 3
    s_lshl_b32 s75, s53, 5
    s_add_u32 s75, s75, s74
    s_cmp_lt_u32 s75, 72
    s_cselect_b32 s74, 0, 0x40000000
    s_and_b32 s76, s2, 4
    s_lshl_b32 s76, s76, 1
    s_and_b32 s77, s75, 7
    s_add_u32 s76, s76, s77
    s_lshr_b32 s75, s75, 3
    s_min_u32 s75, s75, 8
    s_mul_i32 s77, s52, 9
    s_add_u32 s75, s75, s77
    """)
    npre = len(C.ins)
    C(f"""
    v_and_b32 v{VE}, 15, v0
    s_lshl_b32 s77, s75, 4
    v_add_u32 v{VE}, s77, v{VE}
    v_lshlrev_b32 v{T2}, 1, v{VE}
    v_lshlrev_b32 v{VE}, 3, v{VE}
    v_lshrrev_b32 v{VG}, 4, v0
    """)
    emit_param_loads(C, T2, T0, 24, 28, 32)
    C(f"""
    v_lshlrev_b32 v{T3}, 2, v{VG}
    s_sub_u32 s77, s76, 1
    v_sub_u32 v{T3}, s77, v{T3}
    v_mov_b32 v{L1}, 0x7fffffff
    s_add_u32 s78, s74, {WS_A128}
    """)
    for i in range(4):
        C(f"""
        v_subrev_u32 v{T2}, {i}, v{T3}
        v_cmp_gt_i32 vcc, 0, v{T2}
        v_mul_u32_u24 v{T2}, {576*8}, v{T2}
        v_add_u32 v{T2}, v{T2}, v{VE}
        v_cndmask_b32 v{T2}, v{T2}, v{L1}, vcc
        buffer_load_dwordx2 v[{AG+2*i}:{AG+2*i+1}], v{T2}, s[20:23], s78 offen
        """)
    C(f"""
    v_mul_u32_u24 v{T2}, {576*8}, v{VG}
    v_add_u32 v{VE}, v{T2}, v{VE}
    s_mul_i32 s78, s76, {16*576*8}
    s_add_u32 s78, s78, s74
    s_add_u32 s78, s78, {WS_E8}
    """)
    for u in range(4):
        C(f"buffer_load_dwordx2 v[{E8+2*u}:{E8+2*u+1}], v{VE}, s[20:23], s78 offen")
        if u < 3:
            C(f"s_add_u32 s78, s78, {4*576*8}")
    C(f"""
    s_mul_i32 s44, s76, {4*36}
    s_add_u32 s44, s44, s75
    s_lshl_b32 s44, s44, 12
    s_add_u32 s44, s44, s74
    s_add_u32 s44, s44, {WS_BU}
    s_mul_i32 s45, s76, {4*360}
    s_add_u32 s45, s45, s75
    s_lshl_b32 s45, s45, 10
    s_add_u32 s45, s45, s74
    s_add_u32 s45, s45, {WS_HF + 288*1024}
    """)

    if int(os.environ.get("IVPF", "1")):
        C(f"""
        s_lshr_b32 s77, s2, 3
        s_lshl_b32 s78, s53, 5
        s_add_u32 s77, s77, s78
        s_sub_u32 s77, s77, 72
        s_bfe_u32 s78, s2, 0x10002
        s_mul_i32 s78, s78, 40
        s_add_u32 s78, s78, s77
        s_mul_i32 s83, s52, 81
        s_add_u32 s78, s78, s83
        s_sub_u32 s83, s77, 41
        s_lshl_b32 s83, s83, 2
        s_bfe_u32 s82, s2, 0x20001
        s_add_u32 s83, s83, s82
        s_cmp_lt_u32 s77, 41
        s_cselect_b32 s78, s78, s83
        s_cselect_b32 s4, s100, s98
        s_cselect_b32 s5, s101, s99
        s_mov_b32 s6, {576*1152}
        s_cselect_b32 s6, {4608*1152}, s6
        s_lshl_b32 s78, s78, 14
        s_cmp_eq_u32 s74, 0
        s_cselect_b32 s4, s20, s4
        s_cselect_b32 s5, s21, s5
        s_cselect_b32 s6, s22, s6
        s_cselect_b32 s44, s44, s78
        s_mov_b32 s82, 4096
        s_cselect_b32 s82, {36*4096}, s82
        s_and_b32 s5, s5, 0xffff
        s_mov_b32 s7, 0x00020000
        """)
    else:
        C(f"""
        s_mov_b32 s4, s20
        s_mov_b32 s5, s21
        s_mov_b32 s6, s22
        s_mov_b32 s7, 0x00020000
        s_mov_b32 s82, {36*4096}
        """)

    def bu_load(u):
        b = BU + 16 * (u & 1)
        for q in range(4):
            C(f"buffer_load_dwordx4 v[{b+4*q}:{b+4*q+3}], v{V_LANE16}, s[4:7], s44 offen offset:{1024*q}")
        C(f"s_add_u32 s44, s44, s82")
    nld = len(C.ins)
    C(f"""
    s_lshl_b32 s77, s53, 11
    s_add_u32 s77, s77, {SCR}
    v_and_b32 v{VW}, 15, v0
    v_lshlrev_b32 v{VW}, 6, v{VW}
    v_lshl_add_u32 v{VW}, v{VG}, 4, v{VW}
    v_add_u32 v{VW}, s77, v{VW}
    v_lshrrev_b32 v{VR}, 5, v0
    v_lshlrev_b32 v{VR}, 3, v{VR}
    v_bfe_u32 v{T2}, v0, 2, 2
    v_add_u32 v{VR}, v{VR}, v{T2}
    v_lshlrev_b32 v{VR}, 6, v{VR}
    v_bfe_u32 v{T2}, v0, 4, 1
    v_lshl_add_u32 v{VR}, v{T2}, 5, v{VR}
    v_and_b32 v{T2}, 3, v0
    v_lshl_add_u32 v{VR}, v{T2}, 3, v{VR}
    v_add_u32 v{VR}, s77, v{VR}
    v_cvt_f32_u32 v{VG}, v{VG}
    """)
    emit_params(C, T0)
    emit_pow(C, 128, A2, REV, L1, L1 + 1, T0)
    C(f"v_mul_f32 v{T1}, {f2u(512.0)}, v{VG}")
    emit_pow(C, f"v{T1}", A2, REV, T2, T3, T0)
    cfma(C, AG + 4, AG + 5, L1, AG + 6, AG + 7, AG + 4, AG + 5)
    cfma(C, AG + 2, AG + 3, L1, AG + 4, AG + 5, AG + 2, AG + 3)
    cfma(C, AG + 0, AG + 1, L1, AG + 2, AG + 3, AG + 0, AG + 1)
    C(f"""
    v_mul_f32 v{CAR}, v{T2}, v{AG}
    v_mul_f32 v{CAR+1}, v{T2}, v{AG+1}
    v_fma_f32 v{CAR}, -v{T3}, v{AG+1}, v{CAR}
    v_fmac_f32 v{CAR+1}, v{T3}, v{AG}
    """)
    emit_pow(C, 1, A2, REV, L1, L1 + 1, T0)
    for pl in ("v_permlane16_swap_b32", "v_permlane32_swap_b32"):
        C(f"""
        v_mov_b32 v{T0}, v{CAR}
        v_mov_b32 v{T1}, v{CAR+1}
        {pl} v{CAR}, v{T0}
        {pl} v{CAR+1}, v{T1}
        v_add_f32 v{CAR}, v{CAR}, v{T0}
        v_add_f32 v{CAR+1}, v{CAR+1}, v{T1}
        """)
    for u in range(4):
        C(f"v_mov_b32 v{T1}, {f2u(32.0*u)}")
        C(f"v_fmac_f32 v{T1}, {f2u(8.0)}, v{VG}")
        emit_pow(C, f"v{T1}", A2, REV, T2, T3, T0)
        e = E8 + 2 * u
        cfma(C, e, e + 1, T2, CAR, CAR + 1, e, e + 1)
    ncar = len(C.ins)
    bu_load(0)
    bu_load(1)
    nbu = len(C.ins)
    for u in range(4):
        b = BU + 16 * (u & 1)
        e = E8 + 2 * u
        pre, pim = e, e + 1
        for k in range(8):
            cfma(C, b + k, b + 8 + k, L1, pre, pim, b + k, b + 8 + k)
            pre, pim = b + k, b + 8 + k
        for k in range(4):
            C(f"v_cvt_pk_bf16_f32 v{b+k}, v{b+2*k}, v{b+2*k+1}")
        for k in range(4):
            C(f"v_cvt_pk_bf16_f32 v{b+8+k}, -v{b+8+2*k}, -v{b+8+2*k+1}")
        C(f"""
        ds_write_b128 v{VW}, v[{b}:{b+3}]
        ds_write_b128 v{VW}, v[{b+8}:{b+11}] offset:1024
        ds_read_b64_tr_b16 v[{FRG}:{FRG+1}], v{VR}
        ds_read_b64_tr_b16 v[{FRG+2}:{FRG+3}], v{VR} offset:256
        ds_read_b64_tr_b16 v[{FRG+4}:{FRG+5}], v{VR} offset:1024
        ds_read_b64_tr_b16 v[{FRG+6}:{FRG+7}], v{VR} offset:1280
        s_add_u32 s77, s45, {u*360*1024}
        s_add_u32 s73, s45, {u*360*1024 + 36*1024}
        """)
        if u + 2 < 4:
            bu_load(u + 2)
        C(f"""
        buffer_store_dwordx4 v[{FRG}:{FRG+3}], v{V_LANE16}, s[20:23], s77 offen sc1
        buffer_store_dwordx4 v[{FRG+4}:{FRG+7}], v{V_LANE16}, s[20:23], s73 offen sc1
        """)
    return C.ins[:nld], C.ins[nld:ncar], C.ins[ncar:nbu], C.ins[nbu:]


def touch_k3():
    mode = os.environ.get("W3PF", "0")
    T = Prog()
    if mode == "0":
        return [], []
    pre = Prog()
    pre("s_load_dwordx2 s[82:83], s[0:1], 96")
    pre("s_load_dwordx4 s[100:101+2], s[0:1], 40") if False else None
    T(f"""
    s_lshr_b32 s77, s2, 3
    s_lshl_b32 s77, s77, 2
    s_add_u32 s77, s77, s53
    s_lshl_b32 s77, s77, 13
    v_lshlrev_b32 v229, 7, v0
    v_add_u32 v229, s77, v229
    """)
    def ld(srdn, soff):
        i = Ins(f"buffer_store_dword v228, v229, s[{srdn}:{srdn+3}], {soff} offen")
        i.text = f"buffer_load_dword v228, v229, s[{srdn}:{srdn+3}], {soff} offen"
        T.ins.append(i)
    HALF = 2304 * 1152
    if mode == "l2":
        T(f"""
        s_mul_i32 s77, s52, {HALF}
        s_add_u32 s24, s36, s77
        s_addc_u32 s25, s37, 0
        s_and_b32 s25, s25, 0xffff
        s_mov_b32 s26, {HALF}
        """)
        for i in range(3):
            T(f"s_mov_b32 s77, {i*8192*128}")
            ld(24, "s77")
        for k, (lo, hi) in enumerate(((38, 39), (40, 41))):
            d = 28 + 4 * k
            T(f"s_mov_b32 s{d}, s{lo}\ns_and_b32 s{d+1}, s{hi}, 0xffff\ns_mov_b32 s{d+2}, {576*1152}")
            ld(d, "0")
    else:
        Q = HALF // 4
        T(f"""
        s_and_b32 s77, s2, 7
        s_lshr_b32 s78, s77, 1
        s_lshl_b32 s77, s52, 2
        s_add_u32 s77, s77, s78
        s_mul_i32 s77, s77, {Q}
        s_add_u32 s24, s36, s77
        s_addc_u32 s25, s37, 0
        s_and_b32 s25, s25, 0xffff
        s_mov_b32 s26, {Q}
        """)
        ld(24, "0")
        E8_ = 576 * 1152 // 8
        for k, (lo, hi) in enumerate(((38, 39), (40, 41))):
            d = 28 + 4 * k
            T(f"""
            s_and_b32 s77, s2, 7
            s_mul_i32 s77, s77, {E8_}
            s_add_u32 s{d}, s{lo}, s77
            s_addc_u32 s{d+1}, s{hi}, 0
            s_and_b32 s{d+1}, s{d+1}, 0xffff
            s_mov_b32 s{d+2}, {E8_}
            """)
            ld(d, "0")
    return [], T.ins


def gen_k2(fused=False):
    P = Prog()
    P("s_cmp_ge_u32 s2, 256")
    P("s_cbranch_scc1 " + ("K3_END" if fused else "K2_END"))
    P.stamp(0, real=True)
    P.stamp(1)
    P("s_load_dwordx4 s[36:39], s[0:1], 80")
    P("s_load_dwordx2 s[48:49], s[0:1], 120")
    P("s_load_dwordx4 s[40:43], s[0:1], 8")
    P("s_load_dwordx2 s[46:47], s[0:1], 56")
    P("s_load_dwordx2 s[100:101], s[0:1], 96")
    P("s_load_dwordx4 s[4:7], s[0:1], 40")
    P("""
    v_lshrrev_b32 v2, 6, v0
    v_and_b32 v0, 63, v0
    v_readfirstlane_b32 s53, v2
    s_and_b32 s52, s2, 3
    s_lshr_b32 s50, s2, 5
    s_lshl_b32 s51, s52, 3
    s_add_u32 s50, s50, s51
    s_and_b32 s51, s2, 4
    s_bfe_u32 s54, s2, 0x20003
    s_add_u32 s51, s51, s54
    s_mov_b32 s79, s53
    """)
    P(f"v_lshlrev_b32 v{V_LANE16}, 4, v0")
    P(f"""
    s_lshl_b32 s54, s51, 3
    s_lshl_b32 s55, s53, 1
    s_add_u32 s54, s54, s55
    s_mul_i32 s64, s54, 36864
    s_mul_i32 s55, s52, {XNF_BYTES}
    s_add_u32 s64, s64, s55
    s_add_u32 s65, s64, 36864
    s_lshr_b32 s57, s50, 2
    s_and_b32 s58, s50, 3
    s_mul_i32 s66, s54, {360*1024}
    s_mul_i32 s55, s57, {36*1024}
    s_add_u32 s66, s66, s55
    s_add_u32 s66, s66, {WS_HF}
    s_lshl_b32 s55, s58, 10
    s_add_u32 s68, s66, s55
    s_add_u32 s68, s68, {32*1024}
    s_add_u32 s69, s68, {360*1024}
    s_lshl_b32 s55, s58, 13
    s_add_u32 s66, s66, s55
    s_add_u32 s67, s66, {360*1024}
    s_mul_i32 s56, s57, 1152
    s_lshl_b32 s55, s58, 5
    s_add_u32 s72, s56, s55
    s_add_u32 s72, s72, 1024
    s_lshl_b32 s55, s58, 8
    s_add_u32 s56, s56, s55
    s_mov_b32 s70, {f2u(-2.0*math.sqrt(2.0/math.pi)*LOG2E*0.044715)}
    v_mov_b32 v{V_C0}, {f2u(-2.0*math.sqrt(2.0/math.pi)*LOG2E)}
    """)
    P(f"""
    v_lshrrev_b32 v14, 3, v0
    v_and_b32 v15, 2, v14
    v_bfe_u32 v{V_D4}, v0, 1, 2
    v_xor_b32 v{V_D4}, v{V_D4}, v15
    v_lshlrev_b32 v{V_D4}, 5, v{V_D4}
    v_and_b32 v15, 1, v0
    v_lshl_add_u32 v{V_D4}, v15, 4, v{V_D4}
    s_lshl_b32 s57, s53, 4
    v_add_u32 v14, s57, v14
    v_mul_u32_u24 v14, 9216, v14
    v_add_u32 v{V_D4}, v{V_D4}, v14
    v_xor_b32 v{V_D4+1}, 32, v{V_D4}
    v_lshrrev_b32 v14, 1, v0
    s_lshl_b32 s57, s53, 1
    s_and_b32 s57, s57, 4
    v_xor_b32 v14, s57, v14
    v_mul_u32_u24 v14, 9216, v14
    v_lshl_add_u32 v{V_DE}, v15, 4, v14
    s_lshl_b32 s61, s53, 11
    """)
    P("s_waitcnt lgkmcnt(0)")
    srd(P, 8, 36, 37, 576 * 9216)
    srd(P, 12, 38, 39, 576 * 9216)
    srd(P, 20, 48, 49, WS_BYTES)
    P("s_and_b32 s57, s2, 1")
    P("s_cmp_eq_u32 s57, 0")
    P("s_cselect_b32 s98, s4, s6")
    P("s_cselect_b32 s99, s5, s7")

    slotA = [0, 1, 2, 3, 4, 0, 1, 2, 3]
    slotB = [5, 6, 7, 8, 4, 0, 1, 2, 3]
    freeB = [None, None, None, None, 4, 5, 6, 7, 8]

    def dma4(grp, kb):
        slot = (slotA if grp == 0 else slotB)[kb] * SLOT
        out = []
        for m in range(2):
            for i in range(2):
                D = Prog()
                D(f"s_add_u32 m0, s61, {slot + m*8192 + i*1024}")
                D(f"s_add_u32 s59, s56, {(kb*64 + i*8)*9216 + grp*128}")
                D(f"buffer_load_dwordx4 v{V_D4+m}, s[{8+4*m}:{11+4*m}], s59 offen lds", tag=("W", grp, kb))
                out.append((D.ins, 8))
        return out

    def dmaE(kb):
        D = Prog()
        D(f"s_add_u32 m0, s60, {(kb % 4)*4096}")
        D(f"s_add_u32 s59, s72, {kb*64*9216}")
        D(f"buffer_load_dwordx4 v{V_DE}, s[16:19], s59 offen lds", tag=("W", 1, kb))
        return [(D.ins, 32)]

    def xloads(kb):
        out = []
        for s in range(4):
            for j in range(2):
                D = Prog()
                D(f"s_add_u32 s62, s{64+j}, {WS_XNF + kb*4096}")
                D(f"buffer_load_dwordx4 {xreg(j, kb*4+s)}, v{V_LANE16}, s[20:23], s62 offen offset:{s*1024}")
                out.append((D.ins, 8))
        return out

    PRE = int(os.environ.get("K2PRE", "2"))
    for kb in range(PRE):
        for ins, _ in dma4(0, kb) + xloads(kb):
            P.extend(ins)
    srd(P, 24, 40, 41, 1152)
    srd(P, 28, 42, 43, 1152)
    srd(P, 32, 46, 47, 1152)
    P(f"""
    s_cmp_lt_u32 s53, 2
    s_cselect_b32 s16, s8, s12
    s_cselect_b32 s17, s9, s13
    s_mov_b32 s18, {576*9216}
    s_mov_b32 s19, 0x00020000
    s_and_b32 s57, s53, 1
    s_mul_i32 s55, s57, {32*9216}
    s_add_u32 s72, s72, s55
    s_lshl_b32 s60, s53, 10
    s_add_u32 s60, s60, {E_BASE}
    """)
    P(f"""
    v_and_b32 v14, 1, v0
    v_lshlrev_b32 v14, 4, v14
    v_bfe_u32 v15, v0, 1, 1
    v_lshl_add_u32 v14, v15, 3, v14
    v_lshrrev_b32 v15, 5, v0
    v_lshlrev_b32 v15, 3, v15
    v_bfe_u32 v{WF}, v0, 2, 2
    v_add_u32 v15, v15, v{WF}
    v_bfe_u32 v{WF+1}, v0, 4, 1
    v_and_b32 v{WF}, 2, v{WF}
    v_xor_b32 v{WF}, v{WF}, v{WF+1}
    v_lshl_add_u32 v{V_R4}, v15, 7, v14
    v_lshl_add_u32 v{V_R4}, v{WF+1}, 13, v{V_R4}
    v_lshl_add_u32 v{V_R4}, v{WF}, 5, v{V_R4}
    v_xor_b32 v{V_R4+1}, 32, v{V_R4}
    v_xor_b32 v{V_R4+2}, 64, v{V_R4}
    v_xor_b32 v{V_R4+3}, 96, v{V_R4}
    v_lshl_add_u32 v{V_RE}, v15, 5, v14
    v_lshl_add_u32 v{V_RE}, v{WF+1}, 11, v{V_RE}
    v_lshl_add_u32 v{V_RE}, v{WF+1}, 7, v{V_RE}
    v_add_u32 v{V_RE}, {E_BASE}, v{V_RE}
    v_xor_b32 v{V_RE2}, 128, v{V_RE}
    """)
    fx_pre, fx_car, fx_bu, fx_rec = fixup()
    if os.environ.get("NOFX"):
        fx_pre, fx_car, fx_bu, fx_rec = [], [], [], []
    P.extend(fx_pre)
    phases = [
        [("A", 0, 0), ("A", 1, 1), ("A", 2, 2), ("A", 3, 3)],
        [("E", 0, 4), ("B", 0, 0)],
        [("B", 1, 1)],
        [("B", 2, 2)],
        [("B", 3, 3)],
    ]
    frags = []
    unit = 0
    for ph, tiles in enumerate(phases):
        for kb in range(9):
            order = [(s_, t) for s_ in range(4) for t in tiles]
            if (ph == 0 and kb == 8) or (ph == 1 and kb == 0):
                order = [(s_, tiles[0]) for s_ in range(4)] + [(s_, t) for s_ in range(4) for t in tiles[1:]]
            for s_, (buf, g, sl) in order:
                frags.append(dict(ph=ph, buf=buf, kb=kb, s=s_, g=g, slot=sl, ks=kb * 4 + s_, unit=unit))
            unit += 1
    bar_units = set(range(0, 18)) | {19}
    items = []
    for kb in range(PRE, 9):
        rel = -1 if kb < 5 else kb - 5 + 2
        for ins, ln in dma4(0, kb):
            items.append([16 * kb - 1, rel, ins, ln])
        for ins, ln in xloads(kb):
            items.append([16 * kb, -1, ins, ln])
    for kb in range(9):
        rel = -1 if freeB[kb] is None else freeB[kb] + 2
        for ins, ln in dma4(1, kb):
            items.append([144 + 8 * kb, rel, ins, ln])
        rel = -1 if kb < 4 else 9 + (kb - 4) + 2
        for ins, ln in dmaE(kb):
            items.append([144 + 8 * kb - 1, rel, ins, ln])
    items.sort(key=lambda x: x[0])
    released = [-1]
    seen = set()
    region = [0]

    def frag_read(M, n, part):
        f = frags[n]
        u = f["unit"]
        if u not in seen:
            seen.add(u)
            if u in bar_units:
                M.waitvm(("W", 0 if f["buf"] == "A" else 1, f["kb"]))
                M("s_barrier")
                released[0] = u
                if u in (1, 3, 5, 7, 9, 11, 13, 15, 17):
                    M.stamp(3 + u // 2)
        b = WF + 4 * (n % NWF)
        if f["buf"] == "E":
            off = (f["kb"] % 4) * 4096 + f["s"] * 16 * 32
            base = V_RE if part == 0 else V_RE2
        else:
            sl = (slotA if f["buf"] == "A" else slotB)[f["kb"]]
            reg = sl // 3
            if reg != region[0]:
                d = (reg - region[0]) * 3 * SLOT
                for g in range(4):
                    M(f"v_add_u32 v{V_R4+g}, {d & 0xffffffff}, v{V_R4+g}")
                region[0] = reg
            base = V_R4 + f["g"]
            off = (sl % 3) * SLOT + f["s"] * 16 * 128 + part * 512
        M(f"ds_read_b64_tr_b16 v[{b+2*part}:{b+2*part+1}], v{base} offset:{off}")

    for n in range(DIST):
        frag_read(P, n, 0)
        frag_read(P, n, 1)
    P.stamp(2)
    CR0 = float(os.environ.get("CR0", "6.3"))
    CR1 = float(os.environ.get("CR1", "6.6"))
    credit = 0.0
    cur_ph = 0
    B = Prog()
    phase_lists = []
    late = []
    for n, f in enumerate(frags):
        if f["ph"] != cur_ph:
            phase_lists.append(B.ins)
            B = Prog()
            cur_ph = f["ph"]
        b = WF + 4 * (n % NWF)
        credit = min(credit + (CR0 if f["ph"] == 0 else CR1), 16.0)
        for j in range(2):
            a = ACC + 32 * f["slot"] + 16 * j
            c = "0" if f["ks"] == 0 else f"v[{a}:{a+15}]"
            B(f"v_mfma_f32_32x32x16_bf16 v[{a}:{a+15}], v[{b}:{b+3}], {xreg(j, f['ks'])}, {c}")
            if n + DIST < len(frags):
                frag_read(B, n + DIST, j)
            assert not items or items[0][0] > n + DIST + 1, ("load issued too late", n, items[0][0])
            if j == 1 and credit > 0:
                for k, it in enumerate(items):
                    if it[1] <= released[0]:
                        B.extend(it[2])
                        credit -= it[3]
                        late.append(it[0] - n)
                        del items[k]
                        break
    phase_lists.append(B.ins)
    assert not items, len(items)
    if os.environ.get("VERB"):
        print("lead (frags) of loads:", late)
    A_ = lambda t, **k: epilogue(t, 66, 1024 * t, **k)
    B_ = lambda t, **k: epilogue(t, 66, 4096 + 1024 * t, **k)
    L0, L1_ = phase_lists[0], phase_lists[1]
    n0 = sum(1 for i in L0 if i.kind == "mfma")
    L = L0 + L1_
    n01 = sum(1 for i in L if i.kind == "mfma")
    L = interleave2(L, fx_car, start=96, end=n0 - 26)
    L = interleave2(L, A_(0), start=n0 - 23, end=n0 + 7)
    L = interleave2(L, A_(1, part="calc") + A_(2, part="calc") + A_(3, part="calc") + A_(1, part="store"), start=n0 + 8, end=n01 - 1)
    P.extend(L)
    P.stamp(12)
    _, tk3 = touch_k3()
    if tk3:
        P("s_load_dwordx2 s[36:37], s[0:1], 96")
        P("s_load_dwordx2 s[38:39], s[0:1], 40")
        P("s_load_dwordx2 s[40:41], s[0:1], 48")
    nr = len(fx_rec)
    c1, c2 = int(nr * 0.12), int(nr * 0.40)
    fillsV = [epilogue(4, 68, 0) + fx_bu + A_(2, part="store") + A_(3, part="store") + B_(0, halves=(0,)) + fx_rec[:c1],
              B_(0, halves=(1,)) + fx_rec[c1:c2] + B_(1), fx_rec[c2:] + B_(2)]
    def pf(n):
        Q = Prog()
        for q in range(n):
            I = Ins(f"buffer_store_dword v228, v{V_LANE16}, s[4:7], s44 offen")
            I.text = f"buffer_load_dwordx4 v[228:231], v{V_LANE16}, s[4:7], s44 offen" + os.environ.get("PFF", "").replace("+", " ")
            Q.ins.append(I)
            Q("s_add_u32 s44, s44, 1024")
        return Q.ins
    def mix(a_, b_):
        out, k = [], 0
        step = max(1, len(a_) // max(1, len(b_) // 2))
        for i_, x in enumerate(a_):
            out.append(x)
            if i_ % step == step - 1 and k < len(b_):
                out += b_[k:k + 2]
                k += 2
        return out + b_[k:]
    PFS = [int(x) for x in os.environ.get("PFS", "8,8,0").split(",")]
    fillsI = [mix(epilogue(4, 68, 0) + A_(2, part="store") + A_(3, part="store") + B_(0, halves=(0,)), pf(PFS[0])),
              mix(B_(0, halves=(1,)) + B_(1), pf(PFS[1])), mix(B_(2), pf(PFS[2]))]
    SPLIT = int(os.environ.get("SPLIT", "1")) and not os.environ.get("NOFX")
    import copy
    if SPLIT:
        P("s_cmp_lg_u32 s74, 0")
        P("s_cbranch_scc1 K2_INV", tag="keepall")
    last = Prog._last[0]
    for k in range(3):
        L = phase_lists[2 + k]
        nm = sum(1 for i in L if i.kind == "mfma")
        P.extend(interleave2(L, fillsV[k], start=1, end=nm - 1))
        if k >= 1:
            P.stamp(12 + k)
    if SPLIT:
        P("s_branch K2_FIN")
        P("K2_INV:", tag="restore")
        Prog._last[0] = last
        if int(os.environ.get("CPF3", "0")):
            P("""
            s_lshr_b32 s77, s2, 3
            s_lshl_b32 s78, s53, 5
            s_add_u32 s77, s77, s78
            s_sub_u32 s77, s77, 72
            """)
            code_touch(P, "K2_PC", "k3_kernel", "CODE_END", 24, 232, 0, 77, False)
        for k in range(3):
            L = phase_lists[2 + k]
            nm = sum(1 for i in L if i.kind == "mfma")
            P.extend(interleave2(L, fillsI[k], start=1, end=nm - 1))
            if k >= 1:
                P.stamp(12 + k)
        P("K2_FIN:")
        P("s_nop 7")
        P("s_nop 3")
    P.extend(B_(3))
    P.stamp(15, real=True)
    P.dump_stamps(9, 20, WS_DBG + (0x10000 if os.environ.get('ALLST') else 0), 14)
    if fused:
        P("s_mov_b64 exec, -1")
        P(f"""
        s_lshl_b32 s100, s51, 2
        s_add_u32 s100, s100, s53
        s_lshl_b32 s100, s100, 2
        s_add_u32 s100, s100, s52
        s_add_u32 s100, s100, 192
        s_mul_i32 s100, s100, {CNT_STRIDE}
        s_add_u32 s100, s100, {WS_CNT}
        s_add_u32 s101, s76, 320
        s_mul_i32 s101, s101, {CNT_STRIDE}
        s_add_u32 s101, s101, {WS_CNT}
        s_add_u32 s101, s101, s74
        """)
        return P
    P("K2_END:")
    P("s_endpgm")
    return kernel_text("k2_kernel", P.finalize(), vgpr=256, agpr=256, sgpr=102), LDS_BYTES
```

```python
import os, math
from asmlib import *
from layout import *
from k1 import srd, f2u

STG = 24576
NS = 6
LDS_BYTES = NS * STG

V_LANE16 = 1
V_D = 2
V_D1 = 3
V_RB = 4
V_T = 10
V_OUT = 255
RR0 = 216
RR1 = 16
HV = 16
ACC = 48
WF = 144
NWF = 8
DIST = 6
PB = 176


def hreg(ks):
    if ks >= 8:
        return f"a[{4*(ks-8)}:{4*(ks-8)+3}]"
    return f"v[{HV+4*ks}:{HV+4*ks+3}]"


SC = os.environ.get("PSC", " sc0 sc1")


def publish(g):
    E = Prog()
    a = ACC + 16 * g
    for k in range(8):
        E(f"v_cvt_pk_bf16_f32 v{PB+8*g+k}, v{a+2*k}, v{a+2*k+1}")
        if k % 4 == 3:
            r = PB + 8 * g + k - 3
            E(f"buffer_store_dwordx4 v[{r}:{r+3}], v{V_LANE16}, s[20:23], s{24+g} offen offset:{1024*(k//4)}{SC}")
    return E.ins


def resid_calc(P):
    for R, a in ((RR0, ACC + 80), (RR1, ACC)):
        for k in range(8):
            x, xn, dd = R + k, R + 8 + k, R + 16 + k
            P(f"""
            v_lshlrev_b32 v10, 16, v{xn}
            v_and_b32 v{xn}, 0xffff0000, v{xn}
            v_lshlrev_b32 v11, 16, v{dd}
            v_and_b32 v{dd}, 0xffff0000, v{dd}
            v_mul_f32 v10, v10, v11
            v_mul_f32 v{xn}, v{xn}, v{dd}
            v_cvt_pk_bf16_f32 v{xn}, v10, v{xn}
            v_lshlrev_b32 v10, 16, v{xn}
            v_and_b32 v{xn}, 0xffff0000, v{xn}
            v_lshlrev_b32 v11, 16, v{x}
            v_and_b32 v{x}, 0xffff0000, v{x}
            v_add_f32 v10, v10, v11
            v_add_f32 v{xn}, v{xn}, v{x}
            v_add_f32 v{a+2*k}, v{a+2*k}, v10
            v_add_f32 v{a+2*k+1}, v{a+2*k+1}, v{xn}
            """)


def main_loop(P, ssm, fused=False):
    def dma(kb):
        slot = (kb % NS) * STG
        out = []
        for i in range(6):
            D = Prog()
            if not ssm:
                D(f"s_add_u32 m0, s61, {slot + (i >> 1)*8192 + (i & 1)*1024}")
                D(f"s_add_u32 s59, s56, {(kb*64 + (i & 1)*8)*1152 + (i >> 1)*128}")
                D(f"buffer_load_dwordx4 v{V_D}, s[8:11], s59 offen lds", tag=("W", kb))
            else:
                srdn = 8 if kb < 9 else 12
                D(f"s_add_u32 m0, s61, {slot + i*1024}")
                D(f"s_add_u32 s59, s56, {i*8*1152 + (kb % 9)*128}")
                D(f"buffer_load_dwordx4 v{V_D + (i & 1)}, s[{srdn}:{srdn+3}], s59 offen lds", tag=("W", kb))
            out.append((D.ins, 8))
        return out

    def hloads(kb):
        out = []
        for s in range(4):
            D = Prog()
            D(f"s_add_u32 s62, s64, {kb*4096}")
            D(f"buffer_load_dwordx4 {hreg(kb*4+s)}, v{V_LANE16}, s[20:23], s62 offen offset:{s*1024}" + (" sc1" if fused else ""))
            out.append((D.ins, 8))
        return out

    PRE = int(os.environ.get("K3PRE", "2"))
    PREW = PRE
    if not fused:
        for kb in range(PRE):
            for ins, _ in dma(kb) + hloads(kb):
                P.extend(ins)
    else:
        PREW = int(os.environ.get("K3PREW", "4"))
        for kb in range(PREW):
            for ins, _ in dma(kb):
                P.extend(ins)
        tagn = "S" if ssm else "F"
        P(f"""
        s_waitcnt vmcnt({6*PREW})
        v_mov_b32 v10, 0
        v_mov_b32 v11, 1
        s_mov_b64 exec, 1
        buffer_atomic_add v11, v10, s[20:23], s100 offen sc1
        buffer_atomic_add v11, v10, s[20:23], s101 offen sc1
        s_mov_b32 s70, 0
        """)
        if not ssm:
            P.stamp(2)
        P(f"K3_HP{tagn}:")
        P(f"""
        buffer_load_dword v11, v10, s[20:23], s29 offen sc0 sc1
        s_waitcnt vmcnt(0)
        v_readfirstlane_b32 s71, v11
        s_add_u32 s70, s70, 1
        s_cmp_ge_u32 s71, {36 if ssm else 8}
        s_cbranch_scc1 K3_HG{tagn}
        s_sleep 2
        s_cmp_lt_u32 s70, 200000
        s_cbranch_scc1 K3_HP{tagn}
        """)
        P(f"K3_HG{tagn}:")
        P("s_mov_b64 exec, -1")
        for kb in range(PRE):
            for ins, _ in hloads(kb):
                P.extend(ins)
    NT = int(os.environ.get("K3NT", "1"))
    frags = [dict(kb=kb, s=s, g=g) for kb in range(18 - NT) for s in range(4) for g in range(6)]
    frags += [dict(kb=kb, s=s, g=g) for g in range(6) for kb in range(18 - NT, 18) for s in range(4)]
    items = []
    for kb in range(PRE, 18):
        rel = -1 if kb < NS else kb - NS + 2
        first = min(n for n, f in enumerate(frags) if f["kb"] == kb)
        for ins, ln in (dma(kb) if kb >= PREW else []):
            items.append([first - DIST - 1, rel, ins, ln])
        for ins, ln in hloads(kb):
            items.append([first, -1, ins, ln])
    for R, sd, sx in ((RR0, "s30", "s31"), (RR1, "s75", "s76")):
        for txt, ln in ((f"buffer_load_dwordx4 v[{R}:{R+3}], v13, s[4:7], {sd} offen", 32),
                        (f"buffer_load_dwordx4 v[{R+4}:{R+7}], v13, s[4:7], {sd} offen offset:16", 8),
                        (f"buffer_load_dwordx4 v[{R+8}:{R+11}], v15, s[20:23], {sx} offen", 8),
                        (f"buffer_load_dwordx4 v[{R+12}:{R+15}], v15, s[20:23], {sx} offen offset:512", 8),
                        (f"buffer_load_dwordx4 v[{R+16}:{R+19}], v14, s[32:35], {sd} offen", 2),
                        (f"buffer_load_dwordx4 v[{R+20}:{R+23}], v14, s[32:35], {sd} offen offset:16", 2)):
            D = Prog()
            D(txt)
            items.append([len(frags) - 6, -1, D.ins, ln])
    items.sort(key=lambda x: x[0])
    seen = set()
    released = [-1]
    region = [0]

    def frag_read(M, n):
        f = frags[n]
        kb = f["kb"]
        if kb not in seen:
            seen.add(kb)
            M.waitvm(("W", kb))
            M("s_barrier")
            released[0] = kb
            if kb in (11, 13, 15, 17) and not ssm:
                M.stamp(3 + (kb - 11) // 2)
        sl = kb % NS
        reg = sl // 2
        if reg != region[0]:
            d = (reg - region[0]) * 2 * STG
            for g in range(4 if ssm else 6):
                M(f"v_add_u32 v{V_RB+g}, {d & 0xffffffff}, v{V_RB+g}")
            region[0] = reg
        b = WF + 4 * (n % NWF)
        off = (sl % 2) * STG
        if not ssm:
            off += f["s"] * 16 * 128
            M(f"ds_read_b64_tr_b16 v[{b}:{b+1}], v{V_RB+f['g']} offset:{off}")
            M(f"ds_read_b64_tr_b16 v[{b+2}:{b+3}], v{V_RB+f['g']} offset:{off+512}")
        else:
            ph = 5 if f["g"] == 0 else (f["g"] + 4) % 5
            M(f"ds_read_b128 v[{b}:{b+3}], v{V_RB+f['s']} offset:{off + ph*4096}")

    for n in range(DIST):
        frag_read(P, n)
    if not ssm and not fused:
        P.stamp(2)
    CR = float(os.environ.get("CR3", "3.4"))
    credit = 0.0
    P0 = P
    P = Prog()
    MINLEAD = int(os.environ.get("K3LEAD", "40"))
    leads = []
    for n, f in enumerate(frags):
        b = WF + 4 * (n % NWF)
        a = ACC + 16 * f["g"]
        ks = f["kb"] * 4 + f["s"]
        c = "0" if ks == 0 else f"v[{a}:{a+15}]"
        P(f"v_mfma_f32_32x32x16_bf16 v[{a}:{a+15}], v[{b}:{b+3}], {hreg(ks)}, {c}")
        if n + DIST < len(frags):
            frag_read(P, n + DIST)
        rem = len(frags) - 1 - n
        if not ssm and rem % (4 * NT) == 0 and 1 <= rem // (4 * NT) <= 5:
            P.stamp(12 - rem // (4 * NT))
        credit = min(credit + CR, 12.0)
        assert not items or items[0][0] > n + 1, ("load issued too late", n, items[0][0])
        if credit > 0 or (items and items[0][0] - n < MINLEAD):
            for k, it in enumerate(items):
                if it[1] <= released[0]:
                    leads.append(it[0] - n)
                    P.extend(it[2])
                    credit -= it[3]
                    del items[k]
                    break
    assert not items
    if os.environ.get("VERB"):
        print("K3 leads", leads)
    L = P.ins
    nm = len(frags)
    T = 4 * NT
    for g in range(5):
        e = nm - (5 - g) * T
        L = interleave2(L, publish(g), start=e + 1, end=min(e + T, nm) - 1)
    P0.extend(L)
    P0("s_waitcnt vmcnt(0)")


def gen_k3(P2=None):
    fused = P2 is not None
    P = P2 if fused else Prog()
    if fused:
        P("s_barrier")
        P("s_cmp_lt_u32 s2, 240")
        P("s_cbranch_scc1 K3_GOON")
        P("""
        s_waitcnt vmcnt(0)
        v_mov_b32 v10, 0
        v_mov_b32 v11, 1
        s_mov_b64 exec, 1
        buffer_atomic_add v11, v10, s[20:23], s100 offen sc1
        buffer_atomic_add v11, v10, s[20:23], s101 offen sc1
        s_branch K3_END
        """)
        P("K3_GOON:")
    else:
        P("s_cmp_ge_u32 s2, 240")
        P("s_cbranch_scc1 K3_END")
    P.stamp(0, real=True)
    P.stamp(1)
    P("s_load_dwordx4 s[36:39], s[0:1], 96")
    P("s_load_dwordx4 s[40:43], s[0:1], 40")
    P("s_load_dwordx2 s[48:49], s[0:1], 120")
    P("s_load_dwordx2 s[44:45], s[0:1], 0")
    P("s_load_dwordx2 s[46:47], s[0:1], 64")
    if not fused:
        P("""
        v_lshrrev_b32 v2, 6, v0
        v_and_b32 v0, 63, v0
        v_readfirstlane_b32 s53, v2
        """)
    P(f"""
    v_lshlrev_b32 v{V_LANE16}, 4, v0
    s_lshr_b32 s54, s2, 3
    s_and_b32 s55, s2, 7
    s_mov_b32 s79, s53
    """)
    P("""
    s_and_b32 s50, s55, 4
    s_lshl_b32 s50, s50, 1
    s_and_b32 s57, s54, 7
    s_add_u32 s50, s50, s57
    s_and_b32 s51, s55, 3
    s_lshr_b32 s52, s54, 3
    s_lshl_b32 s57, s55, 1
    s_and_b32 s58, s54, 1
    s_add_u32 s57, s57, s58
    s_bfe_u32 s58, s54, 0x20001
    s_cmp_ge_u32 s54, 24
    s_cselect_b32 s50, s57, s50
    s_cselect_b32 s51, 4, s51
    s_cselect_b32 s52, s58, s52
    """)
    P(f"""
    s_lshl_b32 s57, s50, 2
    s_add_u32 s57, s57, s53
    s_mul_i32 s64, s57, 360
    s_mul_i32 s58, s51, 72
    s_add_u32 s64, s64, s58
    s_lshl_b32 s64, s64, 10
    s_add_u32 s64, s64, {WS_HF}
    s_mov_b32 s63, s57
    s_lshr_b32 s29, s57, 1
    s_lshl_b32 s29, s29, 2
    s_add_u32 s29, s29, s51
    s_add_u32 s29, s29, 192
    s_add_u32 s58, s50, 320
    s_cmp_eq_u32 s51, 4
    s_cselect_b32 s29, s58, s29
    s_mul_i32 s29, s29, {CNT_STRIDE}
    s_add_u32 s29, s29, {WS_CNT}
    """)
    P(f"""
    s_mul_i32 s54, s50, 3
    s_add_u32 s54, s54, s52
    s_mul_i32 s65, s54, {6*5*8192}
    s_lshl_b32 s57, s53, 11
    s_add_u32 s65, s65, s57
    s_add_u32 s65, s65, {WS_PART}
    s_lshl_b32 s66, s51, 13
    s_add_u32 s66, s66, s65
    s_add_u32 s24, s66, {5*5*8192}
    s_lshl_b32 s57, s54, 2
    s_add_u32 s57, s57, s53
    s_mul_i32 s69, s57, {CNT_STRIDE}
    s_add_u32 s69, s69, {WS_CNT}
    """)
    for L in range(1, 5):
        P(f"""
        s_add_u32 s57, s51, {L}
        s_cmp_ge_u32 s57, 5
        s_cselect_b32 s58, 5, 0
        s_sub_u32 s57, s57, s58
        s_mul_i32 s57, s57, {5*8192}
        s_add_u32 s{24+L}, s57, s66
        """)
    P("s_waitcnt lgkmcnt(0)")
    srd(P, 20, 48, 49, WS_BYTES)
    srd(P, 16, 38, 39, 2048 * 576 * 4)
    srd(P, 4, 44, 45, 2048 * 1152)
    srd(P, 32, 46, 47, 1152)
    P(f"""
    v_and_b32 v10, 31, v0
    v_lshrrev_b32 v11, 5, v0
    s_lshl_b32 s57, s63, 5
    v_add_u32 v12, s57, v10
    v_mul_u32_u24 v13, 1152, v12
    v_lshl_add_u32 v13, v11, 5, v13
    v_lshlrev_b32 v14, 5, v11
    v_lshlrev_b32 v15, 4, v10
    v_lshl_add_u32 v15, v11, 10, v15
    v_lshlrev_b32 v{V_OUT}, 1, v13
    s_mul_i32 s67, s52, 384
    s_mul_i32 s68, s63, 36864
    s_mul_i32 s57, s52, {12*1024}
    s_add_u32 s68, s68, s57
    s_and_b32 s57, s2, 3
    s_mul_i32 s57, s57, {XNF_BYTES}
    s_add_u32 s68, s68, s57
    s_add_u32 s68, s68, {WS_XNF}
    s_cmp_eq_u32 s51, s53
    s_cselect_b32 s73, 0, 0x40000000
    s_lshl_b32 s30, s51, 6
    s_add_u32 s30, s30, s67
    s_lshl_b32 s31, s51, 11
    s_add_u32 s31, s31, s68
    s_add_u32 s75, s67, {5*64}
    s_add_u32 s75, s75, s73
    s_add_u32 s76, s68, {5*2048}
    s_add_u32 s76, s76, s73
    """)
    P("s_cmp_eq_u32 s51, 4")
    P("s_cbranch_scc1 K3_SSM")
    srd(P, 8, 36, 37, 4608 * 1152)
    P(f"""
    v_lshrrev_b32 v10, 3, v0
    v_bfe_u32 v11, v0, 4, 1
    v_lshlrev_b32 v11, 2, v11
    v_and_b32 v12, 7, v0
    v_xor_b32 v12, v12, v11
    s_lshl_b32 s57, s53, 4
    v_add_u32 v10, s57, v10
    v_mul_u32_u24 v10, 1152, v10
    v_lshl_add_u32 v{V_D}, v12, 4, v10
    s_mul_i32 s56, s51, {1152*1152}
    s_mul_i32 s57, s52, 384
    s_add_u32 s56, s56, s57
    s_lshl_b32 s61, s53, 11
    """)
    P(f"""
    v_lshrrev_b32 v10, 5, v0
    v_lshlrev_b32 v10, 3, v10
    v_bfe_u32 v11, v0, 2, 2
    v_add_u32 v10, v10, v11
    v_lshlrev_b32 v10, 7, v10
    v_bfe_u32 v11, v0, 3, 1
    v_lshl_add_u32 v10, v11, 6, v10
    v_and_b32 v11, 1, v0
    v_lshl_add_u32 v10, v11, 5, v10
    v_bfe_u32 v11, v0, 4, 1
    v_lshl_add_u32 v10, v11, 4, v10
    v_bfe_u32 v11, v0, 1, 1
    v_lshl_add_u32 v10, v11, 3, v10
    v_xor_b32 v{V_RB}, 64, v10
    v_add_u32 v{V_RB}, 16384, v{V_RB}
    """)
    for L in range(1, 6):
        P(f"""
        s_add_u32 s57, s51, {L}
        s_cmp_ge_u32 s57, 5
        s_cselect_b32 s58, 5, 0
        s_sub_u32 s57, s57, s58
        s_and_b32 s58, s57, 1
        s_lshl_b32 s58, s58, 6
        s_lshr_b32 s57, s57, 1
        s_lshl_b32 s57, s57, 13
        v_xor_b32 v{V_RB+L}, s58, v10
        v_add_u32 v{V_RB+L}, s57, v{V_RB+L}
        """)
    main_loop(P, False, fused)
    P("s_branch K3_RED")
    P("K3_SSM:")
    srd(P, 8, 40, 41, 576 * 1152)
    srd(P, 12, 42, 43, 576 * 1152)
    P(f"""
    v_lshrrev_b32 v10, 3, v0
    v_lshrrev_b32 v11, 1, v10
    v_and_b32 v12, 7, v0
    v_xor_b32 v12, v12, v11
    s_mul_i32 s57, s53, 48
    v_add_u32 v10, s57, v10
    v_mul_u32_u24 v10, 1152, v10
    v_lshl_add_u32 v{V_D}, v12, 4, v10
    v_xor_b32 v{V_D1}, 64, v{V_D}
    s_mul_i32 s56, s52, {192*1152}
    s_mul_i32 s61, s53, 6144
    """)
    P(f"""
    v_and_b32 v10, 31, v0
    v_bfe_u32 v11, v10, 2, 1
    v_lshlrev_b32 v11, 4, v11
    v_lshrrev_b32 v12, 3, v10
    v_lshl_add_u32 v11, v12, 2, v11
    v_and_b32 v12, 3, v10
    v_add_u32 v11, v11, v12
    v_bfe_u32 v12, v11, 1, 3
    v_lshrrev_b32 v10, 5, v0
    v_xor_b32 v12, v12, v10
    v_lshlrev_b32 v12, 4, v12
    v_lshl_add_u32 v{V_RB}, v11, 7, v12
    v_xor_b32 v{V_RB+1}, 32, v{V_RB}
    v_xor_b32 v{V_RB+2}, 64, v{V_RB}
    v_xor_b32 v{V_RB+3}, 96, v{V_RB}
    """)
    main_loop(P, True, fused)
    P("K3_RED:")
    P.stamp(12)
    P(f"""
    s_waitcnt vmcnt(0)
    v_mov_b32 v10, 0
    v_mov_b32 v11, 1
    s_mov_b64 exec, 1
    buffer_atomic_add v11, v10, s[20:23], s69 offen sc1
    s_mov_b32 s70, 0
    s_mov_b64 exec, -1
    """)
    resid_calc(P)
    P("v_mov_b32 v10, 0")
    P("s_mov_b64 exec, 1")
    P.stamp(13)
    P("s_waitcnt lgkmcnt(0)")
    P("K3_POLL:")
    P(f"""
    buffer_load_dword v11, v10, s[20:23], s69 offen sc0 sc1
    s_waitcnt vmcnt(0)
    v_readfirstlane_b32 s71, v11
    s_add_u32 s70, s70, 1
    s_cmp_ge_u32 s71, 5
    s_cbranch_scc1 K3_GO
    s_sleep 1
    s_cmp_lt_u32 s70, 200000
    s_cbranch_scc1 K3_POLL
    """)
    P("K3_GO:")
    P("s_mov_b64 exec, -1")
    P.stamp(14)

    P(f"""
    s_mul_i32 s72, s51, {5*8192}
    s_add_u32 s72, s72, s65
    s_add_u32 s74, s65, {5*5*8192}
    s_add_u32 s74, s74, s73
    """)
    for i in range(1, 5):
        P(f"""
        s_add_u32 s57, s51, {i}
        s_cmp_ge_u32 s57, 5
        s_cselect_b32 s58, 5, 0
        s_sub_u32 s57, s57, s58
        s_lshl_b32 s57, s57, 13
        s_add_u32 s{23+i}, s57, s74
        s_add_u32 s57, s57, s72
        """)
        for q in range(2):
            r = WF + 8 * (i - 1) + 4 * q
            P(f"buffer_load_dwordx4 v[{r}:{r+3}], v{V_LANE16}, s[20:23], s57 offen offset:{1024*q} sc0 sc1")
    for i in range(1, 5):
        for q in range(2):
            r = PB + 40 + 8 * (i - 1) + 4 * q
            P(f"buffer_load_dwordx4 v[{r}:{r+3}], v{V_LANE16}, s[20:23], s{23+i} offen offset:{1024*q} sc0 sc1")
    P(f"""
    s_lshl_b32 s57, s51, 7
    s_lshl_b32 s58, s67, 1
    s_add_u32 s57, s57, s58
    s_add_u32 s58, s58, {5*128}
    s_add_u32 s58, s58, s73
    """)
    for a_, R0, so in ((ACC + 80, WF, "s57"), (ACC, PB + 40, "s58")):
        for i in range(4):
            for k in range(8):
                r = R0 + 8 * i + k
                P(f"""
                v_lshlrev_b32 v10, 16, v{r}
                v_and_b32 v{r}, 0xffff0000, v{r}
                v_add_f32 v{a_+2*k}, v{a_+2*k}, v10
                v_add_f32 v{a_+2*k+1}, v{a_+2*k+1}, v{r}
                """)
        for q in range(4):
            P(f"buffer_store_dwordx4 v[{a_+4*q}:{a_+4*q+3}], v{V_OUT}, s[16:19], {so} offen offset:{16*q}")
    P("K3_FIN:")
    P.stamp(15, real=True)
    P.dump_stamps(9, 20, WS_DBG, 10)
    P("K3_END:")
    P("s_endpgm")
    P("CODE_END:")
    if fused:
        return kernel_text("k2_kernel", P.finalize(), vgpr=256, agpr=256, sgpr=102), 163840
    return kernel_text("k3_kernel", P.finalize(), vgpr=256, agpr=256, sgpr=102), LDS_BYTES
```

```python
import struct, os
from asmlib import *
from layout import *


def f2u(x):
    return "0x%08x" % struct.unpack("<I", struct.pack("<f", x))[0]


LOG2E = 1.4426950408889634
INV2PI = 0.15915494309189535


def srd(P, d, lo, hi, nbytes):
    P(f"s_mov_b32 s{d}, s{lo}")
    P(f"s_and_b32 s{d+1}, s{hi}, 0xffff")
    P(f"s_mov_b32 s{d+2}, {nbytes}")
    P(f"s_mov_b32 s{d+3}, 0x00020000")


def bf16r(P, dst, src):
    P(f"v_cvt_pk_bf16_f32 v{dst}, v{src}, v{src}")
    P(f"v_lshlrev_b32 v{dst}, 16, v{dst}")


def emit_param_loads(P, voff, r, s_lre, s_lim, s_ldt):
    P(f"buffer_load_ushort v{r}, v{voff}, s[{s_lre}:{s_lre+3}], 0 offen")
    P(f"buffer_load_ushort v{r+1}, v{voff}, s[{s_lim}:{s_lim+3}], 0 offen")
    P(f"buffer_load_ushort v{r+2}, v{voff}, s[{s_ldt}:{s_ldt+3}], 0 offen")


def emit_params(P, r):
    P(f"v_lshlrev_b32 v{r}, 16, v{r}")
    P(f"v_lshlrev_b32 v{r+1}, 16, v{r+1}")
    P(f"v_lshlrev_b32 v{r+2}, 16, v{r+2}")
    P(f"v_mul_f32 v{r+2}, {f2u(LOG2E)}, v{r+2}")
    P(f"v_exp_f32 v{r+2}, v{r+2}")
    bf16r(P, r + 2, r + 2)
    P(f"v_mul_f32 v{r+3}, v{r+2}, v{r+1}")
    P(f"v_mul_f32 v{r+2}, v{r+2}, v{r}")
    P(f"v_mul_f32 v{r+3}, {f2u(INV2PI)}, v{r+3}")
    P(f"v_mul_f32 v{r+2}, {f2u(LOG2E)}, v{r+2}")


def emit_pow(P, n, a2, rev, ore, oim, t):
    if n == 1:
        P(f"v_exp_f32 v{t}, v{a2}")
        P(f"v_fract_f32 v{oim}, v{rev}")
    else:
        ns = n if isinstance(n, str) else f2u(float(n))
        P(f"v_mul_f32 v{t}, {ns}, v{a2}")
        P(f"v_mul_f32 v{oim}, {ns}, v{rev}")
        P(f"v_exp_f32 v{t}, v{t}")
        P(f"v_fract_f32 v{oim}, v{oim}")
    P(f"v_cos_f32 v{ore}, v{oim}")
    P(f"v_sin_f32 v{oim}, v{oim}")
    P(f"v_mul_f32 v{ore}, v{t}, v{ore}")
    P(f"v_mul_f32 v{oim}, v{t}, v{oim}")


def touch(P, vdst, vaddr, srdn):
    i = Ins(f"buffer_store_dword v{vdst}, v{vaddr}, s[{srdn}:{srdn+3}], 0 offen")
    i.text = f"buffer_load_dword v{vdst}, v{vaddr}, s[{srdn}:{srdn+3}], 0 offen"
    P.ins.append(i)


def prefetch_groups(vt):
    Q = Prog()
    prefetch(Q, vt)
    groups, cur = [], []
    ins = Q.ins
    for k, i in enumerate(ins):
        cur.append(i)
        if i.text.startswith("buffer_load") and not (k + 1 < len(ins) and ins[k + 1].text.startswith("buffer_load")):
            groups.append(cur)
            cur = []
    if cur:
        groups.append(cur)
    return groups


def prefetch(P, vt):
    KPF = int(os.environ.get("KPF", "0"))
    srd(P, 68, 64, 65, 576 * 9216)
    srd(P, 72, 66, 67, 576 * 9216)
    P(f"""
    s_and_b32 s77, s2, 1
    s_lshl_b32 s77, s77, 2
    s_lshr_b32 s76, s50, 3
    s_lshl_b32 s76, s76, 3
    s_add_u32 s76, s76, s79
    v_and_b32 v{vt+4}, 63, v0
    """)
    for r0 in range(0, KPF, 256):
        P(f"""
        s_lshl_b32 s4, s76, 2
        s_add_u32 s4, s4, {r0}
        v_lshrrev_b32 v{vt}, 4, v{vt+4}
        v_add_u32 v{vt}, s4, v{vt}
        v_bfe_u32 v{vt+1}, v{vt+4}, 2, 2
        v_add_u32 v{vt+1}, s77, v{vt+1}
        v_mul_u32_u24 v{vt+1}, 1152, v{vt+1}
        v_and_b32 v{vt+2}, 3, v{vt+4}
        v_lshl_add_u32 v{vt+1}, v{vt+2}, 8, v{vt+1}
        v_cmp_gt_u32 vcc, {KPF}, v{vt}
        v_mul_u32_u24 v{vt}, 9216, v{vt}
        v_add_u32 v{vt}, v{vt}, v{vt+1}
        v_cndmask_b32 v{vt}, 2.0, v{vt}, vcc
        """)
        for m in range(2):
            touch(P, vt + 3, vt, 68 + 4 * m)
    if int(os.environ.get("EPF", "0")):
        P(f"""
        s_mul_i32 s4, s76, 9
        v_lshrrev_b32 v{vt}, 2, v{vt+4}
        v_add_u32 v{vt}, s4, v{vt}
        v_and_b32 v{vt+1}, 3, v{vt+4}
        v_add_u32 v{vt+1}, s77, v{vt+1}
        v_mul_u32_u24 v{vt+1}, 1152, v{vt+1}
        v_mul_u32_u24 v{vt}, 9216, v{vt}
        v_add_u32 v{vt}, v{vt}, v{vt+1}
        v_add_u32 v{vt}, 1024, v{vt}
        v_cmp_gt_u32 vcc, 36, v{vt+4}
        v_cndmask_b32 v{vt}, 2.0, v{vt}, vcc
        """)
        for m in range(2):
            touch(P, vt + 3, vt, 68 + 4 * m)
    if int(os.environ.get("PF2", "0")):
        for i in range(2):
            P(f"""
            s_mul_i32 s4, s76, 81
            s_add_u32 s4, s4, {41*i}
            v_add_u32 v{vt}, s4, v{vt+4}
            s_mov_b32 s5, {(2**32 + 35)//36}
            v_mul_hi_u32 v{vt+1}, v{vt}, s5
            v_mul_u32_u24 v{vt+2}, 36, v{vt+1}
            v_sub_u32 v{vt}, v{vt}, v{vt+2}
            v_lshlrev_b32 v{vt}, 7, v{vt}
            s_bfe_u32 s4, s2, 0x20001
            s_mul_i32 s4, s4, 144
            v_add_u32 v{vt+1}, s4, v{vt+1}
            v_mul_u32_u24 v{vt+1}, 9216, v{vt+1}
            v_add_u32 v{vt}, v{vt}, v{vt+1}
            s_mul_i32 s4, s77, 1152
            v_add_u32 v{vt}, s4, v{vt}
            v_cmp_gt_u32 vcc, {41 - i}, v{vt+4}
            v_cndmask_b32 v{vt}, 2.0, v{vt}, vcc
            """)
            for m in range(2):
                touch(P, vt + 3, vt, 68 + 4 * m)
    if int(os.environ.get("PF3", "0")):
        P("s_load_dwordx2 s[64:65], s[0:1], 96")
        P("s_load_dwordx4 s[4:7], s[0:1], 40")
        P(f"""
        s_lshl_b32 s76, s50, 3
        s_add_u32 s76, s76, s79
        s_mul_i32 s77, s76, 81
        v_add_u32 v{vt}, s77, v{vt+4}
        v_lshlrev_b32 v{vt}, 7, v{vt}
        v_add_u32 v{vt+1}, {41*128}, v{vt}
        s_mul_i32 s77, s76, 11
        v_add_u32 v{vt+2}, s77, v{vt+4}
        v_lshlrev_b32 v{vt+2}, 7, v{vt+2}
        v_cmp_gt_u32 vcc, 41, v{vt+4}
        v_cndmask_b32 v{vt}, 2.0, v{vt}, vcc
        v_cndmask_b32 v{vt+1}, 2.0, v{vt+1}, vcc
        v_cmp_gt_u32 vcc, 11, v{vt+4}
        v_cndmask_b32 v{vt+2}, 2.0, v{vt+2}, vcc
        """)
        srd(P, 68, 64, 65, 4608 * 1152)
        touch(P, vt + 3, vt, 68)
        touch(P, vt + 3, vt + 1, 68)
        srd(P, 72, 4, 5, 576 * 1152)
        touch(P, vt + 3, vt + 2, 72)
        srd(P, 68, 6, 7, 576 * 1152)
        touch(P, vt + 3, vt + 2, 68)


def stream_pf(P, role, vt):
    NCW = int(os.environ.get("SPF_CW", "7"))
    NLN = int(os.environ.get("SPF_LN", "0")); NLD = int(os.environ.get("SPF_LD", "0")); INFL = int(os.environ.get("SPF_INFL", "6"))
    n = {"cw": NCW, "ln": NLN, "ld": NLD}[role]
    if n == 0:
        return []
    Q = Prog()
    srd(Q, 68, 64, 65, 576 * 9216)
    srd(Q, 72, 66, 67, 576 * 9216)
    if role == "ln":
        Q(f"s_lshl_b32 s76, s50, 3\ns_add_u32 s76, s76, s79\ns_add_u32 s76, s76, {NCW*768}")
    elif role == "cw":
        Q(f"s_lshl_b32 s76, s2, 2\ns_add_u32 s76, s76, s53")
    else:
        Q(f"s_lshl_b32 s76, s2, 2\ns_add_u32 s76, s76, s53\ns_add_u32 s76, s76, {NCW*768 + NLN*512}")
    Q(f"s_lshl_b32 s76, s76, 10\nv_and_b32 v{vt}, 63, v0\nv_lshlrev_b32 v{vt}, 4, v{vt}")
    groups = [Q.ins]
    k = 0
    for i in range(n):
        for m in range(2):
            G = Prog()
            G(f"s_add_u32 s77, s76, {i*(512 if role == 'ln' else 768)*1024}")
            I = Ins(f"buffer_store_dword v{vt}, v{vt}, s[{68+4*m}:{71+4*m}], s77 offen")
            I.text = f"buffer_load_dwordx4 v[{vt+2}:{vt+5}], v{vt}, s[{68+4*m}:{71+4*m}], s77 offen"
            G.ins.append(I)
            k += 1
            if role == "ln" and k >= INFL:
                G(f"s_waitcnt vmcnt({INFL-1})")
            groups.append(G.ins)
    return groups


def code_touch(P, lab, start, end, sd, vt, lane, sidx, back):
    P(f"s_getpc_b64 s[{sd}:{sd+1}]")
    P(f"{lab}:", tag="nop")
    if back:
        P(f"s_sub_u32 s{sd}, s{sd}, {lab}-{start}")
        P(f"s_subb_u32 s{sd+1}, s{sd+1}, 0")
    else:
        P(f"s_add_u32 s{sd}, s{sd}, {start}-{lab}")
        P(f"s_addc_u32 s{sd+1}, s{sd+1}, 0")
    P(f"""
    s_and_b32 s{sd+1}, s{sd+1}, 0xffff
    s_mov_b32 s{sd+2}, {"0" if os.environ.get("NOCT") else f"{end}-{start}"}
    s_mov_b32 s{sd+3}, 0x00020000
    v_lshlrev_b32 v{vt}, 7, v{lane}
    s_lshl_b32 s{sidx}, s{sidx}, 13
    v_add_u32 v{vt}, s{sidx}, v{vt}
    """)
    touch(P, vt + 1, vt, sd)


def gen_k1():
    P = Prog()
    P("s_cmp_ge_u32 s2, 256")
    P("s_cbranch_scc1 K1_END")
    P.stamp(0, real=True)
    P.stamp(1)
    P("v_lshrrev_b32 v1, 6, v0")
    P("v_readfirstlane_b32 s79, v1")
    P("s_load_dwordx8 s[36:43], s[0:1], 0")
    P("s_load_dwordx2 s[44:45], s[0:1], 32")
    P("s_load_dwordx2 s[46:47], s[0:1], 56")
    P("s_load_dwordx4 s[48:51], s[0:1], 112")
    P("s_load_dwordx4 s[64:67], s[0:1], 80")
    P("s_load_dwordx2 s[62:63], s[0:1], 64")
    P("v_and_b32 v2, 63, v0")
    P("s_and_b32 s53, s79, 3")
    if int(os.environ.get("CPF", "1")):
        P("s_cmp_lg_u32 s79, 0")
        P("s_cbranch_scc1 K1_NOCT", tag="keepall")
        P("s_lshr_b32 s3, s2, 3")
        code_touch(P, "K1_PC", "k1_kernel", "CODE_END", 4, 250, 2, 3, True)
        P("K1_NOCT:", tag="nop")
    P("s_waitcnt lgkmcnt(0)")
    srd(P, 8, 36, 37, 2048 * 1152)
    srd(P, 20, 50, 51, WS_BYTES)
    srd(P, 16, 48, 49, 256)
    P("s_cmp_ge_u32 s2, 192")
    P("s_cbranch_scc1 K1_LN")

    P("""
    s_and_b32 s50, s2, 4
    s_lshl_b32 s50, s50, 1
    s_bfe_u32 s51, s2, 0x30003
    s_add_u32 s50, s50, s51
    s_lshr_b32 s51, s2, 6
    s_and_b32 s52, s2, 3
    s_mul_i32 s52, s52, 3
    s_add_u32 s51, s51, s52
    s_mul_i32 s52, s51, 48
    s_lshl_b32 s57, s53, 12
    s_lshl_b32 s58, s53, 10
    """)
    SLOT = 28672
    NSLOT = 5
    XTRA = NSLOT * SLOT
    AGG = XTRA
    L8A = AGG + 6144
    SBL = L8A + 512
    STL = SBL + 1536
    AB = 52
    P(f"""
    v_and_b32 v3, 31, v2
    v_lshrrev_b32 v4, 5, v2
    v_bfe_u32 v6, v3, 1, 3
    v_xor_b32 v6, v6, v4
    v_lshlrev_b32 v6, 4, v6
    v_lshl_add_u32 v6, v3, 7, v6
    v_add_u32 v{AB}, 16384, v6
    """)
    P("s_cmp_ge_u32 s79, 4")
    P("s_cbranch_scc1 K1_LOAD")

    srd(P, 24, 38, 39, 1152)
    srd(P, 28, 40, 41, 1152)
    srd(P, 32, 46, 47, 1152)
    PR = 16
    P("""
    v_and_b32 v11, 15, v2
    v_add_u32 v11, s52, v11
    v_lshlrev_b32 v11, 1, v11
    v_add_u32 v12, 32, v11
    v_add_u32 v13, 64, v11
    """)
    for q in range(3):
        emit_param_loads(P, 11 + q, PR + 8 * q, 24, 28, 32)
    AA = 40
    P(f"""
    v_bfe_u32 v5, v3, 2, 1
    v_lshlrev_b32 v5, 4, v5
    v_lshrrev_b32 v6, 3, v3
    v_lshl_add_u32 v5, v6, 2, v5
    v_and_b32 v6, 3, v3
    v_add_u32 v5, v5, v6
    v_bfe_u32 v6, v5, 1, 3
    v_xor_b32 v6, v6, v4
    v_lshlrev_b32 v6, 4, v6
    v_lshl_add_u32 v6, v5, 7, v6
    v_add_u32 v{AA}, s57, v6
    """)
    for base in (AA, AB):
        for s in range(1, 4):
            P(f"v_xor_b32 v{base+s}, {32*s}, v{base}")
        for reg in range(1, 3):
            for s in range(4):
                P(f"v_add_u32 v{base+4*reg+s}, {reg*2*SLOT}, v{base+s}")
    ACC = 64
    FR = 112
    SB, SBI = 170, 174
    ST = 240
    PST = int(os.environ.get('PST', '6'))
    for q in range(3):
        emit_params(P, PR + 8 * q)
    for q in range(3):
        r = PR + 8 * q
        emit_pow(P, 1, r + 2, r + 3, r + 4, r + 5, 6)
        P(f"""
        v_add_f32 v6, -1.0, v{r+4}
        v_mul_f32 v7, v{r}, v{r}
        v_fmac_f32 v7, v{r+1}, v{r+1}
        v_rcp_f32 v7, v7
        v_mul_f32 v{r+6}, v6, v{r}
        v_add_f32 v7, v7, v7
        v_fmac_f32 v{r+6}, v{r+5}, v{r+1}
        v_mul_f32 v{r+7}, v{r+5}, v{r}
        v_fma_f32 v{r+7}, -v6, v{r+1}, v{r+7}
        v_mul_f32 v{r+6}, v{r+6}, v7
        v_mul_f32 v{r+7}, v{r+7}, v7
        """)
        emit_pow(P, 8, r + 2, r + 3, r, r + 1, 6)
    P(f"""
    v_lshrrev_b32 v7, 4, v2
    s_lshl_b32 s59, s50, 2
    s_add_u32 s59, s59, s53
    s_lshl_b32 s62, s53, 8
    s_add_u32 s62, s62, {STL}
    v_lshlrev_b32 v12, 6, v7
    v_add_u32 v12, s62, v12
    s_mul_i32 s59, s59, 36
    s_mul_i32 s60, s51, 3
    s_add_u32 s59, s59, s60
    s_lshl_b32 s59, s59, 12
    s_add_u32 s59, s59, {WS_BU}
    v_lshlrev_b32 v13, 4, v2
    v_and_b32 v14, 15, v2
    v_lshlrev_b32 v15, 3, v14
    v_add_u32 v15, {L8A}, v15
    v_lshlrev_b32 v8, 4, v14
    v_add_u32 v8, {SBL}, v8
    v_lshlrev_b32 v14, 7, v14
    v_lshl_add_u32 v14, v7, 3, v14
    s_lshl_b32 s60, s53, 5
    s_add_u32 s60, s60, {AGG}
    v_add_u32 v14, s60, v14
    """)
    for q in range(3):
        P(f"ds_write_b64 v15, v[{PR+8*q}:{PR+8*q+1}] offset:{q*128}")

    def reads(st):
        L = Prog()
        sl = st % NSLOT
        reg, off = sl // 2, (sl % 2) * SLOT
        for s in range(4):
            f = FR + 64 * (st & 1) + 16 * s
            L(f"ds_read_b128 v[{f}:{f+3}], v{AA+4*reg+s} offset:{off}")
            for q in range(3):
                L(f"ds_read_b128 v[{f+4+4*q}:{f+7+4*q}], v{AB+4*reg+s} offset:{off + 4096*q}")
        return L.ins

    def bar(st):
        P("s_waitcnt lgkmcnt(0)")
        P("s_barrier")
        P.stamp(3 + st)
    cwg = stream_pf(P, 'cw', 2)
    CW0 = int(os.environ.get("CW0", "2"))
    if cwg:
        P.extend(cwg.pop(0))
        for g in cwg[:CW0]:
            P.extend(g)
        cwg = cwg[CW0:]
    P.stamp(2)
    bar(0)
    P.extend(reads(0))
    for st in range(9):
        k = -(-len(cwg) // max(1, int(os.environ.get("CWN", "7")) - st)) if cwg else 0
        for g in cwg[:k]:
            P.extend(g)
        cwg = cwg[k:]
        F0 = FR + 64 * (st & 1)
        M = Prog()
        for s in range(4):
            f = F0 + 16 * s
            for q in range(3):
                a = ACC + 16 * q
                c = "0" if (st == 0 and s == 0) else f"v[{a}:{a+15}]"
                M(f"v_mfma_f32_32x32x16_bf16 v[{a}:{a+15}], v[{f}:{f+3}], v[{f+4+4*q}:{f+7+4*q}], {c}")
        if st + 1 < 9:
            bar(st + 1)
            P.extend(interleave(M.ins, reads(st + 1), start=0, end=8))
        else:
            P.extend(M.ins)
    P.stamp(12)
    P("s_barrier")
    for k in range(4):
        P(f"ds_read_b128 v[{ST+4*k}:{ST+4*k+3}], v12 offset:{16*k}")
    for q in range(3):
        P(f"ds_read_b128 v[{144+8*q}:{147+8*q}], v8 offset:{512*q}")
        P(f"ds_read_b128 v[{148+8*q}:{151+8*q}], v8 offset:{512*q+256}")
    for q in range(3):
        a = ACC + 16 * q
        for k in range(8):
            P(f"v_permlane16_swap_b32 v{a+k}, v{a+8+k}")
    for q in range(3):
        for k, d in enumerate((SB + q, SBI + q)):
            r = 144 + 8 * q + 4 * k
            P(f"""
            v_add_f32 v{r}, v{r}, v{r+1}
            v_add_f32 v{r+2}, v{r+2}, v{r+3}
            v_add_f32 v{d}, v{r}, v{r+2}
            """)
    for q in range(3):
        a = ACC + 16 * q
        r = PR + 8 * q
        P(f"""
        v_mul_f32 v136, v{r+6}, v{SB+q}
        v_fma_f32 v136, -v{r+7}, v{SBI+q}, v136
        v_mul_f32 v137, v{r+6}, v{SBI+q}
        v_fmac_f32 v137, v{r+7}, v{SB+q}
        """)
        hp = None
        for k in range(8):
            re_, im_ = a + k, a + 8 + k
            rt, rm = ST + 2 * k, ST + 2 * k + 1
            P(f"""
            v_mul_f32 v138, v{r+6}, v{re_}
            v_mul_f32 v139, v{r+6}, v{im_}
            v_fma_f32 v138, -v{r+7}, v{im_}, v138
            v_fmac_f32 v139, v{r+7}, v{re_}
            v_mul_f32 v{re_}, v{rt}, v138
            v_mul_f32 v{im_}, v{rt}, v139
            v_fma_f32 v{re_}, -v{rm}, v136, v{re_}
            v_fma_f32 v{im_}, -v{rm}, v137, v{im_}
            """)
            if k == 0:
                hp = (re_, im_)
            else:
                o = 140 + 2 * (k & 1)
                P(f"""
                v_fma_f32 v{o}, v{r+4}, v{hp[0]}, v{re_}
                v_fma_f32 v{o+1}, v{r+4}, v{hp[1]}, v{im_}
                v_fma_f32 v{o}, -v{r+5}, v{hp[1]}, v{o}
                v_fmac_f32 v{o+1}, v{r+5}, v{hp[0]}
                """)
                hp = (o, o + 1)
        P(f"ds_write_b64 v14, v[{hp[0]}:{hp[1]}] offset:{q*2048}")
        for k in range(4):
            P(f"s_add_u32 s60, s59, {q*4096 + k*1024}")
            P(f"buffer_store_dwordx4 v[{a+4*k}:{a+4*k+3}], v13, s[20:23], s60 offen{os.environ.get('BUST', '').replace('+', ' ')}")
    P("s_waitcnt lgkmcnt(0)")
    P("s_barrier")
    P.stamp(13)
    P.stamp(15, real=True)
    P.dump_stamps(9, 20, WS_DBG + 0x20000, 190)
    P("s_mov_b64 exec, -1") if os.environ.get("STAMPS") else None
    P(f"""
    v_cmp_gt_u32 vcc, 48, v0
    s_and_saveexec_b64 s[62:63], vcc
    s_cbranch_execz K1_END
    v_lshlrev_b32 v3, 7, v0
    v_add_u32 v3, {AGG}, v3
    v_lshlrev_b32 v10, 3, v0
    v_add_u32 v11, {L8A}, v10
    ds_read_b64 v[12:13], v11
    """)
    for k in range(8):
        P(f"ds_read_b128 v[{16+4*k}:{19+4*k}], v3 offset:{16*k}")
    P(f"""
    s_mul_i32 s59, s50, {16*576*8}
    s_lshl_b32 s60, s52, 3
    s_add_u32 s59, s59, s60
    s_add_u32 s59, s59, {WS_E8}
    v_mov_b32 v8, 0
    v_mov_b32 v9, 0
    """)
    cur = 8
    for j in range(16):
        P(f"s_add_u32 s61, s59, {j*576*8}")
        P(f"buffer_store_dwordx2 v[{cur}:{cur+1}], v10, s[20:23], s61 offen")
        nxt = 48 + 2 * j
        P(f"""
        v_fma_f32 v{nxt}, v12, v{cur}, v{16+2*j}
        v_fma_f32 v{nxt+1}, v12, v{cur+1}, v{17+2*j}
        v_fma_f32 v{nxt}, -v13, v{cur+1}, v{nxt}
        v_fma_f32 v{nxt+1}, v13, v{cur}, v{nxt+1}
        """)
        cur = nxt
    P(f"""
    s_mul_i32 s59, s50, {576*8}
    s_add_u32 s59, s59, s60
    s_add_u32 s59, s59, {WS_A128}
    buffer_store_dwordx2 v[{cur}:{cur+1}], v10, s[20:23], s59 offen
    s_branch K1_END
    """)

    P("K1_LOAD:")
    P("s_cmp_lt_u32 s53, 2")
    P("s_cselect_b32 s12, s42, s44")
    P("s_cselect_b32 s13, s43, s45")
    P("s_and_b32 s13, s13, 0xffff")
    P(f"s_mov_b32 s14, {576*1152}")
    P("s_mov_b32 s15, 0x00020000")
    ROT1 = int(os.environ.get("ROT1", "1"))
    P(f"""
    v_and_b32 v0, 255, v0
    v_lshrrev_b32 v3, 3, v2
    v_and_b32 v4, 7, v2
    v_lshrrev_b32 v5, 1, v3
    v_xor_b32 v6, v4, v5
    v_lshlrev_b32 v6, 4, v6
    s_lshl_b32 s54, s50, 7
    s_lshl_b32 s55, s53, 5
    s_add_u32 s54, s54, s55
    v_add_u32 v7, s54, v3
    v_mul_u32_u24 v7, 1152, v7
    v_add_u32 v8, v7, v6
    v_xor_b32 v9, 64, v8
    s_and_b32 s55, s53, 1
    s_lshl_b32 s56, s55, 3
    s_add_u32 s56, s56, s52
    v_add_u32 v7, s56, v3
    v_mul_u32_u24 v7, 1152, v7
    v_add_u32 v10, v7, v6
    s_lshl_b32 s56, s55, 6
    v_xor_b32 v10, s56, v10
    s_and_b32 s61, s50, 7
    s_lshr_b32 s60, s2, 6
    s_mul_i32 s60, s60, 3
    s_add_u32 s61, s61, s60
    s_cmp_ge_u32 s61, 9
    s_cselect_b32 s60, 9, 0
    s_sub_u32 s61, s61, s60
    s_mul_i32 s61, s61, {128*ROT1}
    """)

    def issue_stage(st):
        slot = (st % NSLOT) * SLOT
        if st:
            P("s_add_u32 s61, s61, 128")
            P("s_cmp_ge_u32 s61, 1152")
            P("s_cselect_b32 s61, 0, s61")
        for j in range(4):
            P(f"s_add_u32 m0, s57, {slot + j*1024}")
            P(f"s_add_u32 s59, s61, {j*9216}")
            P(f"buffer_load_dwordx4 v{8 + (j & 1)}, s[8:11], s59 offen lds", tag=("st", st))
        for q in range(3):
            P(f"s_add_u32 m0, s58, {slot + 16384 + q*4096}")
            P(f"s_add_u32 s59, s61, {q*18432}")
            P(f"buffer_load_dwordx4 v10, s[12:15], s59 offen lds", tag=("st", st))
    PRE1 = int(os.environ.get("PRE1", "2"))
    for st in range(PRE1):
        issue_stage(st)
    P(f"""
    s_lshl_b32 s59, s53, 5
    v_xor_b32 v{AB}, s59, v{AB}
    v_add_u32 v{AB+1}, {2*SLOT}, v{AB}
    v_add_u32 v{AB+2}, {4*SLOT}, v{AB}
    """)
    for q in range(6):
        P(f"v_mov_b32 v{32+q}, 0")
    nxt = PRE1
    groups = stream_pf(P, 'ld', 44)
    for st in range(9):
        P.waitvm(("st", st))
        P("s_waitcnt lgkmcnt(0)")
        P("s_barrier")
        sl = st % NSLOT
        for q in range(3):
            P(f"ds_read_b128 v[{16+4*q}:{19+4*q}], v{AB + sl//2} offset:{(sl % 2)*SLOT + 4096*q}")
        n_issue = 0
        while nxt <= min(8, st + NSLOT - 1) and n_issue < 2:
            issue_stage(nxt)
            nxt += 1
            n_issue += 1
        if nxt > 8 and n_issue == 0 and groups:
            k = -(-len(groups) // (9 - st))
            for g in groups[:k]:
                P.extend(g)
            groups = groups[k:]
        for q in range(3):
            for d in range(4):
                r = 16 + 4 * q + d
                P(f"""
                v_lshlrev_b32 v30, 16, v{r}
                v_and_b32 v31, 0xffff0000, v{r}
                v_add_f32 v{32+2*q}, v{32+2*q}, v30
                v_add_f32 v{33+2*q}, v{33+2*q}, v31
                """)
    assert not groups
    for q in range(3):
        P(f"v_add_f32 v{32+q*2}, v{32+2*q}, v{33+2*q}")
        P(f"v_mov_b32 v{33+2*q}, v{32+2*q}")
    for q in range(3):
        P(f"v_permlane32_swap_b32 v{32+2*q}, v{33+2*q}")
    P(f"""
    v_and_b32 v3, 31, v2
    v_lshlrev_b32 v3, 4, v3
    s_lshl_b32 s60, s53, 2
    s_add_u32 s60, s60, {SBL}
    v_add_u32 v3, s60, v3
    """)
    for q in range(3):
        P(f"v_add_f32 v{32+q*2}, v{32+2*q}, v{33+2*q}")
        P(f"ds_write_b32 v3, v{32+2*q} offset:{512*q}")
    P(f"""
    s_cmp_lg_u32 s53, 0
    s_cbranch_scc1 K1_LDONE
    s_and_b32 s63, s50, 7
    s_lshl_b32 s63, s63, 3
    s_lshr_b32 s60, s50, 3
    s_lshl_b32 s60, s60, 2
    s_add_u32 s63, s63, s60
    s_lshl_b32 s63, s63, 2
    v_and_b32 v9, 1, v2
    v_lshlrev_b32 v9, 3, v9
    s_mov_b32 s61, 0
    s_lshl_b32 s62, s50, 10
    s_add_u32 s62, s62, {WS_STAT}
    v_lshlrev_b32 v11, 4, v2
    """)
    P("K1_POLL:")
    P("""
    buffer_load_dword v10, v9, s[16:19], s63 offen sc0 sc1
    s_waitcnt vmcnt(0)
    v_cmp_ne_u32 vcc, 1, v10
    s_add_u32 s61, s61, 1
    s_nop 1
    s_cbranch_vccz K1_GO
    s_sleep 8
    s_cmp_lt_u32 s61, 100000
    s_cbranch_scc1 K1_POLL
    """)
    P("K1_GO:")
    P(f"""
    buffer_load_dwordx4 v[12:15], v11, s[20:23], s62 offen sc0 sc1
    v_add_u32 v11, {STL}, v11
    ds_write_b128 v11, v[12:15]
    """)
    P("K1_LDONE:")
    P("""
    s_waitcnt lgkmcnt(0)
    s_barrier
    s_barrier
    s_branch K1_END
    """)

    P("K1_LN:")
    Prog._last[0] = 1
    P(f"""
    s_sub_u32 s50, s2, 192
    s_and_b32 s51, s50, 4
    s_lshl_b32 s51, s51, 3
    s_lshr_b32 s52, s50, 3
    s_lshl_b32 s52, s52, 2
    s_add_u32 s51, s51, s52
    s_lshr_b32 s54, s79, 2
    s_add_u32 s51, s51, s54
    s_and_b32 s52, s50, 2
    s_add_u32 s28, s51, s52
    s_xor_b32 s52, s52, 2
    s_add_u32 s29, s51, s52
    s_and_b32 s53, s50, 3
    v_and_b32 v0, 255, v0
    v_lshrrev_b32 v1, 3, v0
    v_and_b32 v2, 7, v0
    v_mul_u32_u24 v3, 1152, v1
    v_lshl_add_u32 v3, v2, 4, v3
    s_mul_i32 s30, s28, {32*1152}
    s_mul_i32 s31, s29, {32*1152}
    """)
    R2 = [8, 184]
    F = 80
    XO = 176
    XN = 8
    DS = 44
    for ps in range(2):
        for j in range(9):
            P(f"buffer_load_dwordx4 v[{R2[ps]+4*j}:{R2[ps]+4*j+3}], v3, s[8:11], s{30+ps} offen offset:{128*j}")
    P(f"""
    s_lshl_b32 s52, s50, 1
    s_add_u32 s52, s52, s54
    s_mul_i32 s52, s52, {9*CNT_STRIDE}
    s_add_u32 s52, s52, {WS_CNT}
    v_mul_u32_u24 v4, {CNT_STRIDE}, v0
    v_cmp_gt_u32 vcc, 9, v0
    v_cndmask_b32 v4, 2.0, v4, vcc
    v_mov_b32 v5, 0
    buffer_store_dword v5, v4, s[20:23], s52 offen
    """)
    P(f"""
    v_lshrrev_b32 v4, 1, v2
    v_lshlrev_b32 v4, 10, v4
    v_and_b32 v5, 1, v2
    v_lshl_add_u32 v4, v5, 9, v4
    v_lshl_add_u32 v4, v1, 4, v4
    s_mul_i32 s55, s53, {XNF_BYTES}
    v_lshlrev_b32 v6, 3, v1
    v_cmp_eq_u32 vcc, 0, v2
    v_cndmask_b32 v6, 2.0, v6, vcc
    s_lshl_b32 s56, s28, 8
    s_add_u32 s56, s56, {WS_STAT}
    s_and_b32 s58, s53, 1
    s_cmp_eq_u32 s58, 0
    s_cselect_b32 s56, s56, 0x40000000
    s_lshl_b32 s57, s50, 2
    s_add_u32 s58, s58, s79
    s_cmp_eq_u32 s58, 0
    s_cselect_b32 s57, s57, 0x1000
    v_lshrrev_b32 v7, 2, v2
    v_lshlrev_b32 v7, 12, v7
    v_and_b32 v5, 1, v2
    v_lshl_add_u32 v7, v5, 11, v7
    v_bfe_u32 v5, v2, 1, 1
    v_lshl_add_u32 v7, v5, 9, v7
    v_lshl_add_u32 v7, v1, 4, v7
    """)

    def reduce8():
        P("""
        v_add_f32 v152, v152, v153
        v_add_f32_dpp v152, v152, v152 quad_perm:[1,0,3,2] row_mask:0xf bank_mask:0xf
        v_add_f32_dpp v152, v152, v152 quad_perm:[2,3,0,1] row_mask:0xf bank_mask:0xf
        v_add_f32_dpp v152, v152, v152 row_half_mirror row_mask:0xf bank_mask:0xf
        """)
    for ps in range(2):
        R = R2[ps]
        P(f"""
        s_mul_i32 s52, s{28+ps}, 36864
        s_add_u32 s52, s52, s55
        s_mul_i32 s60, s{28+ps}, {18*4096}
        s_add_u32 s60, s60, {WS_RES}
        """)
        for d in range(36):
            P(f"v_lshlrev_b32 v{F+2*d}, 16, v{R+d}")
            P(f"v_and_b32 v{F+2*d+1}, 0xffff0000, v{R+d}")
            if d == 1:
                P(f"v_pk_add_f32 v[152:153], v[{F}:{F+1}], v[{F+2}:{F+3}]")
            elif d > 1:
                P(f"v_pk_add_f32 v[152:153], v[152:153], v[{F+2*d}:{F+2*d+1}]")
        reduce8()
        P(f"v_mul_f32 v154, {f2u(-1.0/576)}, v152")
        for d in range(36):
            P(f"v_pk_add_f32 v[156:157], v[{F+2*d}:{F+2*d+1}], v[154:155] op_sel_hi:[1,0]")
            if d == 0:
                P(f"v_pk_mul_f32 v[152:153], v[156:157], v[156:157]")
            else:
                P(f"v_pk_fma_f32 v[152:153], v[156:157], v[156:157], v[152:153]")
        reduce8()
        P(f"v_mul_f32 v158, {f2u(1.0/576)}, v152")
        bf16r(P, 154, 154)
        bf16r(P, 158, 158)
        P(f"v_add_f32 v158, {f2u(1e-5)}, v158")
        bf16r(P, 158, 158)
        P("v_sqrt_f32 v158, v158")
        bf16r(P, 158, 158)
        P("v_rcp_f32 v158, v158")
        if ps == 0:
            P("v_mul_f32 v159, -v158, v154")
            P("buffer_store_dwordx2 v[158:159], v6, s[20:23], s56 offen sc0 sc1", tag="stat")
            P.stamp(2)
        for j in range(9):
            for d in range(4 * j, 4 * j + 4):
                a_, b_ = F + 2 * d, F + 2 * d + 1
                P(f"""
                v_pk_add_f32 v[{a_}:{b_}], v[{a_}:{b_}], v[154:155] op_sel_hi:[1,0]
                v_cvt_pk_bf16_f32 v{b_}, v{a_}, v{b_}
                v_lshlrev_b32 v{a_}, 16, v{b_}
                v_and_b32 v{b_}, 0xffff0000, v{b_}
                v_pk_mul_f32 v[{a_}:{b_}], v[{a_}:{b_}], v[158:159] op_sel_hi:[1,0]
                v_cvt_pk_bf16_f32 v{(XN + d) if ps == 1 else (XO+(d & 3)+4*(j & 1))}, v{a_}, v{b_}
                """)
            xo = XN + 4 * j if ps == 1 else XO + 4 * (j & 1)
            if ps == 0 and j == int(os.environ.get("SIGJ", "4")):
                P.waitvm("stat")
                P("""
                s_barrier
                v_mov_b32 v160, 0
                v_mov_b32 v161, 1
                s_mov_b64 exec, 1
                buffer_store_dword v161, v160, s[16:19], s57 offen sc0 sc1
                s_mov_b64 exec, -1
                """)
                P.stamp(3)
            P(f"s_add_u32 s61, s52, {WS_XNF + 4096*j}")
            P(f"buffer_store_dwordx4 v[{xo}:{xo+3}], v4, s[20:23], s61 offen")
    P.stamp(4)
    for g in stream_pf(P, 'ln', 162):
        P.extend(g)
    P("s_cmp_ge_u32 s79, 4")
    P("s_cbranch_scc1 K1_END")
    P("s_waitcnt vmcnt(0)") if os.environ.get("STAMPS") else None
    P.stamp(5)
    P.stamp(15, real=True)
    P.dump_stamps(9, 20, WS_DBG + 0x20000, 230)
    P("K1_END:")
    P("s_endpgm")
    return kernel_text("k1_kernel", P.finalize(), vgpr=256, sgpr=102), NSLOT * SLOT + 6144 + 512 + 1536 + 1024
```

```python
import os
from asmlib import *
from layout import *
from k1 import srd, f2u, bf16r, touch, code_touch


def gen_k1b():
    P = Prog()
    P("s_cmp_ge_u32 s2, 256")
    P("s_cbranch_scc1 K1_END")
    P.stamp(0, real=True)
    P.stamp(1)
    P("v_lshrrev_b32 v1, 6, v0")
    P("v_readfirstlane_b32 s79, v1")
    P("s_load_dwordx2 s[36:37], s[0:1], 0")
    P("s_load_dwordx2 s[48:49], s[0:1], 120")
    P("s_load_dwordx4 s[64:67], s[0:1], 80")
    P("s_load_dwordx4 s[40:43], s[0:1], 24")
    P("s_cmp_ge_u32 s79, 4")
    P("s_cbranch_scc1 K1_PF", tag="keepall")
    P(f"""
    s_and_b32 s51, s2, 4
    s_lshl_b32 s51, s51, 3
    s_lshr_b32 s52, s2, 3
    s_add_u32 s51, s51, s52
    v_lshrrev_b32 v1, 3, v0
    v_and_b32 v2, 7, v0
    v_mul_u32_u24 v3, 1152, v1
    v_lshl_add_u32 v3, v2, 4, v3
    s_mul_i32 s30, s51, {32*1152}
    s_waitcnt lgkmcnt(0)
    """)
    srd(P, 8, 36, 37, 2048 * 1152)
    R = 8
    F = 48
    for j in range(9):
        P(f"buffer_load_dwordx4 v[{R+4*j}:{R+4*j+3}], v3, s[8:11], s30 offen offset:{128*j}")
    srd(P, 20, 48, 49, WS_BYTES)
    P(f"""
    v_bfe_u32 v5, v1, 2, 2
    v_lshlrev_b32 v5, 3, v5
    v_lshrrev_b32 v6, 4, v1
    v_lshl_add_u32 v5, v6, 2, v5
    v_and_b32 v6, 3, v1
    v_add_u32 v5, v5, v6
    v_lshrrev_b32 v4, 1, v2
    v_lshlrev_b32 v4, 10, v4
    v_and_b32 v6, 1, v2
    v_lshl_add_u32 v4, v6, 9, v4
    v_lshl_add_u32 v4, v5, 4, v4
    s_and_b32 s53, s2, 3
    s_mul_i32 s55, s53, {XNF_BYTES}
    s_mul_i32 s52, s51, 36864
    s_add_u32 s52, s52, s55
    """)

    def reduce8():
        P("""
        v_add_f32 v120, v120, v121
        v_add_f32_dpp v120, v120, v120 quad_perm:[1,0,3,2] row_mask:0xf bank_mask:0xf
        v_add_f32_dpp v120, v120, v120 quad_perm:[2,3,0,1] row_mask:0xf bank_mask:0xf
        v_add_f32_dpp v120, v120, v120 row_half_mirror row_mask:0xf bank_mask:0xf
        """)
    for d in range(36):
        P(f"v_lshlrev_b32 v{F+2*d}, 16, v{R+d}")
        P(f"v_and_b32 v{F+2*d+1}, 0xffff0000, v{R+d}")
        if d == 1:
            P(f"v_pk_add_f32 v[120:121], v[{F}:{F+1}], v[{F+2}:{F+3}]")
        elif d > 1:
            P(f"v_pk_add_f32 v[120:121], v[120:121], v[{F+2*d}:{F+2*d+1}]")
    reduce8()
    P(f"v_mul_f32 v122, {f2u(-1.0/576)}, v120")
    for d in range(36):
        P(f"v_pk_add_f32 v[124:125], v[{F+2*d}:{F+2*d+1}], v[122:123] op_sel_hi:[1,0]")
        if d == 0:
            P(f"v_pk_mul_f32 v[120:121], v[124:125], v[124:125]")
        else:
            P(f"v_pk_fma_f32 v[120:121], v[124:125], v[124:125], v[120:121]")
    reduce8()
    P(f"v_mul_f32 v126, {f2u(1.0/576)}, v120")
    bf16r(P, 122, 122)
    bf16r(P, 126, 126)
    P(f"v_add_f32 v126, {f2u(1e-5)}, v126")
    bf16r(P, 126, 126)
    P("v_sqrt_f32 v126, v126")
    bf16r(P, 126, 126)
    P("v_rcp_f32 v126, v126")
    P.stamp(2)
    for j in range(9):
        for d in range(4 * j, 4 * j + 4):
            a_, b_ = F + 2 * d, F + 2 * d + 1
            P(f"""
            v_pk_add_f32 v[{a_}:{b_}], v[{a_}:{b_}], v[122:123] op_sel_hi:[1,0]
            v_cvt_pk_bf16_f32 v{b_}, v{a_}, v{b_}
            v_lshlrev_b32 v{a_}, 16, v{b_}
            v_and_b32 v{b_}, 0xffff0000, v{b_}
            v_pk_mul_f32 v[{a_}:{b_}], v[{a_}:{b_}], v[126:127] op_sel_hi:[1,0]
            v_cvt_pk_bf16_f32 v{R+d}, v{a_}, v{b_}
            """)
        P(f"s_add_u32 s61, s52, {WS_XNF + 4096*j}")
        P(f"buffer_store_dwordx4 v[{R+4*j}:{R+4*j+3}], v4, s[20:23], s61 offen")
    P.stamp(3)
    P.stamp(15, real=True)
    P.dump_stamps(9, 20, WS_DBG + 0x20000, 2)
    P("s_branch K1_END")
    P("K1_PF:", tag="restore")
    P("v_and_b32 v2, 63, v0")
    P("v_and_b32 v0, 255, v0")
    P("s_cmp_lg_u32 s79, 4")
    P("s_cbranch_scc1 K1_NOCT", tag="keepall")
    P("s_lshr_b32 s3, s2, 3")
    code_touch(P, "K1_PC", "k1_kernel", "CODE_END", 4, 10, 2, 3, True)
    P("K1_NOCT:", tag="nop")
    P("s_waitcnt lgkmcnt(0)")
    srd(P, 20, 48, 49, WS_BYTES)
    srd(P, 68, 64, 65, 576 * 9216)
    srd(P, 72, 66, 67, 576 * 9216)
    srd(P, 8, 40, 41, 576 * 1152)
    srd(P, 12, 42, 43, 576 * 1152)
    P(f"""
    s_lshl_b32 s76, s2, 2
    s_add_u32 s76, s76, s79
    s_sub_u32 s76, s76, 4
    s_lshl_b32 s76, s76, 10
    v_lshlrev_b32 v3, 4, v2
    """)
    NPF = int(os.environ.get("NPF", "6")); INFL = int(os.environ.get("PINFL", "6"))
    seq = []
    for i in range(NPF):
        seq += [(68, i), (72, i)]
        if i == 1:
            seq += [(8, 0), (12, 0)]
    P(f"""
    v_mov_b32 v12, 0
    v_mov_b32 v13, 0
    v_mov_b32 v14, 0
    v_mov_b32 v15, 0
    s_mul_i32 s52, s2, {5*CNT_STRIDE}
    s_add_u32 s52, s52, {WS_CNT}
    v_mul_u32_u24 v4, {CNT_STRIDE}, v0
    v_cmp_gt_u32 vcc, 5, v0
    v_cndmask_b32 v4, 2.0, v4, vcc
    s_mul_i32 s53, s2, {72*16}
    s_add_u32 s53, s53, {WS_AGG}
    v_lshlrev_b32 v5, 4, v0
    v_cmp_gt_u32 vcc, 72, v0
    v_cndmask_b32 v5, 2.0, v5, vcc
    buffer_store_dword v12, v4, s[20:23], s52 offen
    buffer_store_dwordx4 v[12:15], v5, s[20:23], s53 offen
    v_mov_b32 v18, 1.0
    v_mov_b32 v19, 1.0
    v_mov_b32 v16, 0
    v_mov_b32 v17, 0
    v_cmp_eq_u32 vcc, 0, v0
    v_cndmask_b32 v6, 2.0, v0, vcc
    s_cmp_eq_u32 s2, 0
    s_cselect_b32 s54, 0, 0x40000000
    s_add_u32 s54, s54, {WS_ZREC}
    buffer_store_dwordx4 v[16:19], v6, s[20:23], s54 offen
    """)
    for k, (sd, i) in enumerate(seq):
        P(f"s_add_u32 s77, s76, {i*1024*1024}")
        I = Ins(f"buffer_store_dword v3, v3, s[{sd}:{sd+3}], s77 offen")
        I.text = f"buffer_load_dwordx4 v[20:23], v3, s[{sd}:{sd+3}], s77 offen"
        P.ins.append(I)
        if k >= INFL:
            P(f"s_waitcnt vmcnt({INFL})")
    P("K1_END:")
    P("s_endpgm")
    return kernel_text("k1_kernel", P.finalize(), vgpr=128, sgpr=102), 0
```

```python
import os, math
from asmlib import *
from layout import *
from k1 import code_touch, srd, f2u, bf16r, emit_param_loads, emit_params, emit_pow, LOG2E

SLOT = 16384
E_BASE = 9 * SLOT
SCR = 9 * SLOT
LDS_BYTES = 10 * SLOT

V_LANE16 = 1
V_D4 = 2
V_DE = 4
V_R4 = 5
V_RE = 9
V_RE2 = 15
V_C0 = 10
V_T = 11
XV = 16
ACC = 48
WF = 208
NWF = 5
DIST = 4


def xreg(j, s):
    n = s * 2 + j
    if n < 64:
        return f"a[{4*n}:{4*n+3}]"
    n -= 64
    return f"v[{XV+4*n}:{XV+4*n+3}]"


def epilogue(slot, sreg, foff, halves=(0, 1), part="all", tag=None):
    E = Prog()
    if part == "store":
        for j in halves:
            a = ACC + 32 * slot + 16 * j
            E(f"s_add_u32 s71, s{sreg+j}, {foff}")
            E(f"buffer_store_dwordx4 v[{a}:{a+3}], v{V_LANE16}, s[20:23], s71 offen{os.environ.get('HST', '+sc1').replace('+', ' ')}", tag=tag)
        return E.ins
    for j in halves:
        a = ACC + 32 * slot + 16 * j
        for e in range(8):
            g, u, t = a + e, a + 8 + e, V_T + (e & 1)
            E(f"""
            v_mul_f32 v{t}, v{g}, v{g}
            v_fma_f32 v{t}, v{t}, s70, v{V_C0}
            v_mul_f32 v{t}, v{g}, v{t}
            v_exp_f32 v{t}, v{t}
            v_mul_f32 v{u}, v{g}, v{u}
            v_add_f32 v{t}, 1.0, v{t}
            v_rcp_f32 v{g}, v{t}
            """)
            if e >= 1:
                E(f"v_mul_f32 v{u-1}, v{u-1}, v{g-1}")
            if e >= 2 and e % 2 == 0:
                E(f"v_cvt_pk_bf16_f32 v{a+(e-2)//2}, v{u-2}, v{u-1}")
        if part == "all":
            E(f"s_add_u32 s71, s{sreg+j}, {foff}")
        E(f"v_mul_f32 v{a+15}, v{a+15}, v{a+7}")
        E(f"v_cvt_pk_bf16_f32 v{a+3}, v{a+14}, v{a+15}")
        if part == "all":
            E(f"buffer_store_dwordx4 v[{a}:{a+3}], v{V_LANE16}, s[20:23], s71 offen{os.environ.get('HST', '+sc1').replace('+', ' ')}", tag=tag)
    return E.ins


def cfma(E, ore, oim, a, bre, bim, cre, cim):
    E(f"""
    v_fma_f32 v{ore}, v{a}, v{bre}, v{cre}
    v_fma_f32 v{oim}, v{a}, v{bim}, v{cim}
    v_fma_f32 v{ore}, -v{a+1}, v{bim}, v{ore}
    v_fmac_f32 v{oim}, v{a+1}, v{bre}
    """)


def fixup():
    BU = ACC + 128
    T0, T1, A2, REV, T2, T3 = 228, 229, 230, 231, 232, 233
    L1, CAR, AG, E8, VE, VG, VW, VR = 234, 236, 238, 246, 254, 255, 13, 14
    FRG = AG
    C = Prog()
    C(f"""
    s_lshr_b32 s74, s2, 3
    s_lshl_b32 s75, s53, 5
    s_add_u32 s75, s75, s74
    s_cmp_lt_u32 s75, 72
    s_cselect_b32 s74, 0, 0x40000000
    s_and_b32 s76, s2, 4
    s_lshl_b32 s76, s76, 1
    s_and_b32 s77, s75, 7
    s_add_u32 s76, s76, s77
    s_lshr_b32 s75, s75, 3
    s_min_u32 s75, s75, 8
    s_mul_i32 s77, s52, 9
    s_add_u32 s75, s75, s77
    """)
    npre = len(C.ins)
    C(f"""
    v_and_b32 v{VE}, 15, v0
    s_lshl_b32 s77, s75, 4
    v_add_u32 v{VE}, s77, v{VE}
    v_lshlrev_b32 v{T2}, 1, v{VE}
    v_lshlrev_b32 v{VE}, 3, v{VE}
    v_lshrrev_b32 v{VG}, 4, v0
    """)
    emit_param_loads(C, T2, T0, 24, 28, 32)
    C(f"""
    v_lshlrev_b32 v{T3}, 2, v{VG}
    s_sub_u32 s77, s76, 1
    v_sub_u32 v{T3}, s77, v{T3}
    v_mov_b32 v{L1}, 0x40000000
    s_add_u32 s78, s74, {WS_A128}
    """)
    for i in range(4):
        C(f"""
        v_subrev_u32 v{T2}, {i}, v{T3}
        v_cmp_gt_i32 vcc, 0, v{T2}
        v_mul_u32_u24 v{T2}, {576*8}, v{T2}
        v_add_u32 v{T2}, v{T2}, v{VE}
        v_cndmask_b32 v{T2}, v{T2}, v{L1}, vcc
        buffer_load_dwordx2 v[{AG+2*i}:{AG+2*i+1}], v{T2}, s[20:23], s78 offen
        """)
    C(f"""
    v_mul_u32_u24 v{T2}, {576*8}, v{VG}
    v_add_u32 v{VE}, v{T2}, v{VE}
    s_mul_i32 s78, s76, {16*576*8}
    s_add_u32 s78, s78, s74
    s_add_u32 s78, s78, {WS_E8}
    """)
    for u in range(4):
        C(f"buffer_load_dwordx2 v[{E8+2*u}:{E8+2*u+1}], v{VE}, s[20:23], s78 offen")
        if u < 3:
            C(f"s_add_u32 s78, s78, {4*576*8}")
    C(f"""
    s_mul_i32 s44, s76, {4*36}
    s_add_u32 s44, s44, s75
    s_lshl_b32 s44, s44, 12
    s_add_u32 s44, s44, s74
    s_add_u32 s44, s44, {WS_BU}
    s_mul_i32 s45, s76, {4*360}
    s_add_u32 s45, s45, s75
    s_lshl_b32 s45, s45, 10
    s_add_u32 s45, s45, s74
    s_add_u32 s45, s45, {WS_HF + 288*1024}
    """)

    if int(os.environ.get("IVPF", "1")):
        C(f"""
        s_lshr_b32 s77, s2, 3
        s_lshl_b32 s78, s53, 5
        s_add_u32 s77, s77, s78
        s_sub_u32 s77, s77, 72
        s_bfe_u32 s78, s2, 0x10002
        s_mul_i32 s78, s78, 40
        s_add_u32 s78, s78, s77
        s_mul_i32 s83, s52, 81
        s_add_u32 s78, s78, s83
        s_sub_u32 s83, s77, 41
        s_lshl_b32 s83, s83, 2
        s_bfe_u32 s82, s2, 0x20001
        s_add_u32 s83, s83, s82
        s_cmp_lt_u32 s77, 41
        s_cselect_b32 s78, s78, s83
        s_cselect_b32 s4, s100, s98
        s_cselect_b32 s5, s101, s99
        s_mov_b32 s6, {576*1152}
        s_cselect_b32 s6, {4608*1152}, s6
        s_lshl_b32 s78, s78, 14
        s_cmp_eq_u32 s74, 0
        s_cselect_b32 s4, s20, s4
        s_cselect_b32 s5, s21, s5
        s_cselect_b32 s6, s22, s6
        s_cselect_b32 s44, s44, s78
        s_mov_b32 s82, 4096
        s_cselect_b32 s82, {36*4096}, s82
        s_and_b32 s5, s5, 0xffff
        s_mov_b32 s7, 0x00020000
        """)
    else:
        C(f"""
        s_mov_b32 s4, s20
        s_mov_b32 s5, s21
        s_mov_b32 s6, s22
        s_mov_b32 s7, 0x00020000
        s_mov_b32 s82, {36*4096}
        """)

    def bu_load(u):
        b = BU + 16 * (u & 1)
        for q in range(4):
            C(f"buffer_load_dwordx4 v[{b+4*q}:{b+4*q+3}], v{V_LANE16}, s[4:7], s44 offen offset:{1024*q}")
        C(f"s_add_u32 s44, s44, s82")
    nld = len(C.ins)
    C(f"""
    s_lshl_b32 s77, s53, 11
    s_add_u32 s77, s77, {SCR}
    v_and_b32 v{VW}, 15, v0
    v_lshlrev_b32 v{VW}, 6, v{VW}
    v_lshl_add_u32 v{VW}, v{VG}, 4, v{VW}
    v_add_u32 v{VW}, s77, v{VW}
    v_lshrrev_b32 v{VR}, 5, v0
    v_lshlrev_b32 v{VR}, 3, v{VR}
    v_bfe_u32 v{T2}, v0, 2, 2
    v_add_u32 v{VR}, v{VR}, v{T2}
    v_lshlrev_b32 v{VR}, 6, v{VR}
    v_bfe_u32 v{T2}, v0, 4, 1
    v_lshl_add_u32 v{VR}, v{T2}, 5, v{VR}
    v_and_b32 v{T2}, 3, v0
    v_lshl_add_u32 v{VR}, v{T2}, 3, v{VR}
    v_add_u32 v{VR}, s77, v{VR}
    v_cvt_f32_u32 v{VG}, v{VG}
    """)
    emit_params(C, T0)
    emit_pow(C, 128, A2, REV, L1, L1 + 1, T0)
    C(f"v_mul_f32 v{T1}, {f2u(512.0)}, v{VG}")
    emit_pow(C, f"v{T1}", A2, REV, T2, T3, T0)
    cfma(C, AG + 4, AG + 5, L1, AG + 6, AG + 7, AG + 4, AG + 5)
    cfma(C, AG + 2, AG + 3, L1, AG + 4, AG + 5, AG + 2, AG + 3)
    cfma(C, AG + 0, AG + 1, L1, AG + 2, AG + 3, AG + 0, AG + 1)
    C(f"""
    v_mul_f32 v{CAR}, v{T2}, v{AG}
    v_mul_f32 v{CAR+1}, v{T2}, v{AG+1}
    v_fma_f32 v{CAR}, -v{T3}, v{AG+1}, v{CAR}
    v_fmac_f32 v{CAR+1}, v{T3}, v{AG}
    """)
    emit_pow(C, 1, A2, REV, L1, L1 + 1, T0)
    for pl in ("v_permlane16_swap_b32", "v_permlane32_swap_b32"):
        C(f"""
        v_mov_b32 v{T0}, v{CAR}
        v_mov_b32 v{T1}, v{CAR+1}
        {pl} v{CAR}, v{T0}
        {pl} v{CAR+1}, v{T1}
        v_add_f32 v{CAR}, v{CAR}, v{T0}
        v_add_f32 v{CAR+1}, v{CAR+1}, v{T1}
        """)
    for u in range(4):
        C(f"v_mov_b32 v{T1}, {f2u(32.0*u)}")
        C(f"v_fmac_f32 v{T1}, {f2u(8.0)}, v{VG}")
        emit_pow(C, f"v{T1}", A2, REV, T2, T3, T0)
        e = E8 + 2 * u
        cfma(C, e, e + 1, T2, CAR, CAR + 1, e, e + 1)
    ncar = len(C.ins)
    bu_load(0)
    bu_load(1)
    nbu = len(C.ins)
    for u in range(4):
        b = BU + 16 * (u & 1)
        e = E8 + 2 * u
        pre, pim = e, e + 1
        for k in range(8):
            cfma(C, b + k, b + 8 + k, L1, pre, pim, b + k, b + 8 + k)
            pre, pim = b + k, b + 8 + k
        for k in range(4):
            C(f"v_cvt_pk_bf16_f32 v{b+k}, v{b+2*k}, v{b+2*k+1}")
        for k in range(4):
            C(f"v_cvt_pk_bf16_f32 v{b+8+k}, -v{b+8+2*k}, -v{b+8+2*k+1}")
        C(f"""
        ds_write_b128 v{VW}, v[{b}:{b+3}]
        ds_write_b128 v{VW}, v[{b+8}:{b+11}] offset:1024
        ds_read_b64_tr_b16 v[{FRG}:{FRG+1}], v{VR}
        ds_read_b64_tr_b16 v[{FRG+2}:{FRG+3}], v{VR} offset:256
        ds_read_b64_tr_b16 v[{FRG+4}:{FRG+5}], v{VR} offset:1024
        ds_read_b64_tr_b16 v[{FRG+6}:{FRG+7}], v{VR} offset:1280
        s_add_u32 s77, s45, {u*360*1024}
        s_add_u32 s73, s45, {u*360*1024 + 36*1024}
        """)
        if u + 2 < 4:
            bu_load(u + 2)
        C(f"""
        buffer_store_dwordx4 v[{FRG}:{FRG+3}], v{V_LANE16}, s[20:23], s77 offen sc1
        buffer_store_dwordx4 v[{FRG+4}:{FRG+7}], v{V_LANE16}, s[20:23], s73 offen sc1
        """, tag="fx")
    return C.ins[:nld], C.ins[nld:ncar], C.ins[ncar:nbu], C.ins[nbu:]


def touch_k3():
    mode = os.environ.get("W3PF", "0")
    T = Prog()
    if mode == "0":
        return [], []
    pre = Prog()
    pre("s_load_dwordx2 s[82:83], s[0:1], 96")
    pre("s_load_dwordx4 s[100:101+2], s[0:1], 40") if False else None
    T(f"""
    s_lshr_b32 s77, s2, 3
    s_lshl_b32 s77, s77, 2
    s_add_u32 s77, s77, s53
    s_lshl_b32 s77, s77, 13
    v_lshlrev_b32 v229, 7, v0
    v_add_u32 v229, s77, v229
    """)
    def ld(srdn, soff):
        i = Ins(f"buffer_store_dword v228, v229, s[{srdn}:{srdn+3}], {soff} offen")
        i.text = f"buffer_load_dword v228, v229, s[{srdn}:{srdn+3}], {soff} offen"
        T.ins.append(i)
    HALF = 2304 * 1152
    if mode == "l2":
        T(f"""
        s_mul_i32 s77, s52, {HALF}
        s_add_u32 s24, s36, s77
        s_addc_u32 s25, s37, 0
        s_and_b32 s25, s25, 0xffff
        s_mov_b32 s26, {HALF}
        """)
        for i in range(3):
            T(f"s_mov_b32 s77, {i*8192*128}")
            ld(24, "s77")
        for k, (lo, hi) in enumerate(((38, 39), (40, 41))):
            d = 28 + 4 * k
            T(f"s_mov_b32 s{d}, s{lo}\ns_and_b32 s{d+1}, s{hi}, 0xffff\ns_mov_b32 s{d+2}, {576*1152}")
            ld(d, "0")
    else:
        Q = HALF // 4
        T(f"""
        s_and_b32 s77, s2, 7
        s_lshr_b32 s78, s77, 1
        s_lshl_b32 s77, s52, 2
        s_add_u32 s77, s77, s78
        s_mul_i32 s77, s77, {Q}
        s_add_u32 s24, s36, s77
        s_addc_u32 s25, s37, 0
        s_and_b32 s25, s25, 0xffff
        s_mov_b32 s26, {Q}
        """)
        ld(24, "0")
        E8_ = 576 * 1152 // 8
        for k, (lo, hi) in enumerate(((38, 39), (40, 41))):
            d = 28 + 4 * k
            T(f"""
            s_and_b32 s77, s2, 7
            s_mul_i32 s77, s77, {E8_}
            s_add_u32 s{d}, s{lo}, s77
            s_addc_u32 s{d+1}, s{hi}, 0
            s_and_b32 s{d+1}, s{d+1}, 0xffff
            s_mov_b32 s{d+2}, {E8_}
            """)
            ld(d, "0")
    return [], T.ins


def gen_k2(fused=False):
    P = Prog()
    P("s_cmp_ge_u32 s2, 256")
    P("s_cbranch_scc1 " + ("K3_END" if fused else "K2_END"))
    P.stamp(0, real=True)
    P.stamp(1)
    P("s_load_dwordx4 s[36:39], s[0:1], 80")
    P("s_load_dwordx2 s[48:49], s[0:1], 120")
    P("s_load_dwordx4 s[40:43], s[0:1], 8")
    P("s_load_dwordx2 s[46:47], s[0:1], 56")
    P("s_load_dwordx2 s[100:101], s[0:1], 96")
    P("s_load_dwordx4 s[4:7], s[0:1], 40")
    P("""
    v_lshrrev_b32 v2, 6, v0
    v_and_b32 v0, 63, v0
    v_readfirstlane_b32 s53, v2
    s_and_b32 s52, s2, 3
    s_lshr_b32 s50, s2, 5
    s_lshl_b32 s51, s52, 3
    s_add_u32 s50, s50, s51
    s_and_b32 s51, s2, 4
    s_bfe_u32 s54, s2, 0x20003
    s_add_u32 s51, s51, s54
    s_mov_b32 s79, s53
    """)
    P(f"v_lshlrev_b32 v{V_LANE16}, 4, v0")
    P(f"""
    s_lshl_b32 s54, s51, 3
    s_lshl_b32 s55, s53, 1
    s_add_u32 s54, s54, s55
    s_mul_i32 s64, s54, 36864
    s_mul_i32 s55, s52, {XNF_BYTES}
    s_add_u32 s64, s64, s55
    s_add_u32 s65, s64, 36864
    s_lshr_b32 s57, s50, 2
    s_and_b32 s58, s50, 3
    s_mul_i32 s66, s54, {360*1024}
    s_mul_i32 s55, s57, {36*1024}
    s_add_u32 s66, s66, s55
    s_add_u32 s66, s66, {WS_HF}
    s_lshl_b32 s55, s58, 10
    s_add_u32 s68, s66, s55
    s_add_u32 s68, s68, {32*1024}
    s_add_u32 s69, s68, {360*1024}
    s_lshl_b32 s55, s58, 13
    s_add_u32 s66, s66, s55
    s_add_u32 s67, s66, {360*1024}
    s_mul_i32 s56, s57, 1152
    s_lshl_b32 s55, s58, 5
    s_add_u32 s72, s56, s55
    s_add_u32 s72, s72, 1024
    s_lshl_b32 s55, s58, 8
    s_add_u32 s56, s56, s55
    s_mov_b32 s70, {f2u(-2.0*math.sqrt(2.0/math.pi)*LOG2E*0.044715)}
    v_mov_b32 v{V_C0}, {f2u(-2.0*math.sqrt(2.0/math.pi)*LOG2E)}
    """)
    P(f"""
    v_lshrrev_b32 v14, 3, v0
    v_and_b32 v15, 2, v14
    v_bfe_u32 v{V_D4}, v0, 1, 2
    v_xor_b32 v{V_D4}, v{V_D4}, v15
    v_lshlrev_b32 v{V_D4}, 5, v{V_D4}
    v_and_b32 v15, 1, v0
    v_lshl_add_u32 v{V_D4}, v15, 4, v{V_D4}
    s_lshl_b32 s57, s53, 4
    v_add_u32 v14, s57, v14
    v_mul_u32_u24 v14, 9216, v14
    v_add_u32 v{V_D4}, v{V_D4}, v14
    v_xor_b32 v{V_D4+1}, 32, v{V_D4}
    v_lshrrev_b32 v14, 1, v0
    s_lshl_b32 s57, s53, 1
    s_and_b32 s57, s57, 4
    v_xor_b32 v14, s57, v14
    v_mul_u32_u24 v14, 9216, v14
    v_lshl_add_u32 v{V_DE}, v15, 4, v14
    s_lshl_b32 s61, s53, 11
    """)
    P("s_waitcnt lgkmcnt(0)")
    srd(P, 8, 36, 37, 576 * 9216)
    srd(P, 12, 38, 39, 576 * 9216)
    srd(P, 20, 48, 49, WS_BYTES)
    P("s_and_b32 s57, s2, 1")
    P("s_cmp_eq_u32 s57, 0")
    P("s_cselect_b32 s98, s4, s6")
    P("s_cselect_b32 s99, s5, s7")

    slotA = [0, 1, 2, 3, 4, 0, 1, 2, 3]
    slotB = [5, 6, 7, 8, 4, 0, 1, 2, 3]
    freeB = [None, None, None, None, 4, 5, 6, 7, 8]

    def dma4(grp, kb):
        slot = (slotA if grp == 0 else slotB)[kb] * SLOT
        out = []
        for m in range(2):
            for i in range(2):
                D = Prog()
                D(f"s_add_u32 m0, s61, {slot + m*8192 + i*1024}")
                D(f"s_add_u32 s59, s56, {(kb*64 + i*8)*9216 + grp*128}")
                D(f"buffer_load_dwordx4 v{V_D4+m}, s[{8+4*m}:{11+4*m}], s59 offen lds", tag=("W", grp, kb))
                out.append((D.ins, 8))
        return out

    def dmaE(kb):
        D = Prog()
        D(f"s_add_u32 m0, s60, {(kb % 4)*4096}")
        D(f"s_add_u32 s59, s72, {kb*64*9216}")
        D(f"buffer_load_dwordx4 v{V_DE}, s[16:19], s59 offen lds", tag=("W", 1, kb))
        return [(D.ins, 32)]

    def xloads(kb):
        out = []
        for s in range(4):
            for j in range(2):
                D = Prog()
                D(f"s_add_u32 s62, s{64+j}, {WS_XNF + kb*4096}")
                D(f"buffer_load_dwordx4 {xreg(j, kb*4+s)}, v{V_LANE16}, s[20:23], s62 offen offset:{s*1024}")
                out.append((D.ins, 8))
        return out

    PRE = int(os.environ.get("K2PRE", "2"))
    for kb in range(PRE):
        for ins, _ in dma4(0, kb) + xloads(kb):
            P.extend(ins)
    srd(P, 24, 40, 41, 1152)
    srd(P, 28, 42, 43, 1152)
    srd(P, 32, 46, 47, 1152)
    P(f"""
    s_cmp_lt_u32 s53, 2
    s_cselect_b32 s16, s8, s12
    s_cselect_b32 s17, s9, s13
    s_mov_b32 s18, {576*9216}
    s_mov_b32 s19, 0x00020000
    s_and_b32 s57, s53, 1
    s_mul_i32 s55, s57, {32*9216}
    s_add_u32 s72, s72, s55
    s_lshl_b32 s60, s53, 10
    s_add_u32 s60, s60, {E_BASE}
    """)
    P(f"""
    v_and_b32 v14, 1, v0
    v_lshlrev_b32 v14, 4, v14
    v_bfe_u32 v15, v0, 1, 1
    v_lshl_add_u32 v14, v15, 3, v14
    v_lshrrev_b32 v15, 5, v0
    v_lshlrev_b32 v15, 3, v15
    v_bfe_u32 v{WF}, v0, 2, 2
    v_add_u32 v15, v15, v{WF}
    v_bfe_u32 v{WF+1}, v0, 4, 1
    v_and_b32 v{WF}, 2, v{WF}
    v_xor_b32 v{WF}, v{WF}, v{WF+1}
    v_lshl_add_u32 v{V_R4}, v15, 7, v14
    v_lshl_add_u32 v{V_R4}, v{WF+1}, 13, v{V_R4}
    v_lshl_add_u32 v{V_R4}, v{WF}, 5, v{V_R4}
    v_xor_b32 v{V_R4+1}, 32, v{V_R4}
    v_xor_b32 v{V_R4+2}, 64, v{V_R4}
    v_xor_b32 v{V_R4+3}, 96, v{V_R4}
    v_lshl_add_u32 v{V_RE}, v15, 5, v14
    v_lshl_add_u32 v{V_RE}, v{WF+1}, 11, v{V_RE}
    v_lshl_add_u32 v{V_RE}, v{WF+1}, 7, v{V_RE}
    v_add_u32 v{V_RE}, {E_BASE}, v{V_RE}
    v_xor_b32 v{V_RE2}, 128, v{V_RE}
    """)
    fx_pre, fx_car, fx_bu, fx_rec = fixup()
    if os.environ.get("NOFX"):
        fx_pre, fx_car, fx_bu, fx_rec = [], [], [], []
    P.extend(fx_pre)
    phases = [
        [("A", 0, 0), ("A", 1, 1), ("A", 2, 2), ("A", 3, 3)],
        [("E", 0, 4), ("B", 0, 0)],
        [("B", 1, 1)],
        [("B", 2, 2)],
        [("B", 3, 3)],
    ]
    frags = []
    unit = 0
    for ph, tiles in enumerate(phases):
        for kb in range(9):
            order = [(s_, t) for s_ in range(4) for t in tiles]
            if (ph == 0 and kb == 8) or (ph == 1 and kb == 0):
                order = [(s_, tiles[0]) for s_ in range(4)] + [(s_, t) for s_ in range(4) for t in tiles[1:]]
            for s_, (buf, g, sl) in order:
                frags.append(dict(ph=ph, buf=buf, kb=kb, s=s_, g=g, slot=sl, ks=kb * 4 + s_, unit=unit))
            unit += 1
    bar_units = set(range(0, 18)) | {19}
    items = []
    for kb in range(PRE, 9):
        rel = -1 if kb < 5 else kb - 5 + 2
        for ins, ln in dma4(0, kb):
            items.append([16 * kb - 1, rel, ins, ln])
        for ins, ln in xloads(kb):
            items.append([16 * kb, -1, ins, ln])
    for kb in range(9):
        rel = -1 if freeB[kb] is None else freeB[kb] + 2
        for ins, ln in dma4(1, kb):
            items.append([144 + 8 * kb, rel, ins, ln])
        rel = -1 if kb < 4 else 9 + (kb - 4) + 2
        for ins, ln in dmaE(kb):
            items.append([144 + 8 * kb - 1, rel, ins, ln])
    items.sort(key=lambda x: x[0])
    released = [-1]
    seen = set()
    region = [0]

    def frag_read(M, n, part):
        f = frags[n]
        u = f["unit"]
        if u not in seen:
            seen.add(u)
            if u in bar_units:
                M.waitvm(("W", 0 if f["buf"] == "A" else 1, f["kb"]))
                M("s_barrier")
                released[0] = u
                if u in (1, 3, 5, 7, 9, 11, 13, 15, 17) and not os.environ.get("FINE"):
                    M.stamp(3 + u // 2)
        b = WF + 4 * (n % NWF)
        if f["buf"] == "E":
            off = (f["kb"] % 4) * 4096 + f["s"] * 16 * 32
            base = V_RE if part == 0 else V_RE2
        else:
            sl = (slotA if f["buf"] == "A" else slotB)[f["kb"]]
            reg = sl // 3
            if reg != region[0]:
                d = (reg - region[0]) * 3 * SLOT
                for g in range(4):
                    M(f"v_add_u32 v{V_R4+g}, {d & 0xffffffff}, v{V_R4+g}")
                region[0] = reg
            base = V_R4 + f["g"]
            off = (sl % 3) * SLOT + f["s"] * 16 * 128 + part * 512
        M(f"ds_read_b64_tr_b16 v[{b+2*part}:{b+2*part+1}], v{base} offset:{off}")

    for n in range(DIST):
        frag_read(P, n, 0)
        frag_read(P, n, 1)
    P.stamp(2)
    CR0 = float(os.environ.get("CR0", "6.3"))
    CR1 = float(os.environ.get("CR1", "6.6"))
    credit = 0.0
    cur_ph = 0
    B = Prog()
    phase_lists = []
    late = []
    for n, f in enumerate(frags):
        if f["ph"] != cur_ph:
            phase_lists.append(B.ins)
            B = Prog()
            cur_ph = f["ph"]
        b = WF + 4 * (n % NWF)
        credit = min(credit + (CR0 if f["ph"] == 0 else CR1), 16.0)
        for j in range(2):
            a = ACC + 32 * f["slot"] + 16 * j
            c = "0" if f["ks"] == 0 else f"v[{a}:{a+15}]"
            B(f"v_mfma_f32_32x32x16_bf16 v[{a}:{a+15}], v[{b}:{b+3}], {xreg(j, f['ks'])}, {c}")
            if n + DIST < len(frags):
                frag_read(B, n + DIST, j)
            assert not items or items[0][0] > n + DIST + 1, ("load issued too late", n, items[0][0])
            if j == 1 and credit > 0:
                for k, it in enumerate(items):
                    if it[1] <= released[0]:
                        B.extend(it[2])
                        credit -= it[3]
                        late.append(it[0] - n)
                        del items[k]
                        break
    phase_lists.append(B.ins)
    assert not items, len(items)
    if os.environ.get("VERB"):
        print("lead (frags) of loads:", late)
    A_ = lambda t, **k: epilogue(t, 66, 1024 * t, tag='early', **k)
    B_ = lambda t, **k: epilogue(t, 66, 4096 + 1024 * t, **k)
    L0, L1_ = phase_lists[0], phase_lists[1]
    n0 = sum(1 for i in L0 if i.kind == "mfma")
    L = L0 + L1_
    n01 = sum(1 for i in L if i.kind == "mfma")
    L = interleave2(L, fx_car, start=96, end=n0 - 26)
    L = interleave2(L, A_(0), start=n0 - 23, end=n0 + 7)
    L = interleave2(L, A_(1, part="calc") + A_(2, part="calc") + A_(3, part="calc") + A_(1, part="store"), start=n0 + 8, end=n01 - 1)
    P.extend(L)
    P.stamp(3 if os.environ.get("FINE") else 12)
    _, tk3 = touch_k3()
    if tk3:
        P("s_load_dwordx2 s[36:37], s[0:1], 96")
        P("s_load_dwordx2 s[38:39], s[0:1], 40")
        P("s_load_dwordx2 s[40:41], s[0:1], 48")
    P(f"""
    s_lshl_b32 s100, s51, 2
    s_add_u32 s100, s100, s53
    s_lshl_b32 s100, s100, 2
    s_add_u32 s100, s100, s52
    s_add_u32 s100, s100, 192
    s_mul_i32 s100, s100, {CNT_STRIDE}
    s_add_u32 s100, s100, {WS_CNT}
    s_add_u32 s83, s100, {160*CNT_STRIDE}
    s_add_u32 s101, s76, 320
    s_mul_i32 s101, s101, {CNT_STRIDE}
    s_add_u32 s101, s101, {WS_CNT}
    s_add_u32 s101, s101, s74
    v_cmp_eq_u32 vcc, 0, v0
    v_mov_b32 v233, 1
    v_cndmask_b32 v232, 2.0, v0, vcc
    """)
    def sig(tag, sreg):
        Q = Prog()
        if fused:
            Q.waitvm(tag)
            Q(f"buffer_atomic_add v233, v232, s[20:23], s{sreg} offen sc1")
        return Q.ins
    nr = len(fx_rec)
    FO = os.environ.get("FXO", "early")
    c1, c2 = (int(nr * 0.12), int(nr * 0.40)) if FO != "early" else (int(nr * 0.30), nr)
    def spread(body, stores, lo=0.0, hi=1.0):
        pairs = [stores[i:i + 2] for i in range(0, len(stores), 2)]
        n = len(body)
        pos = [int(n * (lo + (hi - lo) * (k + 0.5) / len(pairs))) for k in range(len(pairs))]
        out = []
        for i_, x in enumerate(body):
            while pos and i_ >= pos[0] and not (out and out[-1].text.startswith("s_add_u32 s71")) and not (len(out) > 1 and out[-2].text.startswith("s_add_u32 s71")) and not (len(out) > 2 and out[-3].text.startswith("s_add_u32 s71")):
                out += pairs.pop(0)
                pos.pop(0)
            out.append(x)
        for p_ in pairs:
            out += p_
        return out
    ST = lambda t: A_(t, part="store")
    EP = lambda: epilogue(4, 68, 0, tag="early")
    if FO == "early":
        b0 = B_(0)
        h = len(b0) // 4
        fillsV = [spread(EP() + fx_bu + b0[:h] + fx_rec[:c1], ST(2), 0.0, 1.0),
                  spread(fx_rec[c1:] + b0[h:], ST(3), 0.0, 0.6),
                  B_(1)[:70] + sig("early", 83) + sig("fx", 101) + B_(1)[70:] + B_(2)]
    else:
        fillsV = [spread(EP() + fx_bu + B_(0, halves=(0,)) + fx_rec[:c1], ST(2), 0.0, 1.0),
                  spread(B_(0, halves=(1,)) + fx_rec[c1:c2] + B_(1), ST(3), 0.0, 0.7), fx_rec[c2:int((nr+c2)/2)] + sig("early", 83) + fx_rec[int((nr+c2)/2):] + B_(2)]
    def pf(n):
        Q = Prog()
        for q in range(n):
            I = Ins(f"buffer_store_dword v228, v{V_LANE16}, s[4:7], s44 offen")
            I.text = f"buffer_load_dwordx4 v[228:231], v{V_LANE16}, s[4:7], s44 offen" + os.environ.get("PFF", "").replace("+", " ")
            Q.ins.append(I)
            Q("s_add_u32 s44, s44, 1024")
        return Q.ins
    def mix(a_, b_):
        out, k = [], 0
        step = max(1, len(a_) // max(1, len(b_) // 2))
        for i_, x in enumerate(a_):
            out.append(x)
            if i_ % step == step - 1 and k < len(b_):
                out += b_[k:k + 2]
                k += 2
        return out + b_[k:]
    PFS = [int(x) for x in os.environ.get("PFS", "8,8,0").split(",")]
    fillsI = [mix(spread(EP() + B_(0, halves=(0,)), ST(2)), pf(PFS[0])),
              mix(spread(B_(0, halves=(1,)) + B_(1), ST(3), 0.0, 0.7), pf(PFS[1])), B_(2)[:70] + sig("early", 83) + B_(2)[70:]]
    SPLIT = int(os.environ.get("SPLIT", "1")) and not os.environ.get("NOFX")
    import copy
    if SPLIT:
        P("s_cmp_lg_u32 s74, 0")
        P("s_cbranch_scc1 K2_INV", tag="keepall")
    last = Prog._last[0]
    for k in range(3):
        L = phase_lists[2 + k]
        nm = sum(1 for i in L if i.kind == "mfma")
        LL = interleave2(L, fillsV[k], start=1, end=nm - 1)
        if os.environ.get("FINE"):
            cnt = 0
            for i_ in LL:
                P.ins.append(i_)
                if i_.kind == "mfma":
                    cnt += 1
                    if cnt % 24 == 0:
                        P.stamp(3 + 3 * k + cnt // 24)
        else:
            P.extend(LL)
            if k >= 1:
                P.stamp(12 + k)
    if SPLIT:
        P("s_branch K2_FIN")
        P("K2_INV:", tag="restore")
        Prog._last[0] = last
        if int(os.environ.get("CPF3", "1")):
            P("""
            s_lshr_b32 s77, s2, 3
            s_lshl_b32 s78, s53, 5
            s_add_u32 s77, s77, s78
            s_sub_u32 s77, s77, 72
            """)
            code_touch(P, "K2_PC", "K3_GOON" if fused else "k3_kernel", "CODE_END", 24, 234, 0, 77, False)
        for k in range(3):
            L = phase_lists[2 + k]
            nm = sum(1 for i in L if i.kind == "mfma")
            LL = interleave2(L, fillsI[k], start=1, end=nm - 1)
            if os.environ.get("FINE"):
                cnt = 0
                for i_ in LL:
                    P.ins.append(i_)
                    if i_.kind == "mfma":
                        cnt += 1
                        if cnt % 24 == 0:
                            P.stamp(3 + 3 * k + cnt // 24)
            else:
                P.extend(LL)
                if k >= 1:
                    P.stamp(12 + k)
        P("K2_FIN:")
        P("s_nop 7")
        P("s_nop 3")
    P.extend(B_(3))
    P.stamp(15, real=True)
    P.dump_stamps(9, 20, WS_DBG + (0x10000 if os.environ.get('ALLST') else 0), 14)
    if fused:
        P("s_mov_b64 exec, -1")
        return P
    P("K2_END:")
    P("s_endpgm")
    return kernel_text("k2_kernel", P.finalize(), vgpr=256, agpr=256, sgpr=102), LDS_BYTES
```

```python
import os, math
from asmlib import *
from layout import *
from k1 import code_touch, srd, f2u, bf16r, emit_param_loads, emit_params, emit_pow, LOG2E
from k2 import (SLOT, E_BASE, V_LANE16, V_D4, V_DE, V_R4, V_RE, V_RE2, V_C0, V_T, XV, ACC, WF, NWF, DIST,
                xreg, epilogue, cfma)

T0, T1, A2, REV = 228, 229, 230, 231
SGO, SGD = 232, 233
L1, CO = 234, 236
C8 = 238
ES = 240
Q = 244
V_DU, VAG, VG, TX = 252, 253, 254, 255
V_UB, V_UT = 14, 13
VW, VR = 13, 14


def cmul(E, o, a, b):
    E(f"""
    v_mul_f32 v{o}, v{a}, v{b}
    v_mul_f32 v{o+1}, v{a}, v{b+1}
    v_fma_f32 v{o}, -v{a+1}, v{b+1}, v{o}
    v_fmac_f32 v{o+1}, v{a+1}, v{b}
    """)


def ssm_params(spt):
    L = Prog()
    L(f"""
    v_and_b32 v{TX}, 15, v0
    s_lshl_b32 s77, s{spt}, 4
    v_add_u32 v{TX}, s77, v{TX}
    v_lshlrev_b32 v{TX}, 1, v{TX}
    """)
    emit_param_loads(L, TX, T0, 24, 28, 32)
    C = Prog()
    emit_params(C, T0)
    emit_pow(C, 1, A2, REV, L1, L1 + 1, Q)
    C(f"""
    v_add_f32 v{Q}, -1.0, v{L1}
    v_mul_f32 v{Q+1}, v{T0}, v{T0}
    v_fmac_f32 v{Q+1}, v{T1}, v{T1}
    v_rcp_f32 v{Q+1}, v{Q+1}
    v_mul_f32 v{CO}, v{Q}, v{T0}
    v_add_f32 v{Q+1}, v{Q+1}, v{Q+1}
    v_fmac_f32 v{CO}, v{L1+1}, v{T1}
    v_mul_f32 v{CO+1}, v{L1+1}, v{T0}
    v_fma_f32 v{CO+1}, -v{Q}, v{T1}, v{CO+1}
    v_mul_f32 v{CO}, v{CO}, v{Q+1}
    v_mul_f32 v{CO+1}, v{CO+1}, v{Q+1}
    v_lshrrev_b32 v{VG}, 4, v0
    v_cvt_f32_u32 v{VG}, v{VG}
    """)
    return L.ins, C.ins


def ssm1(U, sagg):
    E = Prog()
    for j in range(2):
        a = U + 16 * j
        for k in range(8):
            E(f"v_permlane16_swap_b32 v{a+k}, v{a+8+k}")
        hp = None
        for k in range(8):
            re_, im_ = a + k, a + 8 + k
            E(f"""
            v_mul_f32 v{T0}, v{CO}, v{re_}
            v_mul_f32 v{T1}, v{CO+1}, v{re_}
            v_fma_f32 v{re_}, -v{CO+1}, v{im_}, v{T0}
            v_fma_f32 v{im_}, v{CO}, v{im_}, v{T1}
            """)
            if k == 0:
                hp = (re_, im_)
            else:
                o = (Q + 4 * j) + 2 * (k & 1)
                cfma(E, o, o + 1, L1, hp[0], hp[1], re_, im_)
                hp = (o, o + 1)
    emit_pow(E, 8, A2, REV, C8, C8 + 1, T0)
    E(f"v_bfe_u32 v{TX}, v0, 4, 1")
    E(f"v_cvt_f32_u32 v{TX}, v{TX}")
    for j in range(2):
        a, b = Q + 4 * j + 2, Q + 4 * j
        E(f"""
        v_mov_b32 v{b}, v{a}
        v_mov_b32 v{b+1}, v{a+1}
        v_permlane16_swap_b32 v{a}, v{b}
        v_permlane16_swap_b32 v{a+1}, v{b+1}
        v_mul_f32 v{ES+2*j}, v{TX}, v{a}
        v_mul_f32 v{ES+2*j+1}, v{TX}, v{a+1}
        """)
        cfma(E, b, b + 1, C8, a, a + 1, b, b + 1)
    E(f"v_mul_f32 v{TX}, {f2u(8.0)}, v{TX}")
    emit_pow(E, f"v{TX}", A2, REV, CO, CO + 1, T0)
    E(f"""
    v_lshrrev_b32 v{TX}, 5, v0
    v_cvt_f32_u32 v{TX}, v{TX}
    v_mul_f32 v{CO}, v{TX}, v{CO}
    v_mul_f32 v{CO+1}, v{TX}, v{CO+1}
    """)
    cmul(E, T0, C8, C8)
    for j in range(2):
        a, b = Q + 4 * j + 2, Q + 4 * j
        E(f"""
        v_mov_b32 v{a}, v{b}
        v_mov_b32 v{a+1}, v{b+1}
        v_permlane32_swap_b32 v{b}, v{a}
        v_permlane32_swap_b32 v{b+1}, v{a+1}
        """)
        cfma(E, ES + 2 * j, ES + 2 * j + 1, CO, b, b + 1, ES + 2 * j, ES + 2 * j + 1)
        cfma(E, a, a + 1, T0, b, b + 1, a, a + 1)
    cmul(E, C8, T0, T0)
    cfma(E, Q + 4, Q + 5, C8, Q + 2, Q + 3, Q + 6, Q + 7)
    E(f"""
    v_mov_b32 v{Q+6}, 1.0
    v_mov_b32 v{Q+7}, 1.0
    v_lshlrev_b32 v{TX}, 4, v0
    v_cmp_gt_u32 vcc, 16, v0
    v_cndmask_b32 v{TX}, 2.0, v{TX}, vcc
    buffer_store_dwordx4 v[{Q+4}:{Q+7}], v{TX}, s[20:23], s{sagg} offen sc0 sc1
    v_mul_f32 v{TX}, {f2u(8.0)}, v{VG}
    """)
    emit_pow(E, f"v{TX}", A2, REV, CO, CO + 1, T0)
    cfma(E, ES + 2, ES + 3, CO, Q + 2, Q + 3, ES + 2, ES + 3)
    return E.ins


def ssm2_loads(R, sagg, swc):
    E = Prog()
    E(f"""
    v_lshrrev_b32 v{T0}, 4, v0
    v_lshlrev_b32 v{T0}, 3, v{T0}
    v_sub_u32 v{T0}, s{swc}, v{T0}
    v_and_b32 v{T1}, 15, v0
    v_lshlrev_b32 v{T1}, 4, v{T1}
    v_lshrrev_b32 v{VAG}, 4, v0
    v_lshlrev_b32 v{VAG}, 11, v{VAG}
    v_sub_u32 v{VAG}, v{T1}, v{VAG}
    v_add_u32 v{VAG}, s{sagg}, v{VAG}
    v_mov_b32 v{T1}, {WS_ZREC}
    """)
    for q in range(8):
        E(f"""
        v_cmp_lt_i32 vcc, {q}, v{T0}
        v_add_u32 v{TX}, {(-256*(q+1)) & 0xffffffff}, v{VAG}
        v_cndmask_b32 v{TX}, v{T1}, v{TX}, vcc
        buffer_load_dwordx4 v[{R+4*q}:{R+4*q+3}], v{TX}, s[20:23], 0 offen sc0 sc1
        """)
    return E.ins


def ssm2(U, R, shf, lab, scr):
    E = Prog()
    E(f"v_min_f32 v{TX}, v{R+2}, v{R+3}")
    for q in range(1, 8):
        E(f"v_min3_f32 v{TX}, v{TX}, v{R+4*q+2}, v{R+4*q+3}")
    E(f"v_cmp_gt_f32 vcc, 0.5, v{TX}")
    E("s_nop 4")
    E(f"s_cbranch_vccnz {lab}_SLOW", tag="keepall")
    E(f"{lab}_BACK:", tag="nop")
    emit_pow(E, 64, A2, REV, C8, C8 + 1, T0)
    for q in range(6, -1, -1):
        cfma(E, R + 4 * q, R + 4 * q + 1, C8, R + 4 * q + 4, R + 4 * q + 5, R + 4 * q, R + 4 * q + 1)
    E(f"v_mul_f32 v{TX}, {f2u(512.0)}, v{VG}")
    emit_pow(E, f"v{TX}", A2, REV, C8, C8 + 1, T0)
    cmul(E, CO, C8, R)
    for pl in ("v_permlane16_swap_b32", "v_permlane32_swap_b32"):
        E(f"""
        v_mov_b32 v{T0}, v{CO}
        v_mov_b32 v{T1}, v{CO+1}
        {pl} v{CO}, v{T0}
        {pl} v{CO+1}, v{T1}
        v_add_f32 v{CO}, v{CO}, v{T0}
        v_add_f32 v{CO+1}, v{CO+1}, v{T1}
        """)
    E(f"""
    s_lshl_b32 s77, s53, 11
    s_add_u32 s77, s77, {scr}
    v_and_b32 v{VW}, 15, v0
    v_lshlrev_b32 v{VW}, 6, v{VW}
    v_bfe_u32 v{T0}, v0, 4, 1
    v_lshl_add_u32 v{VW}, v{T0}, 5, v{VW}
    v_lshrrev_b32 v{T1}, 5, v0
    v_lshl_add_u32 v{VW}, v{T1}, 3, v{VW}
    v_add_u32 v{VW}, s77, v{VW}
    v_lshlrev_b32 v{VR}, 3, v{T1}
    v_bfe_u32 v{T1}, v0, 2, 2
    v_add_u32 v{VR}, v{VR}, v{T1}
    v_lshlrev_b32 v{VR}, 6, v{VR}
    v_lshl_add_u32 v{VR}, v{T0}, 5, v{VR}
    v_and_b32 v{T1}, 3, v0
    v_lshl_add_u32 v{VR}, v{T1}, 3, v{VR}
    v_add_u32 v{VR}, s77, v{VR}
    """)
    for j in range(2):
        b = U + 16 * j
        E(f"v_mov_b32 v{TX}, {f2u(32.0*j)}")
        E(f"v_fmac_f32 v{TX}, {f2u(8.0)}, v{VG}")
        emit_pow(E, f"v{TX}", A2, REV, C8, C8 + 1, T0)
        e = ES + 2 * j
        cfma(E, e, e + 1, C8, CO, CO + 1, e, e + 1)
        pre, pim = e, e + 1
        for k in range(8):
            cfma(E, b + k, b + 8 + k, L1, pre, pim, b + k, b + 8 + k)
            pre, pim = b + k, b + 8 + k
        for k in range(4):
            E(f"v_cvt_pk_bf16_f32 v{b+k}, v{b+2*k}, v{b+2*k+1}")
        for k in range(4):
            E(f"v_cvt_pk_bf16_f32 v{b+8+k}, -v{b+8+2*k}, -v{b+8+2*k+1}")
        E(f"""
        ds_write_b64 v{VW}, v[{b}:{b+1}]
        ds_write_b64 v{VW}, v[{b+2}:{b+3}] offset:16
        ds_write_b64 v{VW}, v[{b+8}:{b+9}] offset:1024
        ds_write_b64 v{VW}, v[{b+10}:{b+11}] offset:1040
        ds_read_b64_tr_b16 v[{b+4}:{b+5}], v{VR}
        ds_read_b64_tr_b16 v[{b+6}:{b+7}], v{VR} offset:256
        ds_read_b64_tr_b16 v[{b+12}:{b+13}], v{VR} offset:1024
        ds_read_b64_tr_b16 v[{b+14}:{b+15}], v{VR} offset:1280
        s_add_u32 s77, s{shf+j}, {36*1024}
        """)
        E(f"""
        buffer_store_dwordx4 v[{b+4}:{b+7}], v{V_LANE16}, s[20:23], s{shf+j} offen sc1
        buffer_store_dwordx4 v[{b+12}:{b+15}], v{V_LANE16}, s[20:23], s77 offen sc1
        """, tag="fx")
    return E.ins


def ssm2_slow(P, R, sagg, swc, lab):
    P(f"{lab}_SLOW:")
    P("s_mov_b32 s78, 0")
    P(f"{lab}_SPIN:")
    P("s_sleep 4")
    P.extend(ssm2_loads(R, sagg, swc))
    P(f"v_min_f32 v{TX}, v{R+2}, v{R+3}")
    for q in range(1, 8):
        P(f"v_min3_f32 v{TX}, v{TX}, v{R+4*q+2}, v{R+4*q+3}")
    P(f"""
    v_cmp_gt_f32 vcc, 0.5, v{TX}
    s_add_u32 s78, s78, 1
    s_nop 4
    s_cbranch_vccz {lab}_BACK
    s_cmp_lt_u32 s78, 100000
    s_cbranch_scc1 {lab}_SPIN
    s_branch {lab}_BACK
    """)


def N0():
    return tuple(int(x) for x in os.environ.get("N0", "5,4,4").split(","))


def ln_phase(P, dma4, dmaU, xloads, ROT, PRE):
    P("s_load_dwordx2 s[82:83], s[0:1], 0") if False else None
    P(f"""
    s_lshr_b32 s57, s2, 5
    s_bfe_u32 s58, s2, 0x20003
    s_lshl_b32 s58, s58, 1
    s_add_u32 s57, s57, s58
    s_cmp_ge_u32 s57, 9
    s_cselect_b32 s58, 9, 0
    s_sub_u32 s57, s57, s58
    s_mul_i32 s57, s57, {1 if ROT else 0}
    s_sub_u32 s3, 9, s57
    s_mul_i32 s58, s57, {64*9216}
    s_add_u32 s56, s56, s58
    s_add_u32 s72, s72, s58
    s_sub_u32 s4, s56, {9*64*9216}
    s_sub_u32 s5, s72, {9*64*9216}
    s_lshl_b32 s58, s57, 7
    s_add_u32 s63, s63, s58
    s_sub_u32 s6, s63, {9*128}
    s_lshl_b32 s58, s57, 12
    s_add_u32 s64, s64, s58
    s_add_u32 s65, s65, s58
    s_sub_u32 s7, s64, {9*4096}
    s_sub_u32 s78, s65, {9*4096}
    """)
    P("s_load_dwordx2 s[48:49], s[0:1], 112")
    first = []
    for kb in range(2):
        first += dma4(0, kb)
    rest = []
    na, nb, nu = N0()
    for kb in range(2, na):
        rest += dma4(0, kb)
    for kb in range(4):
        rest += (dma4(1, kb) if kb < nb else []) + (dmaU(kb) if kb < nu else [])
    P("s_waitcnt lgkmcnt(0)")
    srd(P, 36, 48, 49, 256)
    P("s_cmp_lg_u32 s53, 0")
    P("s_cbranch_scc1 K2_NOLN")
    R, F, S = ACC, ACC + 40, ACC + 120
    P(f"""
    s_lshl_b32 s57, s51, 5
    s_add_u32 s57, s57, s50
    """)
    W0N = int(os.environ.get("W0N", "4"))
    allw = first + rest
    for ins, _ in allw[:W0N]:
        P.extend(ins)
    P(f"""
    s_and_b32 s58, s50, 3
    s_lshl_b32 s58, s58, 3
    v_lshrrev_b32 v{S+10}, 3, v0
    v_add_u32 v{S+10}, s58, v{S+10}
    v_lshrrev_b32 v{S+8}, 1, v{S+9}
    v_lshlrev_b32 v{S+8}, 10, v{S+8}
    v_and_b32 v{S+11}, 1, v{S+9}
    v_lshl_add_u32 v{S+8}, v{S+11}, 9, v{S+8}
    v_lshl_add_u32 v{S+8}, v{S+10}, 4, v{S+8}
    s_lshr_b32 s58, s57, 2
    s_mul_i32 s58, s58, 36864
    """)

    def reduce8():
        P(f"""
        v_add_f32 v{S}, v{S}, v{S+1}
        v_add_f32_dpp v{S}, v{S}, v{S} quad_perm:[1,0,3,2] row_mask:0xf bank_mask:0xf
        v_add_f32_dpp v{S}, v{S}, v{S} quad_perm:[2,3,0,1] row_mask:0xf bank_mask:0xf
        v_add_f32_dpp v{S}, v{S}, v{S} row_half_mirror row_mask:0xf bank_mask:0xf
        """)
    for d in range(36):
        P(f"v_lshlrev_b32 v{F+2*d}, 16, v{R+d}")
        P(f"v_and_b32 v{F+2*d+1}, 0xffff0000, v{R+d}")
        if d == 1:
            P(f"v_pk_add_f32 v[{S}:{S+1}], v[{F}:{F+1}], v[{F+2}:{F+3}]")
        elif d > 1:
            P(f"v_pk_add_f32 v[{S}:{S+1}], v[{S}:{S+1}], v[{F+2*d}:{F+2*d+1}]")
    reduce8()
    if os.environ.get("PROST"): P.stamp(8)
    P(f"v_mul_f32 v{S+2}, {f2u(-1.0/576)}, v{S}")
    for d in range(36):
        P(f"v_pk_add_f32 v[{S+4}:{S+5}], v[{F+2*d}:{F+2*d+1}], v[{S+2}:{S+3}] op_sel_hi:[1,0]")
        if d == 0:
            P(f"v_pk_mul_f32 v[{S}:{S+1}], v[{S+4}:{S+5}], v[{S+4}:{S+5}]")
        else:
            P(f"v_pk_fma_f32 v[{S}:{S+1}], v[{S+4}:{S+5}], v[{S+4}:{S+5}], v[{S}:{S+1}]")
    reduce8()
    P(f"v_mul_f32 v{S+6}, {f2u(1.0/576)}, v{S}")
    bf16r(P, S + 2, S + 2)
    bf16r(P, S + 6, S + 6)
    P(f"v_add_f32 v{S+6}, {f2u(1e-5)}, v{S+6}")
    bf16r(P, S + 6, S + 6)
    P(f"v_sqrt_f32 v{S+6}, v{S+6}")
    bf16r(P, S + 6, S + 6)
    P(f"v_rcp_f32 v{S+6}, v{S+6}")
    for j in range(9):
        for d in range(4 * j, 4 * j + 4):
            a_, b_ = F + 2 * d, F + 2 * d + 1
            P(f"""
            v_pk_add_f32 v[{a_}:{b_}], v[{a_}:{b_}], v[{S+2}:{S+3}] op_sel_hi:[1,0]
            v_cvt_pk_bf16_f32 v{b_}, v{a_}, v{b_}
            v_lshlrev_b32 v{a_}, 16, v{b_}
            v_and_b32 v{b_}, 0xffff0000, v{b_}
            v_pk_mul_f32 v[{a_}:{b_}], v[{a_}:{b_}], v[{S+6}:{S+7}] op_sel_hi:[1,0]
            v_cvt_pk_bf16_f32 v{R+d}, v{a_}, v{b_}
            """)
        P(f"s_add_u32 s59, s58, {WS_XNF + 4096*j}")
        P(f"buffer_store_dwordx4 v[{R+4*j}:{R+4*j+3}], v{S+8}, s[20:23], s59 offen sc1")
    if os.environ.get("PROST"): P.stamp(9)
    P("s_waitcnt vmcnt(0)")
    if os.environ.get("PROST"): P.stamp(10)
    P("s_barrier")
    P(f"buffer_store_byte v{SGD}, v{SGO}, s[36:39], s57 offen sc0 sc1")
    for ins, _ in allw[W0N:]:
        P.extend(ins)
    if os.environ.get("PROST"): P.stamp(11)
    P("s_branch K2_LNJOIN")
    P("K2_NOLN:")
    P(f"""
    s_waitcnt vmcnt(0)
    s_cmp_lg_u32 s53, 1
    s_cselect_b32 s57, 0x40000000, 0
    v_mov_b32 v{ACC}, 0
    v_mov_b32 v{ACC+1}, 0
    v_mov_b32 v{ACC+2}, 0
    v_mov_b32 v{ACC+3}, 0
    v_mov_b32 v{ACC+4}, 0
    v_mov_b32 v{ACC+5}, 0
    v_mov_b32 v{ACC+6}, 1.0
    v_mov_b32 v{ACC+7}, 1.0
    s_mul_i32 s58, s2, {5*CNT_STRIDE}
    s_add_u32 s58, s58, s57
    s_add_u32 s58, s58, {WS_CNT}
    v_mul_u32_u24 v{ACC+8}, {CNT_STRIDE}, v0
    v_cmp_gt_u32 vcc, 5, v0
    v_cndmask_b32 v{ACC+8}, 2.0, v{ACC+8}, vcc
    buffer_store_dword v{ACC}, v{ACC+8}, s[20:23], s58 offen sc0 sc1
    s_mul_i32 s58, s2, {72*16}
    s_add_u32 s58, s58, s57
    s_add_u32 s58, s58, {WS_AGG}
    v_cmp_gt_u32 vcc, 8, v0
    v_cndmask_b32 v{ACC+8}, 2.0, v{V_LANE16}, vcc
    buffer_store_dwordx4 v[{ACC}:{ACC+3}], v{V_LANE16}, s[20:23], s58 offen sc0 sc1
    buffer_store_dwordx4 v[{ACC}:{ACC+3}], v{ACC+8}, s[20:23], s58 offen offset:1024 sc0 sc1
    s_cmp_eq_u32 s2, 0
    s_cselect_b32 s58, s57, 0x40000000
    s_add_u32 s58, s58, {WS_ZREC}
    buffer_store_dwordx4 v[{ACC+4}:{ACC+7}], v{SGO}, s[20:23], s58 offen sc0 sc1
    """, tag="clr")
    P("s_lshr_b32 s57, s2, 3\ns_cmp_eq_u32 s53, 2\ns_cselect_b32 s57, s57, 4096")
    code_touch(P, "K2_PC0", "k2_kernel", "CODE_END", 88, ACC + 10, 0, 57, True)
    for ins, _ in allw[:W0N]:
        P.extend(ins)
    P.waitvm("clr")
    P("s_barrier")
    for ins, _ in allw[W0N:]:
        P.extend(ins)
    P(f"""
    s_cmp_lg_u32 s53, 3
    s_cbranch_scc1 K2_LNJOIN
    v_and_b32 v{ACC+8}, 7, v0
    v_lshlrev_b32 v{ACC+8}, 2, v{ACC+8}
    s_lshl_b32 s57, s51, 5
    s_mov_b32 s58, 0
    """)
    P("K2_XPOLL:")
    P(f"""
    buffer_load_dword v{ACC+9}, v{ACC+8}, s[36:39], s57 offen sc0 sc1
    s_waitcnt vmcnt(0)
    v_cmp_ne_u32 vcc, 0x01010101, v{ACC+9}
    s_add_u32 s58, s58, 1
    s_nop 4
    s_cbranch_vccz K2_LNJOIN
    s_sleep {os.environ.get("XSLEEP", "6")}
    s_cmp_lt_u32 s58, 100000
    s_cbranch_scc1 K2_XPOLL
    """)
    P("K2_LNJOIN:")
    P("s_barrier")
    if os.environ.get("PROST"): P.stamp(12)
    for kb in range(PRE):
        for ins, _ in xloads(kb):
            P.extend(ins)
    P(f"s_waitcnt vmcnt({8*PRE})")


def gen_k2b(single=False):
    P = Prog()
    P("s_cmp_ge_u32 s2, 256")
    P("s_cbranch_scc1 K3_END")
    P.stamp(0, real=True)
    P.stamp(1)
    if single:
        S_ = ACC + 120
        P("s_load_dwordx2 s[88:89], s[0:1], 0")
        P(f"""
        s_and_b32 s57, s2, 4
        s_bfe_u32 s58, s2, 0x20003
        s_add_u32 s57, s57, s58
        s_lshl_b32 s57, s57, 3
        s_and_b32 s58, s2, 3
        s_lshl_b32 s58, s58, 1
        s_add_u32 s57, s57, s58
        s_lshr_b32 s58, s2, 7
        s_add_u32 s57, s57, s58
        s_lshl_b32 s57, s57, 5
        s_bfe_u32 s58, s2, 0x20005
        s_lshl_b32 s58, s58, 2
        s_add_u32 s57, s57, s58
        s_mul_i32 s58, s57, 1152
        v_bfe_u32 v{S_+8}, v0, 3, 2
        v_bfe_u32 v{S_+9}, v0, 5, 1
        v_lshl_add_u32 v{S_+8}, v{S_+9}, 4, v{S_+8}
        v_mul_u32_u24 v{S_+10}, 1152, v{S_+8}
        v_and_b32 v{S_+9}, 7, v0
        v_lshl_add_u32 v{S_+10}, v{S_+9}, 4, v{S_+10}
        v_cmp_gt_u32 vcc, 64, v0
        v_cndmask_b32 v{S_+10}, 2.0, v{S_+10}, vcc
        s_mov_b32 s90, {2048*1152}
        s_mov_b32 s91, 0x00020000
        s_waitcnt lgkmcnt(0)
        s_and_b32 s89, s89, 0xffff
        """)
        for j in range(9):
            P(f"buffer_load_dwordx4 v[{ACC+4*j}:{ACC+4*j+3}], v{S_+10}, s[88:91], s58 offen offset:{128*j}", tag="keep")
    P("s_load_dwordx4 s[36:39], s[0:1], 80")
    P("s_load_dwordx2 s[48:49], s[0:1], 120")
    P("s_load_dwordx4 s[40:43], s[0:1], 8")
    P("s_load_dwordx2 s[46:47], s[0:1], 56")
    P("s_load_dwordx2 s[100:101], s[0:1], 24")
    P("s_load_dwordx2 s[82:83], s[0:1], 32")
    P("""
    v_lshrrev_b32 v2, 6, v0
    v_and_b32 v0, 63, v0
    v_readfirstlane_b32 s53, v2
    s_and_b32 s52, s2, 3
    s_lshr_b32 s50, s2, 5
    s_lshl_b32 s51, s52, 3
    s_add_u32 s50, s50, s51
    s_and_b32 s51, s2, 4
    s_bfe_u32 s54, s2, 0x20003
    s_add_u32 s51, s51, s54
    s_mov_b32 s79, s53
    """)
    P(f"v_lshlrev_b32 v{V_LANE16}, 4, v0")
    P(f"""
    s_lshl_b32 s54, s51, 3
    s_lshl_b32 s55, s53, 1
    s_add_u32 s54, s54, s55
    s_mul_i32 s64, s54, 36864
    s_mul_i32 s55, s52, {0 if single else XNF_BYTES}
    s_add_u32 s64, s64, s55
    s_add_u32 s65, s64, 36864
    s_lshr_b32 s57, s50, 2
    s_and_b32 s58, s50, 3
    s_mul_i32 s66, s54, {360*1024}
    s_add_u32 s66, s66, {WS_HF}
    s_add_u32 s73, s66, {288*1024}
    s_mul_i32 s55, s57, {36*1024}
    s_add_u32 s66, s66, s55
    s_lshl_b32 s55, s58, 10
    s_add_u32 s68, s66, s55
    s_add_u32 s68, s68, {32*1024}
    s_add_u32 s69, s68, {360*1024}
    s_lshl_b32 s55, s58, 13
    s_add_u32 s66, s66, s55
    s_add_u32 s67, s66, {360*1024}
    s_mul_i32 s56, s57, 1152
    s_lshl_b32 s55, s58, 5
    s_add_u32 s72, s56, s55
    s_add_u32 s72, s72, 1024
    s_lshl_b32 s55, s58, 8
    s_add_u32 s56, s56, s55
    s_mov_b32 s70, {f2u(-2.0*math.sqrt(2.0/math.pi)*LOG2E*0.044715)}
    v_mov_b32 v{V_C0}, {f2u(-2.0*math.sqrt(2.0/math.pi)*LOG2E)}
    """)
    P(f"""
    v_lshrrev_b32 v14, 3, v0
    v_and_b32 v15, 2, v14
    v_bfe_u32 v{V_D4}, v0, 1, 2
    v_xor_b32 v{V_D4}, v{V_D4}, v15
    v_lshlrev_b32 v{V_D4}, 5, v{V_D4}
    v_and_b32 v15, 1, v0
    v_lshl_add_u32 v{V_D4}, v15, 4, v{V_D4}
    s_lshl_b32 s57, s53, 4
    v_add_u32 v14, s57, v14
    v_mul_u32_u24 v14, 9216, v14
    v_add_u32 v{V_D4}, v{V_D4}, v14
    v_xor_b32 v{V_D4+1}, 32, v{V_D4}
    v_lshrrev_b32 v14, 1, v0
    s_lshl_b32 s57, s53, 1
    s_and_b32 s57, s57, 4
    v_xor_b32 v14, s57, v14
    v_mul_u32_u24 v14, 9216, v14
    v_lshl_add_u32 v{V_DE}, v15, 4, v14
    s_lshl_b32 s61, s53, 11
    """)
    P("s_waitcnt lgkmcnt(0)")
    srd(P, 8, 36, 37, 576 * 9216)
    srd(P, 12, 38, 39, 576 * 9216)
    srd(P, 20, 48, 49, WS_BYTES)

    ROT = single and int(os.environ.get("ROT2", "1"))
    def rsel(D, dst, base, kb, const):
        if ROT and kb > 0:
            D(f"s_cmp_ge_u32 {kb}, s3")
            D(f"s_cselect_b32 s{dst}, s{HI[base]}, s{base}")
            D(f"s_add_u32 s{dst}, s{dst}, {const}")
        else:
            D(f"s_add_u32 s{dst}, s{base}, {const}")
    HI = {56: 4, 72: 5, 63: 6, 64: 7, 65: 78}
    slotA = [0, 1, 2, 3, 4, 0, 1, 2, 3]
    slotB = [5, 6, 7, 8, 4, 0, 1, 2, 3]
    freeB = [None, None, None, None, 4, 5, 6, 7, 8]

    def dma4(grp, kb):
        slot = (slotA if grp == 0 else slotB)[kb] * SLOT
        out = []
        for m in range(2):
            for i in range(2):
                D = Prog()
                D(f"s_add_u32 m0, s61, {slot + m*8192 + i*1024}")
                rsel(D, 59, 56, kb, (kb*64 + i*8)*9216 + grp*128)
                D(f"buffer_load_dwordx4 v{V_D4+m}, s[{8+4*m}:{11+4*m}], s59 offen lds", tag=("W", grp, kb))
                out.append((D.ins, 8))
        return out

    def dmaU(kb):
        D = Prog()
        D(f"s_add_u32 m0, s60, {(kb % 4)*4096}")
        rsel(D, 59, 63, kb, kb*128)
        D(f"buffer_load_dwordx4 v{V_DU}, s[44:47], s59 offen lds", tag=("W", 1, kb))
        return [(D.ins, 8)]

    def dmaE(kb):
        D = Prog()
        D(f"s_add_u32 m0, s60, {((9 + kb) % 4)*4096}")
        rsel(D, 59, 72, kb, kb*64*9216)
        D(f"buffer_load_dwordx4 v{V_DE}, s[16:19], s59 offen lds", tag=("W", 2, kb))
        return [(D.ins, 32)]

    def xloads(kb):
        out = []
        for s in range(4):
            for j in range(2):
                D = Prog()
                rsel(D, 62, 64 + j, kb, WS_XNF + kb*4096)
                D(f"buffer_load_dwordx4 {xreg(j, kb*4+s)}, v{V_LANE16}, s[20:23], s62 offen offset:{s*1024}" + (" sc1" if single else ""))
                out.append((D.ins, 8))
        return out

    PRE = int(os.environ.get("K2PRE", "2"))
    if not single:
        for kb in range(PRE):
            for ins, _ in dma4(0, kb) + xloads(kb):
                P.extend(ins)
    srd(P, 24, 40, 41, 1152)
    srd(P, 28, 42, 43, 1152)
    srd(P, 32, 46, 47, 1152)
    P(f"""
    s_cmp_lt_u32 s53, 2
    s_cselect_b32 s16, s8, s12
    s_cselect_b32 s17, s9, s13
    s_cselect_b32 s44, s100, s82
    s_cselect_b32 s45, s101, s83
    s_and_b32 s45, s45, 0xffff
    s_mov_b32 s46, {576*1152}
    s_mov_b32 s47, 0x00020000
    s_mov_b32 s18, {576*9216}
    s_mov_b32 s19, 0x00020000
    s_and_b32 s57, s53, 1
    s_mul_i32 s55, s57, {32*9216}
    s_add_u32 s72, s72, s55
    s_lshl_b32 s60, s53, 10
    s_add_u32 s60, s60, {E_BASE}
    s_mul_i32 s63, s50, {16*1152}
    """)
    P(f"""
    v_lshrrev_b32 v14, 3, v0
    v_lshrrev_b32 v15, 4, v0
    s_lshl_b32 s55, s57, 2
    v_add_u32 v15, s55, v15
    v_and_b32 v13, 7, v0
    v_xor_b32 v13, v13, v15
    s_lshl_b32 s55, s57, 3
    v_add_u32 v14, s55, v14
    v_mul_u32_u24 v14, 1152, v14
    v_lshl_add_u32 v{V_DU}, v13, 4, v14
    """)
    P(f"""
    v_and_b32 v14, 1, v0
    v_lshlrev_b32 v14, 4, v14
    v_bfe_u32 v15, v0, 1, 1
    v_lshl_add_u32 v14, v15, 3, v14
    v_lshrrev_b32 v15, 5, v0
    v_lshlrev_b32 v15, 3, v15
    v_bfe_u32 v{WF}, v0, 2, 2
    v_add_u32 v15, v15, v{WF}
    v_bfe_u32 v{WF+1}, v0, 4, 1
    v_and_b32 v{WF}, 2, v{WF}
    v_xor_b32 v{WF}, v{WF}, v{WF+1}
    v_lshl_add_u32 v{V_R4}, v15, 7, v14
    v_lshl_add_u32 v{V_R4}, v{WF+1}, 13, v{V_R4}
    v_lshl_add_u32 v{V_R4}, v{WF}, 5, v{V_R4}
    v_xor_b32 v{V_R4+1}, 32, v{V_R4}
    v_xor_b32 v{V_R4+2}, 64, v{V_R4}
    v_xor_b32 v{V_R4+3}, 96, v{V_R4}
    v_lshl_add_u32 v{V_RE}, v15, 5, v14
    v_lshl_add_u32 v{V_RE}, v{WF+1}, 11, v{V_RE}
    v_lshl_add_u32 v{V_RE}, v{WF+1}, 7, v{V_RE}
    v_add_u32 v{V_RE}, {E_BASE}, v{V_RE}
    v_xor_b32 v{V_RE2}, 128, v{V_RE}
    v_and_b32 v13, 31, v0
    v_bfe_u32 v{WF}, v13, 1, 3
    v_lshrrev_b32 v{WF+1}, 5, v0
    v_xor_b32 v{WF}, v{WF}, v{WF+1}
    v_lshlrev_b32 v{WF}, 4, v{WF}
    v_lshl_add_u32 v{V_UB}, v13, 7, v{WF}
    v_add_u32 v{V_UB}, {E_BASE}, v{V_UB}
    """)
    P(f"""
    s_lshl_b32 s76, s51, 2
    s_add_u32 s76, s76, s53
    s_lshl_b32 s75, s50, 5
    s_add_u32 s75, s75, s76
    s_lshl_b32 s75, s75, 8
    s_add_u32 s75, s75, {WS_AGG}
    s_lshl_b32 s55, s50, 10
    s_add_u32 s40, s73, s55
    s_add_u32 s41, s40, {360*1024}
    s_lshl_b32 s100, s76, 2
    s_add_u32 s100, s100, s52
    s_add_u32 s100, s100, 192
    s_mul_i32 s100, s100, {CNT_STRIDE}
    s_add_u32 s100, s100, {WS_CNT}
    s_add_u32 s83, s100, {160*CNT_STRIDE}
    s_lshr_b32 s101, s76, 1
    s_add_u32 s101, s101, 320
    s_mul_i32 s101, s101, {CNT_STRIDE}
    s_add_u32 s101, s101, {WS_CNT}
    v_cmp_eq_u32 vcc, 0, v0
    v_mov_b32 v{SGD}, 1
    v_cndmask_b32 v{SGO}, 2.0, v0, vcc
    """)
    NA0, NB0, NU0 = N0() if single else (PRE, 0, 0)
    if single:
        ln_phase(P, dma4, dmaU, xloads, ROT, PRE)
    pl_ld, pl_calc = ssm_params(50)
    phases = [
        [("A", 0, 0), ("A", 1, 1), ("A", 2, 2), ("A", 3, 3)],
        [("U", 0, 4), ("B", 0, 0)],
        [("E", 0, 1), ("B", 1, 2)],
        [("B", 2, 3)],
        [("B", 3, 0)],
    ]
    frags = []
    unit = 0
    for ph, tiles in enumerate(phases):
        for kb in range(9):
            order = [(s_, t) for s_ in range(4) for t in tiles]
            if (ph == 0 and kb == 8) or (ph == 1 and kb == 0):
                order = [(s_, tiles[0]) for s_ in range(4)] + [(s_, t) for s_ in range(4) for t in tiles[1:]]
            for s_, (buf, g, sl) in order:
                frags.append(dict(ph=ph, buf=buf, kb=kb, s=s_, g=g, slot=sl, ks=kb * 4 + s_, unit=unit))
            unit += 1
    bar_units = set(range(0, 27)) | {28}
    items = []
    for kb in range(PRE, 9):
        rel = -1 if kb < 5 else kb - 5 + 2
        for ins, ln in (dma4(0, kb) if kb >= NA0 else []):
            items.append([16 * kb - 1, rel, ins, ln])
        for ins, ln in xloads(kb):
            items.append([16 * kb, -1, ins, ln])
    for kb in range(9):
        rel = -1 if freeB[kb] is None else freeB[kb] + 2
        for ins, ln in (dma4(1, kb) if kb >= NB0 else []):
            items.append([144 + 8 * kb, rel, ins, ln])
        rel = -1 if kb < 4 else 9 + (kb - 4) + 2
        for ins, ln in (dmaU(kb) if kb >= NU0 else []):
            items.append([144 + 8 * kb - 1, rel, ins, ln])
        rel = 9 + (9 + kb - 4) + 2
        for ins, ln in dmaE(kb):
            items.append([216 + 8 * kb - 1, rel, ins, ln])
    items.sort(key=lambda x: x[0])
    released = [-1]
    seen = set()
    region = [0]

    def frag_read(M, n, part):
        f = frags[n]
        u = f["unit"]
        if u not in seen:
            seen.add(u)
            if u in bar_units:
                M.waitvm(("W", min(f["ph"], 2), f["kb"]))
                M("s_barrier")
                released[0] = u
                if u in (3, 6, 9, 12, 15, 18, 21, 24, 28) and not os.environ.get("PROST"):
                    M.stamp(2 + u // 3)
        b = WF + 4 * (n % NWF)
        if f["buf"] == "U":
            if part == 0:
                if f["s"]:
                    M(f"v_xor_b32 v{V_UT}, {32*f['s']}, v{V_UB}")
                M(f"ds_read_b128 v[{b}:{b+3}], v{V_UT if f['s'] else V_UB} offset:{(f['kb'] % 4)*4096}")
            return
        if f["buf"] == "E":
            off = ((9 + f["kb"]) % 4) * 4096 + f["s"] * 16 * 32
            base = V_RE if part == 0 else V_RE2
        else:
            sl = (slotA if f["buf"] == "A" else slotB)[f["kb"]]
            reg = sl // 3
            if reg != region[0]:
                d = (reg - region[0]) * 3 * SLOT
                for g in range(4):
                    M(f"v_add_u32 v{V_R4+g}, {d & 0xffffffff}, v{V_R4+g}")
                region[0] = reg
            base = V_R4 + f["g"]
            off = (sl % 3) * SLOT + f["s"] * 16 * 128 + part * 512
        M(f"ds_read_b64_tr_b16 v[{b+2*part}:{b+2*part+1}], v{base} offset:{off}")

    for n in range(DIST):
        frag_read(P, n, 0)
        frag_read(P, n, 1)
    P.stamp(2)
    CR0 = float(os.environ.get("CR0", "6.3"))
    CR1 = float(os.environ.get("CR1", "6.6"))
    credit = 0.0
    B = Prog()
    ph_start = {}
    nm_ = 0
    for n, f in enumerate(frags):
        ph_start.setdefault(f["ph"], nm_)
        b = WF + 4 * (n % NWF)
        credit = min(credit + (CR0 if f["ph"] == 0 else CR1), 16.0)
        for j in range(2):
            a = ACC + 32 * f["slot"] + 16 * j
            c = "0" if f["ks"] == 0 else f"v[{a}:{a+15}]"
            if f["buf"] == "U":
                B(f"v_mfma_f32_32x32x16_bf16 v[{a}:{a+15}], {xreg(j, f['ks'])}, v[{b}:{b+3}], {c}")
            else:
                B(f"v_mfma_f32_32x32x16_bf16 v[{a}:{a+15}], v[{b}:{b+3}], {xreg(j, f['ks'])}, {c}")
            nm_ += 1
            if n + DIST < len(frags):
                frag_read(B, n + DIST, j)
            assert not items or items[0][0] > n + DIST + 1, ("load issued too late", n, items[0][0])
            if j == 1 and (credit > 0 or (items and items[0][0] - n < 14)):
                for k, it in enumerate(items):
                    if it[1] <= released[0]:
                        B.extend(it[2])
                        credit -= it[3]
                        del items[k]
                        break
    assert not items, len(items)
    ph_start[5] = nm_
    A_ = lambda t, **k: epilogue(t, 66, 1024 * t, tag="early", **k)
    Bslot = [0, 2, 3, 0]
    B_ = lambda t, **k: epilogue(Bslot[t], 66, 4096 + 1024 * t, **k)
    E_ = lambda **k: epilogue(1, 68, 0, **k)
    U = ACC + 128
    RC = ACC + 32

    def sig(tag, sreg):
        Qp = Prog()
        Qp.waitvm(tag)
        Qp(f"buffer_atomic_add v{SGD}, v{SGO}, s[20:23], s{sreg} offen sc1")
        return Qp.ins

    def spread(body, extra, width, lo=0.0, hi=1.0):
        groups = [extra[i:i + width] for i in range(0, len(extra), width)]
        n = len(body)
        pos = [int(n * (lo + (hi - lo) * (k + 0.5) / len(groups))) for k in range(len(groups))]
        out = []
        for i_, x in enumerate(body):
            while pos and i_ >= pos[0] and not any(y.text.startswith("s_add_u32 s71") for y in out[-3:]):
                out += groups.pop(0)
                pos.pop(0)
            out.append(x)
        for g_ in groups:
            out += g_
        return out

    PFp = Prog()
    PFp("s_load_dwordx2 s[36:37], s[0:1], 96")
    PFp("s_load_dwordx4 s[24:27], s[0:1], 40")
    PFp(f"""
    s_lshl_b32 s42, s2, 2
    s_add_u32 s42, s42, s53
    s_lshl_b32 s42, s42, 10
    s_waitcnt lgkmcnt(0)
    """)
    srd(PFp, 4, 36, 37, 4608 * 1152)
    srd(PFp, 28, 24, 25, 576 * 1152)
    srd(PFp, 32, 26, 27, 576 * 1152)
    pf = []
    for sd, i in [(4, 0), (4, 1), (28, 0), (4, 2), (4, 3), (32, 0), (4, 4), (4, 5)]:
        G = Prog()
        G(f"s_add_u32 s43, s42, {i*1024*1024}")
        I = Ins(f"buffer_store_dword v{V_LANE16}, v{V_LANE16}, s[{sd}:{sd+3}], s43 offen")
        I.text = f"buffer_load_dwordx4 v[{Q}:{Q+3}], v{V_LANE16}, s[{sd}:{sd+3}], s43 offen"
        G.ins.append(I)
        pf += G.ins
    if not int(os.environ.get("PF3B", "1")):
        pf = []
    L = B.ins
    p1, p2, p3, p4, p5 = (ph_start[k] for k in range(1, 6))
    ST = lambda t: A_(t, part="store")
    L = interleave2(L, pl_ld, start=8, end=24)
    if single:
        CK = Prog()
        CK(f"v_lshlrev_b32 v{VAG}, 2, v0")
        CK(f"buffer_load_dword v{ES}, v{VAG}, s[36:39], 0 offen sc0 sc1")
        CK2 = Prog()
        CK2(f"v_cmp_ne_u32 vcc, 0x01010101, v{ES}")
        CK2("s_nop 4")
        CK2("s_cbranch_vccnz K2A_SLOW", tag="keepall")
        CK2("K2A_BACK:", tag="nop")
        L = interleave2(L, CK.ins, start=p1 - 70, end=p1 - 66)
        L = interleave2(L, CK2.ins, start=p1 - 28, end=p1 - 26)
    L = interleave2(L, pl_calc, start=110, end=p1 - 72)
    L = interleave2(L, A_(0), start=p1 - 23, end=p1 + 7)
    L = interleave2(L, A_(1, part="calc") + A_(2, part="calc") + A_(3, part="calc") + ST(1) + ST(2), start=p1 + 8, end=p2 - 1)
    L = interleave2(L, ssm1(U, 75) + B_(0, part="calc") + ST(3), start=p2 + 1, end=p3 - 1)
    idx = [k for k, i in enumerate(L) if i.kind == "mfma"]
    cut = idx[p3]
    P.extend(L[:cut])
    P.extend(PFp.ins)
    if int(os.environ.get("CPF3", "1")):
        P("s_lshr_b32 s77, s2, 3\ns_lshl_b32 s77, s77, 2\ns_add_u32 s77, s77, s53")
        code_touch(P, "K2_PC", "K3_GOON", "CODE_END", 24, Q + 4, 0, 77, False)
    L = L[cut:]
    n3, n4 = p4 - p3, p5 - p3
    f3 = spread(E_() + B_(0, part="store") + B_(1, part="calc"), pf, 2, 0.0, 0.6) + sig("early", 83) + ssm2_loads(RC, 75, 76) + B_(1, part="store")
    L = interleave2(L, f3, start=1, end=n3 + 8)
    L = interleave2(L, B_(2)[:60] + ssm2(U, RC, 40, "K2S", E_BASE) + B_(2)[60:], start=n3 + 9, end=n4 - 1)
    P.extend(L)
    P.stamp(13)
    P.extend(B_(3))
    P.stamp(14)
    P.stamp(15, real=True)
    P.dump_stamps(9, 20, WS_DBG + 0x10000, 14)
    P("s_mov_b64 exec, -1")
    return P


def tail_job(P, single=False):
    P("s_load_dwordx4 s[40:43], s[0:1], 8")
    P("s_load_dwordx2 s[36:37], s[0:1], 56")
    P(f"""
    s_lshr_b32 s50, s2, 5
    s_lshl_b32 s50, s50, 1
    s_add_u32 s50, s50, 20
    s_add_u32 s54, s50, 1
    s_mul_i32 s63, s50, {16*1152}
    s_lshl_b32 s60, s53, 10
    """)
    if single:
        P(f"""
        s_sub_u32 s58, 9, s3
        s_lshl_b32 s58, s58, 7
        s_add_u32 s63, s63, s58
        s_sub_u32 s58, s63, {9*128}
        """)
    for u in range(2):
        for kb in range(9):
            if single and kb > 0:
                P(f"s_cmp_ge_u32 {kb}, s3")
                P(f"s_cselect_b32 s59, s58, s63")
                P(f"s_add_u32 s59, s59, {u*16*1152 + kb*128}")
            else:
                P(f"s_add_u32 s59, s63, {u*16*1152 + kb*128}")
            P(f"s_add_u32 m0, s60, {(u*9 + kb)*4096}")
            P(f"buffer_load_dwordx4 v{V_DU}, s[44:47], s59 offen lds")
    P("s_waitcnt lgkmcnt(0)")
    srd(P, 24, 40, 41, 1152)
    srd(P, 28, 42, 43, 1152)
    srd(P, 32, 36, 37, 1152)
    P(f"""
    v_and_b32 v13, 31, v0
    v_bfe_u32 v5, v13, 1, 3
    v_lshrrev_b32 v6, 5, v0
    v_xor_b32 v5, v5, v6
    v_lshlrev_b32 v5, 4, v5
    v_lshl_add_u32 v5, v13, 7, v5
    v_xor_b32 v6, 32, v5
    v_xor_b32 v7, 64, v5
    v_xor_b32 v8, 96, v5
    v_add_u32 v9, {9*4096}, v5
    v_add_u32 v10, {9*4096}, v6
    v_add_u32 v11, {9*4096}, v7
    v_add_u32 v12, {9*4096}, v8
    s_lshl_b32 s75, s50, 5
    s_add_u32 s75, s75, s76
    s_lshl_b32 s75, s75, 8
    s_add_u32 s75, s75, {WS_AGG}
    s_add_u32 s74, s75, {32*256}
    s_lshl_b32 s55, s50, 10
    s_add_u32 s40, s73, s55
    s_add_u32 s41, s40, {360*1024}
    s_add_u32 s42, s40, 1024
    s_add_u32 s43, s41, 1024
    s_add_u32 s101, s101, {16*CNT_STRIDE}
    """)
    ld0, ca0 = ssm_params(50)
    ld1, ca1 = ssm_params(54)
    P.extend(ld0)
    P("s_waitcnt vmcnt(0)")
    P("s_barrier")
    M = Prog()
    fr = [(u, ks) for ks in range(36) for u in range(2)]
    FB = ACC + 96
    def rd(n):
        u, ks = fr[n]
        b = FB + 4 * (n % 8)
        M(f"ds_read_b128 v[{b}:{b+3}], v{5 + 4*u + (ks & 3)} offset:{(ks >> 2)*4096}")
    for n in range(6):
        rd(n)
    for n, (u, ks) in enumerate(fr):
        b = FB + 4 * (n % 8)
        for j in range(2):
            a = ACC + 32 * u + 16 * j
            c = "0" if ks == 0 else f"v[{a}:{a+15}]"
            M(f"v_mfma_f32_32x32x16_bf16 v[{a}:{a+15}], {xreg(j, ks)}, v[{b}:{b+3}], {c}")
            if j == 0 and n + 6 < len(fr):
                rd(n + 6)
    P.extend(interleave2(M.ins, ca0, start=4, end=60))
    SV = ACC + 128
    keep = [A2, REV, L1, L1 + 1, ES, ES + 1, ES + 2, ES + 3]
    P.extend(ssm1(ACC, 75))
    for k, r in enumerate(keep):
        P(f"v_mov_b32 v{SV+k}, v{r}")
    P.extend(ld1)
    P.extend(ca1)
    P.extend(ssm1(ACC + 32, 74))
    P("s_barrier")
    RC = ACC + 64
    for k, r in enumerate(keep):
        P(f"v_mov_b32 v{SV+8+k}, v{r}")
        P(f"v_mov_b32 v{r}, v{SV+k}")
    P.extend(ssm2_loads(RC, 75, 76))
    P.extend(ssm2(ACC, RC, 40, "K2T0", 0))
    for k, r in enumerate(keep):
        P(f"v_mov_b32 v{r}, v{SV+8+k}")
    P.extend(ssm2_loads(RC, 74, 76))
    P.extend(ssm2(ACC + 32, RC, 42, "K2T1", 0))
    P(f"""
    s_waitcnt vmcnt(0)
    v_mov_b32 v{SGD}, 2
    buffer_atomic_add v{SGD}, v{SGO}, s[20:23], s101 offen sc1
    s_branch K3_END
    """)
    ssm2_slow(P, RC, 75, 76, "K2T0")
    ssm2_slow(P, RC, 74, 76, "K2T1")
    ssm2_slow(P, ACC + 32, 75, 76, "K2S")
    if single:
        P("K2A_SLOW:")
        P("s_mov_b32 s71, 0")
        P("K2A_SPIN:")
        P(f"""
        s_sleep 8
        buffer_load_dword v{ES}, v{VAG}, s[36:39], 0 offen sc0 sc1
        s_waitcnt vmcnt(0)
        v_cmp_ne_u32 vcc, 0x01010101, v{ES}
        s_add_u32 s71, s71, 1
        s_nop 4
        s_cbranch_vccz K2A_BACK
        s_cmp_lt_u32 s71, 100000
        s_cbranch_scc1 K2A_SPIN
        s_branch K2A_BACK
        """)
```

```python
import os, math
from asmlib import *
from layout import *
from k1 import srd, f2u

STG = 24576
NS = 6
LDS_BYTES = NS * STG

V_LANE16 = 1
V_D = 2
V_D1 = 3
V_RB = 4
V_T = 10
V_OUT = 255
RR0 = 216
RR1 = 16
HV = 16
ACC = 48
WF = 144
NWF = 8
DIST = int(os.environ.get('K3DIST', '6'))
PB = 176


def hreg(ks):
    if ks >= 8:
        return f"a[{4*(ks-8)}:{4*(ks-8)+3}]"
    return f"v[{HV+4*ks}:{HV+4*ks+3}]"


SC = os.environ.get("PSC", "+sc0+sc1").replace("+", " ")


def publish(g):
    E = Prog()
    a = ACC + 16 * g
    for k in range(8):
        E(f"v_cvt_pk_bf16_f32 v{PB+8*g+k}, v{a+2*k}, v{a+2*k+1}")
        if k % 4 == 3:
            r = PB + 8 * g + k - 3
            E(f"buffer_store_dwordx4 v[{r}:{r+3}], v{V_LANE16}, s[20:23], s{24+g} offen offset:{1024*(k//4)}{SC}")
    return E.ins


def resid_calc(P):
    for R, a in ((RR0, ACC + 80), (RR1, ACC)):
        for k in range(8):
            x, xn, dd = R + k, R + 8 + k, R + 16 + k
            P(f"""
            v_lshlrev_b32 v10, 16, v{xn}
            v_and_b32 v{xn}, 0xffff0000, v{xn}
            v_lshlrev_b32 v11, 16, v{dd}
            v_and_b32 v{dd}, 0xffff0000, v{dd}
            v_mul_f32 v10, v10, v11
            v_mul_f32 v{xn}, v{xn}, v{dd}
            v_cvt_pk_bf16_f32 v{xn}, v10, v{xn}
            v_lshlrev_b32 v10, 16, v{xn}
            v_and_b32 v{xn}, 0xffff0000, v{xn}
            v_lshlrev_b32 v11, 16, v{x}
            v_and_b32 v{x}, 0xffff0000, v{x}
            v_add_f32 v10, v10, v11
            v_add_f32 v{xn}, v{xn}, v{x}
            v_add_f32 v{a+2*k}, v{a+2*k}, v10
            v_add_f32 v{a+2*k+1}, v{a+2*k+1}, v{xn}
            """)


def main_loop(P, ssm, fused=False, pa=False, single=False):
    if fused and not ssm:
        KORD = [0, 2, 4, 6, 9, 11, 13, 15, 8, 17, 1, 3, 5, 7, 10, 12, 14, 16]
    elif pa:
        KORD = [0, 1, 2, 3, 4, 5, 6, 7, 9, 10, 11, 12, 13, 14, 15, 16, 8, 17]
    else:
        KORD = list(range(18))
    LATEKB = (16 if ssm else 8) if pa else (99 if ssm else 10)
    has_late = fused and LATEKB < 18

    def dma(kb):
        slot = (kb % NS) * STG
        out = []
        for i in range(6):
            D = Prog()
            if not ssm:
                D(f"s_add_u32 m0, s61, {slot + (i >> 1)*8192 + (i & 1)*1024}")
                D(f"s_add_u32 s59, s56, {(KORD[kb]*64 + (i & 1)*8)*1152 + (i >> 1)*128}")
                D(f"buffer_load_dwordx4 v{V_D}, s[8:11], s59 offen lds", tag=("W", kb))
            else:
                srdn = 8 if KORD[kb] < 9 else 12
                D(f"s_add_u32 m0, s61, {slot + i*1024}")
                D(f"s_add_u32 s59, s56, {i*8*1152 + (KORD[kb] % 9)*128}")
                D(f"buffer_load_dwordx4 v{V_D + (i & 1)}, s[{srdn}:{srdn+3}], s59 offen lds", tag=("W", kb))
            out.append((D.ins, 8))
        return out

    def hloads(kb):
        out = []
        for s in range(4):
            D = Prog()
            D(f"s_add_u32 s62, s64, {KORD[kb]*4096}")
            D(f"buffer_load_dwordx4 {hreg(kb*4+s)}, v{V_LANE16}, s[20:23], s62 offen offset:{s*1024}" + (" sc1" if fused else ""))
            out.append((D.ins, 8))
        return out

    PRE = int(os.environ.get("K3PRE", "2"))
    PREW = PRE
    if not fused:
        for kb in range(PRE):
            for ins, _ in dma(kb) + hloads(kb):
                P.extend(ins)
    else:
        PREW = int(os.environ.get("K3PREW", "4"))
        for kb in range(PREW):
            for ins, _ in dma(kb):
                P.extend(ins)
        tagn = "S" if ssm else "F"
        P(f"""
        s_waitcnt vmcnt({6*PREW})
        v_mov_b32 v10, 0
        v_mov_b32 v11, 1
        s_mov_b64 exec, 1
        buffer_atomic_add v11, v10, s[20:23], s100 offen sc1
        s_mov_b32 s70, 0
        """)
        if pa or os.environ.get("FXO", "early") != "early":
            P("buffer_atomic_add v11, v10, s[20:23], s101 offen sc1")
        if not ssm:
            P.stamp(2)
        P(f"K3_HP{tagn}:")
        P(f"""
        buffer_load_dword v11, v10, s[20:23], s29 offen sc0 sc1
        s_waitcnt vmcnt(0)
        v_readfirstlane_b32 s71, v11
        s_add_u32 s70, s70, 1
        s_cmp_ge_u32 s71, {(64 if pa else 36) if ssm else 8}
        s_cbranch_scc1 K3_HG{tagn}
        s_sleep 2
        s_cmp_lt_u32 s70, 200000
        s_cbranch_scc1 K3_HP{tagn}
        """)
        P(f"K3_HG{tagn}:")
        P("s_mov_b64 exec, -1")
        for kb in range(PRE):
            for ins, _ in hloads(kb):
                P.extend(ins)
    NT = int(os.environ.get("K3NT", "1"))
    frags = [dict(kb=kb, s=s, g=g) for kb in range(18 - NT) for s in range(4) for g in range(6)]
    frags += [dict(kb=kb, s=s, g=g) for g in range(6) for kb in range(18 - NT, 18) for s in range(4)]
    items = []
    BS = int(os.environ.get("K3BS", "1"))
    LAG = int(os.environ.get("K3LAG", "2"))
    for kb in range(PRE, 18):
        rel = -1 if kb < NS else kb - NS + LAG
        first = min(n for n, f in enumerate(frags) if f["kb"] == kb)
        firstw = min(n for n, f in enumerate(frags) if f["kb"] == kb - kb % BS)
        for ins, ln in (dma(kb) if kb >= PREW else []):
            items.append([firstw - DIST - 1, rel, ins, ln])
        for ins, ln in hloads(kb):
            items.append([first, ("late" if (has_late and kb >= LATEKB) else -1), ins, ln])
    for R, sd, sx in ((RR0, "s30", "s31"), (RR1, "s75", "s76")):
        for txt, ln in ((f"buffer_load_dwordx4 v[{R}:{R+3}], v13, s[4:7], {sd} offen", 32),
                        (f"buffer_load_dwordx4 v[{R+4}:{R+7}], v13, s[4:7], {sd} offen offset:16", 8),
                        (f"buffer_load_dwordx4 v[{R+8}:{R+11}], v15, s[20:23], {sx} offen" + (" sc1" if single else ""), 8),
                        (f"buffer_load_dwordx4 v[{R+12}:{R+15}], v15, s[20:23], {sx} offen offset:512" + (" sc1" if single else ""), 8),
                        (f"buffer_load_dwordx4 v[{R+16}:{R+19}], v14, s[32:35], {sd} offen", 2),
                        (f"buffer_load_dwordx4 v[{R+20}:{R+23}], v14, s[32:35], {sd} offen offset:16", 2)):
            D = Prog()
            D(txt)
            items.append([len(frags) - 6, -1, D.ins, ln])
    items.sort(key=lambda x: x[0])
    seen = set()
    released = [-1]
    region = [0]

    def frag_read(M, n):
        f = frags[n]
        kb = f["kb"]
        if kb not in seen:
            seen.add(kb)
            if kb % BS == 0:
                for k2 in range(kb, min(18, kb + BS)):
                    M.waitvm(("W", k2))
                M("s_barrier")
                released[0] = kb
            if kb in (11, 13, 15, 17) and not ssm:
                M.stamp(3 + (kb - 11) // 2)
        sl = kb % NS
        reg = sl // 2
        if reg != region[0]:
            d = (reg - region[0]) * 2 * STG
            for g in range(4 if ssm else 6):
                M(f"v_add_u32 v{V_RB+g}, {d & 0xffffffff}, v{V_RB+g}")
            region[0] = reg
        b = WF + 4 * (n % NWF)
        off = (sl % 2) * STG
        if not ssm:
            off += f["s"] * 16 * 128
            M(f"ds_read_b64_tr_b16 v[{b}:{b+1}], v{V_RB+f['g']} offset:{off}")
            M(f"ds_read_b64_tr_b16 v[{b+2}:{b+3}], v{V_RB+f['g']} offset:{off+512}")
        else:
            ph = 5 if f["g"] == 0 else (f["g"] + 4) % 5
            M(f"ds_read_b128 v[{b}:{b+3}], v{V_RB+f['s']} offset:{off + ph*4096}")

    for n in range(DIST):
        frag_read(P, n)
    if not ssm and not fused:
        P.stamp(2)
    CR = float(os.environ.get("CR3", "3.4"))
    credit = 0.0
    P0 = P
    P = Prog()
    MINLEAD = int(os.environ.get("K3LEAD", "40"))
    leads = []
    late_ok = [False]
    LATE1 = 24 * LATEKB - int(os.environ.get("LATED", "60")); LATE0 = LATE1 - 45
    for n, f in enumerate(frags):
        b = WF + 4 * (n % NWF)
        a = ACC + 16 * f["g"]
        ks = f["kb"] * 4 + f["s"]
        c = "0" if ks == 0 else f"v[{a}:{a+15}]"
        P(f"v_mfma_f32_32x32x16_bf16 v[{a}:{a+15}], v[{b}:{b+3}], {hreg(ks)}, {c}")
        if n + DIST < len(frags):
            frag_read(P, n + DIST)
        rem = len(frags) - 1 - n
        if not ssm and rem % (4 * NT) == 0 and 1 <= rem // (4 * NT) <= 5:
            P.stamp(12 - rem // (4 * NT))
        tg = "S" if ssm else "F"
        if has_late and n == LATE0:
            P("v_mov_b32 v254, 0")
            P("buffer_load_dword v253, v254, s[20:23], s77 offen sc0 sc1")
        if has_late and n == LATE1:
            P("v_readfirstlane_b32 s71, v253")
            P("s_cmp_lt_u32 s71, 8")
            P(f"s_cbranch_scc1 K3_LSLOW{tg}", tag="keepall")
            P(f"K3_LBACK{tg}:", tag="nop")
            late_ok[0] = True
        credit = min(credit + CR, 12.0)
        assert not items or items[0][0] > n + 1, ("load issued too late", n, items[0][0])
        if credit > 0 or (items and items[0][0] - n < MINLEAD):
            for k, it in enumerate(items):
                if (late_ok[0] if it[1] == "late" else it[1] <= released[0]):
                    leads.append(it[0] - n)
                    P.extend(it[2])
                    credit -= it[3]
                    del items[k]
                    break
    assert not items
    if os.environ.get("VERB"):
        print("K3 leads", leads)
    L = P.ins
    nm = len(frags)
    T = 4 * NT
    for g in range(5):
        e = nm - (5 - g) * T
        L = interleave2(L, publish(g), start=e + 1, end=min(e + T, nm) - 1)
    P0.extend(L)
    P0("s_waitcnt vmcnt(0)")


def gen_k3(P2=None, pa=False, single=False):
    fused = P2 is not None
    P = P2 if fused else Prog()
    if fused:
        P("s_barrier")
        if pa:
            P("""
            s_lshr_b32 s57, s2, 3
            s_and_b32 s58, s57, 27
            s_sub_u32 s58, s58, s52
            s_cmp_lg_u32 s58, 24
            """)
        else:
            P("s_cmp_lt_u32 s2, 240")
        P("s_cbranch_scc1 K3_GOON")
        P("""
        s_waitcnt vmcnt(0)
        v_mov_b32 v10, 0
        v_mov_b32 v11, 1
        s_mov_b64 exec, 1
        buffer_atomic_add v11, v10, s[20:23], s100 offen sc1
        """)
        if pa or os.environ.get("FXO", "early") != "early":
            P("buffer_atomic_add v11, v10, s[20:23], s101 offen sc1")
        if pa:
            from k2b import tail_job
            P("s_mov_b64 exec, -1")
            tail_job(P, single)
        else:
            P("s_branch K3_END")
        P("K3_GOON:")
    else:
        P("s_cmp_ge_u32 s2, 240")
        P("s_cbranch_scc1 K3_END")
    P.stamp(0, real=True)
    P.stamp(1)
    P("s_load_dwordx4 s[36:39], s[0:1], 96")
    P("s_load_dwordx4 s[40:43], s[0:1], 40")
    P("s_load_dwordx2 s[48:49], s[0:1], 120")
    P("s_load_dwordx2 s[44:45], s[0:1], 0")
    P("s_load_dwordx2 s[46:47], s[0:1], 64")
    if not fused:
        P("""
        v_lshrrev_b32 v2, 6, v0
        v_and_b32 v0, 63, v0
        v_readfirstlane_b32 s53, v2
        """)
    P(f"""
    v_lshlrev_b32 v{V_LANE16}, 4, v0
    s_lshr_b32 s54, s2, 3
    s_and_b32 s55, s2, 7
    s_mov_b32 s79, s53
    """)
    if pa:
        P("""
        s_and_b32 s57, s2, 3
        s_add_u32 s57, s57, 28
        s_cmp_gt_u32 s54, s57
        s_cselect_b32 s58, 1, 0
        s_sub_u32 s57, s57, 4
        s_cmp_gt_u32 s54, s57
        s_subb_u32 s54, s54, s58
        """)
    P("""
    s_and_b32 s50, s55, 4
    s_lshl_b32 s50, s50, 1
    s_and_b32 s57, s54, 7
    s_add_u32 s50, s50, s57
    s_and_b32 s51, s55, 3
    s_lshr_b32 s52, s54, 3
    s_lshl_b32 s57, s55, 1
    s_and_b32 s58, s54, 1
    s_add_u32 s57, s57, s58
    s_bfe_u32 s58, s54, 0x20001
    s_cmp_ge_u32 s54, 24
    s_cselect_b32 s50, s57, s50
    s_cselect_b32 s51, 4, s51
    s_cselect_b32 s52, s58, s52
    """)
    P(f"""
    s_lshl_b32 s57, s50, 2
    s_add_u32 s57, s57, s53
    s_mul_i32 s64, s57, 360
    s_mul_i32 s58, s51, 72
    s_add_u32 s64, s64, s58
    s_lshl_b32 s64, s64, 10
    s_add_u32 s64, s64, {WS_HF}
    s_mov_b32 s63, s57
    s_lshr_b32 s29, s57, 1
    s_lshl_b32 s29, s29, 2
    s_add_u32 s29, s29, s51
    s_add_u32 s29, s29, 192
    s_add_u32 s58, s50, 320
    s_cmp_eq_u32 s51, 4
    s_cselect_b32 s29, s58, s29
    s_mul_i32 s29, s29, {CNT_STRIDE}
    s_add_u32 s29, s29, {WS_CNT}
    s_add_u32 s77, s29, {16*CNT_STRIDE}
    s_add_u32 s58, s29, {160*CNT_STRIDE}
    s_cmp_eq_u32 s51, 4
    s_cselect_b32 s77, s77, s29
    s_cselect_b32 s29, s29, s58
    """)
    P(f"""
    s_mul_i32 s54, s50, 3
    s_add_u32 s54, s54, s52
    s_mul_i32 s65, s54, {6*5*8192}
    s_lshl_b32 s57, s53, 11
    s_add_u32 s65, s65, s57
    s_add_u32 s65, s65, {WS_PART}
    s_lshl_b32 s66, s51, 13
    s_add_u32 s66, s66, s65
    s_add_u32 s24, s66, {5*5*8192}
    s_lshl_b32 s57, s54, 2
    s_add_u32 s57, s57, s53
    s_mul_i32 s69, s57, {CNT_STRIDE}
    s_add_u32 s69, s69, {WS_CNT}
    """)
    for L in range(1, 5):
        P(f"""
        s_add_u32 s57, s51, {L}
        s_cmp_ge_u32 s57, 5
        s_cselect_b32 s58, 5, 0
        s_sub_u32 s57, s57, s58
        s_mul_i32 s57, s57, {5*8192}
        s_add_u32 s{24+L}, s57, s66
        """)
    P("s_waitcnt lgkmcnt(0)")
    srd(P, 20, 48, 49, WS_BYTES)
    srd(P, 16, 38, 39, 2048 * 576 * 4)
    srd(P, 4, 44, 45, 2048 * 1152)
    srd(P, 32, 46, 47, 1152)
    P(f"""
    v_and_b32 v10, 31, v0
    v_lshrrev_b32 v11, 5, v0
    s_lshl_b32 s57, s63, 5
    """)
    if pa:
        P("""
        v_bfe_u32 v12, v10, 2, 1
        v_lshlrev_b32 v12, 4, v12
        v_lshrrev_b32 v13, 3, v10
        v_lshl_add_u32 v12, v13, 2, v12
        v_and_b32 v13, 3, v10
        v_add_u32 v12, v12, v13
        v_add_u32 v12, s57, v12
        """)
    else:
        P("v_add_u32 v12, s57, v10")
    P(f"""
    v_mul_u32_u24 v13, 1152, v12
    v_lshl_add_u32 v13, v11, 5, v13
    v_lshlrev_b32 v14, 5, v11
    v_lshlrev_b32 v15, 4, v10
    v_lshl_add_u32 v15, v11, 10, v15
    v_lshlrev_b32 v{V_OUT}, 1, v13
    s_mul_i32 s67, s52, 384
    s_mul_i32 s68, s63, 36864
    s_mul_i32 s57, s52, {12*1024}
    s_add_u32 s68, s68, s57
    s_and_b32 s57, s2, 3
    s_mul_i32 s57, s57, {0 if single else XNF_BYTES}
    s_add_u32 s68, s68, s57
    s_add_u32 s68, s68, {WS_XNF}
    s_cmp_eq_u32 s51, s53
    s_cselect_b32 s73, 0, 0x40000000
    s_lshl_b32 s30, s51, 6
    s_add_u32 s30, s30, s67
    s_lshl_b32 s31, s51, 11
    s_add_u32 s31, s31, s68
    s_add_u32 s75, s67, {5*64}
    s_add_u32 s75, s75, s73
    s_add_u32 s76, s68, {5*2048}
    s_add_u32 s76, s76, s73
    """)
    P("s_cmp_eq_u32 s51, 4")
    P("s_cbranch_scc1 K3_SSM")
    srd(P, 8, 36, 37, 4608 * 1152)
    P(f"""
    v_lshrrev_b32 v10, 3, v0
    v_bfe_u32 v11, v0, 4, 1
    v_lshlrev_b32 v11, 2, v11
    v_and_b32 v12, 7, v0
    v_xor_b32 v12, v12, v11
    s_lshl_b32 s57, s53, 4
    v_add_u32 v10, s57, v10
    v_mul_u32_u24 v10, 1152, v10
    v_lshl_add_u32 v{V_D}, v12, 4, v10
    s_mul_i32 s56, s51, {1152*1152}
    s_mul_i32 s57, s52, 384
    s_add_u32 s56, s56, s57
    s_lshl_b32 s61, s53, 11
    """)
    P(f"""
    v_lshrrev_b32 v10, 5, v0
    v_lshlrev_b32 v10, 3, v10
    v_bfe_u32 v11, v0, 2, 2
    v_add_u32 v10, v10, v11
    v_lshlrev_b32 v10, 7, v10
    v_bfe_u32 v11, v0, 3, 1
    v_lshl_add_u32 v10, v11, 6, v10
    v_and_b32 v11, 1, v0
    v_lshl_add_u32 v10, v11, 5, v10
    v_bfe_u32 v11, v0, 4, 1
    v_lshl_add_u32 v10, v11, 4, v10
    v_bfe_u32 v11, v0, 1, 1
    v_lshl_add_u32 v10, v11, 3, v10
    v_xor_b32 v{V_RB}, 64, v10
    v_add_u32 v{V_RB}, 16384, v{V_RB}
    """)
    for L in range(1, 6):
        P(f"""
        s_add_u32 s57, s51, {L}
        s_cmp_ge_u32 s57, 5
        s_cselect_b32 s58, 5, 0
        s_sub_u32 s57, s57, s58
        s_and_b32 s58, s57, 1
        s_lshl_b32 s58, s58, 6
        s_lshr_b32 s57, s57, 1
        s_lshl_b32 s57, s57, 13
        v_xor_b32 v{V_RB+L}, s58, v10
        v_add_u32 v{V_RB+L}, s57, v{V_RB+L}
        """)
    main_loop(P, False, fused, pa, single)
    P("s_branch K3_RED")
    def lslow(tg):
        P(f"K3_LSLOW{tg}:")
        P("s_mov_b32 s70, 0")
        P(f"K3_LSPIN{tg}:")
        P(f"""
        s_sleep 2
        buffer_load_dword v253, v254, s[20:23], s77 offen sc0 sc1
        s_waitcnt vmcnt(0)
        v_readfirstlane_b32 s71, v253
        s_add_u32 s70, s70, 1
        s_cmp_ge_u32 s71, 8
        s_cbranch_scc1 K3_LBACK{tg}
        s_cmp_lt_u32 s70, 200000
        s_cbranch_scc1 K3_LSPIN{tg}
        s_branch K3_LBACK{tg}
        """)
    if fused:
        lslow("F")
    if pa:
        lslow("S")
    P("K3_SSM:")
    srd(P, 8, 40, 41, 576 * 1152)
    srd(P, 12, 42, 43, 576 * 1152)
    P(f"""
    v_lshrrev_b32 v10, 3, v0
    v_lshrrev_b32 v11, 1, v10
    v_and_b32 v12, 7, v0
    v_xor_b32 v12, v12, v11
    s_mul_i32 s57, s53, 48
    v_add_u32 v10, s57, v10
    v_mul_u32_u24 v10, 1152, v10
    v_lshl_add_u32 v{V_D}, v12, 4, v10
    v_xor_b32 v{V_D1}, 64, v{V_D}
    s_mul_i32 s56, s52, {192*1152}
    s_mul_i32 s61, s53, 6144
    """)
    P(f"""
    v_and_b32 v10, 31, v0
    v_bfe_u32 v11, v10, 2, 1
    v_lshlrev_b32 v11, 4, v11
    v_lshrrev_b32 v12, 3, v10
    v_lshl_add_u32 v11, v12, 2, v11
    v_and_b32 v12, 3, v10
    v_add_u32 v11, v11, v12
    v_bfe_u32 v12, v11, 1, 3
    v_lshrrev_b32 v10, 5, v0
    v_xor_b32 v12, v12, v10
    v_lshlrev_b32 v12, 4, v12
    v_lshl_add_u32 v{V_RB}, v11, 7, v12
    v_xor_b32 v{V_RB+1}, 32, v{V_RB}
    v_xor_b32 v{V_RB+2}, 64, v{V_RB}
    v_xor_b32 v{V_RB+3}, 96, v{V_RB}
    """)
    main_loop(P, True, fused, pa, single)
    P("K3_RED:")
    P.stamp(12)
    P(f"""
    s_waitcnt vmcnt(0)
    v_mov_b32 v10, 0
    v_mov_b32 v11, 1
    s_mov_b64 exec, 1
    buffer_atomic_add v11, v10, s[20:23], s69 offen sc1
    s_mov_b32 s70, 0
    s_mov_b64 exec, -1
    """)
    resid_calc(P)
    P("v_mov_b32 v10, 0")
    P("s_mov_b64 exec, 1")
    P.stamp(13)
    P("s_waitcnt lgkmcnt(0)")
    P("K3_POLL:")
    P(f"""
    buffer_load_dword v11, v10, s[20:23], s69 offen sc0 sc1
    s_waitcnt vmcnt(0)
    v_readfirstlane_b32 s71, v11
    s_add_u32 s70, s70, 1
    s_cmp_ge_u32 s71, 5
    s_cbranch_scc1 K3_GO
    s_sleep 1
    s_cmp_lt_u32 s70, 200000
    s_cbranch_scc1 K3_POLL
    """)
    P("K3_GO:")
    P("s_mov_b64 exec, -1")
    P.stamp(14)

    P(f"""
    s_mul_i32 s72, s51, {5*8192}
    s_add_u32 s72, s72, s65
    s_add_u32 s74, s65, {5*5*8192}
    s_add_u32 s74, s74, s73
    """)
    for i in range(1, 5):
        P(f"""
        s_add_u32 s57, s51, {i}
        s_cmp_ge_u32 s57, 5
        s_cselect_b32 s58, 5, 0
        s_sub_u32 s57, s57, s58
        s_lshl_b32 s57, s57, 13
        s_add_u32 s{23+i}, s57, s74
        s_add_u32 s57, s57, s72
        """)
        for q in range(2):
            r = WF + 8 * (i - 1) + 4 * q
            P(f"buffer_load_dwordx4 v[{r}:{r+3}], v{V_LANE16}, s[20:23], s57 offen offset:{1024*q} sc0 sc1")
    for i in range(1, 5):
        for q in range(2):
            r = PB + 40 + 8 * (i - 1) + 4 * q
            P(f"buffer_load_dwordx4 v[{r}:{r+3}], v{V_LANE16}, s[20:23], s{23+i} offen offset:{1024*q} sc0 sc1")
    P(f"""
    s_lshl_b32 s57, s51, 7
    s_lshl_b32 s58, s67, 1
    s_add_u32 s57, s57, s58
    s_add_u32 s58, s58, {5*128}
    s_add_u32 s58, s58, s73
    """)
    for a_, R0, so in ((ACC + 80, WF, "s57"), (ACC, PB + 40, "s58")):
        for i in range(4):
            for k in range(8):
                r = R0 + 8 * i + k
                P(f"""
                v_lshlrev_b32 v10, 16, v{r}
                v_and_b32 v{r}, 0xffff0000, v{r}
                v_add_f32 v{a_+2*k}, v{a_+2*k}, v10
                v_add_f32 v{a_+2*k+1}, v{a_+2*k+1}, v{r}
                """)
        for q in range(4):
            P(f"buffer_store_dwordx4 v[{a_+4*q}:{a_+4*q+3}], v{V_OUT}, s[16:19], {so} offen offset:{16*q}")
    P("K3_FIN:")
    P.stamp(15, real=True)
    P.dump_stamps(9, 20, WS_DBG, 10)
    P("K3_END:")
    P("s_endpgm")
    P("CODE_END:")
    if fused:
        return kernel_text("k2_kernel", P.finalize(), vgpr=256, agpr=256, sgpr=102), 163840
    return kernel_text("k3_kernel", P.finalize(), vgpr=256, agpr=256, sgpr=102), LDS_BYTES
```

```python
import struct, os
from asmlib import *
from layout import *


def f2u(x):
    return "0x%08x" % struct.unpack("<I", struct.pack("<f", x))[0]


LOG2E = 1.4426950408889634
INV2PI = 0.15915494309189535


def srd(P, d, lo, hi, nbytes):
    P(f"s_mov_b32 s{d}, s{lo}")
    P(f"s_and_b32 s{d+1}, s{hi}, 0xffff")
    P(f"s_mov_b32 s{d+2}, {nbytes}")
    P(f"s_mov_b32 s{d+3}, 0x00020000")


def bf16r(P, dst, src):
    P(f"v_cvt_pk_bf16_f32 v{dst}, v{src}, v{src}")
    P(f"v_lshlrev_b32 v{dst}, 16, v{dst}")


def emit_param_loads(P, voff, r, s_lre, s_lim, s_ldt):
    P(f"buffer_load_ushort v{r}, v{voff}, s[{s_lre}:{s_lre+3}], 0 offen")
    P(f"buffer_load_ushort v{r+1}, v{voff}, s[{s_lim}:{s_lim+3}], 0 offen")
    P(f"buffer_load_ushort v{r+2}, v{voff}, s[{s_ldt}:{s_ldt+3}], 0 offen")


def emit_params(P, r):
    P(f"v_lshlrev_b32 v{r}, 16, v{r}")
    P(f"v_lshlrev_b32 v{r+1}, 16, v{r+1}")
    P(f"v_lshlrev_b32 v{r+2}, 16, v{r+2}")
    P(f"v_mul_f32 v{r+2}, {f2u(LOG2E)}, v{r+2}")
    P(f"v_exp_f32 v{r+2}, v{r+2}")
    bf16r(P, r + 2, r + 2)
    P(f"v_mul_f32 v{r+3}, v{r+2}, v{r+1}")
    P(f"v_mul_f32 v{r+2}, v{r+2}, v{r}")
    P(f"v_mul_f32 v{r+3}, {f2u(INV2PI)}, v{r+3}")
    P(f"v_mul_f32 v{r+2}, {f2u(LOG2E)}, v{r+2}")


def emit_pow(P, n, a2, rev, ore, oim, t):
    if n == 1:
        P(f"v_exp_f32 v{t}, v{a2}")
        P(f"v_fract_f32 v{oim}, v{rev}")
    else:
        ns = n if isinstance(n, str) else f2u(float(n))
        P(f"v_mul_f32 v{t}, {ns}, v{a2}")
        P(f"v_mul_f32 v{oim}, {ns}, v{rev}")
        P(f"v_exp_f32 v{t}, v{t}")
        P(f"v_fract_f32 v{oim}, v{oim}")
    P(f"v_cos_f32 v{ore}, v{oim}")
    P(f"v_sin_f32 v{oim}, v{oim}")
    P(f"v_mul_f32 v{ore}, v{t}, v{ore}")
    P(f"v_mul_f32 v{oim}, v{t}, v{oim}")


def touch(P, vdst, vaddr, srdn):
    i = Ins(f"buffer_store_dword v{vdst}, v{vaddr}, s[{srdn}:{srdn+3}], 0 offen")
    i.text = f"buffer_load_dword v{vdst}, v{vaddr}, s[{srdn}:{srdn+3}], 0 offen"
    P.ins.append(i)


def prefetch_groups(vt):
    Q = Prog()
    prefetch(Q, vt)
    groups, cur = [], []
    ins = Q.ins
    for k, i in enumerate(ins):
        cur.append(i)
        if i.text.startswith("buffer_load") and not (k + 1 < len(ins) and ins[k + 1].text.startswith("buffer_load")):
            groups.append(cur)
            cur = []
    if cur:
        groups.append(cur)
    return groups


def prefetch(P, vt):
    KPF = int(os.environ.get("KPF", "0"))
    srd(P, 68, 64, 65, 576 * 9216)
    srd(P, 72, 66, 67, 576 * 9216)
    P(f"""
    s_and_b32 s77, s2, 1
    s_lshl_b32 s77, s77, 2
    s_lshr_b32 s76, s50, 3
    s_lshl_b32 s76, s76, 3
    s_add_u32 s76, s76, s79
    v_and_b32 v{vt+4}, 63, v0
    """)
    for r0 in range(0, KPF, 256):
        P(f"""
        s_lshl_b32 s4, s76, 2
        s_add_u32 s4, s4, {r0}
        v_lshrrev_b32 v{vt}, 4, v{vt+4}
        v_add_u32 v{vt}, s4, v{vt}
        v_bfe_u32 v{vt+1}, v{vt+4}, 2, 2
        v_add_u32 v{vt+1}, s77, v{vt+1}
        v_mul_u32_u24 v{vt+1}, 1152, v{vt+1}
        v_and_b32 v{vt+2}, 3, v{vt+4}
        v_lshl_add_u32 v{vt+1}, v{vt+2}, 8, v{vt+1}
        v_cmp_gt_u32 vcc, {KPF}, v{vt}
        v_mul_u32_u24 v{vt}, 9216, v{vt}
        v_add_u32 v{vt}, v{vt}, v{vt+1}
        v_cndmask_b32 v{vt}, 2.0, v{vt}, vcc
        """)
        for m in range(2):
            touch(P, vt + 3, vt, 68 + 4 * m)
    if int(os.environ.get("EPF", "0")):
        P(f"""
        s_mul_i32 s4, s76, 9
        v_lshrrev_b32 v{vt}, 2, v{vt+4}
        v_add_u32 v{vt}, s4, v{vt}
        v_and_b32 v{vt+1}, 3, v{vt+4}
        v_add_u32 v{vt+1}, s77, v{vt+1}
        v_mul_u32_u24 v{vt+1}, 1152, v{vt+1}
        v_mul_u32_u24 v{vt}, 9216, v{vt}
        v_add_u32 v{vt}, v{vt}, v{vt+1}
        v_add_u32 v{vt}, 1024, v{vt}
        v_cmp_gt_u32 vcc, 36, v{vt+4}
        v_cndmask_b32 v{vt}, 2.0, v{vt}, vcc
        """)
        for m in range(2):
            touch(P, vt + 3, vt, 68 + 4 * m)
    if int(os.environ.get("PF2", "0")):
        for i in range(2):
            P(f"""
            s_mul_i32 s4, s76, 81
            s_add_u32 s4, s4, {41*i}
            v_add_u32 v{vt}, s4, v{vt+4}
            s_mov_b32 s5, {(2**32 + 35)//36}
            v_mul_hi_u32 v{vt+1}, v{vt}, s5
            v_mul_u32_u24 v{vt+2}, 36, v{vt+1}
            v_sub_u32 v{vt}, v{vt}, v{vt+2}
            v_lshlrev_b32 v{vt}, 7, v{vt}
            s_bfe_u32 s4, s2, 0x20001
            s_mul_i32 s4, s4, 144
            v_add_u32 v{vt+1}, s4, v{vt+1}
            v_mul_u32_u24 v{vt+1}, 9216, v{vt+1}
            v_add_u32 v{vt}, v{vt}, v{vt+1}
            s_mul_i32 s4, s77, 1152
            v_add_u32 v{vt}, s4, v{vt}
            v_cmp_gt_u32 vcc, {41 - i}, v{vt+4}
            v_cndmask_b32 v{vt}, 2.0, v{vt}, vcc
            """)
            for m in range(2):
                touch(P, vt + 3, vt, 68 + 4 * m)
    if int(os.environ.get("PF3", "0")):
        P("s_load_dwordx2 s[64:65], s[0:1], 96")
        P("s_load_dwordx4 s[4:7], s[0:1], 40")
        P(f"""
        s_lshl_b32 s76, s50, 3
        s_add_u32 s76, s76, s79
        s_mul_i32 s77, s76, 81
        v_add_u32 v{vt}, s77, v{vt+4}
        v_lshlrev_b32 v{vt}, 7, v{vt}
        v_add_u32 v{vt+1}, {41*128}, v{vt}
        s_mul_i32 s77, s76, 11
        v_add_u32 v{vt+2}, s77, v{vt+4}
        v_lshlrev_b32 v{vt+2}, 7, v{vt+2}
        v_cmp_gt_u32 vcc, 41, v{vt+4}
        v_cndmask_b32 v{vt}, 2.0, v{vt}, vcc
        v_cndmask_b32 v{vt+1}, 2.0, v{vt+1}, vcc
        v_cmp_gt_u32 vcc, 11, v{vt+4}
        v_cndmask_b32 v{vt+2}, 2.0, v{vt+2}, vcc
        """)
        srd(P, 68, 64, 65, 4608 * 1152)
        touch(P, vt + 3, vt, 68)
        touch(P, vt + 3, vt + 1, 68)
        srd(P, 72, 4, 5, 576 * 1152)
        touch(P, vt + 3, vt + 2, 72)
        srd(P, 68, 6, 7, 576 * 1152)
        touch(P, vt + 3, vt + 2, 68)


def stream_pf(P, role, vt):
    NCW = int(os.environ.get("SPF_CW", "7"))
    NLN = int(os.environ.get("SPF_LN", "0")); NLD = int(os.environ.get("SPF_LD", "0")); INFL = int(os.environ.get("SPF_INFL", "6"))
    n = {"cw": NCW, "ln": NLN, "ld": NLD}[role]
    if n == 0:
        return []
    Q = Prog()
    srd(Q, 68, 64, 65, 576 * 9216)
    srd(Q, 72, 66, 67, 576 * 9216)
    if role == "ln":
        Q(f"s_lshl_b32 s76, s50, 3\ns_add_u32 s76, s76, s79\ns_add_u32 s76, s76, {NCW*768}")
    elif role == "cw":
        Q(f"s_lshl_b32 s76, s2, 2\ns_add_u32 s76, s76, s53")
    else:
        Q(f"s_lshl_b32 s76, s2, 2\ns_add_u32 s76, s76, s53\ns_add_u32 s76, s76, {NCW*768 + NLN*512}")
    Q(f"s_lshl_b32 s76, s76, 10\nv_and_b32 v{vt}, 63, v0\nv_lshlrev_b32 v{vt}, 4, v{vt}")
    groups = [Q.ins]
    k = 0
    for i in range(n):
        for m in range(2):
            G = Prog()
            G(f"s_add_u32 s77, s76, {i*(512 if role == 'ln' else 768)*1024}")
            I = Ins(f"buffer_store_dword v{vt}, v{vt}, s[{68+4*m}:{71+4*m}], s77 offen")
            I.text = f"buffer_load_dwordx4 v[{vt+2}:{vt+5}], v{vt}, s[{68+4*m}:{71+4*m}], s77 offen"
            G.ins.append(I)
            k += 1
            if role == "ln" and k >= INFL:
                G(f"s_waitcnt vmcnt({INFL-1})")
            groups.append(G.ins)
    return groups


def code_touch(P, lab, start, end, sd, vt, lane, sidx, back):
    P(f"s_getpc_b64 s[{sd}:{sd+1}]")
    P(f"{lab}:", tag="nop")
    if back:
        P(f"s_sub_u32 s{sd}, s{sd}, {lab}-{start}")
        P(f"s_subb_u32 s{sd+1}, s{sd+1}, 0")
    else:
        P(f"s_add_u32 s{sd}, s{sd}, {start}-{lab}")
        P(f"s_addc_u32 s{sd+1}, s{sd+1}, 0")
    P(f"""
    s_and_b32 s{sd+1}, s{sd+1}, 0xffff
    s_mov_b32 s{sd+2}, {end}-{start}
    s_mov_b32 s{sd+3}, 0x00020000
    v_lshlrev_b32 v{vt}, 7, v{lane}
    s_lshl_b32 s{sidx}, s{sidx}, 13
    v_add_u32 v{vt}, s{sidx}, v{vt}
    """)
    touch(P, vt + 1, vt, sd)


def gen_k1():
    P = Prog()
    P("s_cmp_ge_u32 s2, 256")
    P("s_cbranch_scc1 K1_END")
    P.stamp(0, real=True)
    P.stamp(1)
    P("v_lshrrev_b32 v1, 6, v0")
    P("v_readfirstlane_b32 s79, v1")
    P("s_load_dwordx8 s[36:43], s[0:1], 0")
    P("s_load_dwordx2 s[44:45], s[0:1], 32")
    P("s_load_dwordx2 s[46:47], s[0:1], 56")
    P("s_load_dwordx4 s[48:51], s[0:1], 112")
    P("s_load_dwordx4 s[64:67], s[0:1], 80")
    P("s_load_dwordx2 s[62:63], s[0:1], 64")
    P("v_and_b32 v2, 63, v0")
    P("s_and_b32 s53, s79, 3")
    if int(os.environ.get("CPF", "0")):
        P("s_cmp_lg_u32 s79, 0")
        P("s_cbranch_scc1 K1_NOCT", tag="keepall")
        P("s_lshr_b32 s3, s2, 3")
        code_touch(P, "K1_PC", "k1_kernel", "CODE_END", 4, 250, 2, 3, True)
        P("K1_NOCT:", tag="nop")
    P("s_waitcnt lgkmcnt(0)")
    srd(P, 8, 36, 37, 2048 * 1152)
    srd(P, 20, 50, 51, WS_BYTES)
    srd(P, 16, 48, 49, 256)
    P("s_cmp_ge_u32 s2, 192")
    P("s_cbranch_scc1 K1_LN")

    P("""
    s_and_b32 s50, s2, 4
    s_lshl_b32 s50, s50, 1
    s_bfe_u32 s51, s2, 0x30003
    s_add_u32 s50, s50, s51
    s_lshr_b32 s51, s2, 6
    s_and_b32 s52, s2, 3
    s_mul_i32 s52, s52, 3
    s_add_u32 s51, s51, s52
    s_mul_i32 s52, s51, 48
    s_lshl_b32 s57, s53, 12
    s_lshl_b32 s58, s53, 10
    """)
    SLOT = 28672
    NSLOT = 5
    XTRA = NSLOT * SLOT
    AGG = XTRA
    L8A = AGG + 6144
    SBL = L8A + 512
    STL = SBL + 1536
    AB = 52
    P(f"""
    v_and_b32 v3, 31, v2
    v_lshrrev_b32 v4, 5, v2
    v_bfe_u32 v6, v3, 1, 3
    v_xor_b32 v6, v6, v4
    v_lshlrev_b32 v6, 4, v6
    v_lshl_add_u32 v6, v3, 7, v6
    v_add_u32 v{AB}, 16384, v6
    """)
    P("s_cmp_ge_u32 s79, 4")
    P("s_cbranch_scc1 K1_LOAD")

    srd(P, 24, 38, 39, 1152)
    srd(P, 28, 40, 41, 1152)
    srd(P, 32, 46, 47, 1152)
    PR = 16
    P("""
    v_and_b32 v11, 15, v2
    v_add_u32 v11, s52, v11
    v_lshlrev_b32 v11, 1, v11
    v_add_u32 v12, 32, v11
    v_add_u32 v13, 64, v11
    """)
    for q in range(3):
        emit_param_loads(P, 11 + q, PR + 8 * q, 24, 28, 32)
    AA = 40
    P(f"""
    v_bfe_u32 v5, v3, 2, 1
    v_lshlrev_b32 v5, 4, v5
    v_lshrrev_b32 v6, 3, v3
    v_lshl_add_u32 v5, v6, 2, v5
    v_and_b32 v6, 3, v3
    v_add_u32 v5, v5, v6
    v_bfe_u32 v6, v5, 1, 3
    v_xor_b32 v6, v6, v4
    v_lshlrev_b32 v6, 4, v6
    v_lshl_add_u32 v6, v5, 7, v6
    v_add_u32 v{AA}, s57, v6
    """)
    for base in (AA, AB):
        for s in range(1, 4):
            P(f"v_xor_b32 v{base+s}, {32*s}, v{base}")
        for reg in range(1, 3):
            for s in range(4):
                P(f"v_add_u32 v{base+4*reg+s}, {reg*2*SLOT}, v{base+s}")
    ACC = 64
    FR = 112
    SB, SBI = 170, 174
    ST = 240
    PST = int(os.environ.get('PST', '6'))
    for q in range(3):
        emit_params(P, PR + 8 * q)
    for q in range(3):
        r = PR + 8 * q
        emit_pow(P, 1, r + 2, r + 3, r + 4, r + 5, 6)
        P(f"""
        v_add_f32 v6, -1.0, v{r+4}
        v_mul_f32 v7, v{r}, v{r}
        v_fmac_f32 v7, v{r+1}, v{r+1}
        v_rcp_f32 v7, v7
        v_mul_f32 v{r+6}, v6, v{r}
        v_add_f32 v7, v7, v7
        v_fmac_f32 v{r+6}, v{r+5}, v{r+1}
        v_mul_f32 v{r+7}, v{r+5}, v{r}
        v_fma_f32 v{r+7}, -v6, v{r+1}, v{r+7}
        v_mul_f32 v{r+6}, v{r+6}, v7
        v_mul_f32 v{r+7}, v{r+7}, v7
        """)
        emit_pow(P, 8, r + 2, r + 3, r, r + 1, 6)
    P(f"""
    v_lshrrev_b32 v7, 4, v2
    s_lshl_b32 s59, s50, 2
    s_add_u32 s59, s59, s53
    s_lshl_b32 s62, s53, 8
    s_add_u32 s62, s62, {STL}
    v_lshlrev_b32 v12, 6, v7
    v_add_u32 v12, s62, v12
    s_mul_i32 s59, s59, 36
    s_mul_i32 s60, s51, 3
    s_add_u32 s59, s59, s60
    s_lshl_b32 s59, s59, 12
    s_add_u32 s59, s59, {WS_BU}
    v_lshlrev_b32 v13, 4, v2
    v_and_b32 v14, 15, v2
    v_lshlrev_b32 v15, 3, v14
    v_add_u32 v15, {L8A}, v15
    v_lshlrev_b32 v8, 4, v14
    v_add_u32 v8, {SBL}, v8
    v_lshlrev_b32 v14, 7, v14
    v_lshl_add_u32 v14, v7, 3, v14
    s_lshl_b32 s60, s53, 5
    s_add_u32 s60, s60, {AGG}
    v_add_u32 v14, s60, v14
    """)
    for q in range(3):
        P(f"ds_write_b64 v15, v[{PR+8*q}:{PR+8*q+1}] offset:{q*128}")

    def reads(st):
        L = Prog()
        sl = st % NSLOT
        reg, off = sl // 2, (sl % 2) * SLOT
        for s in range(4):
            f = FR + 64 * (st & 1) + 16 * s
            L(f"ds_read_b128 v[{f}:{f+3}], v{AA+4*reg+s} offset:{off}")
            for q in range(3):
                L(f"ds_read_b128 v[{f+4+4*q}:{f+7+4*q}], v{AB+4*reg+s} offset:{off + 4096*q}")
        return L.ins

    def bar(st):
        P("s_waitcnt lgkmcnt(0)")
        P("s_barrier")
        P.stamp(3 + st)
    cwg = stream_pf(P, 'cw', 2)
    CW0 = int(os.environ.get("CW0", "2"))
    if cwg:
        P.extend(cwg.pop(0))
        for g in cwg[:CW0]:
            P.extend(g)
        cwg = cwg[CW0:]
    P.stamp(2)
    bar(0)
    P.extend(reads(0))
    for st in range(9):
        k = -(-len(cwg) // max(1, int(os.environ.get("CWN", "7")) - st)) if cwg else 0
        for g in cwg[:k]:
            P.extend(g)
        cwg = cwg[k:]
        F0 = FR + 64 * (st & 1)
        M = Prog()
        for s in range(4):
            f = F0 + 16 * s
            for q in range(3):
                a = ACC + 16 * q
                c = "0" if (st == 0 and s == 0) else f"v[{a}:{a+15}]"
                M(f"v_mfma_f32_32x32x16_bf16 v[{a}:{a+15}], v[{f}:{f+3}], v[{f+4+4*q}:{f+7+4*q}], {c}")
        if st + 1 < 9:
            bar(st + 1)
            P.extend(interleave(M.ins, reads(st + 1), start=0, end=8))
        else:
            P.extend(M.ins)
    P.stamp(12)
    P("s_barrier")
    for k in range(4):
        P(f"ds_read_b128 v[{ST+4*k}:{ST+4*k+3}], v12 offset:{16*k}")
    for q in range(3):
        P(f"ds_read_b128 v[{144+8*q}:{147+8*q}], v8 offset:{512*q}")
        P(f"ds_read_b128 v[{148+8*q}:{151+8*q}], v8 offset:{512*q+256}")
    for q in range(3):
        a = ACC + 16 * q
        for k in range(8):
            P(f"v_permlane16_swap_b32 v{a+k}, v{a+8+k}")
    for q in range(3):
        for k, d in enumerate((SB + q, SBI + q)):
            r = 144 + 8 * q + 4 * k
            P(f"""
            v_add_f32 v{r}, v{r}, v{r+1}
            v_add_f32 v{r+2}, v{r+2}, v{r+3}
            v_add_f32 v{d}, v{r}, v{r+2}
            """)
    for q in range(3):
        a = ACC + 16 * q
        r = PR + 8 * q
        P(f"""
        v_mul_f32 v136, v{r+6}, v{SB+q}
        v_fma_f32 v136, -v{r+7}, v{SBI+q}, v136
        v_mul_f32 v137, v{r+6}, v{SBI+q}
        v_fmac_f32 v137, v{r+7}, v{SB+q}
        """)
        hp = None
        for k in range(8):
            re_, im_ = a + k, a + 8 + k
            rt, rm = ST + 2 * k, ST + 2 * k + 1
            P(f"""
            v_mul_f32 v138, v{r+6}, v{re_}
            v_mul_f32 v139, v{r+6}, v{im_}
            v_fma_f32 v138, -v{r+7}, v{im_}, v138
            v_fmac_f32 v139, v{r+7}, v{re_}
            v_mul_f32 v{re_}, v{rt}, v138
            v_mul_f32 v{im_}, v{rt}, v139
            v_fma_f32 v{re_}, -v{rm}, v136, v{re_}
            v_fma_f32 v{im_}, -v{rm}, v137, v{im_}
            """)
            if k == 0:
                hp = (re_, im_)
            else:
                o = 140 + 2 * (k & 1)
                P(f"""
                v_fma_f32 v{o}, v{r+4}, v{hp[0]}, v{re_}
                v_fma_f32 v{o+1}, v{r+4}, v{hp[1]}, v{im_}
                v_fma_f32 v{o}, -v{r+5}, v{hp[1]}, v{o}
                v_fmac_f32 v{o+1}, v{r+5}, v{hp[0]}
                """)
                hp = (o, o + 1)
        P(f"ds_write_b64 v14, v[{hp[0]}:{hp[1]}] offset:{q*2048}")
        for k in range(4):
            P(f"s_add_u32 s60, s59, {q*4096 + k*1024}")
            P(f"buffer_store_dwordx4 v[{a+4*k}:{a+4*k+3}], v13, s[20:23], s60 offen{os.environ.get('BUST', '').replace('+', ' ')}")
    P("s_waitcnt lgkmcnt(0)")
    P("s_barrier")
    P.stamp(13)
    P.stamp(15, real=True)
    P.dump_stamps(9, 20, WS_DBG + 0x20000, 190)
    P("s_mov_b64 exec, -1") if os.environ.get("STAMPS") else None
    P(f"""
    v_cmp_gt_u32 vcc, 48, v0
    s_and_saveexec_b64 s[62:63], vcc
    s_cbranch_execz K1_END
    v_lshlrev_b32 v3, 7, v0
    v_add_u32 v3, {AGG}, v3
    v_lshlrev_b32 v10, 3, v0
    v_add_u32 v11, {L8A}, v10
    ds_read_b64 v[12:13], v11
    """)
    for k in range(8):
        P(f"ds_read_b128 v[{16+4*k}:{19+4*k}], v3 offset:{16*k}")
    P(f"""
    s_mul_i32 s59, s50, {16*576*8}
    s_lshl_b32 s60, s52, 3
    s_add_u32 s59, s59, s60
    s_add_u32 s59, s59, {WS_E8}
    v_mov_b32 v8, 0
    v_mov_b32 v9, 0
    """)
    cur = 8
    for j in range(16):
        P(f"s_add_u32 s61, s59, {j*576*8}")
        P(f"buffer_store_dwordx2 v[{cur}:{cur+1}], v10, s[20:23], s61 offen")
        nxt = 48 + 2 * j
        P(f"""
        v_fma_f32 v{nxt}, v12, v{cur}, v{16+2*j}
        v_fma_f32 v{nxt+1}, v12, v{cur+1}, v{17+2*j}
        v_fma_f32 v{nxt}, -v13, v{cur+1}, v{nxt}
        v_fma_f32 v{nxt+1}, v13, v{cur}, v{nxt+1}
        """)
        cur = nxt
    P(f"""
    s_mul_i32 s59, s50, {576*8}
    s_add_u32 s59, s59, s60
    s_add_u32 s59, s59, {WS_A128}
    buffer_store_dwordx2 v[{cur}:{cur+1}], v10, s[20:23], s59 offen
    s_branch K1_END
    """)

    P("K1_LOAD:")
    P("s_cmp_lt_u32 s53, 2")
    P("s_cselect_b32 s12, s42, s44")
    P("s_cselect_b32 s13, s43, s45")
    P("s_and_b32 s13, s13, 0xffff")
    P(f"s_mov_b32 s14, {576*1152}")
    P("s_mov_b32 s15, 0x00020000")
    ROT1 = int(os.environ.get("ROT1", "1"))
    P(f"""
    v_and_b32 v0, 255, v0
    v_lshrrev_b32 v3, 3, v2
    v_and_b32 v4, 7, v2
    v_lshrrev_b32 v5, 1, v3
    v_xor_b32 v6, v4, v5
    v_lshlrev_b32 v6, 4, v6
    s_lshl_b32 s54, s50, 7
    s_lshl_b32 s55, s53, 5
    s_add_u32 s54, s54, s55
    v_add_u32 v7, s54, v3
    v_mul_u32_u24 v7, 1152, v7
    v_add_u32 v8, v7, v6
    v_xor_b32 v9, 64, v8
    s_and_b32 s55, s53, 1
    s_lshl_b32 s56, s55, 3
    s_add_u32 s56, s56, s52
    v_add_u32 v7, s56, v3
    v_mul_u32_u24 v7, 1152, v7
    v_add_u32 v10, v7, v6
    s_lshl_b32 s56, s55, 6
    v_xor_b32 v10, s56, v10
    s_and_b32 s61, s50, 7
    s_lshr_b32 s60, s2, 6
    s_mul_i32 s60, s60, 3
    s_add_u32 s61, s61, s60
    s_cmp_ge_u32 s61, 9
    s_cselect_b32 s60, 9, 0
    s_sub_u32 s61, s61, s60
    s_mul_i32 s61, s61, {128*ROT1}
    """)

    def issue_stage(st):
        slot = (st % NSLOT) * SLOT
        if st:
            P("s_add_u32 s61, s61, 128")
            P("s_cmp_ge_u32 s61, 1152")
            P("s_cselect_b32 s61, 0, s61")
        for j in range(4):
            P(f"s_add_u32 m0, s57, {slot + j*1024}")
            P(f"s_add_u32 s59, s61, {j*9216}")
            P(f"buffer_load_dwordx4 v{8 + (j & 1)}, s[8:11], s59 offen lds", tag=("st", st))
        for q in range(3):
            P(f"s_add_u32 m0, s58, {slot + 16384 + q*4096}")
            P(f"s_add_u32 s59, s61, {q*18432}")
            P(f"buffer_load_dwordx4 v10, s[12:15], s59 offen lds", tag=("st", st))
    PRE1 = int(os.environ.get("PRE1", "2"))
    for st in range(PRE1):
        issue_stage(st)
    P(f"""
    s_lshl_b32 s59, s53, 5
    v_xor_b32 v{AB}, s59, v{AB}
    v_add_u32 v{AB+1}, {2*SLOT}, v{AB}
    v_add_u32 v{AB+2}, {4*SLOT}, v{AB}
    """)
    for q in range(6):
        P(f"v_mov_b32 v{32+q}, 0")
    nxt = PRE1
    groups = stream_pf(P, 'ld', 44)
    for st in range(9):
        P.waitvm(("st", st))
        P("s_waitcnt lgkmcnt(0)")
        P("s_barrier")
        sl = st % NSLOT
        for q in range(3):
            P(f"ds_read_b128 v[{16+4*q}:{19+4*q}], v{AB + sl//2} offset:{(sl % 2)*SLOT + 4096*q}")
        n_issue = 0
        while nxt <= min(8, st + NSLOT - 1) and n_issue < 2:
            issue_stage(nxt)
            nxt += 1
            n_issue += 1
        if nxt > 8 and n_issue == 0 and groups:
            k = -(-len(groups) // (9 - st))
            for g in groups[:k]:
                P.extend(g)
            groups = groups[k:]
        for q in range(3):
            for d in range(4):
                r = 16 + 4 * q + d
                P(f"""
                v_lshlrev_b32 v30, 16, v{r}
                v_and_b32 v31, 0xffff0000, v{r}
                v_add_f32 v{32+2*q}, v{32+2*q}, v30
                v_add_f32 v{33+2*q}, v{33+2*q}, v31
                """)
    assert not groups
    for q in range(3):
        P(f"v_add_f32 v{32+q*2}, v{32+2*q}, v{33+2*q}")
        P(f"v_mov_b32 v{33+2*q}, v{32+2*q}")
    for q in range(3):
        P(f"v_permlane32_swap_b32 v{32+2*q}, v{33+2*q}")
    P(f"""
    v_and_b32 v3, 31, v2
    v_lshlrev_b32 v3, 4, v3
    s_lshl_b32 s60, s53, 2
    s_add_u32 s60, s60, {SBL}
    v_add_u32 v3, s60, v3
    """)
    for q in range(3):
        P(f"v_add_f32 v{32+q*2}, v{32+2*q}, v{33+2*q}")
        P(f"ds_write_b32 v3, v{32+2*q} offset:{512*q}")
    P(f"""
    s_cmp_lg_u32 s53, 0
    s_cbranch_scc1 K1_LDONE
    s_and_b32 s63, s50, 7
    s_lshl_b32 s63, s63, 3
    s_lshr_b32 s60, s50, 3
    s_lshl_b32 s60, s60, 2
    s_add_u32 s63, s63, s60
    s_lshl_b32 s63, s63, 2
    v_and_b32 v9, 1, v2
    v_lshlrev_b32 v9, 3, v9
    s_mov_b32 s61, 0
    s_lshl_b32 s62, s50, 10
    s_add_u32 s62, s62, {WS_STAT}
    v_lshlrev_b32 v11, 4, v2
    """)
    P("K1_POLL:")
    P("""
    buffer_load_dword v10, v9, s[16:19], s63 offen sc0 sc1
    s_waitcnt vmcnt(0)
    v_cmp_ne_u32 vcc, 1, v10
    s_add_u32 s61, s61, 1
    s_nop 1
    s_cbranch_vccz K1_GO
    s_sleep 8
    s_cmp_lt_u32 s61, 100000
    s_cbranch_scc1 K1_POLL
    """)
    P("K1_GO:")
    P(f"""
    buffer_load_dwordx4 v[12:15], v11, s[20:23], s62 offen sc0 sc1
    v_add_u32 v11, {STL}, v11
    ds_write_b128 v11, v[12:15]
    """)
    P("K1_LDONE:")
    P("""
    s_waitcnt lgkmcnt(0)
    s_barrier
    s_barrier
    s_branch K1_END
    """)

    P("K1_LN:")
    Prog._last[0] = 1
    P(f"""
    s_sub_u32 s50, s2, 192
    s_and_b32 s51, s50, 4
    s_lshl_b32 s51, s51, 3
    s_lshr_b32 s52, s50, 3
    s_lshl_b32 s52, s52, 2
    s_add_u32 s51, s51, s52
    s_lshr_b32 s54, s79, 2
    s_add_u32 s51, s51, s54
    s_and_b32 s52, s50, 2
    s_add_u32 s28, s51, s52
    s_xor_b32 s52, s52, 2
    s_add_u32 s29, s51, s52
    s_and_b32 s53, s50, 3
    v_and_b32 v0, 255, v0
    v_lshrrev_b32 v1, 3, v0
    v_and_b32 v2, 7, v0
    v_mul_u32_u24 v3, 1152, v1
    v_lshl_add_u32 v3, v2, 4, v3
    s_mul_i32 s30, s28, {32*1152}
    s_mul_i32 s31, s29, {32*1152}
    """)
    R2 = [8, 184]
    F = 80
    XO = 176
    XN = 8
    DS = 44
    for ps in range(2):
        for j in range(9):
            P(f"buffer_load_dwordx4 v[{R2[ps]+4*j}:{R2[ps]+4*j+3}], v3, s[8:11], s{30+ps} offen offset:{128*j}")
    P(f"""
    s_lshl_b32 s52, s50, 1
    s_add_u32 s52, s52, s54
    s_mul_i32 s52, s52, {9*CNT_STRIDE}
    s_add_u32 s52, s52, {WS_CNT}
    v_mul_u32_u24 v4, {CNT_STRIDE}, v0
    v_cmp_gt_u32 vcc, 9, v0
    v_cndmask_b32 v4, 2.0, v4, vcc
    v_mov_b32 v5, 0
    buffer_store_dword v5, v4, s[20:23], s52 offen
    """)
    P(f"""
    v_lshrrev_b32 v4, 1, v2
    v_lshlrev_b32 v4, 10, v4
    v_and_b32 v5, 1, v2
    v_lshl_add_u32 v4, v5, 9, v4
    v_lshl_add_u32 v4, v1, 4, v4
    s_mul_i32 s55, s53, {XNF_BYTES}
    v_lshlrev_b32 v6, 3, v1
    v_cmp_eq_u32 vcc, 0, v2
    v_cndmask_b32 v6, 2.0, v6, vcc
    s_lshl_b32 s56, s28, 8
    s_add_u32 s56, s56, {WS_STAT}
    s_and_b32 s58, s53, 1
    s_cmp_eq_u32 s58, 0
    s_cselect_b32 s56, s56, 0x40000000
    s_lshl_b32 s57, s50, 2
    s_add_u32 s58, s58, s79
    s_cmp_eq_u32 s58, 0
    s_cselect_b32 s57, s57, 0x1000
    v_lshrrev_b32 v7, 2, v2
    v_lshlrev_b32 v7, 12, v7
    v_and_b32 v5, 1, v2
    v_lshl_add_u32 v7, v5, 11, v7
    v_bfe_u32 v5, v2, 1, 1
    v_lshl_add_u32 v7, v5, 9, v7
    v_lshl_add_u32 v7, v1, 4, v7
    """)

    def reduce8():
        P("""
        v_add_f32 v152, v152, v153
        v_add_f32_dpp v152, v152, v152 quad_perm:[1,0,3,2] row_mask:0xf bank_mask:0xf
        v_add_f32_dpp v152, v152, v152 quad_perm:[2,3,0,1] row_mask:0xf bank_mask:0xf
        v_add_f32_dpp v152, v152, v152 row_half_mirror row_mask:0xf bank_mask:0xf
        """)
    for ps in range(2):
        R = R2[ps]
        P(f"""
        s_mul_i32 s52, s{28+ps}, 36864
        s_add_u32 s52, s52, s55
        s_mul_i32 s60, s{28+ps}, {18*4096}
        s_add_u32 s60, s60, {WS_RES}
        """)
        for d in range(36):
            P(f"v_lshlrev_b32 v{F+2*d}, 16, v{R+d}")
            P(f"v_and_b32 v{F+2*d+1}, 0xffff0000, v{R+d}")
            if d == 1:
                P(f"v_pk_add_f32 v[152:153], v[{F}:{F+1}], v[{F+2}:{F+3}]")
            elif d > 1:
                P(f"v_pk_add_f32 v[152:153], v[152:153], v[{F+2*d}:{F+2*d+1}]")
        reduce8()
        P(f"v_mul_f32 v154, {f2u(-1.0/576)}, v152")
        for d in range(36):
            P(f"v_pk_add_f32 v[156:157], v[{F+2*d}:{F+2*d+1}], v[154:155] op_sel_hi:[1,0]")
            if d == 0:
                P(f"v_pk_mul_f32 v[152:153], v[156:157], v[156:157]")
            else:
                P(f"v_pk_fma_f32 v[152:153], v[156:157], v[156:157], v[152:153]")
        reduce8()
        P(f"v_mul_f32 v158, {f2u(1.0/576)}, v152")
        bf16r(P, 154, 154)
        bf16r(P, 158, 158)
        P(f"v_add_f32 v158, {f2u(1e-5)}, v158")
        bf16r(P, 158, 158)
        P("v_sqrt_f32 v158, v158")
        bf16r(P, 158, 158)
        P("v_rcp_f32 v158, v158")
        if ps == 0:
            P("v_mul_f32 v159, -v158, v154")
            P("buffer_store_dwordx2 v[158:159], v6, s[20:23], s56 offen sc0 sc1", tag="stat")
            P.stamp(2)
        for j in range(9):
            for d in range(4 * j, 4 * j + 4):
                a_, b_ = F + 2 * d, F + 2 * d + 1
                P(f"""
                v_pk_add_f32 v[{a_}:{b_}], v[{a_}:{b_}], v[154:155] op_sel_hi:[1,0]
                v_cvt_pk_bf16_f32 v{b_}, v{a_}, v{b_}
                v_lshlrev_b32 v{a_}, 16, v{b_}
                v_and_b32 v{b_}, 0xffff0000, v{b_}
                v_pk_mul_f32 v[{a_}:{b_}], v[{a_}:{b_}], v[158:159] op_sel_hi:[1,0]
                v_cvt_pk_bf16_f32 v{(XN + d) if ps == 1 else (XO+(d & 3)+4*(j & 1))}, v{a_}, v{b_}
                """)
            xo = XN + 4 * j if ps == 1 else XO + 4 * (j & 1)
            if ps == 0 and j == int(os.environ.get("SIGJ", "4")):
                P.waitvm("stat")
                P("""
                s_barrier
                v_mov_b32 v160, 0
                v_mov_b32 v161, 1
                s_mov_b64 exec, 1
                buffer_store_dword v161, v160, s[16:19], s57 offen sc0 sc1
                s_mov_b64 exec, -1
                """)
                P.stamp(3)
            P(f"s_add_u32 s61, s52, {WS_XNF + 4096*j}")
            P(f"buffer_store_dwordx4 v[{xo}:{xo+3}], v4, s[20:23], s61 offen")
    P.stamp(4)
    for g in stream_pf(P, 'ln', 162):
        P.extend(g)
    P("s_cmp_ge_u32 s79, 4")
    P("s_cbranch_scc1 K1_END")
    P("s_waitcnt vmcnt(0)") if os.environ.get("STAMPS") else None
    P.stamp(5)
    P.stamp(15, real=True)
    P.dump_stamps(9, 20, WS_DBG + 0x20000, 230)
    P("K1_END:")
    P("s_endpgm")
    return kernel_text("k1_kernel", P.finalize(), vgpr=256, sgpr=102), NSLOT * SLOT + 6144 + 512 + 1536 + 1024
```

```python
import os, math
from asmlib import *
from layout import *
from k1 import code_touch, srd, f2u, bf16r, emit_param_loads, emit_params, emit_pow, LOG2E

SLOT = 16384
E_BASE = 9 * SLOT
SCR = 9 * SLOT
LDS_BYTES = 10 * SLOT

V_LANE16 = 1
V_D4 = 2
V_DE = 4
V_R4 = 5
V_RE = 9
V_RE2 = 15
V_C0 = 10
V_T = 11
XV = 16
ACC = 48
WF = 208
NWF = 5
DIST = 4


def xreg(j, s):
    n = s * 2 + j
    if n < 64:
        return f"a[{4*n}:{4*n+3}]"
    n -= 64
    return f"v[{XV+4*n}:{XV+4*n+3}]"


def epilogue(slot, sreg, foff, halves=(0, 1), part="all", tag=None):
    E = Prog()
    if part == "store":
        for j in halves:
            a = ACC + 32 * slot + 16 * j
            E(f"s_add_u32 s71, s{sreg+j}, {foff}")
            E(f"buffer_store_dwordx4 v[{a}:{a+3}], v{V_LANE16}, s[20:23], s71 offen{os.environ.get('HST', '+sc1').replace('+', ' ')}", tag=tag)
        return E.ins
    for j in halves:
        a = ACC + 32 * slot + 16 * j
        for e in range(8):
            g, u, t = a + e, a + 8 + e, V_T + (e & 1)
            E(f"""
            v_mul_f32 v{t}, v{g}, v{g}
            v_fma_f32 v{t}, v{t}, s70, v{V_C0}
            v_mul_f32 v{t}, v{g}, v{t}
            v_exp_f32 v{t}, v{t}
            v_mul_f32 v{u}, v{g}, v{u}
            v_add_f32 v{t}, 1.0, v{t}
            v_rcp_f32 v{g}, v{t}
            """)
            if e >= 1:
                E(f"v_mul_f32 v{u-1}, v{u-1}, v{g-1}")
            if e >= 2 and e % 2 == 0:
                E(f"v_cvt_pk_bf16_f32 v{a+(e-2)//2}, v{u-2}, v{u-1}")
        if part == "all":
            E(f"s_add_u32 s71, s{sreg+j}, {foff}")
        E(f"v_mul_f32 v{a+15}, v{a+15}, v{a+7}")
        E(f"v_cvt_pk_bf16_f32 v{a+3}, v{a+14}, v{a+15}")
        if part == "all":
            E(f"buffer_store_dwordx4 v[{a}:{a+3}], v{V_LANE16}, s[20:23], s71 offen{os.environ.get('HST', '+sc1').replace('+', ' ')}", tag=tag)
    return E.ins


def cfma(E, ore, oim, a, bre, bim, cre, cim):
    E(f"""
    v_fma_f32 v{ore}, v{a}, v{bre}, v{cre}
    v_fma_f32 v{oim}, v{a}, v{bim}, v{cim}
    v_fma_f32 v{ore}, -v{a+1}, v{bim}, v{ore}
    v_fmac_f32 v{oim}, v{a+1}, v{bre}
    """)


def fixup():
    BU = ACC + 128
    T0, T1, A2, REV, T2, T3 = 228, 229, 230, 231, 232, 233
    L1, CAR, AG, E8, VE, VG, VW, VR = 234, 236, 238, 246, 254, 255, 13, 14
    FRG = AG
    C = Prog()
    C(f"""
    s_lshr_b32 s74, s2, 3
    s_lshl_b32 s75, s53, 5
    s_add_u32 s75, s75, s74
    s_cmp_lt_u32 s75, 72
    s_cselect_b32 s74, 0, 0x40000000
    s_and_b32 s76, s2, 4
    s_lshl_b32 s76, s76, 1
    s_and_b32 s77, s75, 7
    s_add_u32 s76, s76, s77
    s_lshr_b32 s75, s75, 3
    s_min_u32 s75, s75, 8
    s_mul_i32 s77, s52, 9
    s_add_u32 s75, s75, s77
    """)
    npre = len(C.ins)
    C(f"""
    v_and_b32 v{VE}, 15, v0
    s_lshl_b32 s77, s75, 4
    v_add_u32 v{VE}, s77, v{VE}
    v_lshlrev_b32 v{T2}, 1, v{VE}
    v_lshlrev_b32 v{VE}, 3, v{VE}
    v_lshrrev_b32 v{VG}, 4, v0
    """)
    emit_param_loads(C, T2, T0, 24, 28, 32)
    C(f"""
    v_lshlrev_b32 v{T3}, 2, v{VG}
    s_sub_u32 s77, s76, 1
    v_sub_u32 v{T3}, s77, v{T3}
    v_mov_b32 v{L1}, 0x40000000
    s_add_u32 s78, s74, {WS_A128}
    """)
    for i in range(4):
        C(f"""
        v_subrev_u32 v{T2}, {i}, v{T3}
        v_cmp_gt_i32 vcc, 0, v{T2}
        v_mul_u32_u24 v{T2}, {576*8}, v{T2}
        v_add_u32 v{T2}, v{T2}, v{VE}
        v_cndmask_b32 v{T2}, v{T2}, v{L1}, vcc
        buffer_load_dwordx2 v[{AG+2*i}:{AG+2*i+1}], v{T2}, s[20:23], s78 offen
        """)
    C(f"""
    v_mul_u32_u24 v{T2}, {576*8}, v{VG}
    v_add_u32 v{VE}, v{T2}, v{VE}
    s_mul_i32 s78, s76, {16*576*8}
    s_add_u32 s78, s78, s74
    s_add_u32 s78, s78, {WS_E8}
    """)
    for u in range(4):
        C(f"buffer_load_dwordx2 v[{E8+2*u}:{E8+2*u+1}], v{VE}, s[20:23], s78 offen")
        if u < 3:
            C(f"s_add_u32 s78, s78, {4*576*8}")
    C(f"""
    s_mul_i32 s44, s76, {4*36}
    s_add_u32 s44, s44, s75
    s_lshl_b32 s44, s44, 12
    s_add_u32 s44, s44, s74
    s_add_u32 s44, s44, {WS_BU}
    s_mul_i32 s45, s76, {4*360}
    s_add_u32 s45, s45, s75
    s_lshl_b32 s45, s45, 10
    s_add_u32 s45, s45, s74
    s_add_u32 s45, s45, {WS_HF + 288*1024}
    """)

    if int(os.environ.get("IVPF", "1")):
        C(f"""
        s_lshr_b32 s77, s2, 3
        s_lshl_b32 s78, s53, 5
        s_add_u32 s77, s77, s78
        s_sub_u32 s77, s77, 72
        s_bfe_u32 s78, s2, 0x10002
        s_mul_i32 s78, s78, 40
        s_add_u32 s78, s78, s77
        s_mul_i32 s83, s52, 81
        s_add_u32 s78, s78, s83
        s_sub_u32 s83, s77, 41
        s_lshl_b32 s83, s83, 2
        s_bfe_u32 s82, s2, 0x20001
        s_add_u32 s83, s83, s82
        s_cmp_lt_u32 s77, 41
        s_cselect_b32 s78, s78, s83
        s_cselect_b32 s4, s100, s98
        s_cselect_b32 s5, s101, s99
        s_mov_b32 s6, {576*1152}
        s_cselect_b32 s6, {4608*1152}, s6
        s_lshl_b32 s78, s78, 14
        s_cmp_eq_u32 s74, 0
        s_cselect_b32 s4, s20, s4
        s_cselect_b32 s5, s21, s5
        s_cselect_b32 s6, s22, s6
        s_cselect_b32 s44, s44, s78
        s_mov_b32 s82, 4096
        s_cselect_b32 s82, {36*4096}, s82
        s_and_b32 s5, s5, 0xffff
        s_mov_b32 s7, 0x00020000
        """)
    else:
        C(f"""
        s_mov_b32 s4, s20
        s_mov_b32 s5, s21
        s_mov_b32 s6, s22
        s_mov_b32 s7, 0x00020000
        s_mov_b32 s82, {36*4096}
        """)

    def bu_load(u):
        b = BU + 16 * (u & 1)
        for q in range(4):
            C(f"buffer_load_dwordx4 v[{b+4*q}:{b+4*q+3}], v{V_LANE16}, s[4:7], s44 offen offset:{1024*q}")
        C(f"s_add_u32 s44, s44, s82")
    nld = len(C.ins)
    C(f"""
    s_lshl_b32 s77, s53, 11
    s_add_u32 s77, s77, {SCR}
    v_and_b32 v{VW}, 15, v0
    v_lshlrev_b32 v{VW}, 6, v{VW}
    v_lshl_add_u32 v{VW}, v{VG}, 4, v{VW}
    v_add_u32 v{VW}, s77, v{VW}
    v_lshrrev_b32 v{VR}, 5, v0
    v_lshlrev_b32 v{VR}, 3, v{VR}
    v_bfe_u32 v{T2}, v0, 2, 2
    v_add_u32 v{VR}, v{VR}, v{T2}
    v_lshlrev_b32 v{VR}, 6, v{VR}
    v_bfe_u32 v{T2}, v0, 4, 1
    v_lshl_add_u32 v{VR}, v{T2}, 5, v{VR}
    v_and_b32 v{T2}, 3, v0
    v_lshl_add_u32 v{VR}, v{T2}, 3, v{VR}
    v_add_u32 v{VR}, s77, v{VR}
    v_cvt_f32_u32 v{VG}, v{VG}
    """)
    emit_params(C, T0)
    emit_pow(C, 128, A2, REV, L1, L1 + 1, T0)
    C(f"v_mul_f32 v{T1}, {f2u(512.0)}, v{VG}")
    emit_pow(C, f"v{T1}", A2, REV, T2, T3, T0)
    cfma(C, AG + 4, AG + 5, L1, AG + 6, AG + 7, AG + 4, AG + 5)
    cfma(C, AG + 2, AG + 3, L1, AG + 4, AG + 5, AG + 2, AG + 3)
    cfma(C, AG + 0, AG + 1, L1, AG + 2, AG + 3, AG + 0, AG + 1)
    C(f"""
    v_mul_f32 v{CAR}, v{T2}, v{AG}
    v_mul_f32 v{CAR+1}, v{T2}, v{AG+1}
    v_fma_f32 v{CAR}, -v{T3}, v{AG+1}, v{CAR}
    v_fmac_f32 v{CAR+1}, v{T3}, v{AG}
    """)
    emit_pow(C, 1, A2, REV, L1, L1 + 1, T0)
    for pl in ("v_permlane16_swap_b32", "v_permlane32_swap_b32"):
        C(f"""
        v_mov_b32 v{T0}, v{CAR}
        v_mov_b32 v{T1}, v{CAR+1}
        {pl} v{CAR}, v{T0}
        {pl} v{CAR+1}, v{T1}
        v_add_f32 v{CAR}, v{CAR}, v{T0}
        v_add_f32 v{CAR+1}, v{CAR+1}, v{T1}
        """)
    for u in range(4):
        C(f"v_mov_b32 v{T1}, {f2u(32.0*u)}")
        C(f"v_fmac_f32 v{T1}, {f2u(8.0)}, v{VG}")
        emit_pow(C, f"v{T1}", A2, REV, T2, T3, T0)
        e = E8 + 2 * u
        cfma(C, e, e + 1, T2, CAR, CAR + 1, e, e + 1)
    ncar = len(C.ins)
    bu_load(0)
    bu_load(1)
    nbu = len(C.ins)
    for u in range(4):
        b = BU + 16 * (u & 1)
        e = E8 + 2 * u
        pre, pim = e, e + 1
        for k in range(8):
            cfma(C, b + k, b + 8 + k, L1, pre, pim, b + k, b + 8 + k)
            pre, pim = b + k, b + 8 + k
        for k in range(4):
            C(f"v_cvt_pk_bf16_f32 v{b+k}, v{b+2*k}, v{b+2*k+1}")
        for k in range(4):
            C(f"v_cvt_pk_bf16_f32 v{b+8+k}, -v{b+8+2*k}, -v{b+8+2*k+1}")
        C(f"""
        ds_write_b128 v{VW}, v[{b}:{b+3}]
        ds_write_b128 v{VW}, v[{b+8}:{b+11}] offset:1024
        ds_read_b64_tr_b16 v[{FRG}:{FRG+1}], v{VR}
        ds_read_b64_tr_b16 v[{FRG+2}:{FRG+3}], v{VR} offset:256
        ds_read_b64_tr_b16 v[{FRG+4}:{FRG+5}], v{VR} offset:1024
        ds_read_b64_tr_b16 v[{FRG+6}:{FRG+7}], v{VR} offset:1280
        s_add_u32 s77, s45, {u*360*1024}
        s_add_u32 s73, s45, {u*360*1024 + 36*1024}
        """)
        if u + 2 < 4:
            bu_load(u + 2)
        C(f"""
        buffer_store_dwordx4 v[{FRG}:{FRG+3}], v{V_LANE16}, s[20:23], s77 offen sc1
        buffer_store_dwordx4 v[{FRG+4}:{FRG+7}], v{V_LANE16}, s[20:23], s73 offen sc1
        """, tag="fx")
    return C.ins[:nld], C.ins[nld:ncar], C.ins[ncar:nbu], C.ins[nbu:]


def touch_k3():
    mode = os.environ.get("W3PF", "0")
    T = Prog()
    if mode == "0":
        return [], []
    pre = Prog()
    pre("s_load_dwordx2 s[82:83], s[0:1], 96")
    pre("s_load_dwordx4 s[100:101+2], s[0:1], 40") if False else None
    T(f"""
    s_lshr_b32 s77, s2, 3
    s_lshl_b32 s77, s77, 2
    s_add_u32 s77, s77, s53
    s_lshl_b32 s77, s77, 13
    v_lshlrev_b32 v229, 7, v0
    v_add_u32 v229, s77, v229
    """)
    def ld(srdn, soff):
        i = Ins(f"buffer_store_dword v228, v229, s[{srdn}:{srdn+3}], {soff} offen")
        i.text = f"buffer_load_dword v228, v229, s[{srdn}:{srdn+3}], {soff} offen"
        T.ins.append(i)
    HALF = 2304 * 1152
    if mode == "l2":
        T(f"""
        s_mul_i32 s77, s52, {HALF}
        s_add_u32 s24, s36, s77
        s_addc_u32 s25, s37, 0
        s_and_b32 s25, s25, 0xffff
        s_mov_b32 s26, {HALF}
        """)
        for i in range(3):
            T(f"s_mov_b32 s77, {i*8192*128}")
            ld(24, "s77")
        for k, (lo, hi) in enumerate(((38, 39), (40, 41))):
            d = 28 + 4 * k
            T(f"s_mov_b32 s{d}, s{lo}\ns_and_b32 s{d+1}, s{hi}, 0xffff\ns_mov_b32 s{d+2}, {576*1152}")
            ld(d, "0")
    else:
        Q = HALF // 4
        T(f"""
        s_and_b32 s77, s2, 7
        s_lshr_b32 s78, s77, 1
        s_lshl_b32 s77, s52, 2
        s_add_u32 s77, s77, s78
        s_mul_i32 s77, s77, {Q}
        s_add_u32 s24, s36, s77
        s_addc_u32 s25, s37, 0
        s_and_b32 s25, s25, 0xffff
        s_mov_b32 s26, {Q}
        """)
        ld(24, "0")
        E8_ = 576 * 1152 // 8
        for k, (lo, hi) in enumerate(((38, 39), (40, 41))):
            d = 28 + 4 * k
            T(f"""
            s_and_b32 s77, s2, 7
            s_mul_i32 s77, s77, {E8_}
            s_add_u32 s{d}, s{lo}, s77
            s_addc_u32 s{d+1}, s{hi}, 0
            s_and_b32 s{d+1}, s{d+1}, 0xffff
            s_mov_b32 s{d+2}, {E8_}
            """)
            ld(d, "0")
    return [], T.ins


def gen_k2(fused=False):
    P = Prog()
    P("s_cmp_ge_u32 s2, 256")
    P("s_cbranch_scc1 " + ("K3_END" if fused else "K2_END"))
    P.stamp(0, real=True)
    P.stamp(1)
    P("s_load_dwordx4 s[36:39], s[0:1], 80")
    P("s_load_dwordx2 s[48:49], s[0:1], 120")
    P("s_load_dwordx4 s[40:43], s[0:1], 8")
    P("s_load_dwordx2 s[46:47], s[0:1], 56")
    P("s_load_dwordx2 s[100:101], s[0:1], 96")
    P("s_load_dwordx4 s[4:7], s[0:1], 40")
    P("""
    v_lshrrev_b32 v2, 6, v0
    v_and_b32 v0, 63, v0
    v_readfirstlane_b32 s53, v2
    s_and_b32 s52, s2, 3
    s_lshr_b32 s50, s2, 5
    s_lshl_b32 s51, s52, 3
    s_add_u32 s50, s50, s51
    s_and_b32 s51, s2, 4
    s_bfe_u32 s54, s2, 0x20003
    s_add_u32 s51, s51, s54
    s_mov_b32 s79, s53
    """)
    P(f"v_lshlrev_b32 v{V_LANE16}, 4, v0")
    P(f"""
    s_lshl_b32 s54, s51, 3
    s_lshl_b32 s55, s53, 1
    s_add_u32 s54, s54, s55
    s_mul_i32 s64, s54, 36864
    s_mul_i32 s55, s52, {XNF_BYTES}
    s_add_u32 s64, s64, s55
    s_add_u32 s65, s64, 36864
    s_lshr_b32 s57, s50, 2
    s_and_b32 s58, s50, 3
    s_mul_i32 s66, s54, {360*1024}
    s_mul_i32 s55, s57, {36*1024}
    s_add_u32 s66, s66, s55
    s_add_u32 s66, s66, {WS_HF}
    s_lshl_b32 s55, s58, 10
    s_add_u32 s68, s66, s55
    s_add_u32 s68, s68, {32*1024}
    s_add_u32 s69, s68, {360*1024}
    s_lshl_b32 s55, s58, 13
    s_add_u32 s66, s66, s55
    s_add_u32 s67, s66, {360*1024}
    s_mul_i32 s56, s57, 1152
    s_lshl_b32 s55, s58, 5
    s_add_u32 s72, s56, s55
    s_add_u32 s72, s72, 1024
    s_lshl_b32 s55, s58, 8
    s_add_u32 s56, s56, s55
    s_mov_b32 s70, {f2u(-2.0*math.sqrt(2.0/math.pi)*LOG2E*0.044715)}
    v_mov_b32 v{V_C0}, {f2u(-2.0*math.sqrt(2.0/math.pi)*LOG2E)}
    """)
    P(f"""
    v_lshrrev_b32 v14, 3, v0
    v_and_b32 v15, 2, v14
    v_bfe_u32 v{V_D4}, v0, 1, 2
    v_xor_b32 v{V_D4}, v{V_D4}, v15
    v_lshlrev_b32 v{V_D4}, 5, v{V_D4}
    v_and_b32 v15, 1, v0
    v_lshl_add_u32 v{V_D4}, v15, 4, v{V_D4}
    s_lshl_b32 s57, s53, 4
    v_add_u32 v14, s57, v14
    v_mul_u32_u24 v14, 9216, v14
    v_add_u32 v{V_D4}, v{V_D4}, v14
    v_xor_b32 v{V_D4+1}, 32, v{V_D4}
    v_lshrrev_b32 v14, 1, v0
    s_lshl_b32 s57, s53, 1
    s_and_b32 s57, s57, 4
    v_xor_b32 v14, s57, v14
    v_mul_u32_u24 v14, 9216, v14
    v_lshl_add_u32 v{V_DE}, v15, 4, v14
    s_lshl_b32 s61, s53, 11
    """)
    P("s_waitcnt lgkmcnt(0)")
    srd(P, 8, 36, 37, 576 * 9216)
    srd(P, 12, 38, 39, 576 * 9216)
    srd(P, 20, 48, 49, WS_BYTES)
    P("s_and_b32 s57, s2, 1")
    P("s_cmp_eq_u32 s57, 0")
    P("s_cselect_b32 s98, s4, s6")
    P("s_cselect_b32 s99, s5, s7")

    slotA = [0, 1, 2, 3, 4, 0, 1, 2, 3]
    slotB = [5, 6, 7, 8, 4, 0, 1, 2, 3]
    freeB = [None, None, None, None, 4, 5, 6, 7, 8]

    def dma4(grp, kb):
        slot = (slotA if grp == 0 else slotB)[kb] * SLOT
        out = []
        for m in range(2):
            for i in range(2):
                D = Prog()
                D(f"s_add_u32 m0, s61, {slot + m*8192 + i*1024}")
                D(f"s_add_u32 s59, s56, {(kb*64 + i*8)*9216 + grp*128}")
                D(f"buffer_load_dwordx4 v{V_D4+m}, s[{8+4*m}:{11+4*m}], s59 offen lds", tag=("W", grp, kb))
                out.append((D.ins, 8))
        return out

    def dmaE(kb):
        D = Prog()
        D(f"s_add_u32 m0, s60, {(kb % 4)*4096}")
        D(f"s_add_u32 s59, s72, {kb*64*9216}")
        D(f"buffer_load_dwordx4 v{V_DE}, s[16:19], s59 offen lds", tag=("W", 1, kb))
        return [(D.ins, 32)]

    def xloads(kb):
        out = []
        for s in range(4):
            for j in range(2):
                D = Prog()
                D(f"s_add_u32 s62, s{64+j}, {WS_XNF + kb*4096}")
                D(f"buffer_load_dwordx4 {xreg(j, kb*4+s)}, v{V_LANE16}, s[20:23], s62 offen offset:{s*1024}")
                out.append((D.ins, 8))
        return out

    PRE = int(os.environ.get("K2PRE", "2"))
    for kb in range(PRE):
        for ins, _ in dma4(0, kb) + xloads(kb):
            P.extend(ins)
    srd(P, 24, 40, 41, 1152)
    srd(P, 28, 42, 43, 1152)
    srd(P, 32, 46, 47, 1152)
    P(f"""
    s_cmp_lt_u32 s53, 2
    s_cselect_b32 s16, s8, s12
    s_cselect_b32 s17, s9, s13
    s_mov_b32 s18, {576*9216}
    s_mov_b32 s19, 0x00020000
    s_and_b32 s57, s53, 1
    s_mul_i32 s55, s57, {32*9216}
    s_add_u32 s72, s72, s55
    s_lshl_b32 s60, s53, 10
    s_add_u32 s60, s60, {E_BASE}
    """)
    P(f"""
    v_and_b32 v14, 1, v0
    v_lshlrev_b32 v14, 4, v14
    v_bfe_u32 v15, v0, 1, 1
    v_lshl_add_u32 v14, v15, 3, v14
    v_lshrrev_b32 v15, 5, v0
    v_lshlrev_b32 v15, 3, v15
    v_bfe_u32 v{WF}, v0, 2, 2
    v_add_u32 v15, v15, v{WF}
    v_bfe_u32 v{WF+1}, v0, 4, 1
    v_and_b32 v{WF}, 2, v{WF}
    v_xor_b32 v{WF}, v{WF}, v{WF+1}
    v_lshl_add_u32 v{V_R4}, v15, 7, v14
    v_lshl_add_u32 v{V_R4}, v{WF+1}, 13, v{V_R4}
    v_lshl_add_u32 v{V_R4}, v{WF}, 5, v{V_R4}
    v_xor_b32 v{V_R4+1}, 32, v{V_R4}
    v_xor_b32 v{V_R4+2}, 64, v{V_R4}
    v_xor_b32 v{V_R4+3}, 96, v{V_R4}
    v_lshl_add_u32 v{V_RE}, v15, 5, v14
    v_lshl_add_u32 v{V_RE}, v{WF+1}, 11, v{V_RE}
    v_lshl_add_u32 v{V_RE}, v{WF+1}, 7, v{V_RE}
    v_add_u32 v{V_RE}, {E_BASE}, v{V_RE}
    v_xor_b32 v{V_RE2}, 128, v{V_RE}
    """)
    fx_pre, fx_car, fx_bu, fx_rec = fixup()
    if os.environ.get("NOFX"):
        fx_pre, fx_car, fx_bu, fx_rec = [], [], [], []
    P.extend(fx_pre)
    phases = [
        [("A", 0, 0), ("A", 1, 1), ("A", 2, 2), ("A", 3, 3)],
        [("E", 0, 4), ("B", 0, 0)],
        [("B", 1, 1)],
        [("B", 2, 2)],
        [("B", 3, 3)],
    ]
    frags = []
    unit = 0
    for ph, tiles in enumerate(phases):
        for kb in range(9):
            order = [(s_, t) for s_ in range(4) for t in tiles]
            if (ph == 0 and kb == 8) or (ph == 1 and kb == 0):
                order = [(s_, tiles[0]) for s_ in range(4)] + [(s_, t) for s_ in range(4) for t in tiles[1:]]
            for s_, (buf, g, sl) in order:
                frags.append(dict(ph=ph, buf=buf, kb=kb, s=s_, g=g, slot=sl, ks=kb * 4 + s_, unit=unit))
            unit += 1
    bar_units = set(range(0, 18)) | {19}
    items = []
    for kb in range(PRE, 9):
        rel = -1 if kb < 5 else kb - 5 + 2
        for ins, ln in dma4(0, kb):
            items.append([16 * kb - 1, rel, ins, ln])
        for ins, ln in xloads(kb):
            items.append([16 * kb, -1, ins, ln])
    for kb in range(9):
        rel = -1 if freeB[kb] is None else freeB[kb] + 2
        for ins, ln in dma4(1, kb):
            items.append([144 + 8 * kb, rel, ins, ln])
        rel = -1 if kb < 4 else 9 + (kb - 4) + 2
        for ins, ln in dmaE(kb):
            items.append([144 + 8 * kb - 1, rel, ins, ln])
    items.sort(key=lambda x: x[0])
    released = [-1]
    seen = set()
    region = [0]

    def frag_read(M, n, part):
        f = frags[n]
        u = f["unit"]
        if u not in seen:
            seen.add(u)
            if u in bar_units:
                M.waitvm(("W", 0 if f["buf"] == "A" else 1, f["kb"]))
                M("s_barrier")
                released[0] = u
                if u in (1, 3, 5, 7, 9, 11, 13, 15, 17) and not os.environ.get("FINE"):
                    M.stamp(3 + u // 2)
        b = WF + 4 * (n % NWF)
        if f["buf"] == "E":
            off = (f["kb"] % 4) * 4096 + f["s"] * 16 * 32
            base = V_RE if part == 0 else V_RE2
        else:
            sl = (slotA if f["buf"] == "A" else slotB)[f["kb"]]
            reg = sl // 3
            if reg != region[0]:
                d = (reg - region[0]) * 3 * SLOT
                for g in range(4):
                    M(f"v_add_u32 v{V_R4+g}, {d & 0xffffffff}, v{V_R4+g}")
                region[0] = reg
            base = V_R4 + f["g"]
            off = (sl % 3) * SLOT + f["s"] * 16 * 128 + part * 512
        M(f"ds_read_b64_tr_b16 v[{b+2*part}:{b+2*part+1}], v{base} offset:{off}")

    for n in range(DIST):
        frag_read(P, n, 0)
        frag_read(P, n, 1)
    P.stamp(2)
    CR0 = float(os.environ.get("CR0", "6.3"))
    CR1 = float(os.environ.get("CR1", "6.6"))
    credit = 0.0
    cur_ph = 0
    B = Prog()
    phase_lists = []
    late = []
    for n, f in enumerate(frags):
        if f["ph"] != cur_ph:
            phase_lists.append(B.ins)
            B = Prog()
            cur_ph = f["ph"]
        b = WF + 4 * (n % NWF)
        credit = min(credit + (CR0 if f["ph"] == 0 else CR1), 16.0)
        for j in range(2):
            a = ACC + 32 * f["slot"] + 16 * j
            c = "0" if f["ks"] == 0 else f"v[{a}:{a+15}]"
            B(f"v_mfma_f32_32x32x16_bf16 v[{a}:{a+15}], v[{b}:{b+3}], {xreg(j, f['ks'])}, {c}")
            if n + DIST < len(frags):
                frag_read(B, n + DIST, j)
            assert not items or items[0][0] > n + DIST + 1, ("load issued too late", n, items[0][0])
            if j == 1 and credit > 0:
                for k, it in enumerate(items):
                    if it[1] <= released[0]:
                        B.extend(it[2])
                        credit -= it[3]
                        late.append(it[0] - n)
                        del items[k]
                        break
    phase_lists.append(B.ins)
    assert not items, len(items)
    if os.environ.get("VERB"):
        print("lead (frags) of loads:", late)
    A_ = lambda t, **k: epilogue(t, 66, 1024 * t, tag='early', **k)
    B_ = lambda t, **k: epilogue(t, 66, 4096 + 1024 * t, **k)
    L0, L1_ = phase_lists[0], phase_lists[1]
    n0 = sum(1 for i in L0 if i.kind == "mfma")
    L = L0 + L1_
    n01 = sum(1 for i in L if i.kind == "mfma")
    L = interleave2(L, fx_car, start=96, end=n0 - 26)
    L = interleave2(L, A_(0), start=n0 - 23, end=n0 + 7)
    L = interleave2(L, A_(1, part="calc") + A_(2, part="calc") + A_(3, part="calc") + A_(1, part="store"), start=n0 + 8, end=n01 - 1)
    P.extend(L)
    P.stamp(3 if os.environ.get("FINE") else 12)
    _, tk3 = touch_k3()
    if tk3:
        P("s_load_dwordx2 s[36:37], s[0:1], 96")
        P("s_load_dwordx2 s[38:39], s[0:1], 40")
        P("s_load_dwordx2 s[40:41], s[0:1], 48")
    P(f"""
    s_lshl_b32 s100, s51, 2
    s_add_u32 s100, s100, s53
    s_lshl_b32 s100, s100, 2
    s_add_u32 s100, s100, s52
    s_add_u32 s100, s100, 192
    s_mul_i32 s100, s100, {CNT_STRIDE}
    s_add_u32 s100, s100, {WS_CNT}
    s_add_u32 s83, s100, {160*CNT_STRIDE}
    s_add_u32 s101, s76, 320
    s_mul_i32 s101, s101, {CNT_STRIDE}
    s_add_u32 s101, s101, {WS_CNT}
    s_add_u32 s101, s101, s74
    v_cmp_eq_u32 vcc, 0, v0
    v_mov_b32 v233, 1
    v_cndmask_b32 v232, 2.0, v0, vcc
    """)
    def sig(tag, sreg):
        Q = Prog()
        if fused:
            Q.waitvm(tag)
            Q(f"buffer_atomic_add v233, v232, s[20:23], s{sreg} offen sc1")
        return Q.ins
    nr = len(fx_rec)
    FO = os.environ.get("FXO", "early")
    c1, c2 = (int(nr * 0.12), int(nr * 0.40)) if FO != "early" else (int(nr * 0.30), nr)
    def spread(body, stores, lo=0.0, hi=1.0):
        pairs = [stores[i:i + 2] for i in range(0, len(stores), 2)]
        n = len(body)
        pos = [int(n * (lo + (hi - lo) * (k + 0.5) / len(pairs))) for k in range(len(pairs))]
        out = []
        for i_, x in enumerate(body):
            while pos and i_ >= pos[0] and not (out and out[-1].text.startswith("s_add_u32 s71")) and not (len(out) > 1 and out[-2].text.startswith("s_add_u32 s71")) and not (len(out) > 2 and out[-3].text.startswith("s_add_u32 s71")):
                out += pairs.pop(0)
                pos.pop(0)
            out.append(x)
        for p_ in pairs:
            out += p_
        return out
    ST = lambda t: A_(t, part="store")
    EP = lambda: epilogue(4, 68, 0, tag="early")
    if FO == "early":
        b0 = B_(0)
        h = len(b0) // 4
        fillsV = [spread(EP() + fx_bu + b0[:h] + fx_rec[:c1], ST(2), 0.0, 1.0),
                  spread(fx_rec[c1:] + b0[h:], ST(3), 0.0, 0.6),
                  B_(1)[:70] + sig("early", 83) + sig("fx", 101) + B_(1)[70:] + B_(2)]
    else:
        fillsV = [spread(EP() + fx_bu + B_(0, halves=(0,)) + fx_rec[:c1], ST(2), 0.0, 1.0),
                  spread(B_(0, halves=(1,)) + fx_rec[c1:c2] + B_(1), ST(3), 0.0, 0.7), fx_rec[c2:int((nr+c2)/2)] + sig("early", 83) + fx_rec[int((nr+c2)/2):] + B_(2)]
    def pf(n):
        Q = Prog()
        for q in range(n):
            I = Ins(f"buffer_store_dword v228, v{V_LANE16}, s[4:7], s44 offen")
            I.text = f"buffer_load_dwordx4 v[228:231], v{V_LANE16}, s[4:7], s44 offen" + os.environ.get("PFF", "").replace("+", " ")
            Q.ins.append(I)
            Q("s_add_u32 s44, s44, 1024")
        return Q.ins
    def mix(a_, b_):
        out, k = [], 0
        step = max(1, len(a_) // max(1, len(b_) // 2))
        for i_, x in enumerate(a_):
            out.append(x)
            if i_ % step == step - 1 and k < len(b_):
                out += b_[k:k + 2]
                k += 2
        return out + b_[k:]
    PFS = [int(x) for x in os.environ.get("PFS", "8,8,0").split(",")]
    fillsI = [mix(spread(EP() + B_(0, halves=(0,)), ST(2)), pf(PFS[0])),
              mix(spread(B_(0, halves=(1,)) + B_(1), ST(3), 0.0, 0.7), pf(PFS[1])), B_(2)[:70] + sig("early", 83) + B_(2)[70:]]
    SPLIT = int(os.environ.get("SPLIT", "1")) and not os.environ.get("NOFX")
    import copy
    if SPLIT:
        P("s_cmp_lg_u32 s74, 0")
        P("s_cbranch_scc1 K2_INV", tag="keepall")
    last = Prog._last[0]
    for k in range(3):
        L = phase_lists[2 + k]
        nm = sum(1 for i in L if i.kind == "mfma")
        LL = interleave2(L, fillsV[k], start=1, end=nm - 1)
        if os.environ.get("FINE"):
            cnt = 0
            for i_ in LL:
                P.ins.append(i_)
                if i_.kind == "mfma":
                    cnt += 1
                    if cnt % 24 == 0:
                        P.stamp(3 + 3 * k + cnt // 24)
        else:
            P.extend(LL)
            if k >= 1:
                P.stamp(12 + k)
    if SPLIT:
        P("s_branch K2_FIN")
        P("K2_INV:", tag="restore")
        Prog._last[0] = last
        if int(os.environ.get("CPF3", "0")):
            P("""
            s_lshr_b32 s77, s2, 3
            s_lshl_b32 s78, s53, 5
            s_add_u32 s77, s77, s78
            s_sub_u32 s77, s77, 72
            """)
            code_touch(P, "K2_PC", "k3_kernel", "CODE_END", 24, 232, 0, 77, False)
        for k in range(3):
            L = phase_lists[2 + k]
            nm = sum(1 for i in L if i.kind == "mfma")
            LL = interleave2(L, fillsI[k], start=1, end=nm - 1)
            if os.environ.get("FINE"):
                cnt = 0
                for i_ in LL:
                    P.ins.append(i_)
                    if i_.kind == "mfma":
                        cnt += 1
                        if cnt % 24 == 0:
                            P.stamp(3 + 3 * k + cnt // 24)
            else:
                P.extend(LL)
                if k >= 1:
                    P.stamp(12 + k)
        P("K2_FIN:")
        P("s_nop 7")
        P("s_nop 3")
    P.extend(B_(3))
    P.stamp(15, real=True)
    P.dump_stamps(9, 20, WS_DBG + (0x10000 if os.environ.get('ALLST') else 0), 14)
    if fused:
        P("s_mov_b64 exec, -1")
        return P
    P("K2_END:")
    P("s_endpgm")
    return kernel_text("k2_kernel", P.finalize(), vgpr=256, agpr=256, sgpr=102), LDS_BYTES
```

```python
import os, math
from asmlib import *
from layout import *
from k1 import srd, f2u

STG = 24576
NS = 6
LDS_BYTES = NS * STG

V_LANE16 = 1
V_D = 2
V_D1 = 3
V_RB = 4
V_T = 10
V_OUT = 255
RR0 = 216
RR1 = 16
HV = 16
ACC = 48
WF = 144
NWF = 8
DIST = int(os.environ.get('K3DIST', '6'))
PB = 176


def hreg(ks):
    if ks >= 8:
        return f"a[{4*(ks-8)}:{4*(ks-8)+3}]"
    return f"v[{HV+4*ks}:{HV+4*ks+3}]"


SC = os.environ.get("PSC", " sc0 sc1")


def publish(g):
    E = Prog()
    a = ACC + 16 * g
    for k in range(8):
        E(f"v_cvt_pk_bf16_f32 v{PB+8*g+k}, v{a+2*k}, v{a+2*k+1}")
        if k % 4 == 3:
            r = PB + 8 * g + k - 3
            E(f"buffer_store_dwordx4 v[{r}:{r+3}], v{V_LANE16}, s[20:23], s{24+g} offen offset:{1024*(k//4)}{SC}")
    return E.ins


def resid_calc(P):
    for R, a in ((RR0, ACC + 80), (RR1, ACC)):
        for k in range(8):
            x, xn, dd = R + k, R + 8 + k, R + 16 + k
            P(f"""
            v_lshlrev_b32 v10, 16, v{xn}
            v_and_b32 v{xn}, 0xffff0000, v{xn}
            v_lshlrev_b32 v11, 16, v{dd}
            v_and_b32 v{dd}, 0xffff0000, v{dd}
            v_mul_f32 v10, v10, v11
            v_mul_f32 v{xn}, v{xn}, v{dd}
            v_cvt_pk_bf16_f32 v{xn}, v10, v{xn}
            v_lshlrev_b32 v10, 16, v{xn}
            v_and_b32 v{xn}, 0xffff0000, v{xn}
            v_lshlrev_b32 v11, 16, v{x}
            v_and_b32 v{x}, 0xffff0000, v{x}
            v_add_f32 v10, v10, v11
            v_add_f32 v{xn}, v{xn}, v{x}
            v_add_f32 v{a+2*k}, v{a+2*k}, v10
            v_add_f32 v{a+2*k+1}, v{a+2*k+1}, v{xn}
            """)


def main_loop(P, ssm, fused=False):
    if fused and not ssm:
        KORD = [0, 2, 4, 6, 9, 11, 13, 15, 8, 17, 1, 3, 5, 7, 10, 12, 14, 16]
    else:
        KORD = list(range(18))

    def dma(kb):
        slot = (kb % NS) * STG
        out = []
        for i in range(6):
            D = Prog()
            if not ssm:
                D(f"s_add_u32 m0, s61, {slot + (i >> 1)*8192 + (i & 1)*1024}")
                D(f"s_add_u32 s59, s56, {(KORD[kb]*64 + (i & 1)*8)*1152 + (i >> 1)*128}")
                D(f"buffer_load_dwordx4 v{V_D}, s[8:11], s59 offen lds", tag=("W", kb))
            else:
                srdn = 8 if kb < 9 else 12
                D(f"s_add_u32 m0, s61, {slot + i*1024}")
                D(f"s_add_u32 s59, s56, {i*8*1152 + (kb % 9)*128}")
                D(f"buffer_load_dwordx4 v{V_D + (i & 1)}, s[{srdn}:{srdn+3}], s59 offen lds", tag=("W", kb))
            out.append((D.ins, 8))
        return out

    def hloads(kb):
        out = []
        for s in range(4):
            D = Prog()
            D(f"s_add_u32 s62, s64, {KORD[kb]*4096}")
            D(f"buffer_load_dwordx4 {hreg(kb*4+s)}, v{V_LANE16}, s[20:23], s62 offen offset:{s*1024}" + (" sc1" if fused else ""))
            out.append((D.ins, 8))
        return out

    PRE = int(os.environ.get("K3PRE", "2"))
    PREW = PRE
    if not fused:
        for kb in range(PRE):
            for ins, _ in dma(kb) + hloads(kb):
                P.extend(ins)
    else:
        PREW = int(os.environ.get("K3PREW", "4"))
        for kb in range(PREW):
            for ins, _ in dma(kb):
                P.extend(ins)
        tagn = "S" if ssm else "F"
        P(f"""
        s_waitcnt vmcnt({6*PREW})
        v_mov_b32 v10, 0
        v_mov_b32 v11, 1
        s_mov_b64 exec, 1
        buffer_atomic_add v11, v10, s[20:23], s100 offen sc1
        s_mov_b32 s70, 0
        """)
        if os.environ.get("FXO", "early") != "early":
            P("buffer_atomic_add v11, v10, s[20:23], s101 offen sc1")
        if not ssm:
            P.stamp(2)
        P(f"K3_HP{tagn}:")
        P(f"""
        buffer_load_dword v11, v10, s[20:23], s29 offen sc0 sc1
        s_waitcnt vmcnt(0)
        v_readfirstlane_b32 s71, v11
        s_add_u32 s70, s70, 1
        s_cmp_ge_u32 s71, {36 if ssm else 8}
        s_cbranch_scc1 K3_HG{tagn}
        s_sleep 2
        s_cmp_lt_u32 s70, 200000
        s_cbranch_scc1 K3_HP{tagn}
        """)
        P(f"K3_HG{tagn}:")
        P("s_mov_b64 exec, -1")
        for kb in range(PRE):
            for ins, _ in hloads(kb):
                P.extend(ins)
    NT = int(os.environ.get("K3NT", "1"))
    frags = [dict(kb=kb, s=s, g=g) for kb in range(18 - NT) for s in range(4) for g in range(6)]
    frags += [dict(kb=kb, s=s, g=g) for g in range(6) for kb in range(18 - NT, 18) for s in range(4)]
    items = []
    BS = int(os.environ.get("K3BS", "1"))
    LAG = int(os.environ.get("K3LAG", "2"))
    for kb in range(PRE, 18):
        rel = -1 if kb < NS else kb - NS + LAG
        first = min(n for n, f in enumerate(frags) if f["kb"] == kb)
        firstw = min(n for n, f in enumerate(frags) if f["kb"] == kb - kb % BS)
        for ins, ln in (dma(kb) if kb >= PREW else []):
            items.append([firstw - DIST - 1, rel, ins, ln])
        for ins, ln in hloads(kb):
            items.append([first, ("late" if (fused and not ssm and kb >= 10) else -1), ins, ln])
    for R, sd, sx in ((RR0, "s30", "s31"), (RR1, "s75", "s76")):
        for txt, ln in ((f"buffer_load_dwordx4 v[{R}:{R+3}], v13, s[4:7], {sd} offen", 32),
                        (f"buffer_load_dwordx4 v[{R+4}:{R+7}], v13, s[4:7], {sd} offen offset:16", 8),
                        (f"buffer_load_dwordx4 v[{R+8}:{R+11}], v15, s[20:23], {sx} offen", 8),
                        (f"buffer_load_dwordx4 v[{R+12}:{R+15}], v15, s[20:23], {sx} offen offset:512", 8),
                        (f"buffer_load_dwordx4 v[{R+16}:{R+19}], v14, s[32:35], {sd} offen", 2),
                        (f"buffer_load_dwordx4 v[{R+20}:{R+23}], v14, s[32:35], {sd} offen offset:16", 2)):
            D = Prog()
            D(txt)
            items.append([len(frags) - 6, -1, D.ins, ln])
    items.sort(key=lambda x: x[0])
    seen = set()
    released = [-1]
    region = [0]

    def frag_read(M, n):
        f = frags[n]
        kb = f["kb"]
        if kb not in seen:
            seen.add(kb)
            if kb % BS == 0:
                for k2 in range(kb, min(18, kb + BS)):
                    M.waitvm(("W", k2))
                M("s_barrier")
                released[0] = kb
            if kb in (11, 13, 15, 17) and not ssm:
                M.stamp(3 + (kb - 11) // 2)
        sl = kb % NS
        reg = sl // 2
        if reg != region[0]:
            d = (reg - region[0]) * 2 * STG
            for g in range(4 if ssm else 6):
                M(f"v_add_u32 v{V_RB+g}, {d & 0xffffffff}, v{V_RB+g}")
            region[0] = reg
        b = WF + 4 * (n % NWF)
        off = (sl % 2) * STG
        if not ssm:
            off += f["s"] * 16 * 128
            M(f"ds_read_b64_tr_b16 v[{b}:{b+1}], v{V_RB+f['g']} offset:{off}")
            M(f"ds_read_b64_tr_b16 v[{b+2}:{b+3}], v{V_RB+f['g']} offset:{off+512}")
        else:
            ph = 5 if f["g"] == 0 else (f["g"] + 4) % 5
            M(f"ds_read_b128 v[{b}:{b+3}], v{V_RB+f['s']} offset:{off + ph*4096}")

    for n in range(DIST):
        frag_read(P, n)
    if not ssm and not fused:
        P.stamp(2)
    CR = float(os.environ.get("CR3", "3.4"))
    credit = 0.0
    P0 = P
    P = Prog()
    MINLEAD = int(os.environ.get("K3LEAD", "40"))
    leads = []
    late_ok = [False]
    LATE0 = int(os.environ.get("LATE0", "120")); LATE1 = int(os.environ.get("LATE1", "170"))
    for n, f in enumerate(frags):
        b = WF + 4 * (n % NWF)
        a = ACC + 16 * f["g"]
        ks = f["kb"] * 4 + f["s"]
        c = "0" if ks == 0 else f"v[{a}:{a+15}]"
        P(f"v_mfma_f32_32x32x16_bf16 v[{a}:{a+15}], v[{b}:{b+3}], {hreg(ks)}, {c}")
        if n + DIST < len(frags):
            frag_read(P, n + DIST)
        rem = len(frags) - 1 - n
        if not ssm and rem % (4 * NT) == 0 and 1 <= rem // (4 * NT) <= 5:
            P.stamp(12 - rem // (4 * NT))
        if fused and not ssm and n == LATE0:
            P("v_mov_b32 v254, 0")
            P("buffer_load_dword v253, v254, s[20:23], s77 offen sc0 sc1")
        if fused and not ssm and n == LATE1:
            P("v_readfirstlane_b32 s71, v253")
            P("s_cmp_lt_u32 s71, 8")
            P("s_cbranch_scc1 K3_LSLOW", tag="keepall")
            P("K3_LBACK:", tag="nop")
            late_ok[0] = True
        credit = min(credit + CR, 12.0)
        assert not items or items[0][0] > n + 1, ("load issued too late", n, items[0][0])
        if credit > 0 or (items and items[0][0] - n < MINLEAD):
            for k, it in enumerate(items):
                if (late_ok[0] if it[1] == "late" else it[1] <= released[0]):
                    leads.append(it[0] - n)
                    P.extend(it[2])
                    credit -= it[3]
                    del items[k]
                    break
    assert not items
    if os.environ.get("VERB"):
        print("K3 leads", leads)
    L = P.ins
    nm = len(frags)
    T = 4 * NT
    for g in range(5):
        e = nm - (5 - g) * T
        L = interleave2(L, publish(g), start=e + 1, end=min(e + T, nm) - 1)
    P0.extend(L)
    P0("s_waitcnt vmcnt(0)")


def gen_k3(P2=None):
    fused = P2 is not None
    P = P2 if fused else Prog()
    if fused:
        P("s_barrier")
        P("s_cmp_lt_u32 s2, 240")
        P("s_cbranch_scc1 K3_GOON")
        P("""
        s_waitcnt vmcnt(0)
        v_mov_b32 v10, 0
        v_mov_b32 v11, 1
        s_mov_b64 exec, 1
        buffer_atomic_add v11, v10, s[20:23], s100 offen sc1
        """)
        if os.environ.get("FXO", "early") != "early":
            P("buffer_atomic_add v11, v10, s[20:23], s101 offen sc1")
        P("s_branch K3_END")
        P("K3_GOON:")
    else:
        P("s_cmp_ge_u32 s2, 240")
        P("s_cbranch_scc1 K3_END")
    P.stamp(0, real=True)
    P.stamp(1)
    P("s_load_dwordx4 s[36:39], s[0:1], 96")
    P("s_load_dwordx4 s[40:43], s[0:1], 40")
    P("s_load_dwordx2 s[48:49], s[0:1], 120")
    P("s_load_dwordx2 s[44:45], s[0:1], 0")
    P("s_load_dwordx2 s[46:47], s[0:1], 64")
    if not fused:
        P("""
        v_lshrrev_b32 v2, 6, v0
        v_and_b32 v0, 63, v0
        v_readfirstlane_b32 s53, v2
        """)
    P(f"""
    v_lshlrev_b32 v{V_LANE16}, 4, v0
    s_lshr_b32 s54, s2, 3
    s_and_b32 s55, s2, 7
    s_mov_b32 s79, s53
    """)
    P("""
    s_and_b32 s50, s55, 4
    s_lshl_b32 s50, s50, 1
    s_and_b32 s57, s54, 7
    s_add_u32 s50, s50, s57
    s_and_b32 s51, s55, 3
    s_lshr_b32 s52, s54, 3
    s_lshl_b32 s57, s55, 1
    s_and_b32 s58, s54, 1
    s_add_u32 s57, s57, s58
    s_bfe_u32 s58, s54, 0x20001
    s_cmp_ge_u32 s54, 24
    s_cselect_b32 s50, s57, s50
    s_cselect_b32 s51, 4, s51
    s_cselect_b32 s52, s58, s52
    """)
    P(f"""
    s_lshl_b32 s57, s50, 2
    s_add_u32 s57, s57, s53
    s_mul_i32 s64, s57, 360
    s_mul_i32 s58, s51, 72
    s_add_u32 s64, s64, s58
    s_lshl_b32 s64, s64, 10
    s_add_u32 s64, s64, {WS_HF}
    s_mov_b32 s63, s57
    s_lshr_b32 s29, s57, 1
    s_lshl_b32 s29, s29, 2
    s_add_u32 s29, s29, s51
    s_add_u32 s29, s29, 192
    s_add_u32 s58, s50, 320
    s_cmp_eq_u32 s51, 4
    s_cselect_b32 s29, s58, s29
    s_mul_i32 s29, s29, {CNT_STRIDE}
    s_add_u32 s29, s29, {WS_CNT}
    s_mov_b32 s77, s29
    s_add_u32 s58, s29, {160*CNT_STRIDE}
    s_cmp_eq_u32 s51, 4
    s_cselect_b32 s29, s29, s58
    """)
    P(f"""
    s_mul_i32 s54, s50, 3
    s_add_u32 s54, s54, s52
    s_mul_i32 s65, s54, {6*5*8192}
    s_lshl_b32 s57, s53, 11
    s_add_u32 s65, s65, s57
    s_add_u32 s65, s65, {WS_PART}
    s_lshl_b32 s66, s51, 13
    s_add_u32 s66, s66, s65
    s_add_u32 s24, s66, {5*5*8192}
    s_lshl_b32 s57, s54, 2
    s_add_u32 s57, s57, s53
    s_mul_i32 s69, s57, {CNT_STRIDE}
    s_add_u32 s69, s69, {WS_CNT}
    """)
    for L in range(1, 5):
        P(f"""
        s_add_u32 s57, s51, {L}
        s_cmp_ge_u32 s57, 5
        s_cselect_b32 s58, 5, 0
        s_sub_u32 s57, s57, s58
        s_mul_i32 s57, s57, {5*8192}
        s_add_u32 s{24+L}, s57, s66
        """)
    P("s_waitcnt lgkmcnt(0)")
    srd(P, 20, 48, 49, WS_BYTES)
    srd(P, 16, 38, 39, 2048 * 576 * 4)
    srd(P, 4, 44, 45, 2048 * 1152)
    srd(P, 32, 46, 47, 1152)
    P(f"""
    v_and_b32 v10, 31, v0
    v_lshrrev_b32 v11, 5, v0
    s_lshl_b32 s57, s63, 5
    v_add_u32 v12, s57, v10
    v_mul_u32_u24 v13, 1152, v12
    v_lshl_add_u32 v13, v11, 5, v13
    v_lshlrev_b32 v14, 5, v11
    v_lshlrev_b32 v15, 4, v10
    v_lshl_add_u32 v15, v11, 10, v15
    v_lshlrev_b32 v{V_OUT}, 1, v13
    s_mul_i32 s67, s52, 384
    s_mul_i32 s68, s63, 36864
    s_mul_i32 s57, s52, {12*1024}
    s_add_u32 s68, s68, s57
    s_and_b32 s57, s2, 3
    s_mul_i32 s57, s57, {XNF_BYTES}
    s_add_u32 s68, s68, s57
    s_add_u32 s68, s68, {WS_XNF}
    s_cmp_eq_u32 s51, s53
    s_cselect_b32 s73, 0, 0x40000000
    s_lshl_b32 s30, s51, 6
    s_add_u32 s30, s30, s67
    s_lshl_b32 s31, s51, 11
    s_add_u32 s31, s31, s68
    s_add_u32 s75, s67, {5*64}
    s_add_u32 s75, s75, s73
    s_add_u32 s76, s68, {5*2048}
    s_add_u32 s76, s76, s73
    """)
    P("s_cmp_eq_u32 s51, 4")
    P("s_cbranch_scc1 K3_SSM")
    srd(P, 8, 36, 37, 4608 * 1152)
    P(f"""
    v_lshrrev_b32 v10, 3, v0
    v_bfe_u32 v11, v0, 4, 1
    v_lshlrev_b32 v11, 2, v11
    v_and_b32 v12, 7, v0
    v_xor_b32 v12, v12, v11
    s_lshl_b32 s57, s53, 4
    v_add_u32 v10, s57, v10
    v_mul_u32_u24 v10, 1152, v10
    v_lshl_add_u32 v{V_D}, v12, 4, v10
    s_mul_i32 s56, s51, {1152*1152}
    s_mul_i32 s57, s52, 384
    s_add_u32 s56, s56, s57
    s_lshl_b32 s61, s53, 11
    """)
    P(f"""
    v_lshrrev_b32 v10, 5, v0
    v_lshlrev_b32 v10, 3, v10
    v_bfe_u32 v11, v0, 2, 2
    v_add_u32 v10, v10, v11
    v_lshlrev_b32 v10, 7, v10
    v_bfe_u32 v11, v0, 3, 1
    v_lshl_add_u32 v10, v11, 6, v10
    v_and_b32 v11, 1, v0
    v_lshl_add_u32 v10, v11, 5, v10
    v_bfe_u32 v11, v0, 4, 1
    v_lshl_add_u32 v10, v11, 4, v10
    v_bfe_u32 v11, v0, 1, 1
    v_lshl_add_u32 v10, v11, 3, v10
    v_xor_b32 v{V_RB}, 64, v10
    v_add_u32 v{V_RB}, 16384, v{V_RB}
    """)
    for L in range(1, 6):
        P(f"""
        s_add_u32 s57, s51, {L}
        s_cmp_ge_u32 s57, 5
        s_cselect_b32 s58, 5, 0
        s_sub_u32 s57, s57, s58
        s_and_b32 s58, s57, 1
        s_lshl_b32 s58, s58, 6
        s_lshr_b32 s57, s57, 1
        s_lshl_b32 s57, s57, 13
        v_xor_b32 v{V_RB+L}, s58, v10
        v_add_u32 v{V_RB+L}, s57, v{V_RB+L}
        """)
    main_loop(P, False, fused)
    P("s_branch K3_RED")
    if fused:
        P("K3_LSLOW:")
        P("s_mov_b32 s70, 0")
        P("K3_LSPIN:")
        P("""
        s_sleep 2
        buffer_load_dword v253, v254, s[20:23], s77 offen sc0 sc1
        s_waitcnt vmcnt(0)
        v_readfirstlane_b32 s71, v253
        s_add_u32 s70, s70, 1
        s_cmp_ge_u32 s71, 8
        s_cbranch_scc1 K3_LBACK
        s_cmp_lt_u32 s70, 200000
        s_cbranch_scc1 K3_LSPIN
        s_branch K3_LBACK
        """)
    P("K3_SSM:")
    srd(P, 8, 40, 41, 576 * 1152)
    srd(P, 12, 42, 43, 576 * 1152)
    P(f"""
    v_lshrrev_b32 v10, 3, v0
    v_lshrrev_b32 v11, 1, v10
    v_and_b32 v12, 7, v0
    v_xor_b32 v12, v12, v11
    s_mul_i32 s57, s53, 48
    v_add_u32 v10, s57, v10
    v_mul_u32_u24 v10, 1152, v10
    v_lshl_add_u32 v{V_D}, v12, 4, v10
    v_xor_b32 v{V_D1}, 64, v{V_D}
    s_mul_i32 s56, s52, {192*1152}
    s_mul_i32 s61, s53, 6144
    """)
    P(f"""
    v_and_b32 v10, 31, v0
    v_bfe_u32 v11, v10, 2, 1
    v_lshlrev_b32 v11, 4, v11
    v_lshrrev_b32 v12, 3, v10
    v_lshl_add_u32 v11, v12, 2, v11
    v_and_b32 v12, 3, v10
    v_add_u32 v11, v11, v12
    v_bfe_u32 v12, v11, 1, 3
    v_lshrrev_b32 v10, 5, v0
    v_xor_b32 v12, v12, v10
    v_lshlrev_b32 v12, 4, v12
    v_lshl_add_u32 v{V_RB}, v11, 7, v12
    v_xor_b32 v{V_RB+1}, 32, v{V_RB}
    v_xor_b32 v{V_RB+2}, 64, v{V_RB}
    v_xor_b32 v{V_RB+3}, 96, v{V_RB}
    """)
    main_loop(P, True, fused)
    P("K3_RED:")
    P.stamp(12)
    P(f"""
    s_waitcnt vmcnt(0)
    v_mov_b32 v10, 0
    v_mov_b32 v11, 1
    s_mov_b64 exec, 1
    buffer_atomic_add v11, v10, s[20:23], s69 offen sc1
    s_mov_b32 s70, 0
    s_mov_b64 exec, -1
    """)
    resid_calc(P)
    P("v_mov_b32 v10, 0")
    P("s_mov_b64 exec, 1")
    P.stamp(13)
    P("s_waitcnt lgkmcnt(0)")
    P("K3_POLL:")
    P(f"""
    buffer_load_dword v11, v10, s[20:23], s69 offen sc0 sc1
    s_waitcnt vmcnt(0)
    v_readfirstlane_b32 s71, v11
    s_add_u32 s70, s70, 1
    s_cmp_ge_u32 s71, 5
    s_cbranch_scc1 K3_GO
    s_sleep 1
    s_cmp_lt_u32 s70, 200000
    s_cbranch_scc1 K3_POLL
    """)
    P("K3_GO:")
    P("s_mov_b64 exec, -1")
    P.stamp(14)

    P(f"""
    s_mul_i32 s72, s51, {5*8192}
    s_add_u32 s72, s72, s65
    s_add_u32 s74, s65, {5*5*8192}
    s_add_u32 s74, s74, s73
    """)
    for i in range(1, 5):
        P(f"""
        s_add_u32 s57, s51, {i}
        s_cmp_ge_u32 s57, 5
        s_cselect_b32 s58, 5, 0
        s_sub_u32 s57, s57, s58
        s_lshl_b32 s57, s57, 13
        s_add_u32 s{23+i}, s57, s74
        s_add_u32 s57, s57, s72
        """)
        for q in range(2):
            r = WF + 8 * (i - 1) + 4 * q
            P(f"buffer_load_dwordx4 v[{r}:{r+3}], v{V_LANE16}, s[20:23], s57 offen offset:{1024*q} sc0 sc1")
    for i in range(1, 5):
        for q in range(2):
            r = PB + 40 + 8 * (i - 1) + 4 * q
            P(f"buffer_load_dwordx4 v[{r}:{r+3}], v{V_LANE16}, s[20:23], s{23+i} offen offset:{1024*q} sc0 sc1")
    P(f"""
    s_lshl_b32 s57, s51, 7
    s_lshl_b32 s58, s67, 1
    s_add_u32 s57, s57, s58
    s_add_u32 s58, s58, {5*128}
    s_add_u32 s58, s58, s73
    """)
    for a_, R0, so in ((ACC + 80, WF, "s57"), (ACC, PB + 40, "s58")):
        for i in range(4):
            for k in range(8):
                r = R0 + 8 * i + k
                P(f"""
                v_lshlrev_b32 v10, 16, v{r}
                v_and_b32 v{r}, 0xffff0000, v{r}
                v_add_f32 v{a_+2*k}, v{a_+2*k}, v10
                v_add_f32 v{a_+2*k+1}, v{a_+2*k+1}, v{r}
                """)
        for q in range(4):
            P(f"buffer_store_dwordx4 v[{a_+4*q}:{a_+4*q+3}], v{V_OUT}, s[16:19], {so} offen offset:{16*q}")
    P("K3_FIN:")
    P.stamp(15, real=True)
    P.dump_stamps(9, 20, WS_DBG, 10)
    P("K3_END:")
    P("s_endpgm")
    P("CODE_END:")
    if fused:
        return kernel_text("k2_kernel", P.finalize(), vgpr=256, agpr=256, sgpr=102), 163840
    return kernel_text("k3_kernel", P.finalize(), vgpr=256, agpr=256, sgpr=102), LDS_BYTES
```

```python
import os, math
from asmlib import *
from layout import *
from k1 import code_touch, srd, f2u, bf16r, emit_param_loads, emit_params, emit_pow, LOG2E
from k2 import (SLOT, E_BASE, V_LANE16, V_D4, V_DE, V_R4, V_RE, V_RE2, V_C0, V_T, XV, ACC, WF, NWF, DIST,
                xreg, epilogue, cfma)

T0, T1, A2, REV = 228, 229, 230, 231
SGO, SGD = 232, 233
L1, CO = 234, 236
C8 = 238
ES = 240
Q = 244
V_DU, VAG, VG, TX = 252, 253, 254, 255
V_UB, V_UT = 14, 13
VW, VR = 13, 14


def cmul(E, o, a, b):
    E(f"""
    v_mul_f32 v{o}, v{a}, v{b}
    v_mul_f32 v{o+1}, v{a}, v{b+1}
    v_fma_f32 v{o}, -v{a+1}, v{b+1}, v{o}
    v_fmac_f32 v{o+1}, v{a+1}, v{b}
    """)


def ssm_params(spt):
    L = Prog()
    L(f"""
    v_and_b32 v{TX}, 15, v0
    s_lshl_b32 s77, s{spt}, 4
    v_add_u32 v{TX}, s77, v{TX}
    v_lshlrev_b32 v{TX}, 1, v{TX}
    """)
    emit_param_loads(L, TX, T0, 24, 28, 32)
    C = Prog()
    emit_params(C, T0)
    emit_pow(C, 1, A2, REV, L1, L1 + 1, Q)
    C(f"""
    v_add_f32 v{Q}, -1.0, v{L1}
    v_mul_f32 v{Q+1}, v{T0}, v{T0}
    v_fmac_f32 v{Q+1}, v{T1}, v{T1}
    v_rcp_f32 v{Q+1}, v{Q+1}
    v_mul_f32 v{CO}, v{Q}, v{T0}
    v_add_f32 v{Q+1}, v{Q+1}, v{Q+1}
    v_fmac_f32 v{CO}, v{L1+1}, v{T1}
    v_mul_f32 v{CO+1}, v{L1+1}, v{T0}
    v_fma_f32 v{CO+1}, -v{Q}, v{T1}, v{CO+1}
    v_mul_f32 v{CO}, v{CO}, v{Q+1}
    v_mul_f32 v{CO+1}, v{CO+1}, v{Q+1}
    v_lshrrev_b32 v{VG}, 4, v0
    v_cvt_f32_u32 v{VG}, v{VG}
    """)
    return L.ins, C.ins


def ssm1(U, sagg):
    E = Prog()
    for j in range(2):
        a = U + 16 * j
        for k in range(8):
            E(f"v_permlane16_swap_b32 v{a+k}, v{a+8+k}")
        hp = None
        for k in range(8):
            re_, im_ = a + k, a + 8 + k
            E(f"""
            v_mul_f32 v{T0}, v{CO}, v{re_}
            v_mul_f32 v{T1}, v{CO+1}, v{re_}
            v_fma_f32 v{re_}, -v{CO+1}, v{im_}, v{T0}
            v_fma_f32 v{im_}, v{CO}, v{im_}, v{T1}
            """)
            if k == 0:
                hp = (re_, im_)
            else:
                o = (Q + 4 * j) + 2 * (k & 1)
                cfma(E, o, o + 1, L1, hp[0], hp[1], re_, im_)
                hp = (o, o + 1)
    emit_pow(E, 8, A2, REV, C8, C8 + 1, T0)
    E(f"v_bfe_u32 v{TX}, v0, 4, 1")
    E(f"v_cvt_f32_u32 v{TX}, v{TX}")
    for j in range(2):
        a, b = Q + 4 * j + 2, Q + 4 * j
        E(f"""
        v_mov_b32 v{b}, v{a}
        v_mov_b32 v{b+1}, v{a+1}
        v_permlane16_swap_b32 v{a}, v{b}
        v_permlane16_swap_b32 v{a+1}, v{b+1}
        v_mul_f32 v{ES+2*j}, v{TX}, v{a}
        v_mul_f32 v{ES+2*j+1}, v{TX}, v{a+1}
        """)
        cfma(E, b, b + 1, C8, a, a + 1, b, b + 1)
    E(f"v_mul_f32 v{TX}, {f2u(8.0)}, v{TX}")
    emit_pow(E, f"v{TX}", A2, REV, CO, CO + 1, T0)
    E(f"""
    v_lshrrev_b32 v{TX}, 5, v0
    v_cvt_f32_u32 v{TX}, v{TX}
    v_mul_f32 v{CO}, v{TX}, v{CO}
    v_mul_f32 v{CO+1}, v{TX}, v{CO+1}
    """)
    cmul(E, T0, C8, C8)
    for j in range(2):
        a, b = Q + 4 * j + 2, Q + 4 * j
        E(f"""
        v_mov_b32 v{a}, v{b}
        v_mov_b32 v{a+1}, v{b+1}
        v_permlane32_swap_b32 v{b}, v{a}
        v_permlane32_swap_b32 v{b+1}, v{a+1}
        """)
        cfma(E, ES + 2 * j, ES + 2 * j + 1, CO, b, b + 1, ES + 2 * j, ES + 2 * j + 1)
        cfma(E, a, a + 1, T0, b, b + 1, a, a + 1)
    cmul(E, C8, T0, T0)
    cfma(E, Q + 4, Q + 5, C8, Q + 2, Q + 3, Q + 6, Q + 7)
    E(f"""
    v_mov_b32 v{Q+6}, 1.0
    v_mov_b32 v{Q+7}, 1.0
    v_lshlrev_b32 v{TX}, 4, v0
    v_cmp_gt_u32 vcc, 16, v0
    v_cndmask_b32 v{TX}, 2.0, v{TX}, vcc
    buffer_store_dwordx4 v[{Q+4}:{Q+7}], v{TX}, s[20:23], s{sagg} offen sc0 sc1
    v_mul_f32 v{TX}, {f2u(8.0)}, v{VG}
    """)
    emit_pow(E, f"v{TX}", A2, REV, CO, CO + 1, T0)
    cfma(E, ES + 2, ES + 3, CO, Q + 2, Q + 3, ES + 2, ES + 3)
    return E.ins


def ssm2_loads(R, sagg, swc):
    E = Prog()
    E(f"""
    v_lshrrev_b32 v{T0}, 4, v0
    v_lshlrev_b32 v{T0}, 3, v{T0}
    v_sub_u32 v{T0}, s{swc}, v{T0}
    v_and_b32 v{T1}, 15, v0
    v_lshlrev_b32 v{T1}, 4, v{T1}
    v_lshrrev_b32 v{VAG}, 4, v0
    v_lshlrev_b32 v{VAG}, 11, v{VAG}
    v_sub_u32 v{VAG}, v{T1}, v{VAG}
    v_add_u32 v{VAG}, s{sagg}, v{VAG}
    v_mov_b32 v{T1}, {WS_ZREC}
    """)
    for q in range(8):
        E(f"""
        v_cmp_lt_i32 vcc, {q}, v{T0}
        v_add_u32 v{TX}, {(-256*(q+1)) & 0xffffffff}, v{VAG}
        v_cndmask_b32 v{TX}, v{T1}, v{TX}, vcc
        buffer_load_dwordx4 v[{R+4*q}:{R+4*q+3}], v{TX}, s[20:23], 0 offen sc0 sc1
        """)
    return E.ins


def ssm2(U, R, shf, lab, scr):
    E = Prog()
    E(f"v_min_f32 v{TX}, v{R+2}, v{R+3}")
    for q in range(1, 8):
        E(f"v_min3_f32 v{TX}, v{TX}, v{R+4*q+2}, v{R+4*q+3}")
    E(f"v_cmp_gt_f32 vcc, 0.5, v{TX}")
    E("s_nop 4")
    E(f"s_cbranch_vccnz {lab}_SLOW", tag="keepall")
    E(f"{lab}_BACK:", tag="nop")
    emit_pow(E, 64, A2, REV, C8, C8 + 1, T0)
    for q in range(6, -1, -1):
        cfma(E, R + 4 * q, R + 4 * q + 1, C8, R + 4 * q + 4, R + 4 * q + 5, R + 4 * q, R + 4 * q + 1)
    E(f"v_mul_f32 v{TX}, {f2u(512.0)}, v{VG}")
    emit_pow(E, f"v{TX}", A2, REV, C8, C8 + 1, T0)
    cmul(E, CO, C8, R)
    for pl in ("v_permlane16_swap_b32", "v_permlane32_swap_b32"):
        E(f"""
        v_mov_b32 v{T0}, v{CO}
        v_mov_b32 v{T1}, v{CO+1}
        {pl} v{CO}, v{T0}
        {pl} v{CO+1}, v{T1}
        v_add_f32 v{CO}, v{CO}, v{T0}
        v_add_f32 v{CO+1}, v{CO+1}, v{T1}
        """)
    E(f"""
    s_lshl_b32 s77, s53, 11
    s_add_u32 s77, s77, {scr}
    v_and_b32 v{VW}, 15, v0
    v_lshlrev_b32 v{VW}, 6, v{VW}
    v_bfe_u32 v{T0}, v0, 4, 1
    v_lshl_add_u32 v{VW}, v{T0}, 5, v{VW}
    v_lshrrev_b32 v{T1}, 5, v0
    v_lshl_add_u32 v{VW}, v{T1}, 3, v{VW}
    v_add_u32 v{VW}, s77, v{VW}
    v_lshlrev_b32 v{VR}, 3, v{T1}
    v_bfe_u32 v{T1}, v0, 2, 2
    v_add_u32 v{VR}, v{VR}, v{T1}
    v_lshlrev_b32 v{VR}, 6, v{VR}
    v_lshl_add_u32 v{VR}, v{T0}, 5, v{VR}
    v_and_b32 v{T1}, 3, v0
    v_lshl_add_u32 v{VR}, v{T1}, 3, v{VR}
    v_add_u32 v{VR}, s77, v{VR}
    """)
    for j in range(2):
        b = U + 16 * j
        E(f"v_mov_b32 v{TX}, {f2u(32.0*j)}")
        E(f"v_fmac_f32 v{TX}, {f2u(8.0)}, v{VG}")
        emit_pow(E, f"v{TX}", A2, REV, C8, C8 + 1, T0)
        e = ES + 2 * j
        cfma(E, e, e + 1, C8, CO, CO + 1, e, e + 1)
        pre, pim = e, e + 1
        for k in range(8):
            cfma(E, b + k, b + 8 + k, L1, pre, pim, b + k, b + 8 + k)
            pre, pim = b + k, b + 8 + k
        for k in range(4):
            E(f"v_cvt_pk_bf16_f32 v{b+k}, v{b+2*k}, v{b+2*k+1}")
        for k in range(4):
            E(f"v_cvt_pk_bf16_f32 v{b+8+k}, -v{b+8+2*k}, -v{b+8+2*k+1}")
        E(f"""
        ds_write_b64 v{VW}, v[{b}:{b+1}]
        ds_write_b64 v{VW}, v[{b+2}:{b+3}] offset:16
        ds_write_b64 v{VW}, v[{b+8}:{b+9}] offset:1024
        ds_write_b64 v{VW}, v[{b+10}:{b+11}] offset:1040
        ds_read_b64_tr_b16 v[{b+4}:{b+5}], v{VR}
        ds_read_b64_tr_b16 v[{b+6}:{b+7}], v{VR} offset:256
        ds_read_b64_tr_b16 v[{b+12}:{b+13}], v{VR} offset:1024
        ds_read_b64_tr_b16 v[{b+14}:{b+15}], v{VR} offset:1280
        s_add_u32 s77, s{shf+j}, {36*1024}
        """)
        E(f"""
        buffer_store_dwordx4 v[{b+4}:{b+7}], v{V_LANE16}, s[20:23], s{shf+j} offen sc1
        buffer_store_dwordx4 v[{b+12}:{b+15}], v{V_LANE16}, s[20:23], s77 offen sc1
        """, tag="fx")
    return E.ins


def ssm2_slow(P, R, sagg, swc, lab):
    P(f"{lab}_SLOW:")
    P("s_mov_b32 s78, 0")
    P(f"{lab}_SPIN:")
    P("s_sleep 4")
    P.extend(ssm2_loads(R, sagg, swc))
    P(f"v_min_f32 v{TX}, v{R+2}, v{R+3}")
    for q in range(1, 8):
        P(f"v_min3_f32 v{TX}, v{TX}, v{R+4*q+2}, v{R+4*q+3}")
    P(f"""
    v_cmp_gt_f32 vcc, 0.5, v{TX}
    s_add_u32 s78, s78, 1
    s_nop 4
    s_cbranch_vccz {lab}_BACK
    s_cmp_lt_u32 s78, 100000
    s_cbranch_scc1 {lab}_SPIN
    s_branch {lab}_BACK
    """)


def gen_k2b():
    P = Prog()
    P("s_cmp_ge_u32 s2, 256")
    P("s_cbranch_scc1 K3_END")
    P.stamp(0, real=True)
    P.stamp(1)
    P("s_load_dwordx4 s[36:39], s[0:1], 80")
    P("s_load_dwordx2 s[48:49], s[0:1], 120")
    P("s_load_dwordx4 s[40:43], s[0:1], 8")
    P("s_load_dwordx2 s[46:47], s[0:1], 56")
    P("s_load_dwordx2 s[100:101], s[0:1], 24")
    P("s_load_dwordx2 s[82:83], s[0:1], 32")
    P("""
    v_lshrrev_b32 v2, 6, v0
    v_and_b32 v0, 63, v0
    v_readfirstlane_b32 s53, v2
    s_and_b32 s52, s2, 3
    s_lshr_b32 s50, s2, 5
    s_lshl_b32 s51, s52, 3
    s_add_u32 s50, s50, s51
    s_and_b32 s51, s2, 4
    s_bfe_u32 s54, s2, 0x20003
    s_add_u32 s51, s51, s54
    s_mov_b32 s79, s53
    """)
    P(f"v_lshlrev_b32 v{V_LANE16}, 4, v0")
    P(f"""
    s_lshl_b32 s54, s51, 3
    s_lshl_b32 s55, s53, 1
    s_add_u32 s54, s54, s55
    s_mul_i32 s64, s54, 36864
    s_mul_i32 s55, s52, {XNF_BYTES}
    s_add_u32 s64, s64, s55
    s_add_u32 s65, s64, 36864
    s_lshr_b32 s57, s50, 2
    s_and_b32 s58, s50, 3
    s_mul_i32 s66, s54, {360*1024}
    s_add_u32 s66, s66, {WS_HF}
    s_add_u32 s73, s66, {288*1024}
    s_mul_i32 s55, s57, {36*1024}
    s_add_u32 s66, s66, s55
    s_lshl_b32 s55, s58, 10
    s_add_u32 s68, s66, s55
    s_add_u32 s68, s68, {32*1024}
    s_add_u32 s69, s68, {360*1024}
    s_lshl_b32 s55, s58, 13
    s_add_u32 s66, s66, s55
    s_add_u32 s67, s66, {360*1024}
    s_mul_i32 s56, s57, 1152
    s_lshl_b32 s55, s58, 5
    s_add_u32 s72, s56, s55
    s_add_u32 s72, s72, 1024
    s_lshl_b32 s55, s58, 8
    s_add_u32 s56, s56, s55
    s_mov_b32 s70, {f2u(-2.0*math.sqrt(2.0/math.pi)*LOG2E*0.044715)}
    v_mov_b32 v{V_C0}, {f2u(-2.0*math.sqrt(2.0/math.pi)*LOG2E)}
    """)
    P(f"""
    v_lshrrev_b32 v14, 3, v0
    v_and_b32 v15, 2, v14
    v_bfe_u32 v{V_D4}, v0, 1, 2
    v_xor_b32 v{V_D4}, v{V_D4}, v15
    v_lshlrev_b32 v{V_D4}, 5, v{V_D4}
    v_and_b32 v15, 1, v0
    v_lshl_add_u32 v{V_D4}, v15, 4, v{V_D4}
    s_lshl_b32 s57, s53, 4
    v_add_u32 v14, s57, v14
    v_mul_u32_u24 v14, 9216, v14
    v_add_u32 v{V_D4}, v{V_D4}, v14
    v_xor_b32 v{V_D4+1}, 32, v{V_D4}
    v_lshrrev_b32 v14, 1, v0
    s_lshl_b32 s57, s53, 1
    s_and_b32 s57, s57, 4
    v_xor_b32 v14, s57, v14
    v_mul_u32_u24 v14, 9216, v14
    v_lshl_add_u32 v{V_DE}, v15, 4, v14
    s_lshl_b32 s61, s53, 11
    """)
    P("s_waitcnt lgkmcnt(0)")
    srd(P, 8, 36, 37, 576 * 9216)
    srd(P, 12, 38, 39, 576 * 9216)
    srd(P, 20, 48, 49, WS_BYTES)

    slotA = [0, 1, 2, 3, 4, 0, 1, 2, 3]
    slotB = [5, 6, 7, 8, 4, 0, 1, 2, 3]
    freeB = [None, None, None, None, 4, 5, 6, 7, 8]

    def dma4(grp, kb):
        slot = (slotA if grp == 0 else slotB)[kb] * SLOT
        out = []
        for m in range(2):
            for i in range(2):
                D = Prog()
                D(f"s_add_u32 m0, s61, {slot + m*8192 + i*1024}")
                D(f"s_add_u32 s59, s56, {(kb*64 + i*8)*9216 + grp*128}")
                D(f"buffer_load_dwordx4 v{V_D4+m}, s[{8+4*m}:{11+4*m}], s59 offen lds", tag=("W", grp, kb))
                out.append((D.ins, 8))
        return out

    def dmaU(kb):
        D = Prog()
        D(f"s_add_u32 m0, s60, {(kb % 4)*4096}")
        D(f"s_add_u32 s59, s63, {kb*128}")
        D(f"buffer_load_dwordx4 v{V_DU}, s[44:47], s59 offen lds", tag=("W", 1, kb))
        return [(D.ins, 8)]

    def dmaE(kb):
        D = Prog()
        D(f"s_add_u32 m0, s60, {((9 + kb) % 4)*4096}")
        D(f"s_add_u32 s59, s72, {kb*64*9216}")
        D(f"buffer_load_dwordx4 v{V_DE}, s[16:19], s59 offen lds", tag=("W", 2, kb))
        return [(D.ins, 32)]

    def xloads(kb):
        out = []
        for s in range(4):
            for j in range(2):
                D = Prog()
                D(f"s_add_u32 s62, s{64+j}, {WS_XNF + kb*4096}")
                D(f"buffer_load_dwordx4 {xreg(j, kb*4+s)}, v{V_LANE16}, s[20:23], s62 offen offset:{s*1024}")
                out.append((D.ins, 8))
        return out

    PRE = int(os.environ.get("K2PRE", "2"))
    for kb in range(PRE):
        for ins, _ in dma4(0, kb) + xloads(kb):
            P.extend(ins)
    srd(P, 24, 40, 41, 1152)
    srd(P, 28, 42, 43, 1152)
    srd(P, 32, 46, 47, 1152)
    P(f"""
    s_cmp_lt_u32 s53, 2
    s_cselect_b32 s16, s8, s12
    s_cselect_b32 s17, s9, s13
    s_cselect_b32 s44, s100, s82
    s_cselect_b32 s45, s101, s83
    s_and_b32 s45, s45, 0xffff
    s_mov_b32 s46, {576*1152}
    s_mov_b32 s47, 0x00020000
    s_mov_b32 s18, {576*9216}
    s_mov_b32 s19, 0x00020000
    s_and_b32 s57, s53, 1
    s_mul_i32 s55, s57, {32*9216}
    s_add_u32 s72, s72, s55
    s_lshl_b32 s60, s53, 10
    s_add_u32 s60, s60, {E_BASE}
    s_mul_i32 s63, s50, {16*1152}
    """)
    P(f"""
    v_lshrrev_b32 v14, 3, v0
    v_lshrrev_b32 v15, 4, v0
    s_lshl_b32 s55, s57, 2
    v_add_u32 v15, s55, v15
    v_and_b32 v13, 7, v0
    v_xor_b32 v13, v13, v15
    s_lshl_b32 s55, s57, 3
    v_add_u32 v14, s55, v14
    v_mul_u32_u24 v14, 1152, v14
    v_lshl_add_u32 v{V_DU}, v13, 4, v14
    """)
    P(f"""
    v_and_b32 v14, 1, v0
    v_lshlrev_b32 v14, 4, v14
    v_bfe_u32 v15, v0, 1, 1
    v_lshl_add_u32 v14, v15, 3, v14
    v_lshrrev_b32 v15, 5, v0
    v_lshlrev_b32 v15, 3, v15
    v_bfe_u32 v{WF}, v0, 2, 2
    v_add_u32 v15, v15, v{WF}
    v_bfe_u32 v{WF+1}, v0, 4, 1
    v_and_b32 v{WF}, 2, v{WF}
    v_xor_b32 v{WF}, v{WF}, v{WF+1}
    v_lshl_add_u32 v{V_R4}, v15, 7, v14
    v_lshl_add_u32 v{V_R4}, v{WF+1}, 13, v{V_R4}
    v_lshl_add_u32 v{V_R4}, v{WF}, 5, v{V_R4}
    v_xor_b32 v{V_R4+1}, 32, v{V_R4}
    v_xor_b32 v{V_R4+2}, 64, v{V_R4}
    v_xor_b32 v{V_R4+3}, 96, v{V_R4}
    v_lshl_add_u32 v{V_RE}, v15, 5, v14
    v_lshl_add_u32 v{V_RE}, v{WF+1}, 11, v{V_RE}
    v_lshl_add_u32 v{V_RE}, v{WF+1}, 7, v{V_RE}
    v_add_u32 v{V_RE}, {E_BASE}, v{V_RE}
    v_xor_b32 v{V_RE2}, 128, v{V_RE}
    v_and_b32 v13, 31, v0
    v_bfe_u32 v{WF}, v13, 1, 3
    v_lshrrev_b32 v{WF+1}, 5, v0
    v_xor_b32 v{WF}, v{WF}, v{WF+1}
    v_lshlrev_b32 v{WF}, 4, v{WF}
    v_lshl_add_u32 v{V_UB}, v13, 7, v{WF}
    v_add_u32 v{V_UB}, {E_BASE}, v{V_UB}
    """)
    P(f"""
    s_lshl_b32 s76, s51, 2
    s_add_u32 s76, s76, s53
    s_lshl_b32 s75, s50, 5
    s_add_u32 s75, s75, s76
    s_lshl_b32 s75, s75, 8
    s_add_u32 s75, s75, {WS_AGG}
    s_lshl_b32 s55, s50, 10
    s_add_u32 s40, s73, s55
    s_add_u32 s41, s40, {360*1024}
    s_lshl_b32 s100, s76, 2
    s_add_u32 s100, s100, s52
    s_add_u32 s100, s100, 192
    s_mul_i32 s100, s100, {CNT_STRIDE}
    s_add_u32 s100, s100, {WS_CNT}
    s_add_u32 s83, s100, {160*CNT_STRIDE}
    s_lshr_b32 s101, s76, 1
    s_add_u32 s101, s101, 320
    s_mul_i32 s101, s101, {CNT_STRIDE}
    s_add_u32 s101, s101, {WS_CNT}
    v_cmp_eq_u32 vcc, 0, v0
    v_mov_b32 v{SGD}, 1
    v_cndmask_b32 v{SGO}, 2.0, v0, vcc
    """)
    pl_ld, pl_calc = ssm_params(50)
    phases = [
        [("A", 0, 0), ("A", 1, 1), ("A", 2, 2), ("A", 3, 3)],
        [("U", 0, 4), ("B", 0, 0)],
        [("E", 0, 1), ("B", 1, 2)],
        [("B", 2, 3)],
        [("B", 3, 0)],
    ]
    frags = []
    unit = 0
    for ph, tiles in enumerate(phases):
        for kb in range(9):
            order = [(s_, t) for s_ in range(4) for t in tiles]
            if (ph == 0 and kb == 8) or (ph == 1 and kb == 0):
                order = [(s_, tiles[0]) for s_ in range(4)] + [(s_, t) for s_ in range(4) for t in tiles[1:]]
            for s_, (buf, g, sl) in order:
                frags.append(dict(ph=ph, buf=buf, kb=kb, s=s_, g=g, slot=sl, ks=kb * 4 + s_, unit=unit))
            unit += 1
    bar_units = set(range(0, 27)) | {28}
    items = []
    for kb in range(PRE, 9):
        rel = -1 if kb < 5 else kb - 5 + 2
        for ins, ln in dma4(0, kb):
            items.append([16 * kb - 1, rel, ins, ln])
        for ins, ln in xloads(kb):
            items.append([16 * kb, -1, ins, ln])
    for kb in range(9):
        rel = -1 if freeB[kb] is None else freeB[kb] + 2
        for ins, ln in dma4(1, kb):
            items.append([144 + 8 * kb, rel, ins, ln])
        rel = -1 if kb < 4 else 9 + (kb - 4) + 2
        for ins, ln in dmaU(kb):
            items.append([144 + 8 * kb - 1, rel, ins, ln])
        rel = 9 + (9 + kb - 4) + 2
        for ins, ln in dmaE(kb):
            items.append([216 + 8 * kb - 1, rel, ins, ln])
    items.sort(key=lambda x: x[0])
    released = [-1]
    seen = set()
    region = [0]

    def frag_read(M, n, part):
        f = frags[n]
        u = f["unit"]
        if u not in seen:
            seen.add(u)
            if u in bar_units:
                M.waitvm(("W", min(f["ph"], 2), f["kb"]))
                M("s_barrier")
                released[0] = u
                if u in (3, 6, 9, 12, 15, 18, 21, 24, 28):
                    M.stamp(2 + u // 3)
        b = WF + 4 * (n % NWF)
        if f["buf"] == "U":
            if part == 0:
                if f["s"]:
                    M(f"v_xor_b32 v{V_UT}, {32*f['s']}, v{V_UB}")
                M(f"ds_read_b128 v[{b}:{b+3}], v{V_UT if f['s'] else V_UB} offset:{(f['kb'] % 4)*4096}")
            return
        if f["buf"] == "E":
            off = ((9 + f["kb"]) % 4) * 4096 + f["s"] * 16 * 32
            base = V_RE if part == 0 else V_RE2
        else:
            sl = (slotA if f["buf"] == "A" else slotB)[f["kb"]]
            reg = sl // 3
            if reg != region[0]:
                d = (reg - region[0]) * 3 * SLOT
                for g in range(4):
                    M(f"v_add_u32 v{V_R4+g}, {d & 0xffffffff}, v{V_R4+g}")
                region[0] = reg
            base = V_R4 + f["g"]
            off = (sl % 3) * SLOT + f["s"] * 16 * 128 + part * 512
        M(f"ds_read_b64_tr_b16 v[{b+2*part}:{b+2*part+1}], v{base} offset:{off}")

    for n in range(DIST):
        frag_read(P, n, 0)
        frag_read(P, n, 1)
    P.stamp(2)
    CR0 = float(os.environ.get("CR0", "6.3"))
    CR1 = float(os.environ.get("CR1", "6.6"))
    credit = 0.0
    B = Prog()
    ph_start = {}
    nm_ = 0
    for n, f in enumerate(frags):
        ph_start.setdefault(f["ph"], nm_)
        b = WF + 4 * (n % NWF)
        credit = min(credit + (CR0 if f["ph"] == 0 else CR1), 16.0)
        for j in range(2):
            a = ACC + 32 * f["slot"] + 16 * j
            c = "0" if f["ks"] == 0 else f"v[{a}:{a+15}]"
            if f["buf"] == "U":
                B(f"v_mfma_f32_32x32x16_bf16 v[{a}:{a+15}], {xreg(j, f['ks'])}, v[{b}:{b+3}], {c}")
            else:
                B(f"v_mfma_f32_32x32x16_bf16 v[{a}:{a+15}], v[{b}:{b+3}], {xreg(j, f['ks'])}, {c}")
            nm_ += 1
            if n + DIST < len(frags):
                frag_read(B, n + DIST, j)
            assert not items or items[0][0] > n + DIST + 1, ("load issued too late", n, items[0][0])
            if j == 1 and (credit > 0 or (items and items[0][0] - n < 14)):
                for k, it in enumerate(items):
                    if it[1] <= released[0]:
                        B.extend(it[2])
                        credit -= it[3]
                        del items[k]
                        break
    assert not items, len(items)
    ph_start[5] = nm_
    A_ = lambda t, **k: epilogue(t, 66, 1024 * t, tag="early", **k)
    Bslot = [0, 2, 3, 0]
    B_ = lambda t, **k: epilogue(Bslot[t], 66, 4096 + 1024 * t, **k)
    E_ = lambda **k: epilogue(1, 68, 0, **k)
    U = ACC + 128
    RC = ACC + 32

    def sig(tag, sreg):
        Qp = Prog()
        Qp.waitvm(tag)
        Qp(f"buffer_atomic_add v{SGD}, v{SGO}, s[20:23], s{sreg} offen sc1")
        return Qp.ins

    def spread(body, extra, width, lo=0.0, hi=1.0):
        groups = [extra[i:i + width] for i in range(0, len(extra), width)]
        n = len(body)
        pos = [int(n * (lo + (hi - lo) * (k + 0.5) / len(groups))) for k in range(len(groups))]
        out = []
        for i_, x in enumerate(body):
            while pos and i_ >= pos[0] and not any(y.text.startswith("s_add_u32 s71") for y in out[-3:]):
                out += groups.pop(0)
                pos.pop(0)
            out.append(x)
        for g_ in groups:
            out += g_
        return out

    PFp = Prog()
    PFp("s_load_dwordx2 s[36:37], s[0:1], 96")
    PFp("s_load_dwordx4 s[24:27], s[0:1], 40")
    PFp(f"""
    s_lshl_b32 s42, s2, 2
    s_add_u32 s42, s42, s53
    s_lshl_b32 s42, s42, 10
    s_waitcnt lgkmcnt(0)
    """)
    srd(PFp, 4, 36, 37, 4608 * 1152)
    srd(PFp, 28, 24, 25, 576 * 1152)
    srd(PFp, 32, 26, 27, 576 * 1152)
    pf = []
    for sd, i in [(4, 0), (4, 1), (28, 0), (4, 2), (4, 3), (32, 0), (4, 4), (4, 5)]:
        G = Prog()
        G(f"s_add_u32 s43, s42, {i*1024*1024}")
        I = Ins(f"buffer_store_dword v{V_LANE16}, v{V_LANE16}, s[{sd}:{sd+3}], s43 offen")
        I.text = f"buffer_load_dwordx4 v[{Q}:{Q+3}], v{V_LANE16}, s[{sd}:{sd+3}], s43 offen"
        G.ins.append(I)
        pf += G.ins
    if not int(os.environ.get("PF3B", "1")):
        pf = []
    L = B.ins
    p1, p2, p3, p4, p5 = (ph_start[k] for k in range(1, 6))
    ST = lambda t: A_(t, part="store")
    L = interleave2(L, pl_ld, start=8, end=24)
    L = interleave2(L, pl_calc, start=110, end=p1 - 30)
    L = interleave2(L, A_(0), start=p1 - 23, end=p1 + 7)
    L = interleave2(L, A_(1, part="calc") + A_(2, part="calc") + A_(3, part="calc") + ST(1) + ST(2), start=p1 + 8, end=p2 - 1)
    L = interleave2(L, ssm1(U, 75) + B_(0, part="calc") + ST(3), start=p2 + 1, end=p3 - 1)
    idx = [k for k, i in enumerate(L) if i.kind == "mfma"]
    cut = idx[p3]
    P.extend(L[:cut])
    P.extend(PFp.ins)
    if int(os.environ.get("CPF3", "1")):
        P("s_lshr_b32 s77, s2, 3\ns_lshl_b32 s77, s77, 2\ns_add_u32 s77, s77, s53")
        code_touch(P, "K2_PC", "K3_GOON", "CODE_END", 24, Q + 4, 0, 77, False)
    L = L[cut:]
    n3, n4 = p4 - p3, p5 - p3
    f3 = spread(E_() + B_(0, part="store") + B_(1, part="calc"), pf, 2, 0.0, 0.6) + sig("early", 83) + ssm2_loads(RC, 75, 76) + B_(1, part="store")
    L = interleave2(L, f3, start=1, end=n3 + 8)
    L = interleave2(L, B_(2)[:60] + ssm2(U, RC, 40, "K2S", E_BASE) + B_(2)[60:], start=n3 + 9, end=n4 - 1)
    P.extend(L)
    P.stamp(13)
    P.extend(B_(3))
    P.stamp(14)
    P.stamp(15, real=True)
    P.dump_stamps(9, 20, WS_DBG + 0x10000, 14)
    P("s_mov_b64 exec, -1")
    return P


def tail_job(P):
    P("s_load_dwordx4 s[40:43], s[0:1], 8")
    P("s_load_dwordx2 s[36:37], s[0:1], 56")
    P(f"""
    s_lshr_b32 s50, s2, 5
    s_lshl_b32 s50, s50, 1
    s_add_u32 s50, s50, 20
    s_add_u32 s54, s50, 1
    s_mul_i32 s63, s50, {16*1152}
    s_lshl_b32 s60, s53, 10
    """)
    for u in range(2):
        for kb in range(9):
            P(f"s_add_u32 m0, s60, {(u*9 + kb)*4096}")
            P(f"s_add_u32 s59, s63, {u*16*1152 + kb*128}")
            P(f"buffer_load_dwordx4 v{V_DU}, s[44:47], s59 offen lds")
    P("s_waitcnt lgkmcnt(0)")
    srd(P, 24, 40, 41, 1152)
    srd(P, 28, 42, 43, 1152)
    srd(P, 32, 36, 37, 1152)
    P(f"""
    v_and_b32 v13, 31, v0
    v_bfe_u32 v5, v13, 1, 3
    v_lshrrev_b32 v6, 5, v0
    v_xor_b32 v5, v5, v6
    v_lshlrev_b32 v5, 4, v5
    v_lshl_add_u32 v5, v13, 7, v5
    v_xor_b32 v6, 32, v5
    v_xor_b32 v7, 64, v5
    v_xor_b32 v8, 96, v5
    v_add_u32 v9, {9*4096}, v5
    v_add_u32 v10, {9*4096}, v6
    v_add_u32 v11, {9*4096}, v7
    v_add_u32 v12, {9*4096}, v8
    s_lshl_b32 s75, s50, 5
    s_add_u32 s75, s75, s76
    s_lshl_b32 s75, s75, 8
    s_add_u32 s75, s75, {WS_AGG}
    s_add_u32 s74, s75, {32*256}
    s_lshl_b32 s55, s50, 10
    s_add_u32 s40, s73, s55
    s_add_u32 s41, s40, {360*1024}
    s_add_u32 s42, s40, 1024
    s_add_u32 s43, s41, 1024
    s_add_u32 s101, s101, {16*CNT_STRIDE}
    """)
    ld0, ca0 = ssm_params(50)
    ld1, ca1 = ssm_params(54)
    P.extend(ld0)
    P("s_waitcnt vmcnt(0)")
    P("s_barrier")
    M = Prog()
    fr = [(u, ks) for ks in range(36) for u in range(2)]
    FB = ACC + 96
    def rd(n):
        u, ks = fr[n]
        b = FB + 4 * (n % 8)
        M(f"ds_read_b128 v[{b}:{b+3}], v{5 + 4*u + (ks & 3)} offset:{(ks >> 2)*4096}")
    for n in range(6):
        rd(n)
    for n, (u, ks) in enumerate(fr):
        b = FB + 4 * (n % 8)
        for j in range(2):
            a = ACC + 32 * u + 16 * j
            c = "0" if ks == 0 else f"v[{a}:{a+15}]"
            M(f"v_mfma_f32_32x32x16_bf16 v[{a}:{a+15}], {xreg(j, ks)}, v[{b}:{b+3}], {c}")
            if j == 0 and n + 6 < len(fr):
                rd(n + 6)
    P.extend(interleave2(M.ins, ca0, start=4, end=60))
    SV = ACC + 128
    keep = [A2, REV, L1, L1 + 1, ES, ES + 1, ES + 2, ES + 3]
    P.extend(ssm1(ACC, 75))
    for k, r in enumerate(keep):
        P(f"v_mov_b32 v{SV+k}, v{r}")
    P.extend(ld1)
    P.extend(ca1)
    P.extend(ssm1(ACC + 32, 74))
    P("s_barrier")
    RC = ACC + 64
    for k, r in enumerate(keep):
        P(f"v_mov_b32 v{SV+8+k}, v{r}")
        P(f"v_mov_b32 v{r}, v{SV+k}")
    P.extend(ssm2_loads(RC, 75, 76))
    P.extend(ssm2(ACC, RC, 40, "K2T0", 0))
    for k, r in enumerate(keep):
        P(f"v_mov_b32 v{r}, v{SV+8+k}")
    P.extend(ssm2_loads(RC, 74, 76))
    P.extend(ssm2(ACC + 32, RC, 42, "K2T1", 0))
    P(f"""
    s_waitcnt vmcnt(0)
    v_mov_b32 v{SGD}, 2
    buffer_atomic_add v{SGD}, v{SGO}, s[20:23], s101 offen sc1
    s_branch K3_END
    """)
    ssm2_slow(P, RC, 75, 76, "K2T0")
    ssm2_slow(P, RC, 74, 76, "K2T1")
    ssm2_slow(P, ACC + 32, 75, 76, "K2S")
```

```python
import os, math
from asmlib import *
from layout import *
from k1 import srd, f2u

STG = 24576
NS = 6
LDS_BYTES = NS * STG

V_LANE16 = 1
V_D = 2
V_D1 = 3
V_RB = 4
V_T = 10
V_OUT = 255
RR0 = 216
RR1 = 16
HV = 16
ACC = 48
WF = 144
NWF = 8
DIST = int(os.environ.get('K3DIST', '6'))
PB = 176


def hreg(ks):
    if ks >= 8:
        return f"a[{4*(ks-8)}:{4*(ks-8)+3}]"
    return f"v[{HV+4*ks}:{HV+4*ks+3}]"


SC = os.environ.get("PSC", " sc0 sc1")


def publish(g):
    E = Prog()
    a = ACC + 16 * g
    for k in range(8):
        E(f"v_cvt_pk_bf16_f32 v{PB+8*g+k}, v{a+2*k}, v{a+2*k+1}")
        if k % 4 == 3:
            r = PB + 8 * g + k - 3
            E(f"buffer_store_dwordx4 v[{r}:{r+3}], v{V_LANE16}, s[20:23], s{24+g} offen offset:{1024*(k//4)}{SC}")
    return E.ins


def resid_calc(P):
    for R, a in ((RR0, ACC + 80), (RR1, ACC)):
        for k in range(8):
            x, xn, dd = R + k, R + 8 + k, R + 16 + k
            P(f"""
            v_lshlrev_b32 v10, 16, v{xn}
            v_and_b32 v{xn}, 0xffff0000, v{xn}
            v_lshlrev_b32 v11, 16, v{dd}
            v_and_b32 v{dd}, 0xffff0000, v{dd}
            v_mul_f32 v10, v10, v11
            v_mul_f32 v{xn}, v{xn}, v{dd}
            v_cvt_pk_bf16_f32 v{xn}, v10, v{xn}
            v_lshlrev_b32 v10, 16, v{xn}
            v_and_b32 v{xn}, 0xffff0000, v{xn}
            v_lshlrev_b32 v11, 16, v{x}
            v_and_b32 v{x}, 0xffff0000, v{x}
            v_add_f32 v10, v10, v11
            v_add_f32 v{xn}, v{xn}, v{x}
            v_add_f32 v{a+2*k}, v{a+2*k}, v10
            v_add_f32 v{a+2*k+1}, v{a+2*k+1}, v{xn}
            """)


def main_loop(P, ssm, fused=False, pa=False):
    if fused and not ssm:
        KORD = [0, 2, 4, 6, 9, 11, 13, 15, 8, 17, 1, 3, 5, 7, 10, 12, 14, 16]
    elif pa:
        KORD = [0, 1, 2, 3, 4, 5, 6, 7, 9, 10, 11, 12, 13, 14, 15, 16, 8, 17]
    else:
        KORD = list(range(18))
    LATEKB = (16 if ssm else 8) if pa else (99 if ssm else 10)
    has_late = fused and LATEKB < 18

    def dma(kb):
        slot = (kb % NS) * STG
        out = []
        for i in range(6):
            D = Prog()
            if not ssm:
                D(f"s_add_u32 m0, s61, {slot + (i >> 1)*8192 + (i & 1)*1024}")
                D(f"s_add_u32 s59, s56, {(KORD[kb]*64 + (i & 1)*8)*1152 + (i >> 1)*128}")
                D(f"buffer_load_dwordx4 v{V_D}, s[8:11], s59 offen lds", tag=("W", kb))
            else:
                srdn = 8 if KORD[kb] < 9 else 12
                D(f"s_add_u32 m0, s61, {slot + i*1024}")
                D(f"s_add_u32 s59, s56, {i*8*1152 + (KORD[kb] % 9)*128}")
                D(f"buffer_load_dwordx4 v{V_D + (i & 1)}, s[{srdn}:{srdn+3}], s59 offen lds", tag=("W", kb))
            out.append((D.ins, 8))
        return out

    def hloads(kb):
        out = []
        for s in range(4):
            D = Prog()
            D(f"s_add_u32 s62, s64, {KORD[kb]*4096}")
            D(f"buffer_load_dwordx4 {hreg(kb*4+s)}, v{V_LANE16}, s[20:23], s62 offen offset:{s*1024}" + (" sc1" if fused else ""))
            out.append((D.ins, 8))
        return out

    PRE = int(os.environ.get("K3PRE", "2"))
    PREW = PRE
    if not fused:
        for kb in range(PRE):
            for ins, _ in dma(kb) + hloads(kb):
                P.extend(ins)
    else:
        PREW = int(os.environ.get("K3PREW", "4"))
        for kb in range(PREW):
            for ins, _ in dma(kb):
                P.extend(ins)
        tagn = "S" if ssm else "F"
        P(f"""
        s_waitcnt vmcnt({6*PREW})
        v_mov_b32 v10, 0
        v_mov_b32 v11, 1
        s_mov_b64 exec, 1
        buffer_atomic_add v11, v10, s[20:23], s100 offen sc1
        s_mov_b32 s70, 0
        """)
        if pa or os.environ.get("FXO", "early") != "early":
            P("buffer_atomic_add v11, v10, s[20:23], s101 offen sc1")
        if not ssm:
            P.stamp(2)
        P(f"K3_HP{tagn}:")
        P(f"""
        buffer_load_dword v11, v10, s[20:23], s29 offen sc0 sc1
        s_waitcnt vmcnt(0)
        v_readfirstlane_b32 s71, v11
        s_add_u32 s70, s70, 1
        s_cmp_ge_u32 s71, {(64 if pa else 36) if ssm else 8}
        s_cbranch_scc1 K3_HG{tagn}
        s_sleep 2
        s_cmp_lt_u32 s70, 200000
        s_cbranch_scc1 K3_HP{tagn}
        """)
        P(f"K3_HG{tagn}:")
        P("s_mov_b64 exec, -1")
        for kb in range(PRE):
            for ins, _ in hloads(kb):
                P.extend(ins)
    NT = int(os.environ.get("K3NT", "1"))
    frags = [dict(kb=kb, s=s, g=g) for kb in range(18 - NT) for s in range(4) for g in range(6)]
    frags += [dict(kb=kb, s=s, g=g) for g in range(6) for kb in range(18 - NT, 18) for s in range(4)]
    items = []
    BS = int(os.environ.get("K3BS", "1"))
    LAG = int(os.environ.get("K3LAG", "2"))
    for kb in range(PRE, 18):
        rel = -1 if kb < NS else kb - NS + LAG
        first = min(n for n, f in enumerate(frags) if f["kb"] == kb)
        firstw = min(n for n, f in enumerate(frags) if f["kb"] == kb - kb % BS)
        for ins, ln in (dma(kb) if kb >= PREW else []):
            items.append([firstw - DIST - 1, rel, ins, ln])
        for ins, ln in hloads(kb):
            items.append([first, ("late" if (has_late and kb >= LATEKB) else -1), ins, ln])
    for R, sd, sx in ((RR0, "s30", "s31"), (RR1, "s75", "s76")):
        for txt, ln in ((f"buffer_load_dwordx4 v[{R}:{R+3}], v13, s[4:7], {sd} offen", 32),
                        (f"buffer_load_dwordx4 v[{R+4}:{R+7}], v13, s[4:7], {sd} offen offset:16", 8),
                        (f"buffer_load_dwordx4 v[{R+8}:{R+11}], v15, s[20:23], {sx} offen", 8),
                        (f"buffer_load_dwordx4 v[{R+12}:{R+15}], v15, s[20:23], {sx} offen offset:512", 8),
                        (f"buffer_load_dwordx4 v[{R+16}:{R+19}], v14, s[32:35], {sd} offen", 2),
                        (f"buffer_load_dwordx4 v[{R+20}:{R+23}], v14, s[32:35], {sd} offen offset:16", 2)):
            D = Prog()
            D(txt)
            items.append([len(frags) - 6, -1, D.ins, ln])
    items.sort(key=lambda x: x[0])
    seen = set()
    released = [-1]
    region = [0]

    def frag_read(M, n):
        f = frags[n]
        kb = f["kb"]
        if kb not in seen:
            seen.add(kb)
            if kb % BS == 0:
                for k2 in range(kb, min(18, kb + BS)):
                    M.waitvm(("W", k2))
                M("s_barrier")
                released[0] = kb
            if kb in (11, 13, 15, 17) and not ssm:
                M.stamp(3 + (kb - 11) // 2)
        sl = kb % NS
        reg = sl // 2
        if reg != region[0]:
            d = (reg - region[0]) * 2 * STG
            for g in range(4 if ssm else 6):
                M(f"v_add_u32 v{V_RB+g}, {d & 0xffffffff}, v{V_RB+g}")
            region[0] = reg
        b = WF + 4 * (n % NWF)
        off = (sl % 2) * STG
        if not ssm:
            off += f["s"] * 16 * 128
            M(f"ds_read_b64_tr_b16 v[{b}:{b+1}], v{V_RB+f['g']} offset:{off}")
            M(f"ds_read_b64_tr_b16 v[{b+2}:{b+3}], v{V_RB+f['g']} offset:{off+512}")
        else:
            ph = 5 if f["g"] == 0 else (f["g"] + 4) % 5
            M(f"ds_read_b128 v[{b}:{b+3}], v{V_RB+f['s']} offset:{off + ph*4096}")

    for n in range(DIST):
        frag_read(P, n)
    if not ssm and not fused:
        P.stamp(2)
    CR = float(os.environ.get("CR3", "3.4"))
    credit = 0.0
    P0 = P
    P = Prog()
    MINLEAD = int(os.environ.get("K3LEAD", "40"))
    leads = []
    late_ok = [False]
    LATE1 = 24 * LATEKB - int(os.environ.get("LATED", "60")); LATE0 = LATE1 - 45
    for n, f in enumerate(frags):
        b = WF + 4 * (n % NWF)
        a = ACC + 16 * f["g"]
        ks = f["kb"] * 4 + f["s"]
        c = "0" if ks == 0 else f"v[{a}:{a+15}]"
        P(f"v_mfma_f32_32x32x16_bf16 v[{a}:{a+15}], v[{b}:{b+3}], {hreg(ks)}, {c}")
        if n + DIST < len(frags):
            frag_read(P, n + DIST)
        rem = len(frags) - 1 - n
        if not ssm and rem % (4 * NT) == 0 and 1 <= rem // (4 * NT) <= 5:
            P.stamp(12 - rem // (4 * NT))
        tg = "S" if ssm else "F"
        if has_late and n == LATE0:
            P("v_mov_b32 v254, 0")
            P("buffer_load_dword v253, v254, s[20:23], s77 offen sc0 sc1")
        if has_late and n == LATE1:
            P("v_readfirstlane_b32 s71, v253")
            P("s_cmp_lt_u32 s71, 8")
            P(f"s_cbranch_scc1 K3_LSLOW{tg}", tag="keepall")
            P(f"K3_LBACK{tg}:", tag="nop")
            late_ok[0] = True
        credit = min(credit + CR, 12.0)
        assert not items or items[0][0] > n + 1, ("load issued too late", n, items[0][0])
        if credit > 0 or (items and items[0][0] - n < MINLEAD):
            for k, it in enumerate(items):
                if (late_ok[0] if it[1] == "late" else it[1] <= released[0]):
                    leads.append(it[0] - n)
                    P.extend(it[2])
                    credit -= it[3]
                    del items[k]
                    break
    assert not items
    if os.environ.get("VERB"):
        print("K3 leads", leads)
    L = P.ins
    nm = len(frags)
    T = 4 * NT
    for g in range(5):
        e = nm - (5 - g) * T
        L = interleave2(L, publish(g), start=e + 1, end=min(e + T, nm) - 1)
    P0.extend(L)
    P0("s_waitcnt vmcnt(0)")


def gen_k3(P2=None, pa=False):
    fused = P2 is not None
    P = P2 if fused else Prog()
    if fused:
        P("s_barrier")
        if pa:
            P("""
            s_lshr_b32 s57, s2, 3
            s_and_b32 s58, s57, 27
            s_sub_u32 s58, s58, s52
            s_cmp_lg_u32 s58, 24
            """)
        else:
            P("s_cmp_lt_u32 s2, 240")
        P("s_cbranch_scc1 K3_GOON")
        P("""
        s_waitcnt vmcnt(0)
        v_mov_b32 v10, 0
        v_mov_b32 v11, 1
        s_mov_b64 exec, 1
        buffer_atomic_add v11, v10, s[20:23], s100 offen sc1
        """)
        if pa or os.environ.get("FXO", "early") != "early":
            P("buffer_atomic_add v11, v10, s[20:23], s101 offen sc1")
        if pa:
            from k2b import tail_job
            P("s_mov_b64 exec, -1")
            tail_job(P)
        else:
            P("s_branch K3_END")
        P("K3_GOON:")
    else:
        P("s_cmp_ge_u32 s2, 240")
        P("s_cbranch_scc1 K3_END")
    P.stamp(0, real=True)
    P.stamp(1)
    P("s_load_dwordx4 s[36:39], s[0:1], 96")
    P("s_load_dwordx4 s[40:43], s[0:1], 40")
    P("s_load_dwordx2 s[48:49], s[0:1], 120")
    P("s_load_dwordx2 s[44:45], s[0:1], 0")
    P("s_load_dwordx2 s[46:47], s[0:1], 64")
    if not fused:
        P("""
        v_lshrrev_b32 v2, 6, v0
        v_and_b32 v0, 63, v0
        v_readfirstlane_b32 s53, v2
        """)
    P(f"""
    v_lshlrev_b32 v{V_LANE16}, 4, v0
    s_lshr_b32 s54, s2, 3
    s_and_b32 s55, s2, 7
    s_mov_b32 s79, s53
    """)
    if pa:
        P("""
        s_and_b32 s57, s2, 3
        s_add_u32 s57, s57, 28
        s_cmp_gt_u32 s54, s57
        s_cselect_b32 s58, 1, 0
        s_sub_u32 s57, s57, 4
        s_cmp_gt_u32 s54, s57
        s_subb_u32 s54, s54, s58
        """)
    P("""
    s_and_b32 s50, s55, 4
    s_lshl_b32 s50, s50, 1
    s_and_b32 s57, s54, 7
    s_add_u32 s50, s50, s57
    s_and_b32 s51, s55, 3
    s_lshr_b32 s52, s54, 3
    s_lshl_b32 s57, s55, 1
    s_and_b32 s58, s54, 1
    s_add_u32 s57, s57, s58
    s_bfe_u32 s58, s54, 0x20001
    s_cmp_ge_u32 s54, 24
    s_cselect_b32 s50, s57, s50
    s_cselect_b32 s51, 4, s51
    s_cselect_b32 s52, s58, s52
    """)
    P(f"""
    s_lshl_b32 s57, s50, 2
    s_add_u32 s57, s57, s53
    s_mul_i32 s64, s57, 360
    s_mul_i32 s58, s51, 72
    s_add_u32 s64, s64, s58
    s_lshl_b32 s64, s64, 10
    s_add_u32 s64, s64, {WS_HF}
    s_mov_b32 s63, s57
    s_lshr_b32 s29, s57, 1
    s_lshl_b32 s29, s29, 2
    s_add_u32 s29, s29, s51
    s_add_u32 s29, s29, 192
    s_add_u32 s58, s50, 320
    s_cmp_eq_u32 s51, 4
    s_cselect_b32 s29, s58, s29
    s_mul_i32 s29, s29, {CNT_STRIDE}
    s_add_u32 s29, s29, {WS_CNT}
    s_add_u32 s77, s29, {16*CNT_STRIDE}
    s_add_u32 s58, s29, {160*CNT_STRIDE}
    s_cmp_eq_u32 s51, 4
    s_cselect_b32 s77, s77, s29
    s_cselect_b32 s29, s29, s58
    """)
    P(f"""
    s_mul_i32 s54, s50, 3
    s_add_u32 s54, s54, s52
    s_mul_i32 s65, s54, {6*5*8192}
    s_lshl_b32 s57, s53, 11
    s_add_u32 s65, s65, s57
    s_add_u32 s65, s65, {WS_PART}
    s_lshl_b32 s66, s51, 13
    s_add_u32 s66, s66, s65
    s_add_u32 s24, s66, {5*5*8192}
    s_lshl_b32 s57, s54, 2
    s_add_u32 s57, s57, s53
    s_mul_i32 s69, s57, {CNT_STRIDE}
    s_add_u32 s69, s69, {WS_CNT}
    """)
    for L in range(1, 5):
        P(f"""
        s_add_u32 s57, s51, {L}
        s_cmp_ge_u32 s57, 5
        s_cselect_b32 s58, 5, 0
        s_sub_u32 s57, s57, s58
        s_mul_i32 s57, s57, {5*8192}
        s_add_u32 s{24+L}, s57, s66
        """)
    P("s_waitcnt lgkmcnt(0)")
    srd(P, 20, 48, 49, WS_BYTES)
    srd(P, 16, 38, 39, 2048 * 576 * 4)
    srd(P, 4, 44, 45, 2048 * 1152)
    srd(P, 32, 46, 47, 1152)
    P(f"""
    v_and_b32 v10, 31, v0
    v_lshrrev_b32 v11, 5, v0
    s_lshl_b32 s57, s63, 5
    """)
    if pa:
        P("""
        v_bfe_u32 v12, v10, 2, 1
        v_lshlrev_b32 v12, 4, v12
        v_lshrrev_b32 v13, 3, v10
        v_lshl_add_u32 v12, v13, 2, v12
        v_and_b32 v13, 3, v10
        v_add_u32 v12, v12, v13
        v_add_u32 v12, s57, v12
        """)
    else:
        P("v_add_u32 v12, s57, v10")
    P(f"""
    v_mul_u32_u24 v13, 1152, v12
    v_lshl_add_u32 v13, v11, 5, v13
    v_lshlrev_b32 v14, 5, v11
    v_lshlrev_b32 v15, 4, v10
    v_lshl_add_u32 v15, v11, 10, v15
    v_lshlrev_b32 v{V_OUT}, 1, v13
    s_mul_i32 s67, s52, 384
    s_mul_i32 s68, s63, 36864
    s_mul_i32 s57, s52, {12*1024}
    s_add_u32 s68, s68, s57
    s_and_b32 s57, s2, 3
    s_mul_i32 s57, s57, {XNF_BYTES}
    s_add_u32 s68, s68, s57
    s_add_u32 s68, s68, {WS_XNF}
    s_cmp_eq_u32 s51, s53
    s_cselect_b32 s73, 0, 0x40000000
    s_lshl_b32 s30, s51, 6
    s_add_u32 s30, s30, s67
    s_lshl_b32 s31, s51, 11
    s_add_u32 s31, s31, s68
    s_add_u32 s75, s67, {5*64}
    s_add_u32 s75, s75, s73
    s_add_u32 s76, s68, {5*2048}
    s_add_u32 s76, s76, s73
    """)
    P("s_cmp_eq_u32 s51, 4")
    P("s_cbranch_scc1 K3_SSM")
    srd(P, 8, 36, 37, 4608 * 1152)
    P(f"""
    v_lshrrev_b32 v10, 3, v0
    v_bfe_u32 v11, v0, 4, 1
    v_lshlrev_b32 v11, 2, v11
    v_and_b32 v12, 7, v0
    v_xor_b32 v12, v12, v11
    s_lshl_b32 s57, s53, 4
    v_add_u32 v10, s57, v10
    v_mul_u32_u24 v10, 1152, v10
    v_lshl_add_u32 v{V_D}, v12, 4, v10
    s_mul_i32 s56, s51, {1152*1152}
    s_mul_i32 s57, s52, 384
    s_add_u32 s56, s56, s57
    s_lshl_b32 s61, s53, 11
    """)
    P(f"""
    v_lshrrev_b32 v10, 5, v0
    v_lshlrev_b32 v10, 3, v10
    v_bfe_u32 v11, v0, 2, 2
    v_add_u32 v10, v10, v11
    v_lshlrev_b32 v10, 7, v10
    v_bfe_u32 v11, v0, 3, 1
    v_lshl_add_u32 v10, v11, 6, v10
    v_and_b32 v11, 1, v0
    v_lshl_add_u32 v10, v11, 5, v10
    v_bfe_u32 v11, v0, 4, 1
    v_lshl_add_u32 v10, v11, 4, v10
    v_bfe_u32 v11, v0, 1, 1
    v_lshl_add_u32 v10, v11, 3, v10
    v_xor_b32 v{V_RB}, 64, v10
    v_add_u32 v{V_RB}, 16384, v{V_RB}
    """)
    for L in range(1, 6):
        P(f"""
        s_add_u32 s57, s51, {L}
        s_cmp_ge_u32 s57, 5
        s_cselect_b32 s58, 5, 0
        s_sub_u32 s57, s57, s58
        s_and_b32 s58, s57, 1
        s_lshl_b32 s58, s58, 6
        s_lshr_b32 s57, s57, 1
        s_lshl_b32 s57, s57, 13
        v_xor_b32 v{V_RB+L}, s58, v10
        v_add_u32 v{V_RB+L}, s57, v{V_RB+L}
        """)
    main_loop(P, False, fused, pa)
    P("s_branch K3_RED")
    def lslow(tg):
        P(f"K3_LSLOW{tg}:")
        P("s_mov_b32 s70, 0")
        P(f"K3_LSPIN{tg}:")
        P(f"""
        s_sleep 2
        buffer_load_dword v253, v254, s[20:23], s77 offen sc0 sc1
        s_waitcnt vmcnt(0)
        v_readfirstlane_b32 s71, v253
        s_add_u32 s70, s70, 1
        s_cmp_ge_u32 s71, 8
        s_cbranch_scc1 K3_LBACK{tg}
        s_cmp_lt_u32 s70, 200000
        s_cbranch_scc1 K3_LSPIN{tg}
        s_branch K3_LBACK{tg}
        """)
    if fused:
        lslow("F")
    if pa:
        lslow("S")
    P("K3_SSM:")
    srd(P, 8, 40, 41, 576 * 1152)
    srd(P, 12, 42, 43, 576 * 1152)
    P(f"""
    v_lshrrev_b32 v10, 3, v0
    v_lshrrev_b32 v11, 1, v10
    v_and_b32 v12, 7, v0
    v_xor_b32 v12, v12, v11
    s_mul_i32 s57, s53, 48
    v_add_u32 v10, s57, v10
    v_mul_u32_u24 v10, 1152, v10
    v_lshl_add_u32 v{V_D}, v12, 4, v10
    v_xor_b32 v{V_D1}, 64, v{V_D}
    s_mul_i32 s56, s52, {192*1152}
    s_mul_i32 s61, s53, 6144
    """)
    P(f"""
    v_and_b32 v10, 31, v0
    v_bfe_u32 v11, v10, 2, 1
    v_lshlrev_b32 v11, 4, v11
    v_lshrrev_b32 v12, 3, v10
    v_lshl_add_u32 v11, v12, 2, v11
    v_and_b32 v12, 3, v10
    v_add_u32 v11, v11, v12
    v_bfe_u32 v12, v11, 1, 3
    v_lshrrev_b32 v10, 5, v0
    v_xor_b32 v12, v12, v10
    v_lshlrev_b32 v12, 4, v12
    v_lshl_add_u32 v{V_RB}, v11, 7, v12
    v_xor_b32 v{V_RB+1}, 32, v{V_RB}
    v_xor_b32 v{V_RB+2}, 64, v{V_RB}
    v_xor_b32 v{V_RB+3}, 96, v{V_RB}
    """)
    main_loop(P, True, fused, pa)
    P("K3_RED:")
    P.stamp(12)
    P(f"""
    s_waitcnt vmcnt(0)
    v_mov_b32 v10, 0
    v_mov_b32 v11, 1
    s_mov_b64 exec, 1
    buffer_atomic_add v11, v10, s[20:23], s69 offen sc1
    s_mov_b32 s70, 0
    s_mov_b64 exec, -1
    """)
    resid_calc(P)
    P("v_mov_b32 v10, 0")
    P("s_mov_b64 exec, 1")
    P.stamp(13)
    P("s_waitcnt lgkmcnt(0)")
    P("K3_POLL:")
    P(f"""
    buffer_load_dword v11, v10, s[20:23], s69 offen sc0 sc1
    s_waitcnt vmcnt(0)
    v_readfirstlane_b32 s71, v11
    s_add_u32 s70, s70, 1
    s_cmp_ge_u32 s71, 5
    s_cbranch_scc1 K3_GO
    s_sleep 1
    s_cmp_lt_u32 s70, 200000
    s_cbranch_scc1 K3_POLL
    """)
    P("K3_GO:")
    P("s_mov_b64 exec, -1")
    P.stamp(14)

    P(f"""
    s_mul_i32 s72, s51, {5*8192}
    s_add_u32 s72, s72, s65
    s_add_u32 s74, s65, {5*5*8192}
    s_add_u32 s74, s74, s73
    """)
    for i in range(1, 5):
        P(f"""
        s_add_u32 s57, s51, {i}
        s_cmp_ge_u32 s57, 5
        s_cselect_b32 s58, 5, 0
        s_sub_u32 s57, s57, s58
        s_lshl_b32 s57, s57, 13
        s_add_u32 s{23+i}, s57, s74
        s_add_u32 s57, s57, s72
        """)
        for q in range(2):
            r = WF + 8 * (i - 1) + 4 * q
            P(f"buffer_load_dwordx4 v[{r}:{r+3}], v{V_LANE16}, s[20:23], s57 offen offset:{1024*q} sc0 sc1")
    for i in range(1, 5):
        for q in range(2):
            r = PB + 40 + 8 * (i - 1) + 4 * q
            P(f"buffer_load_dwordx4 v[{r}:{r+3}], v{V_LANE16}, s[20:23], s{23+i} offen offset:{1024*q} sc0 sc1")
    P(f"""
    s_lshl_b32 s57, s51, 7
    s_lshl_b32 s58, s67, 1
    s_add_u32 s57, s57, s58
    s_add_u32 s58, s58, {5*128}
    s_add_u32 s58, s58, s73
    """)
    for a_, R0, so in ((ACC + 80, WF, "s57"), (ACC, PB + 40, "s58")):
        for i in range(4):
            for k in range(8):
                r = R0 + 8 * i + k
                P(f"""
                v_lshlrev_b32 v10, 16, v{r}
                v_and_b32 v{r}, 0xffff0000, v{r}
                v_add_f32 v{a_+2*k}, v{a_+2*k}, v10
                v_add_f32 v{a_+2*k+1}, v{a_+2*k+1}, v{r}
                """)
        for q in range(4):
            P(f"buffer_store_dwordx4 v[{a_+4*q}:{a_+4*q+3}], v{V_OUT}, s[16:19], {so} offen offset:{16*q}")
    P("K3_FIN:")
    P.stamp(15, real=True)
    P.dump_stamps(9, 20, WS_DBG, 10)
    P("K3_END:")
    P("s_endpgm")
    P("CODE_END:")
    if fused:
        return kernel_text("k2_kernel", P.finalize(), vgpr=256, agpr=256, sgpr=102), 163840
    return kernel_text("k3_kernel", P.finalize(), vgpr=256, agpr=256, sgpr=102), LDS_BYTES
```

```python
import os, math
from asmlib import *
from layout import *
from k1 import code_touch, srd, f2u, bf16r, emit_param_loads, emit_params, emit_pow, LOG2E
from k2 import (SLOT, E_BASE, V_LANE16, V_D4, V_DE, V_R4, V_RE, V_RE2, V_C0, V_T, XV, ACC, WF, NWF, DIST,
                xreg, epilogue, cfma)

T0, T1, A2, REV = 228, 229, 230, 231
SGO, SGD = 232, 233
L1, CO = 234, 236
C8 = 238
ES = 240
Q = 244
V_DU, VAG, VG, TX = 252, 253, 254, 255
V_UB, V_UT = 14, 13
VW, VR = 13, 14


def cmul(E, o, a, b):
    E(f"""
    v_mul_f32 v{o}, v{a}, v{b}
    v_mul_f32 v{o+1}, v{a}, v{b+1}
    v_fma_f32 v{o}, -v{a+1}, v{b+1}, v{o}
    v_fmac_f32 v{o+1}, v{a+1}, v{b}
    """)


def ssm_params(spt):
    L = Prog()
    L(f"""
    v_and_b32 v{TX}, 15, v0
    s_lshl_b32 s77, s{spt}, 4
    v_add_u32 v{TX}, s77, v{TX}
    v_lshlrev_b32 v{TX}, 1, v{TX}
    """)
    emit_param_loads(L, TX, T0, 24, 28, 32)
    C = Prog()
    emit_params(C, T0)
    emit_pow(C, 1, A2, REV, L1, L1 + 1, Q)
    C(f"""
    v_add_f32 v{Q}, -1.0, v{L1}
    v_mul_f32 v{Q+1}, v{T0}, v{T0}
    v_fmac_f32 v{Q+1}, v{T1}, v{T1}
    v_rcp_f32 v{Q+1}, v{Q+1}
    v_mul_f32 v{CO}, v{Q}, v{T0}
    v_add_f32 v{Q+1}, v{Q+1}, v{Q+1}
    v_fmac_f32 v{CO}, v{L1+1}, v{T1}
    v_mul_f32 v{CO+1}, v{L1+1}, v{T0}
    v_fma_f32 v{CO+1}, -v{Q}, v{T1}, v{CO+1}
    v_mul_f32 v{CO}, v{CO}, v{Q+1}
    v_mul_f32 v{CO+1}, v{CO+1}, v{Q+1}
    v_lshrrev_b32 v{VG}, 4, v0
    v_cvt_f32_u32 v{VG}, v{VG}
    """)
    return L.ins, C.ins


def ssm1(U, sagg):
    E = Prog()
    for j in range(2):
        a = U + 16 * j
        for k in range(8):
            E(f"v_permlane16_swap_b32 v{a+k}, v{a+8+k}")
        hp = None
        for k in range(8):
            re_, im_ = a + k, a + 8 + k
            E(f"""
            v_mul_f32 v{T0}, v{CO}, v{re_}
            v_mul_f32 v{T1}, v{CO+1}, v{re_}
            v_fma_f32 v{re_}, -v{CO+1}, v{im_}, v{T0}
            v_fma_f32 v{im_}, v{CO}, v{im_}, v{T1}
            """)
            if k == 0:
                hp = (re_, im_)
            else:
                o = (Q + 4 * j) + 2 * (k & 1)
                cfma(E, o, o + 1, L1, hp[0], hp[1], re_, im_)
                hp = (o, o + 1)
    emit_pow(E, 8, A2, REV, C8, C8 + 1, T0)
    E(f"v_bfe_u32 v{TX}, v0, 4, 1")
    E(f"v_cvt_f32_u32 v{TX}, v{TX}")
    for j in range(2):
        a, b = Q + 4 * j + 2, Q + 4 * j
        E(f"""
        v_mov_b32 v{b}, v{a}
        v_mov_b32 v{b+1}, v{a+1}
        v_permlane16_swap_b32 v{a}, v{b}
        v_permlane16_swap_b32 v{a+1}, v{b+1}
        v_mul_f32 v{ES+2*j}, v{TX}, v{a}
        v_mul_f32 v{ES+2*j+1}, v{TX}, v{a+1}
        """)
        cfma(E, b, b + 1, C8, a, a + 1, b, b + 1)
    E(f"v_mul_f32 v{TX}, {f2u(8.0)}, v{TX}")
    emit_pow(E, f"v{TX}", A2, REV, CO, CO + 1, T0)
    E(f"""
    v_lshrrev_b32 v{TX}, 5, v0
    v_cvt_f32_u32 v{TX}, v{TX}
    v_mul_f32 v{CO}, v{TX}, v{CO}
    v_mul_f32 v{CO+1}, v{TX}, v{CO+1}
    """)
    cmul(E, T0, C8, C8)
    for j in range(2):
        a, b = Q + 4 * j + 2, Q + 4 * j
        E(f"""
        v_mov_b32 v{a}, v{b}
        v_mov_b32 v{a+1}, v{b+1}
        v_permlane32_swap_b32 v{b}, v{a}
        v_permlane32_swap_b32 v{b+1}, v{a+1}
        """)
        cfma(E, ES + 2 * j, ES + 2 * j + 1, CO, b, b + 1, ES + 2 * j, ES + 2 * j + 1)
        cfma(E, a, a + 1, T0, b, b + 1, a, a + 1)
    cmul(E, C8, T0, T0)
    cfma(E, Q + 4, Q + 5, C8, Q + 2, Q + 3, Q + 6, Q + 7)
    E(f"""
    v_mov_b32 v{Q+6}, 1.0
    v_mov_b32 v{Q+7}, 1.0
    v_lshlrev_b32 v{TX}, 4, v0
    v_cmp_gt_u32 vcc, 16, v0
    v_cndmask_b32 v{TX}, 2.0, v{TX}, vcc
    buffer_store_dwordx4 v[{Q+4}:{Q+7}], v{TX}, s[20:23], s{sagg} offen sc0 sc1
    v_mul_f32 v{TX}, {f2u(8.0)}, v{VG}
    """)
    emit_pow(E, f"v{TX}", A2, REV, CO, CO + 1, T0)
    cfma(E, ES + 2, ES + 3, CO, Q + 2, Q + 3, ES + 2, ES + 3)
    return E.ins


def ssm2_loads(R, sagg, swc):
    E = Prog()
    E(f"""
    v_lshrrev_b32 v{T0}, 4, v0
    v_lshlrev_b32 v{T0}, 3, v{T0}
    v_sub_u32 v{T0}, s{swc}, v{T0}
    v_and_b32 v{T1}, 15, v0
    v_lshlrev_b32 v{T1}, 4, v{T1}
    v_lshrrev_b32 v{VAG}, 4, v0
    v_lshlrev_b32 v{VAG}, 11, v{VAG}
    v_sub_u32 v{VAG}, v{T1}, v{VAG}
    v_add_u32 v{VAG}, s{sagg}, v{VAG}
    v_mov_b32 v{T1}, {WS_ZREC}
    """)
    for q in range(8):
        E(f"""
        v_cmp_lt_i32 vcc, {q}, v{T0}
        v_add_u32 v{TX}, {(-256*(q+1)) & 0xffffffff}, v{VAG}
        v_cndmask_b32 v{TX}, v{T1}, v{TX}, vcc
        buffer_load_dwordx4 v[{R+4*q}:{R+4*q+3}], v{TX}, s[20:23], 0 offen sc0 sc1
        """)
    return E.ins


def ssm2(U, R, shf, lab, scr):
    E = Prog()
    E(f"v_min_f32 v{TX}, v{R+2}, v{R+3}")
    for q in range(1, 8):
        E(f"v_min3_f32 v{TX}, v{TX}, v{R+4*q+2}, v{R+4*q+3}")
    E(f"v_cmp_gt_f32 vcc, 0.5, v{TX}")
    E("s_nop 4")
    E(f"s_cbranch_vccnz {lab}_SLOW", tag="keepall")
    E(f"{lab}_BACK:", tag="nop")
    emit_pow(E, 64, A2, REV, C8, C8 + 1, T0)
    for q in range(6, -1, -1):
        cfma(E, R + 4 * q, R + 4 * q + 1, C8, R + 4 * q + 4, R + 4 * q + 5, R + 4 * q, R + 4 * q + 1)
    E(f"v_mul_f32 v{TX}, {f2u(512.0)}, v{VG}")
    emit_pow(E, f"v{TX}", A2, REV, C8, C8 + 1, T0)
    cmul(E, CO, C8, R)
    for pl in ("v_permlane16_swap_b32", "v_permlane32_swap_b32"):
        E(f"""
        v_mov_b32 v{T0}, v{CO}
        v_mov_b32 v{T1}, v{CO+1}
        {pl} v{CO}, v{T0}
        {pl} v{CO+1}, v{T1}
        v_add_f32 v{CO}, v{CO}, v{T0}
        v_add_f32 v{CO+1}, v{CO+1}, v{T1}
        """)
    E(f"""
    s_lshl_b32 s77, s53, 11
    s_add_u32 s77, s77, {scr}
    v_and_b32 v{VW}, 15, v0
    v_lshlrev_b32 v{VW}, 6, v{VW}
    v_bfe_u32 v{T0}, v0, 4, 1
    v_lshl_add_u32 v{VW}, v{T0}, 5, v{VW}
    v_lshrrev_b32 v{T1}, 5, v0
    v_lshl_add_u32 v{VW}, v{T1}, 3, v{VW}
    v_add_u32 v{VW}, s77, v{VW}
    v_lshlrev_b32 v{VR}, 3, v{T1}
    v_bfe_u32 v{T1}, v0, 2, 2
    v_add_u32 v{VR}, v{VR}, v{T1}
    v_lshlrev_b32 v{VR}, 6, v{VR}
    v_lshl_add_u32 v{VR}, v{T0}, 5, v{VR}
    v_and_b32 v{T1}, 3, v0
    v_lshl_add_u32 v{VR}, v{T1}, 3, v{VR}
    v_add_u32 v{VR}, s77, v{VR}
    """)
    for j in range(2):
        b = U + 16 * j
        E(f"v_mov_b32 v{TX}, {f2u(32.0*j)}")
        E(f"v_fmac_f32 v{TX}, {f2u(8.0)}, v{VG}")
        emit_pow(E, f"v{TX}", A2, REV, C8, C8 + 1, T0)
        e = ES + 2 * j
        cfma(E, e, e + 1, C8, CO, CO + 1, e, e + 1)
        pre, pim = e, e + 1
        for k in range(8):
            cfma(E, b + k, b + 8 + k, L1, pre, pim, b + k, b + 8 + k)
            pre, pim = b + k, b + 8 + k
        for k in range(4):
            E(f"v_cvt_pk_bf16_f32 v{b+k}, v{b+2*k}, v{b+2*k+1}")
        for k in range(4):
            E(f"v_cvt_pk_bf16_f32 v{b+8+k}, -v{b+8+2*k}, -v{b+8+2*k+1}")
        E(f"""
        ds_write_b64 v{VW}, v[{b}:{b+1}]
        ds_write_b64 v{VW}, v[{b+2}:{b+3}] offset:16
        ds_write_b64 v{VW}, v[{b+8}:{b+9}] offset:1024
        ds_write_b64 v{VW}, v[{b+10}:{b+11}] offset:1040
        ds_read_b64_tr_b16 v[{b+4}:{b+5}], v{VR}
        ds_read_b64_tr_b16 v[{b+6}:{b+7}], v{VR} offset:256
        ds_read_b64_tr_b16 v[{b+12}:{b+13}], v{VR} offset:1024
        ds_read_b64_tr_b16 v[{b+14}:{b+15}], v{VR} offset:1280
        s_add_u32 s77, s{shf+j}, {36*1024}
        """)
        E(f"""
        buffer_store_dwordx4 v[{b+4}:{b+7}], v{V_LANE16}, s[20:23], s{shf+j} offen sc1
        buffer_store_dwordx4 v[{b+12}:{b+15}], v{V_LANE16}, s[20:23], s77 offen sc1
        """, tag="fx")
    return E.ins


def ssm2_slow(P, R, sagg, swc, lab):
    P(f"{lab}_SLOW:")
    P("s_mov_b32 s78, 0")
    P(f"{lab}_SPIN:")
    P("s_sleep 4")
    P.extend(ssm2_loads(R, sagg, swc))
    P(f"v_min_f32 v{TX}, v{R+2}, v{R+3}")
    for q in range(1, 8):
        P(f"v_min3_f32 v{TX}, v{TX}, v{R+4*q+2}, v{R+4*q+3}")
    P(f"""
    v_cmp_gt_f32 vcc, 0.5, v{TX}
    s_add_u32 s78, s78, 1
    s_nop 4
    s_cbranch_vccz {lab}_BACK
    s_cmp_lt_u32 s78, 100000
    s_cbranch_scc1 {lab}_SPIN
    s_branch {lab}_BACK
    """)


def N0():
    return tuple(int(x) for x in os.environ.get("N0", "2,0,0").split(","))


def ln_phase(P, dma4, dmaU, xloads, ROT, PRE):
    P("s_load_dwordx2 s[82:83], s[0:1], 0") if False else None
    P(f"""
    s_lshr_b32 s57, s2, 5
    s_bfe_u32 s58, s2, 0x20003
    s_lshl_b32 s58, s58, 1
    s_add_u32 s57, s57, s58
    s_cmp_ge_u32 s57, 9
    s_cselect_b32 s58, 9, 0
    s_sub_u32 s57, s57, s58
    s_mul_i32 s57, s57, {1 if ROT else 0}
    s_sub_u32 s3, 9, s57
    s_mul_i32 s58, s57, {64*9216}
    s_add_u32 s56, s56, s58
    s_add_u32 s72, s72, s58
    s_sub_u32 s4, s56, {9*64*9216}
    s_sub_u32 s5, s72, {9*64*9216}
    s_lshl_b32 s58, s57, 7
    s_add_u32 s63, s63, s58
    s_sub_u32 s6, s63, {9*128}
    s_lshl_b32 s58, s57, 12
    s_add_u32 s64, s64, s58
    s_add_u32 s65, s65, s58
    s_sub_u32 s7, s64, {9*4096}
    s_sub_u32 s78, s65, {9*4096}
    """)
    P("s_load_dwordx2 s[48:49], s[0:1], 112")
    first = []
    for kb in range(2):
        first += dma4(0, kb)
    rest = []
    na, nb, nu = N0()
    for kb in range(2, na):
        rest += dma4(0, kb)
    for kb in range(4):
        rest += (dma4(1, kb) if kb < nb else []) + (dmaU(kb) if kb < nu else [])
    P("s_waitcnt lgkmcnt(0)")
    srd(P, 36, 48, 49, 256)
    P("s_cmp_lg_u32 s53, 0")
    P("s_cbranch_scc1 K2_NOLN")
    R, F, S, Z = ACC, ACC + 40, ACC + 120, ACC + 136
    allw = first + rest
    P(f"""
    v_mov_b32 v{Z}, 0
    v_mov_b32 v{Z+1}, 0
    v_mov_b32 v{Z+2}, 0
    v_mov_b32 v{Z+3}, 0
    v_mov_b32 v{Z+4}, 0
    v_mov_b32 v{Z+5}, 0
    v_mov_b32 v{Z+6}, 1.0
    v_mov_b32 v{Z+7}, 1.0
    s_mul_i32 s58, s2, {5*CNT_STRIDE}
    s_add_u32 s58, s58, {WS_CNT}
    v_mul_u32_u24 v{Z+8}, {CNT_STRIDE}, v0
    v_cmp_gt_u32 vcc, 5, v0
    v_cndmask_b32 v{Z+8}, 2.0, v{Z+8}, vcc
    buffer_store_dword v{Z}, v{Z+8}, s[20:23], s58 offen sc0 sc1
    s_mul_i32 s58, s2, {72*16}
    s_add_u32 s58, s58, {WS_AGG}
    v_cmp_gt_u32 vcc, 8, v0
    v_cndmask_b32 v{Z+8}, 2.0, v{V_LANE16}, vcc
    buffer_store_dwordx4 v[{Z}:{Z+3}], v{V_LANE16}, s[20:23], s58 offen sc0 sc1
    buffer_store_dwordx4 v[{Z}:{Z+3}], v{Z+8}, s[20:23], s58 offen offset:1024 sc0 sc1
    s_lshl_b32 s57, s51, 5
    s_add_u32 s57, s57, s50
    s_lshl_b32 s42, s57, 7
    s_add_u32 s42, s42, {WS_MBX}
    buffer_store_dword v{Z}, v{SGO}, s[20:23], s42 offen sc0 sc1
    s_cmp_eq_u32 s2, 0
    s_cselect_b32 s58, 0, 0x40000000
    s_add_u32 s58, s58, {WS_ZREC}
    buffer_store_dwordx4 v[{Z+4}:{Z+7}], v{SGO}, s[20:23], s58 offen sc0 sc1
    """)
    for ins, _ in allw:
        P.extend(ins)
    P(f"""
    s_and_b32 s58, s50, 3
    s_lshl_b32 s58, s58, 3
    v_lshrrev_b32 v{S+10}, 3, v0
    v_add_u32 v{S+10}, s58, v{S+10}
    v_lshrrev_b32 v{S+8}, 1, v{S+9}
    v_lshlrev_b32 v{S+8}, 10, v{S+8}
    v_and_b32 v{S+11}, 1, v{S+9}
    v_lshl_add_u32 v{S+8}, v{S+11}, 9, v{S+8}
    v_lshl_add_u32 v{S+8}, v{S+10}, 4, v{S+8}
    s_lshr_b32 s58, s57, 2
    s_mul_i32 s58, s58, 36864
    """)

    def reduce8():
        P(f"""
        v_add_f32 v{S}, v{S}, v{S+1}
        v_add_f32_dpp v{S}, v{S}, v{S} quad_perm:[1,0,3,2] row_mask:0xf bank_mask:0xf
        v_add_f32_dpp v{S}, v{S}, v{S} quad_perm:[2,3,0,1] row_mask:0xf bank_mask:0xf
        v_add_f32_dpp v{S}, v{S}, v{S} row_half_mirror row_mask:0xf bank_mask:0xf
        """)
    for d in range(36):
        P(f"v_lshlrev_b32 v{F+2*d}, 16, v{R+d}")
        P(f"v_and_b32 v{F+2*d+1}, 0xffff0000, v{R+d}")
        if d == 1:
            P(f"v_pk_add_f32 v[{S}:{S+1}], v[{F}:{F+1}], v[{F+2}:{F+3}]")
        elif d > 1:
            P(f"v_pk_add_f32 v[{S}:{S+1}], v[{S}:{S+1}], v[{F+2*d}:{F+2*d+1}]")
    reduce8()
    if os.environ.get("PROST"): P.stamp(8)
    P(f"v_mul_f32 v{S+2}, {f2u(-1.0/576)}, v{S}")
    for d in range(36):
        P(f"v_pk_add_f32 v[{S+4}:{S+5}], v[{F+2*d}:{F+2*d+1}], v[{S+2}:{S+3}] op_sel_hi:[1,0]")
        if d == 0:
            P(f"v_pk_mul_f32 v[{S}:{S+1}], v[{S+4}:{S+5}], v[{S+4}:{S+5}]")
        else:
            P(f"v_pk_fma_f32 v[{S}:{S+1}], v[{S+4}:{S+5}], v[{S+4}:{S+5}], v[{S}:{S+1}]")
    reduce8()
    P(f"v_mul_f32 v{S+6}, {f2u(1.0/576)}, v{S}")
    bf16r(P, S + 2, S + 2)
    bf16r(P, S + 6, S + 6)
    P(f"v_add_f32 v{S+6}, {f2u(1e-5)}, v{S+6}")
    bf16r(P, S + 6, S + 6)
    P(f"v_sqrt_f32 v{S+6}, v{S+6}")
    bf16r(P, S + 6, S + 6)
    P(f"v_rcp_f32 v{S+6}, v{S+6}")
    for j in range(9):
        for d in range(4 * j, 4 * j + 4):
            a_, b_ = F + 2 * d, F + 2 * d + 1
            P(f"""
            v_pk_add_f32 v[{a_}:{b_}], v[{a_}:{b_}], v[{S+2}:{S+3}] op_sel_hi:[1,0]
            v_cvt_pk_bf16_f32 v{b_}, v{a_}, v{b_}
            v_lshlrev_b32 v{a_}, 16, v{b_}
            v_and_b32 v{b_}, 0xffff0000, v{b_}
            v_pk_mul_f32 v[{a_}:{b_}], v[{a_}:{b_}], v[{S+6}:{S+7}] op_sel_hi:[1,0]
            v_cvt_pk_bf16_f32 v{R+d}, v{a_}, v{b_}
            """)
        P(f"s_add_u32 s59, s58, {WS_XNF + 4096*j}")
        P(f"buffer_store_dwordx4 v[{R+4*j}:{R+4*j+3}], v{S+8}, s[20:23], s59 offen sc1")
    if os.environ.get("PROST"): P.stamp(9)
    P("s_waitcnt vmcnt(0)")
    if os.environ.get("PROST"): P.stamp(10)
    P(f"""
    s_lshl_b32 s58, s51, 5
    v_mov_b32 v{S}, 1
    buffer_atomic_add v{S}, v{SGO}, s[36:39], s58 offen sc0 sc1
    s_lshl_b32 s58, s51, 12
    s_add_u32 s58, s58, {WS_MBX}
    v_lshlrev_b32 v{S+1}, 7, v0
    v_cmp_gt_u32 vcc, 32, v0
    v_cndmask_b32 v{S+1}, 2.0, v{S+1}, vcc
    v_readfirstlane_b32 s59, v{S}
    s_and_b32 s59, s59, 31
    s_cmp_eq_u32 s59, 31
    s_cselect_b32 s58, s58, 0x40000000
    buffer_store_dword v{SGD}, v{S+1}, s[20:23], s58 offen sc0 sc1
    """)
    if os.environ.get("PROST"): P.stamp(11)
    P(f"v_mov_b32 v{Z+8}, 0")
    P("s_mov_b32 s58, 0")
    P("K2_XPOLL:")
    P(f"""
    buffer_load_dword v{Z+9}, v{Z+8}, s[20:23], s42 offen sc0 sc1
    s_waitcnt vmcnt(0)
    v_cmp_ne_u32 vcc, 1, v{Z+9}
    s_add_u32 s58, s58, 1
    s_nop 4
    s_cbranch_vccz K2_LNJOIN
    s_sleep {os.environ.get("XSLEEP", "2")}
    s_cmp_lt_u32 s58, 100000
    s_cbranch_scc1 K2_XPOLL
    s_branch K2_LNJOIN
    """)
    P("K2_NOLN:")
    if os.environ.get("CTOP", "1") != "1":
        P("s_lshr_b32 s57, s2, 3\ns_cmp_eq_u32 s53, 2\ns_cselect_b32 s57, s57, 4096")
        code_touch(P, "K2_PC0", "k2_kernel", "CODE_END", 92, Z + 10, 0, 57, True)
    for ins, _ in allw:
        P.extend(ins)
    WST = [x for x in os.environ.get("WARM", "").split(",") if x]
    WINF = int(os.environ.get("WINF", "8"))
    P(f"""
    s_mul_i32 s57, s53, {16*9216}
    v_subrev_u32 v{Z}, s57, v{V_D4}
    v_subrev_u32 v{Z+1}, s57, v{V_D4+1}
    """)
    k = 0
    for st_ in WST:
        grp, kb0 = (0 if st_[0] == "A" else 1), int(st_[1:])
        P(f"""
        s_add_u32 s57, s53, {kb0 - 1}
        s_cmp_ge_u32 s57, s3
        s_cselect_b32 s58, s4, s56
        s_mul_i32 s57, s57, {64*9216}
        s_add_u32 s58, s58, s57
        """)
        for m in range(2):
            for i in range(8):
                P(f"s_add_u32 s59, s58, {i*8*9216 + grp*128}")
                I = Ins(f"buffer_store_dword v{Z}, v{Z+m}, s[{8+4*m}:{11+4*m}], s59 offen")
                I.text = f"buffer_load_dwordx4 v[{Z+4}:{Z+7}], v{Z+m}, s[{8+4*m}:{11+4*m}], s59 offen"
                P.ins.append(I)
                k += 1
                if k > WINF:
                    P(f"s_waitcnt vmcnt({WINF})")
    P("K2_LNJOIN:")
    P("s_barrier")
    if os.environ.get("PROST"): P.stamp(12)
    for kb in range(PRE):
        for ins, _ in xloads(kb):
            P.extend(ins)
    P(f"s_waitcnt vmcnt({8*PRE})")


def gen_k2b(single=False):
    P = Prog()
    P("s_cmp_ge_u32 s2, 256")
    P("s_cbranch_scc1 K3_END")
    P.stamp(0, real=True)
    P.stamp(1)
    if single:
        S_ = ACC + 120
        P("s_load_dwordx2 s[88:89], s[0:1], 0")
        if os.environ.get("CTOP", "1") == "1":
            P("s_lshr_b32 s57, s2, 3")
            P("s_lshl_b32 s57, s57, 2")
            code_touch(P, "K2_PC0", "k2_kernel", "CODE_END", 92, ACC + 150, 0, 57, True)
        P(f"""
        s_and_b32 s57, s2, 4
        s_bfe_u32 s58, s2, 0x20003
        s_add_u32 s57, s57, s58
        s_lshl_b32 s57, s57, 3
        s_and_b32 s58, s2, 3
        s_lshl_b32 s58, s58, 1
        s_add_u32 s57, s57, s58
        s_lshr_b32 s58, s2, 7
        s_add_u32 s57, s57, s58
        s_lshl_b32 s57, s57, 5
        s_bfe_u32 s58, s2, 0x20005
        s_lshl_b32 s58, s58, 2
        s_add_u32 s57, s57, s58
        s_mul_i32 s58, s57, 1152
        v_bfe_u32 v{S_+8}, v0, 3, 2
        v_bfe_u32 v{S_+9}, v0, 5, 1
        v_lshl_add_u32 v{S_+8}, v{S_+9}, 4, v{S_+8}
        v_mul_u32_u24 v{S_+10}, 1152, v{S_+8}
        v_and_b32 v{S_+9}, 7, v0
        v_lshl_add_u32 v{S_+10}, v{S_+9}, 4, v{S_+10}
        v_cmp_gt_u32 vcc, 64, v0
        v_cndmask_b32 v{S_+10}, 2.0, v{S_+10}, vcc
        s_mov_b32 s90, {2048*1152}
        s_mov_b32 s91, 0x00020000
        s_waitcnt lgkmcnt(0)
        s_and_b32 s89, s89, 0xffff
        """)
        for j in range(9):
            P(f"buffer_load_dwordx4 v[{ACC+4*j}:{ACC+4*j+3}], v{S_+10}, s[88:91], s58 offen offset:{128*j}", tag="keep")
    P("s_load_dwordx4 s[36:39], s[0:1], 80")
    P("s_load_dwordx2 s[48:49], s[0:1], 120")
    P("s_load_dwordx4 s[40:43], s[0:1], 8")
    P("s_load_dwordx2 s[46:47], s[0:1], 56")
    P("s_load_dwordx2 s[100:101], s[0:1], 24")
    P("s_load_dwordx2 s[82:83], s[0:1], 32")
    P("""
    v_lshrrev_b32 v2, 6, v0
    v_and_b32 v0, 63, v0
    v_readfirstlane_b32 s53, v2
    s_and_b32 s52, s2, 3
    s_lshr_b32 s50, s2, 5
    s_lshl_b32 s51, s52, 3
    s_add_u32 s50, s50, s51
    s_and_b32 s51, s2, 4
    s_bfe_u32 s54, s2, 0x20003
    s_add_u32 s51, s51, s54
    s_mov_b32 s79, s53
    """)
    P(f"v_lshlrev_b32 v{V_LANE16}, 4, v0")
    P(f"""
    s_lshl_b32 s54, s51, 3
    s_lshl_b32 s55, s53, 1
    s_add_u32 s54, s54, s55
    s_mul_i32 s64, s54, 36864
    s_mul_i32 s55, s52, {0 if single else XNF_BYTES}
    s_add_u32 s64, s64, s55
    s_add_u32 s65, s64, 36864
    s_lshr_b32 s57, s50, 2
    s_and_b32 s58, s50, 3
    s_mul_i32 s66, s54, {360*1024}
    s_add_u32 s66, s66, {WS_HF}
    s_add_u32 s73, s66, {288*1024}
    s_mul_i32 s55, s57, {36*1024}
    s_add_u32 s66, s66, s55
    s_lshl_b32 s55, s58, 10
    s_add_u32 s68, s66, s55
    s_add_u32 s68, s68, {32*1024}
    s_add_u32 s69, s68, {360*1024}
    s_lshl_b32 s55, s58, 13
    s_add_u32 s66, s66, s55
    s_add_u32 s67, s66, {360*1024}
    s_mul_i32 s56, s57, 1152
    s_lshl_b32 s55, s58, 5
    s_add_u32 s72, s56, s55
    s_add_u32 s72, s72, 1024
    s_lshl_b32 s55, s58, 8
    s_add_u32 s56, s56, s55
    s_mov_b32 s70, {f2u(-2.0*math.sqrt(2.0/math.pi)*LOG2E*0.044715)}
    v_mov_b32 v{V_C0}, {f2u(-2.0*math.sqrt(2.0/math.pi)*LOG2E)}
    """)
    P(f"""
    v_lshrrev_b32 v14, 3, v0
    v_and_b32 v15, 2, v14
    v_bfe_u32 v{V_D4}, v0, 1, 2
    v_xor_b32 v{V_D4}, v{V_D4}, v15
    v_lshlrev_b32 v{V_D4}, 5, v{V_D4}
    v_and_b32 v15, 1, v0
    v_lshl_add_u32 v{V_D4}, v15, 4, v{V_D4}
    s_lshl_b32 s57, s53, 4
    v_add_u32 v14, s57, v14
    v_mul_u32_u24 v14, 9216, v14
    v_add_u32 v{V_D4}, v{V_D4}, v14
    v_xor_b32 v{V_D4+1}, 32, v{V_D4}
    v_lshrrev_b32 v14, 1, v0
    s_lshl_b32 s57, s53, 1
    s_and_b32 s57, s57, 4
    v_xor_b32 v14, s57, v14
    v_mul_u32_u24 v14, 9216, v14
    v_lshl_add_u32 v{V_DE}, v15, 4, v14
    s_lshl_b32 s61, s53, 11
    """)
    P("s_waitcnt lgkmcnt(0)")
    srd(P, 8, 36, 37, 576 * 9216)
    srd(P, 12, 38, 39, 576 * 9216)
    srd(P, 20, 48, 49, WS_BYTES)

    ROT = single and int(os.environ.get("ROT2", "1"))
    def rsel(D, dst, base, kb, const):
        if ROT and kb > 0:
            D(f"s_cmp_ge_u32 {kb}, s3")
            D(f"s_cselect_b32 s{dst}, s{HI[base]}, s{base}")
            D(f"s_add_u32 s{dst}, s{dst}, {const}")
        else:
            D(f"s_add_u32 s{dst}, s{base}, {const}")
    HI = {56: 4, 72: 5, 63: 6, 64: 7, 65: 78}
    slotA = [0, 1, 2, 3, 4, 0, 1, 2, 3]
    slotB = [5, 6, 7, 8, 4, 0, 1, 2, 3]
    freeB = [None, None, None, None, 4, 5, 6, 7, 8]

    def dma4(grp, kb):
        slot = (slotA if grp == 0 else slotB)[kb] * SLOT
        out = []
        for m in range(2):
            for i in range(2):
                D = Prog()
                D(f"s_add_u32 m0, s61, {slot + m*8192 + i*1024}")
                rsel(D, 59, 56, kb, (kb*64 + i*8)*9216 + grp*128)
                D(f"buffer_load_dwordx4 v{V_D4+m}, s[{8+4*m}:{11+4*m}], s59 offen lds", tag=("W", grp, kb))
                out.append((D.ins, 8))
        return out

    def dmaU(kb):
        D = Prog()
        D(f"s_add_u32 m0, s60, {(kb % 4)*4096}")
        rsel(D, 59, 63, kb, kb*128)
        D(f"buffer_load_dwordx4 v{V_DU}, s[44:47], s59 offen lds", tag=("W", 1, kb))
        return [(D.ins, 8)]

    def dmaE(kb):
        D = Prog()
        D(f"s_add_u32 m0, s60, {((9 + kb) % 4)*4096}")
        rsel(D, 59, 72, kb, kb*64*9216)
        D(f"buffer_load_dwordx4 v{V_DE}, s[16:19], s59 offen lds", tag=("W", 2, kb))
        return [(D.ins, 32)]

    def xloads(kb):
        out = []
        for s in range(4):
            for j in range(2):
                D = Prog()
                rsel(D, 62, 64 + j, kb, WS_XNF + kb*4096)
                D(f"buffer_load_dwordx4 {xreg(j, kb*4+s)}, v{V_LANE16}, s[20:23], s62 offen offset:{s*1024}" + (" sc1" if single else ""))
                out.append((D.ins, 8))
        return out

    PRE = int(os.environ.get("K2PRE", "2"))
    if not single:
        for kb in range(PRE):
            for ins, _ in dma4(0, kb) + xloads(kb):
                P.extend(ins)
    srd(P, 24, 40, 41, 1152)
    srd(P, 28, 42, 43, 1152)
    srd(P, 32, 46, 47, 1152)
    P(f"""
    s_cmp_lt_u32 s53, 2
    s_cselect_b32 s16, s8, s12
    s_cselect_b32 s17, s9, s13
    s_cselect_b32 s44, s100, s82
    s_cselect_b32 s45, s101, s83
    s_and_b32 s45, s45, 0xffff
    s_mov_b32 s46, {576*1152}
    s_mov_b32 s47, 0x00020000
    s_mov_b32 s18, {576*9216}
    s_mov_b32 s19, 0x00020000
    s_and_b32 s57, s53, 1
    s_mul_i32 s55, s57, {32*9216}
    s_add_u32 s72, s72, s55
    s_lshl_b32 s60, s53, 10
    s_add_u32 s60, s60, {E_BASE}
    s_mul_i32 s63, s50, {16*1152}
    """)
    P(f"""
    v_lshrrev_b32 v14, 3, v0
    v_lshrrev_b32 v15, 4, v0
    s_lshl_b32 s55, s57, 2
    v_add_u32 v15, s55, v15
    v_and_b32 v13, 7, v0
    v_xor_b32 v13, v13, v15
    s_lshl_b32 s55, s57, 3
    v_add_u32 v14, s55, v14
    v_mul_u32_u24 v14, 1152, v14
    v_lshl_add_u32 v{V_DU}, v13, 4, v14
    """)
    P(f"""
    v_and_b32 v14, 1, v0
    v_lshlrev_b32 v14, 4, v14
    v_bfe_u32 v15, v0, 1, 1
    v_lshl_add_u32 v14, v15, 3, v14
    v_lshrrev_b32 v15, 5, v0
    v_lshlrev_b32 v15, 3, v15
    v_bfe_u32 v{WF}, v0, 2, 2
    v_add_u32 v15, v15, v{WF}
    v_bfe_u32 v{WF+1}, v0, 4, 1
    v_and_b32 v{WF}, 2, v{WF}
    v_xor_b32 v{WF}, v{WF}, v{WF+1}
    v_lshl_add_u32 v{V_R4}, v15, 7, v14
    v_lshl_add_u32 v{V_R4}, v{WF+1}, 13, v{V_R4}
    v_lshl_add_u32 v{V_R4}, v{WF}, 5, v{V_R4}
    v_xor_b32 v{V_R4+1}, 32, v{V_R4}
    v_xor_b32 v{V_R4+2}, 64, v{V_R4}
    v_xor_b32 v{V_R4+3}, 96, v{V_R4}
    v_lshl_add_u32 v{V_RE}, v15, 5, v14
    v_lshl_add_u32 v{V_RE}, v{WF+1}, 11, v{V_RE}
    v_lshl_add_u32 v{V_RE}, v{WF+1}, 7, v{V_RE}
    v_add_u32 v{V_RE}, {E_BASE}, v{V_RE}
    v_xor_b32 v{V_RE2}, 128, v{V_RE}
    v_and_b32 v13, 31, v0
    v_bfe_u32 v{WF}, v13, 1, 3
    v_lshrrev_b32 v{WF+1}, 5, v0
    v_xor_b32 v{WF}, v{WF}, v{WF+1}
    v_lshlrev_b32 v{WF}, 4, v{WF}
    v_lshl_add_u32 v{V_UB}, v13, 7, v{WF}
    v_add_u32 v{V_UB}, {E_BASE}, v{V_UB}
    """)
    P(f"""
    s_lshl_b32 s76, s51, 2
    s_add_u32 s76, s76, s53
    s_lshl_b32 s75, s50, 5
    s_add_u32 s75, s75, s76
    s_lshl_b32 s75, s75, 8
    s_add_u32 s75, s75, {WS_AGG}
    s_lshl_b32 s55, s50, 10
    s_add_u32 s40, s73, s55
    s_add_u32 s41, s40, {360*1024}
    s_lshl_b32 s100, s76, 2
    s_add_u32 s100, s100, s52
    s_add_u32 s100, s100, 192
    s_mul_i32 s100, s100, {CNT_STRIDE}
    s_add_u32 s100, s100, {WS_CNT}
    s_add_u32 s83, s100, {160*CNT_STRIDE}
    s_lshr_b32 s101, s76, 1
    s_add_u32 s101, s101, 320
    s_mul_i32 s101, s101, {CNT_STRIDE}
    s_add_u32 s101, s101, {WS_CNT}
    v_cmp_eq_u32 vcc, 0, v0
    v_mov_b32 v{SGD}, 1
    v_cndmask_b32 v{SGO}, 2.0, v0, vcc
    """)
    NA0, NB0, NU0 = N0() if single else (PRE, 0, 0)
    if single:
        ln_phase(P, dma4, dmaU, xloads, ROT, PRE)
    pl_ld, pl_calc = ssm_params(50)
    phases = [
        [("A", 0, 0), ("A", 1, 1), ("A", 2, 2), ("A", 3, 3)],
        [("U", 0, 4), ("B", 0, 0)],
        [("E", 0, 1), ("B", 1, 2)],
        [("B", 2, 3)],
        [("B", 3, 0)],
    ]
    frags = []
    unit = 0
    for ph, tiles in enumerate(phases):
        for kb in range(9):
            order = [(s_, t) for s_ in range(4) for t in tiles]
            if (ph == 0 and kb == 8) or (ph == 1 and kb == 0):
                order = [(s_, tiles[0]) for s_ in range(4)] + [(s_, t) for s_ in range(4) for t in tiles[1:]]
            for s_, (buf, g, sl) in order:
                frags.append(dict(ph=ph, buf=buf, kb=kb, s=s_, g=g, slot=sl, ks=kb * 4 + s_, unit=unit))
            unit += 1
    bar_units = set(range(0, 27)) | {28}
    items = []
    for kb in range(PRE, 9):
        rel = -1 if kb < 5 else kb - 5 + 2
        for ins, ln in (dma4(0, kb) if kb >= NA0 else []):
            items.append([16 * kb - 1, rel, ins, ln])
        for ins, ln in xloads(kb):
            items.append([16 * kb, -1, ins, ln])
    for kb in range(9):
        rel = -1 if freeB[kb] is None else freeB[kb] + 2
        for ins, ln in (dma4(1, kb) if kb >= NB0 else []):
            items.append([144 + 8 * kb, rel, ins, ln])
        rel = -1 if kb < 4 else 9 + (kb - 4) + 2
        for ins, ln in (dmaU(kb) if kb >= NU0 else []):
            items.append([144 + 8 * kb - 1, rel, ins, ln])
        rel = 9 + (9 + kb - 4) + 2
        for ins, ln in dmaE(kb):
            items.append([216 + 8 * kb - 1, rel, ins, ln])
    items.sort(key=lambda x: x[0])
    released = [-1]
    seen = set()
    region = [0]

    def frag_read(M, n, part):
        f = frags[n]
        u = f["unit"]
        if u not in seen:
            seen.add(u)
            if u in bar_units:
                M.waitvm(("W", min(f["ph"], 2), f["kb"]))
                M("s_barrier")
                released[0] = u
                if u in (3, 6, 9, 12, 15, 18, 21, 24, 28) and not os.environ.get("PROST"):
                    M.stamp(2 + u // 3)
        b = WF + 4 * (n % NWF)
        if f["buf"] == "U":
            if part == 0:
                if f["s"]:
                    M(f"v_xor_b32 v{V_UT}, {32*f['s']}, v{V_UB}")
                M(f"ds_read_b128 v[{b}:{b+3}], v{V_UT if f['s'] else V_UB} offset:{(f['kb'] % 4)*4096}")
            return
        if f["buf"] == "E":
            off = ((9 + f["kb"]) % 4) * 4096 + f["s"] * 16 * 32
            base = V_RE if part == 0 else V_RE2
        else:
            sl = (slotA if f["buf"] == "A" else slotB)[f["kb"]]
            reg = sl // 3
            if reg != region[0]:
                d = (reg - region[0]) * 3 * SLOT
                for g in range(4):
                    M(f"v_add_u32 v{V_R4+g}, {d & 0xffffffff}, v{V_R4+g}")
                region[0] = reg
            base = V_R4 + f["g"]
            off = (sl % 3) * SLOT + f["s"] * 16 * 128 + part * 512
        M(f"ds_read_b64_tr_b16 v[{b+2*part}:{b+2*part+1}], v{base} offset:{off}")

    for n in range(DIST):
        frag_read(P, n, 0)
        frag_read(P, n, 1)
    P.stamp(2)
    CR0 = float(os.environ.get("CR0", "6.3"))
    CR1 = float(os.environ.get("CR1", "6.6"))
    credit = 0.0
    B = Prog()
    ph_start = {}
    nm_ = 0
    for n, f in enumerate(frags):
        ph_start.setdefault(f["ph"], nm_)
        b = WF + 4 * (n % NWF)
        credit = min(credit + (CR0 if f["ph"] == 0 else CR1), 16.0)
        for j in range(2):
            a = ACC + 32 * f["slot"] + 16 * j
            c = "0" if f["ks"] == 0 else f"v[{a}:{a+15}]"
            if f["buf"] == "U":
                B(f"v_mfma_f32_32x32x16_bf16 v[{a}:{a+15}], {xreg(j, f['ks'])}, v[{b}:{b+3}], {c}")
            else:
                B(f"v_mfma_f32_32x32x16_bf16 v[{a}:{a+15}], v[{b}:{b+3}], {xreg(j, f['ks'])}, {c}")
            nm_ += 1
            if n + DIST < len(frags):
                frag_read(B, n + DIST, j)
            assert not items or items[0][0] > n + DIST + 1, ("load issued too late", n, items[0][0])
            if j == 1 and (credit > 0 or (items and items[0][0] - n < 14)):
                for k, it in enumerate(items):
                    if it[1] <= released[0]:
                        B.extend(it[2])
                        credit -= it[3]
                        del items[k]
                        break
    assert not items, len(items)
    ph_start[5] = nm_
    A_ = lambda t, **k: epilogue(t, 66, 1024 * t, tag="early", **k)
    Bslot = [0, 2, 3, 0]
    B_ = lambda t, **k: epilogue(Bslot[t], 66, 4096 + 1024 * t, **k)
    E_ = lambda **k: epilogue(1, 68, 0, **k)
    U = ACC + 128
    RC = ACC + 32

    def sig(tag, sreg):
        Qp = Prog()
        Qp.waitvm(tag)
        Qp(f"buffer_atomic_add v{SGD}, v{SGO}, s[20:23], s{sreg} offen sc1")
        return Qp.ins

    def spread(body, extra, width, lo=0.0, hi=1.0):
        groups = [extra[i:i + width] for i in range(0, len(extra), width)]
        n = len(body)
        pos = [int(n * (lo + (hi - lo) * (k + 0.5) / len(groups))) for k in range(len(groups))]
        out = []
        for i_, x in enumerate(body):
            while pos and i_ >= pos[0] and not any(y.text.startswith("s_add_u32 s71") for y in out[-3:]):
                out += groups.pop(0)
                pos.pop(0)
            out.append(x)
        for g_ in groups:
            out += g_
        return out

    PFp = Prog()
    PFp("s_load_dwordx2 s[36:37], s[0:1], 96")
    PFp("s_load_dwordx4 s[24:27], s[0:1], 40")
    PFp(f"""
    s_lshl_b32 s42, s2, 2
    s_add_u32 s42, s42, s53
    s_lshl_b32 s42, s42, 10
    s_waitcnt lgkmcnt(0)
    """)
    srd(PFp, 4, 36, 37, 4608 * 1152)
    srd(PFp, 28, 24, 25, 576 * 1152)
    srd(PFp, 32, 26, 27, 576 * 1152)
    pf = []
    for sd, i in [(4, 0), (4, 1), (28, 0), (4, 2), (4, 3), (32, 0), (4, 4), (4, 5)]:
        G = Prog()
        G(f"s_add_u32 s43, s42, {i*1024*1024}")
        I = Ins(f"buffer_store_dword v{V_LANE16}, v{V_LANE16}, s[{sd}:{sd+3}], s43 offen")
        I.text = f"buffer_load_dwordx4 v[{Q}:{Q+3}], v{V_LANE16}, s[{sd}:{sd+3}], s43 offen"
        G.ins.append(I)
        pf += G.ins
    if not int(os.environ.get("PF3B", "1")):
        pf = []
    L = B.ins
    p1, p2, p3, p4, p5 = (ph_start[k] for k in range(1, 6))
    ST = lambda t: A_(t, part="store")
    L = interleave2(L, pl_ld, start=8, end=24)
    if single:
        CK = Prog()
        CK(f"v_and_b32 v{VAG}, 7, v0")
        CK(f"v_lshlrev_b32 v{VAG}, 5, v{VAG}")
        CK(f"buffer_load_dword v{ES}, v{VAG}, s[36:39], 0 offen sc0 sc1")
        CK2 = Prog()
        CK2(f"v_max_u32 v{ES}, 1, v{ES}")
        CK2(f"v_and_b32 v{ES}, 31, v{ES}")
        CK2(f"v_cmp_ne_u32 vcc, 0, v{ES}")
        CK2("s_nop 4")
        CK2("s_cbranch_vccnz K2A_SLOW", tag="keepall")
        CK2("K2A_BACK:", tag="nop")
        L = interleave2(L, CK.ins, start=p1 - 70, end=p1 - 66)
        L = interleave2(L, CK2.ins, start=p1 - 28, end=p1 - 26)
    L = interleave2(L, pl_calc, start=110, end=p1 - 72)
    L = interleave2(L, A_(0), start=p1 - 23, end=p1 + 7)
    L = interleave2(L, A_(1, part="calc") + A_(2, part="calc") + A_(3, part="calc") + ST(1) + ST(2), start=p1 + 8, end=p2 - 1)
    L = interleave2(L, ssm1(U, 75) + B_(0, part="calc") + ST(3), start=p2 + 1, end=p3 - 1)
    idx = [k for k, i in enumerate(L) if i.kind == "mfma"]
    cut = idx[p3]
    P.extend(L[:cut])
    P.extend(PFp.ins)
    if int(os.environ.get("CPF3", "1")):
        P("s_lshr_b32 s77, s2, 3\ns_lshl_b32 s77, s77, 2\ns_add_u32 s77, s77, s53")
        code_touch(P, "K2_PC", "K3_GOON", "CODE_END", 24, Q + 4, 0, 77, False)
    L = L[cut:]
    n3, n4 = p4 - p3, p5 - p3
    f3 = spread(E_() + B_(0, part="store") + B_(1, part="calc"), pf, 2, 0.0, 0.6) + sig("early", 83) + ssm2_loads(RC, 75, 76) + B_(1, part="store")
    L = interleave2(L, f3, start=1, end=n3 + 8)
    L = interleave2(L, B_(2)[:60] + ssm2(U, RC, 40, "K2S", E_BASE) + B_(2)[60:], start=n3 + 9, end=n4 - 1)
    cnt = 0
    for i_ in L:
        P.ins.append(i_)
        if i_.kind == "mfma":
            cnt += 1
            if cnt == n3 and not os.environ.get("PROST"):
                P.stamp(12)
    P.stamp(13)
    P.extend(B_(3))
    P.stamp(14)
    P.stamp(15, real=True)
    P.dump_stamps(9, 20, WS_DBG + 0x10000, 14)
    P("s_mov_b64 exec, -1")
    return P


def tail_job(P, single=False):
    P("s_load_dwordx4 s[40:43], s[0:1], 8")
    P("s_load_dwordx2 s[36:37], s[0:1], 56")
    P(f"""
    s_lshr_b32 s50, s2, 5
    s_lshl_b32 s50, s50, 1
    s_add_u32 s50, s50, 20
    s_add_u32 s54, s50, 1
    s_mul_i32 s63, s50, {16*1152}
    s_lshl_b32 s60, s53, 10
    """)
    if single:
        P(f"""
        s_sub_u32 s58, 9, s3
        s_lshl_b32 s58, s58, 7
        s_add_u32 s63, s63, s58
        s_sub_u32 s58, s63, {9*128}
        """)
    for u in range(2):
        for kb in range(9):
            if single and kb > 0:
                P(f"s_cmp_ge_u32 {kb}, s3")
                P(f"s_cselect_b32 s59, s58, s63")
                P(f"s_add_u32 s59, s59, {u*16*1152 + kb*128}")
            else:
                P(f"s_add_u32 s59, s63, {u*16*1152 + kb*128}")
            P(f"s_add_u32 m0, s60, {(u*9 + kb)*4096}")
            P(f"buffer_load_dwordx4 v{V_DU}, s[44:47], s59 offen lds")
    P("s_waitcnt lgkmcnt(0)")
    srd(P, 24, 40, 41, 1152)
    srd(P, 28, 42, 43, 1152)
    srd(P, 32, 36, 37, 1152)
    P(f"""
    v_and_b32 v13, 31, v0
    v_bfe_u32 v5, v13, 1, 3
    v_lshrrev_b32 v6, 5, v0
    v_xor_b32 v5, v5, v6
    v_lshlrev_b32 v5, 4, v5
    v_lshl_add_u32 v5, v13, 7, v5
    v_xor_b32 v6, 32, v5
    v_xor_b32 v7, 64, v5
    v_xor_b32 v8, 96, v5
    v_add_u32 v9, {9*4096}, v5
    v_add_u32 v10, {9*4096}, v6
    v_add_u32 v11, {9*4096}, v7
    v_add_u32 v12, {9*4096}, v8
    s_lshl_b32 s75, s50, 5
    s_add_u32 s75, s75, s76
    s_lshl_b32 s75, s75, 8
    s_add_u32 s75, s75, {WS_AGG}
    s_add_u32 s74, s75, {32*256}
    s_lshl_b32 s55, s50, 10
    s_add_u32 s40, s73, s55
    s_add_u32 s41, s40, {360*1024}
    s_add_u32 s42, s40, 1024
    s_add_u32 s43, s41, 1024
    s_add_u32 s101, s101, {16*CNT_STRIDE}
    """)
    ld0, ca0 = ssm_params(50)
    ld1, ca1 = ssm_params(54)
    P.extend(ld0)
    P("s_waitcnt vmcnt(0)")
    P("s_barrier")
    M = Prog()
    fr = [(u, ks) for ks in range(36) for u in range(2)]
    FB = ACC + 96
    def rd(n):
        u, ks = fr[n]
        b = FB + 4 * (n % 8)
        M(f"ds_read_b128 v[{b}:{b+3}], v{5 + 4*u + (ks & 3)} offset:{(ks >> 2)*4096}")
    for n in range(6):
        rd(n)
    for n, (u, ks) in enumerate(fr):
        b = FB + 4 * (n % 8)
        for j in range(2):
            a = ACC + 32 * u + 16 * j
            c = "0" if ks == 0 else f"v[{a}:{a+15}]"
            M(f"v_mfma_f32_32x32x16_bf16 v[{a}:{a+15}], {xreg(j, ks)}, v[{b}:{b+3}], {c}")
            if j == 0 and n + 6 < len(fr):
                rd(n + 6)
    P.extend(interleave2(M.ins, ca0, start=4, end=60))
    SV = ACC + 128
    keep = [A2, REV, L1, L1 + 1, ES, ES + 1, ES + 2, ES + 3]
    P.extend(ssm1(ACC, 75))
    for k, r in enumerate(keep):
        P(f"v_mov_b32 v{SV+k}, v{r}")
    P.extend(ld1)
    P.extend(ca1)
    P.extend(ssm1(ACC + 32, 74))
    P("s_barrier")
    RC = ACC + 64
    for k, r in enumerate(keep):
        P(f"v_mov_b32 v{SV+8+k}, v{r}")
        P(f"v_mov_b32 v{r}, v{SV+k}")
    P.extend(ssm2_loads(RC, 75, 76))
    P.extend(ssm2(ACC, RC, 40, "K2T0", 0))
    for k, r in enumerate(keep):
        P(f"v_mov_b32 v{r}, v{SV+8+k}")
    P.extend(ssm2_loads(RC, 74, 76))
    P.extend(ssm2(ACC + 32, RC, 42, "K2T1", 0))
    P(f"""
    s_waitcnt vmcnt(0)
    v_mov_b32 v{SGD}, 2
    buffer_atomic_add v{SGD}, v{SGO}, s[20:23], s101 offen sc1
    s_branch K3_END
    """)
    ssm2_slow(P, RC, 75, 76, "K2T0")
    ssm2_slow(P, RC, 74, 76, "K2T1")
    ssm2_slow(P, ACC + 32, 75, 76, "K2S")
    if single:
        P("K2A_SLOW:")
        P("s_mov_b32 s71, 0")
        P("K2A_SPIN:")
        P(f"""
        s_sleep 8
        buffer_load_dword v{ES}, v{VAG}, s[36:39], 0 offen sc0 sc1
        s_waitcnt vmcnt(0)
        v_max_u32 v{ES}, 1, v{ES}
        v_and_b32 v{ES}, 31, v{ES}
        v_cmp_ne_u32 vcc, 0, v{ES}
        s_add_u32 s71, s71, 1
        s_nop 4
        s_cbranch_vccz K2A_BACK
        s_cmp_lt_u32 s71, 100000
        s_cbranch_scc1 K2A_SPIN
        s_branch K2A_BACK
        """)
```

```python
import os
from asmlib import *
from layout import *
from k1 import srd
from k3 import (STG, NS, V_LANE16, V_D, V_RB, V_OUT, RR0, RR1, ACC, WF, NWF, DIST, PB, hreg, publish, resid_calc)

V_DS = 3
V_DS1 = 252
V_SB = 248
V_G4, V_GD = 254, 253


def main_loop(P, typ):
    S = typ == "S"
    if S:
        blocks = [("F", q, l) for l in (0, 2) for q in range(4)] + [("F", q, 1) for q in range(4)] + [("S", b) for b in (6, 7, 15, 16, 8, 17)]
        gates = [(8, 77, 8), (12, 74, 64), (16, 78, 8)]
    else:
        blocks = [("F", 0, l) for l in (4, 6, 9, 11, 13, 15, 8, 17, 3, 5, 7, 10, 12, 14, 16)] + [("S", r) for r in range(3)]
        gates = [(6, 77, 8), (15, 74, 64)]

    def dma(kb):
        slot = (kb % NS) * STG
        bl = blocks[kb]
        out = []
        for i in range(6):
            D = Prog()
            if bl[0] == "F":
                D(f"s_add_u32 m0, s61, {slot + (i >> 1)*8192 + (i & 1)*1024}")
                D(f"s_add_u32 s59, s56, {((bl[1]*18 + bl[2])*64 + (i & 1)*8)*1152 + (i >> 1)*128}")
                D(f"buffer_load_dwordx4 v{V_D}, s[8:11], s59 offen lds", tag=("W", kb))
            else:
                srdn = 12 if (not S or bl[1] < 9) else 40
                D(f"s_add_u32 m0, s60, {slot + i*1024}")
                D(f"s_add_u32 s59, s{92+i}, {(bl[1] % 9)*128}")
                D(f"buffer_load_dwordx4 v{V_DS1 if i & 1 else V_DS}, s[{srdn}:{srdn+3}], s59 offen lds", tag=("W", kb))
            out.append((D.ins, 8))
        return out

    def hloads(kb):
        bl = blocks[kb]
        out = []
        for s in range(4):
            D = Prog()
            if bl[0] == "F":
                D(f"s_add_u32 s62, s64, {(bl[1]*18 + bl[2])*4096}")
            else:
                D(f"s_add_u32 s62, s72, {bl[1]*4096}")
            D(f"buffer_load_dwordx4 {hreg(kb*4+s)}, v{V_LANE16}, s[20:23], s62 offen offset:{s*1024} sc1")
            out.append((D.ins, 8))
        return out

    PRE = int(os.environ.get("K3PRE", "2"))
    PREW = int(os.environ.get("K3PREW", "4"))
    for kb in range(PREW):
        for ins, _ in dma(kb):
            P.extend(ins)
    P(f"""
    s_waitcnt vmcnt({6*PREW})
    buffer_atomic_add v233, v232, s[20:23], s100 offen sc1
    buffer_atomic_add v233, v232, s[20:23], s101 offen sc1
    s_mov_b32 s70, 0
    """)
    if not S:
        P.stamp(2)
    P(f"K3_HP{typ}:")
    P(f"""
    buffer_load_dword v{V_GD}, v{V_G4}, s[20:23], s29 offen sc0 sc1
    s_waitcnt vmcnt(0)
    v_cmp_gt_u32 vcc, 8, v{V_GD}
    s_add_u32 s70, s70, 1
    s_nop 4
    s_cbranch_vccz K3_HG{typ}
    s_sleep 2
    s_cmp_lt_u32 s70, 200000
    s_cbranch_scc1 K3_HP{typ}
    """)
    P(f"K3_HG{typ}:")
    for kb in range(PRE):
        for ins, _ in hloads(kb):
            P.extend(ins)
    NT = 1
    frags = [dict(kb=kb, s=s, g=g) for kb in range(18 - NT) for s in range(4) for g in range(6)]
    frags += [dict(kb=kb, s=s, g=g) for g in range(6) for kb in range(18 - NT, 18) for s in range(4)]
    items = []
    for kb in range(PRE, 18):
        rel = -1 if kb < NS else kb - NS + 2
        first = min(n for n, f in enumerate(frags) if f["kb"] == kb)
        for ins, ln in (dma(kb) if kb >= PREW else []):
            items.append([first - DIST - 1, rel, ins, ln])
        gi = sum(1 for g_ in gates if kb >= g_[0])
        for ins, ln in hloads(kb):
            items.append([first, ("gate", gi), ins, ln])
    for R, sd, sx in ((RR0, "s30", "s31"), (RR1, "s75", "s76")):
        for txt, ln in ((f"buffer_load_dwordx4 v[{R}:{R+3}], v13, s[4:7], {sd} offen", 32),
                        (f"buffer_load_dwordx4 v[{R+4}:{R+7}], v13, s[4:7], {sd} offen offset:16", 8),
                        (f"buffer_load_dwordx4 v[{R+8}:{R+11}], v15, s[20:23], {sx} offen sc1", 8),
                        (f"buffer_load_dwordx4 v[{R+12}:{R+15}], v15, s[20:23], {sx} offen offset:512 sc1", 8),
                        (f"buffer_load_dwordx4 v[{R+16}:{R+19}], v14, s[32:35], {sd} offen", 2),
                        (f"buffer_load_dwordx4 v[{R+20}:{R+23}], v14, s[32:35], {sd} offen offset:16", 2)):
            D = Prog()
            D(txt)
            items.append([len(frags) - 6, -1, D.ins, ln])
    items.sort(key=lambda x: x[0])
    seen = set()
    released = [-1]
    region = {"F": 0, "S": 0}

    def frag_read(M, n):
        f = frags[n]
        kb = f["kb"]
        if kb not in seen:
            seen.add(kb)
            M.waitvm(("W", kb))
            M("s_barrier")
            released[0] = kb
            if kb in (5, 9, 13, 17) and not S:
                M.stamp(3 + (kb - 5) // 4)
        ty = blocks[kb][0]
        sl = kb % NS
        reg = sl // 2
        if reg != region[ty]:
            d = (reg - region[ty]) * 2 * STG
            for r in (range(V_RB, V_RB + 6) if ty == "F" else range(V_SB, V_SB + 4)):
                M(f"v_add_u32 v{r}, {d & 0xffffffff}, v{r}")
            region[ty] = reg
        b = WF + 4 * (n % NWF)
        off = (sl % 2) * STG
        if ty == "F":
            off += f["s"] * 16 * 128
            M(f"ds_read_b64_tr_b16 v[{b}:{b+1}], v{V_RB+f['g']} offset:{off}")
            M(f"ds_read_b64_tr_b16 v[{b+2}:{b+3}], v{V_RB+f['g']} offset:{off+512}")
        else:
            M(f"ds_read_b128 v[{b}:{b+3}], v{V_SB+f['s']} offset:{off + f['g']*4096}")

    for n in range(DIST):
        frag_read(P, n)
    CR = float(os.environ.get("CR3", "3.4"))
    credit = 0.0
    P0 = P
    P = Prog()
    MINLEAD = int(os.environ.get("K3LEAD", "40"))
    GD = int(os.environ.get("LATED", "56"))
    open_gates = [0]
    slow = []
    for n, f in enumerate(frags):
        b = WF + 4 * (n % NWF)
        a = ACC + 16 * f["g"]
        ks = f["kb"] * 4 + f["s"]
        c = "0" if ks == 0 else f"v[{a}:{a+15}]"
        P(f"v_mfma_f32_32x32x16_bf16 v[{a}:{a+15}], v[{b}:{b+3}], {hreg(ks)}, {c}")
        if n + DIST < len(frags):
            frag_read(P, n + DIST)
        for gi, (gkb, sreg, tgt) in enumerate(gates):
            vo = V_G4 if (sreg == 77) else 12
            if n == 24 * gkb - GD - 40:
                P(f"buffer_load_dword v{V_GD}, v{vo}, s[20:23], s{sreg} offen sc0 sc1")
            if n == 24 * gkb - GD:
                P(f"v_cmp_gt_u32 vcc, {tgt}, v{V_GD}")
                P("s_nop 4")
                P(f"s_cbranch_vccnz K3_GS{typ}{gi}", tag="keepall")
                P(f"K3_GB{typ}{gi}:", tag="nop")
                open_gates[0] = gi + 1
                slow.append((f"{typ}{gi}", vo, sreg, tgt))
        credit = min(credit + CR, 12.0)
        assert not items or items[0][0] > n + 1, ("load issued too late", n, items[0][0])
        if credit > 0 or (items and items[0][0] - n < MINLEAD):
            for k, it in enumerate(items):
                if (it[1][1] <= open_gates[0] if isinstance(it[1], tuple) else it[1] <= released[0]):
                    P.extend(it[2])
                    credit -= it[3]
                    del items[k]
                    break
    assert not items
    L = P.ins
    nm = len(frags)
    T = 4 * NT
    for g in range(5):
        e = nm - (5 - g) * T
        L = interleave2(L, publish(g), start=e + 1, end=min(e + T, nm) - 1)
    P0.extend(L)
    P0("s_waitcnt vmcnt(0)")
    return slow


def slow_paths(P, slow):
    for name, vo, sreg, tgt in slow:
        P(f"K3_GS{name}:")
        P("s_mov_b32 s70, 0")
        P(f"K3_GP{name}:")
        P(f"""
        s_sleep 2
        buffer_load_dword v{V_GD}, v{vo}, s[20:23], s{sreg} offen sc0 sc1
        s_waitcnt vmcnt(0)
        v_cmp_gt_u32 vcc, {tgt}, v{V_GD}
        s_add_u32 s70, s70, 1
        s_nop 4
        s_cbranch_vccz K3_GB{name}
        s_cmp_lt_u32 s70, 200000
        s_cbranch_scc1 K3_GP{name}
        s_branch K3_GB{name}
        """)


def gen_k3m(P):
    from k2b import tail_job
    P("s_barrier")
    P("""
    s_lshr_b32 s57, s2, 3
    s_and_b32 s58, s57, 27
    s_sub_u32 s58, s58, s52
    s_cmp_lg_u32 s58, 24
    s_cbranch_scc1 K3_GOON
    s_waitcnt vmcnt(0)
    buffer_atomic_add v233, v232, s[20:23], s100 offen sc1
    buffer_atomic_add v233, v232, s[20:23], s101 offen sc1
    """)
    tail_job(P, True)
    P("K3_GOON:")
    P.stamp(0, real=True)
    P.stamp(1)
    P("s_load_dwordx4 s[36:39], s[0:1], 96")
    P("s_load_dwordx4 s[40:43], s[0:1], 40")
    P("s_load_dwordx2 s[44:45], s[0:1], 0")
    P("s_load_dwordx2 s[46:47], s[0:1], 64")
    P("""
    s_lshr_b32 s54, s2, 3
    s_and_b32 s55, s2, 7
    s_and_b32 s57, s2, 3
    s_add_u32 s57, s57, 28
    s_cmp_gt_u32 s54, s57
    s_cselect_b32 s58, 1, 0
    s_sub_u32 s57, s57, 4
    s_cmp_gt_u32 s54, s57
    s_subb_u32 s54, s54, s58
    s_and_b32 s50, s55, 4
    s_lshl_b32 s50, s50, 1
    s_and_b32 s57, s54, 7
    s_add_u32 s50, s50, s57
    s_and_b32 s51, s55, 3
    s_lshr_b32 s52, s54, 3
    s_lshl_b32 s57, s55, 1
    s_and_b32 s58, s54, 1
    s_add_u32 s57, s57, s58
    s_bfe_u32 s58, s54, 0x20001
    s_cmp_ge_u32 s54, 24
    s_cselect_b32 s50, s57, s50
    s_cselect_b32 s51, 4, s51
    s_cselect_b32 s52, s58, s52
    s_and_b32 s55, s51, 3
    """)
    P(f"""
    s_lshl_b32 s63, s50, 2
    s_add_u32 s63, s63, s53
    s_mul_i32 s64, s63, {360*1024}
    s_add_u32 s64, s64, {WS_HF}
    s_lshr_b32 s57, s55, 1
    s_mul_i32 s57, s57, 9
    s_and_b32 s58, s55, 1
    s_mul_i32 s58, s58, 3
    s_add_u32 s57, s57, s58
    s_lshl_b32 s57, s57, 12
    s_add_u32 s72, s64, s57
    s_add_u32 s72, s72, {288*1024}
    s_lshl_b32 s71, s58, 7
    s_mul_i32 s57, s55, {72*1024}
    s_add_u32 s64, s64, s57
    s_lshr_b32 s77, s63, 1
    s_lshl_b32 s77, s77, 2
    s_add_u32 s77, s77, s55
    s_add_u32 s77, s77, 192
    s_mul_i32 s77, s77, {CNT_STRIDE}
    s_add_u32 s77, s77, {WS_CNT}
    s_add_u32 s29, s77, {160*CNT_STRIDE}
    s_add_u32 s74, s50, 320
    s_mul_i32 s74, s74, {CNT_STRIDE}
    s_add_u32 s74, s74, {WS_CNT}
    s_add_u32 s78, s74, {16*CNT_STRIDE}
    v_and_b32 v{V_G4}, 3, v0
    v_mul_u32_u24 v{V_G4}, {CNT_STRIDE}, v{V_G4}
    s_cmp_eq_u32 s51, 4
    s_cselect_b32 s57, -1, 0
    v_and_b32 v{V_G4}, s57, v{V_G4}
    """)
    P(f"""
    s_mul_i32 s54, s50, 3
    s_add_u32 s54, s54, s52
    s_mul_i32 s65, s54, {6*5*8192}
    s_lshl_b32 s57, s53, 11
    s_add_u32 s65, s65, s57
    s_add_u32 s65, s65, {WS_PART}
    s_lshl_b32 s66, s51, 13
    s_add_u32 s66, s66, s65
    s_add_u32 s24, s66, {5*5*8192}
    s_lshl_b32 s57, s54, 2
    s_add_u32 s57, s57, s53
    s_mul_i32 s69, s57, {CNT_STRIDE}
    s_add_u32 s69, s69, {WS_CNT}
    """)
    P(f"""
    v_lshrrev_b32 v10, 3, v0
    v_bfe_u32 v11, v0, 4, 1
    v_lshlrev_b32 v11, 2, v11
    v_and_b32 v12, 7, v0
    v_xor_b32 v12, v12, v11
    s_lshl_b32 s57, s53, 4
    v_add_u32 v11, s57, v10
    v_mul_u32_u24 v11, 1152, v11
    v_lshl_add_u32 v{V_D}, v12, 4, v11
    v_lshrrev_b32 v11, 1, v10
    v_and_b32 v12, 7, v0
    v_xor_b32 v12, v12, v11
    v_mul_u32_u24 v10, 1152, v10
    v_lshl_add_u32 v{V_DS}, v12, 4, v10
    v_xor_b32 v{V_DS1}, 64, v{V_DS}
    s_mul_i32 s56, s55, {1152*1152}
    s_mul_i32 s67, s52, 384
    s_add_u32 s56, s56, s67
    s_lshl_b32 s61, s53, 11
    s_mul_i32 s60, s53, 6144
    v_and_b32 v10, 31, v0
    v_bfe_u32 v11, v10, 2, 1
    v_lshlrev_b32 v11, 4, v11
    v_lshrrev_b32 v12, 3, v10
    v_lshl_add_u32 v11, v12, 2, v11
    v_and_b32 v12, 3, v10
    v_add_u32 v11, v11, v12
    v_bfe_u32 v12, v11, 1, 3
    v_lshrrev_b32 v13, 5, v0
    v_xor_b32 v12, v12, v13
    v_lshlrev_b32 v12, 4, v12
    v_lshl_add_u32 v{V_SB}, v11, 7, v12
    v_xor_b32 v{V_SB+1}, 32, v{V_SB}
    v_xor_b32 v{V_SB+2}, 64, v{V_SB}
    v_xor_b32 v{V_SB+3}, 96, v{V_SB}
    s_lshl_b32 s57, s63, 5
    v_add_u32 v11, s57, v11
    v_lshlrev_b32 v15, 4, v10
    v_lshl_add_u32 v15, v13, 10, v15
    v_lshlrev_b32 v14, 5, v13
    v_mul_u32_u24 v11, 1152, v11
    v_lshl_add_u32 v13, v13, 5, v11
    v_lshlrev_b32 v{V_OUT}, 1, v13
    """)
    P(f"""
    v_lshrrev_b32 v10, 5, v0
    v_lshlrev_b32 v10, 3, v10
    v_bfe_u32 v11, v0, 2, 2
    v_add_u32 v10, v10, v11
    v_lshlrev_b32 v10, 7, v10
    v_bfe_u32 v11, v0, 3, 1
    v_lshl_add_u32 v10, v11, 6, v10
    v_and_b32 v11, 1, v0
    v_lshl_add_u32 v10, v11, 5, v10
    v_bfe_u32 v11, v0, 4, 1
    v_lshl_add_u32 v10, v11, 4, v10
    v_bfe_u32 v11, v0, 1, 1
    v_lshl_add_u32 v10, v11, 3, v10
    v_xor_b32 v{V_RB}, 64, v10
    v_add_u32 v{V_RB}, 16384, v{V_RB}
    """)
    for L in range(1, 6):
        P(f"""
        s_add_u32 s57, s51, {L}
        s_cmp_ge_u32 s57, 5
        s_cselect_b32 s58, 5, 0
        s_sub_u32 s57, s57, s58
        """)
        if L < 5:
            P(f"s_mul_i32 s58, s57, {5*8192}\ns_add_u32 s{24+L}, s58, s66")
        P(f"""
        s_and_b32 s58, s57, 1
        s_lshl_b32 s58, s58, 6
        s_lshr_b32 s57, s57, 1
        s_lshl_b32 s57, s57, 13
        v_xor_b32 v{V_RB+L}, s58, v10
        v_add_u32 v{V_RB+L}, s57, v{V_RB+L}
        """)
    for i in range(6):
        P(f"""
        s_mul_i32 s57, s53, 48
        s_add_u32 s57, s57, {8*i}
        s_lshr_b32 s58, s57, 5
        s_and_b32 s57, s57, 31
        s_add_u32 s59, s58, s51
        s_cmp_ge_u32 s59, 5
        s_cselect_b32 s62, 5, 0
        s_sub_u32 s59, s59, s62
        s_cmp_eq_u32 s58, 0
        s_cselect_b32 s59, 5, s59
        s_lshl_b32 s59, s59, 5
        s_add_u32 s57, s57, s59
        s_mul_i32 s58, s52, 192
        s_add_u32 s57, s57, s58
        s_mul_i32 s57, s57, 1152
        s_add_u32 s{92+i}, s57, s71
        """)
    P("v_mov_b32 v12, 0")
    P("s_waitcnt lgkmcnt(0)")
    srd(P, 8, 36, 37, 4608 * 1152)
    srd(P, 16, 38, 39, 2048 * 576 * 4)
    srd(P, 4, 44, 45, 2048 * 1152)
    srd(P, 32, 46, 47, 1152)
    P(f"""
    s_cmp_eq_u32 s55, 2
    s_cselect_b32 s57, 1, 0
    s_cmp_eq_u32 s55, 3
    s_cselect_b32 s57, 1, s57
    s_cmp_eq_u32 s57, 1
    s_cselect_b32 s12, s42, s40
    s_cselect_b32 s13, s43, s41
    s_and_b32 s13, s13, 0xffff
    s_mov_b32 s14, {576*1152}
    s_mov_b32 s15, 0x00020000
    s_mov_b32 s40, s42
    s_and_b32 s41, s43, 0xffff
    s_mov_b32 s42, {576*1152}
    s_mov_b32 s43, 0x00020000
    s_mul_i32 s68, s63, 36864
    s_mul_i32 s57, s52, {12*1024}
    s_add_u32 s68, s68, s57
    s_add_u32 s68, s68, {WS_XNF}
    s_cmp_eq_u32 s51, s53
    s_cselect_b32 s73, 0, 0x40000000
    s_lshl_b32 s30, s51, 6
    s_add_u32 s30, s30, s67
    s_lshl_b32 s31, s51, 11
    s_add_u32 s31, s31, s68
    s_add_u32 s75, s67, {5*64}
    s_add_u32 s75, s75, s73
    s_add_u32 s76, s68, {5*2048}
    s_add_u32 s76, s76, s73
    s_cmp_eq_u32 s51, 4
    s_cbranch_scc1 K3_SR
    """)
    slow = main_loop(P, "F")
    P("s_branch K3_RED")
    slow_paths(P, slow)
    P("K3_SR:")
    last = Prog._last[0]
    slow2 = main_loop(P, "S")
    P("K3_RED:")
    P.stamp(12)
    P(f"""
    v_mov_b32 v{V_GD}, 1
    v_cmp_eq_u32 vcc, 0, v0
    v_cndmask_b32 v{V_G4}, 2.0, v0, vcc
    buffer_atomic_add v{V_GD}, v{V_G4}, s[20:23], s69 offen sc1
    s_mov_b32 s70, 0
    """)
    resid_calc(P)
    P.stamp(13)
    P("s_waitcnt lgkmcnt(0)")
    P("K3_POLL:")
    P(f"""
    buffer_load_dword v11, v12, s[20:23], s69 offen sc0 sc1
    s_waitcnt vmcnt(0)
    v_readfirstlane_b32 s71, v11
    s_add_u32 s70, s70, 1
    s_cmp_ge_u32 s71, 5
    s_cbranch_scc1 K3_GO
    s_sleep 1
    s_cmp_lt_u32 s70, 200000
    s_cbranch_scc1 K3_POLL
    """)
    P("K3_GO:")
    P.stamp(14)
    P(f"""
    s_mul_i32 s72, s51, {5*8192}
    s_add_u32 s72, s72, s65
    s_add_u32 s74, s65, {5*5*8192}
    s_add_u32 s74, s74, s73
    """)
    for i in range(1, 5):
        P(f"""
        s_add_u32 s57, s51, {i}
        s_cmp_ge_u32 s57, 5
        s_cselect_b32 s58, 5, 0
        s_sub_u32 s57, s57, s58
        s_lshl_b32 s57, s57, 13
        s_add_u32 s{23+i}, s57, s74
        s_add_u32 s57, s57, s72
        """)
        for q in range(2):
            r = WF + 8 * (i - 1) + 4 * q
            P(f"buffer_load_dwordx4 v[{r}:{r+3}], v{V_LANE16}, s[20:23], s57 offen offset:{1024*q} sc0 sc1")
    for i in range(1, 5):
        for q in range(2):
            r = PB + 40 + 8 * (i - 1) + 4 * q
            P(f"buffer_load_dwordx4 v[{r}:{r+3}], v{V_LANE16}, s[20:23], s{23+i} offen offset:{1024*q} sc0 sc1")
    P(f"""
    s_lshl_b32 s57, s51, 7
    s_lshl_b32 s58, s67, 1
    s_add_u32 s57, s57, s58
    s_add_u32 s58, s58, {5*128}
    s_add_u32 s58, s58, s73
    """)
    for a_, R0, so in ((ACC + 80, WF, "s57"), (ACC, PB + 40, "s58")):
        for i in range(4):
            for k in range(8):
                r = R0 + 8 * i + k
                P(f"""
                v_lshlrev_b32 v10, 16, v{r}
                v_and_b32 v{r}, 0xffff0000, v{r}
                v_add_f32 v{a_+2*k}, v{a_+2*k}, v10
                v_add_f32 v{a_+2*k+1}, v{a_+2*k+1}, v{r}
                """)
        for q in range(4):
            P(f"buffer_store_dwordx4 v[{a_+4*q}:{a_+4*q+3}], v{V_OUT}, s[16:19], {so} offen offset:{16*q}")
    P.stamp(15, real=True)
    P.dump_stamps(9, 20, WS_DBG, 10)
    P("s_branch K3_END")
    slow_paths(P, slow2)
    P("K3_END:")
    P("s_endpgm")
    P("CODE_END:")
    name = os.environ.get("KNAME", "k2_kernel")
    return kernel_text(name, P.finalize().replace("k2_kernel", name), vgpr=256, agpr=256, sgpr=102), 163840
```

```python
import os, math
from asmlib import *
from layout import *
from k1 import code_touch, srd, f2u, bf16r, emit_param_loads, emit_params, emit_pow, LOG2E
from k2 import (SLOT, E_BASE, V_LANE16, V_D4, V_DE, V_R4, V_RE, V_RE2, V_C0, V_T, XV, ACC, WF, NWF, DIST,
                xreg, epilogue, cfma)

T0, T1, A2, REV = 228, 229, 230, 231
SGO, SGD = 232, 233
L1, CO = 234, 236
C8 = 238
ES = 240
Q = 244
V_DU, VAG, VG, TX = 252, 253, 254, 255
V_UB, V_UT = 14, 13
VW, VR = 13, 14


def cmul(E, o, a, b):
    E(f"""
    v_mul_f32 v{o}, v{a}, v{b}
    v_mul_f32 v{o+1}, v{a}, v{b+1}
    v_fma_f32 v{o}, -v{a+1}, v{b+1}, v{o}
    v_fmac_f32 v{o+1}, v{a+1}, v{b}
    """)


def ssm_params(spt):
    L = Prog()
    L(f"""
    v_and_b32 v{TX}, 15, v0
    s_lshl_b32 s77, s{spt}, 4
    v_add_u32 v{TX}, s77, v{TX}
    v_lshlrev_b32 v{TX}, 1, v{TX}
    """)
    emit_param_loads(L, TX, T0, 24, 28, 32)
    C = Prog()
    emit_params(C, T0)
    emit_pow(C, 1, A2, REV, L1, L1 + 1, Q)
    C(f"""
    v_add_f32 v{Q}, -1.0, v{L1}
    v_mul_f32 v{Q+1}, v{T0}, v{T0}
    v_fmac_f32 v{Q+1}, v{T1}, v{T1}
    v_rcp_f32 v{Q+1}, v{Q+1}
    v_mul_f32 v{CO}, v{Q}, v{T0}
    v_add_f32 v{Q+1}, v{Q+1}, v{Q+1}
    v_fmac_f32 v{CO}, v{L1+1}, v{T1}
    v_mul_f32 v{CO+1}, v{L1+1}, v{T0}
    v_fma_f32 v{CO+1}, -v{Q}, v{T1}, v{CO+1}
    v_mul_f32 v{CO}, v{CO}, v{Q+1}
    v_mul_f32 v{CO+1}, v{CO+1}, v{Q+1}
    v_lshrrev_b32 v{VG}, 4, v0
    v_cvt_f32_u32 v{VG}, v{VG}
    """)
    return L.ins, C.ins


def ssm1(U, sagg):
    E = Prog()
    for j in range(2):
        a = U + 16 * j
        for k in range(8):
            E(f"v_permlane16_swap_b32 v{a+k}, v{a+8+k}")
        hp = None
        for k in range(8):
            re_, im_ = a + k, a + 8 + k
            E(f"""
            v_mul_f32 v{T0}, v{CO}, v{re_}
            v_mul_f32 v{T1}, v{CO+1}, v{re_}
            v_fma_f32 v{re_}, -v{CO+1}, v{im_}, v{T0}
            v_fma_f32 v{im_}, v{CO}, v{im_}, v{T1}
            """)
            if k == 0:
                hp = (re_, im_)
            else:
                o = (Q + 4 * j) + 2 * (k & 1)
                cfma(E, o, o + 1, L1, hp[0], hp[1], re_, im_)
                hp = (o, o + 1)
    emit_pow(E, 8, A2, REV, C8, C8 + 1, T0)
    E(f"v_bfe_u32 v{TX}, v0, 4, 1")
    E(f"v_cvt_f32_u32 v{TX}, v{TX}")
    for j in range(2):
        a, b = Q + 4 * j + 2, Q + 4 * j
        E(f"""
        v_mov_b32 v{b}, v{a}
        v_mov_b32 v{b+1}, v{a+1}
        v_permlane16_swap_b32 v{a}, v{b}
        v_permlane16_swap_b32 v{a+1}, v{b+1}
        v_mul_f32 v{ES+2*j}, v{TX}, v{a}
        v_mul_f32 v{ES+2*j+1}, v{TX}, v{a+1}
        """)
        cfma(E, b, b + 1, C8, a, a + 1, b, b + 1)
    E(f"v_mul_f32 v{TX}, {f2u(8.0)}, v{TX}")
    emit_pow(E, f"v{TX}", A2, REV, CO, CO + 1, T0)
    E(f"""
    v_lshrrev_b32 v{TX}, 5, v0
    v_cvt_f32_u32 v{TX}, v{TX}
    v_mul_f32 v{CO}, v{TX}, v{CO}
    v_mul_f32 v{CO+1}, v{TX}, v{CO+1}
    """)
    cmul(E, T0, C8, C8)
    for j in range(2):
        a, b = Q + 4 * j + 2, Q + 4 * j
        E(f"""
        v_mov_b32 v{a}, v{b}
        v_mov_b32 v{a+1}, v{b+1}
        v_permlane32_swap_b32 v{b}, v{a}
        v_permlane32_swap_b32 v{b+1}, v{a+1}
        """)
        cfma(E, ES + 2 * j, ES + 2 * j + 1, CO, b, b + 1, ES + 2 * j, ES + 2 * j + 1)
        cfma(E, a, a + 1, T0, b, b + 1, a, a + 1)
    cmul(E, C8, T0, T0)
    cfma(E, Q + 4, Q + 5, C8, Q + 2, Q + 3, Q + 6, Q + 7)
    E(f"""
    v_mov_b32 v{Q+6}, 1.0
    v_mov_b32 v{Q+7}, 1.0
    v_lshlrev_b32 v{TX}, 4, v0
    v_cmp_gt_u32 vcc, 16, v0
    v_cndmask_b32 v{TX}, 2.0, v{TX}, vcc
    buffer_store_dwordx4 v[{Q+4}:{Q+7}], v{TX}, s[20:23], s{sagg} offen sc0 sc1
    v_mul_f32 v{TX}, {f2u(8.0)}, v{VG}
    """)
    emit_pow(E, f"v{TX}", A2, REV, CO, CO + 1, T0)
    cfma(E, ES + 2, ES + 3, CO, Q + 2, Q + 3, ES + 2, ES + 3)
    return E.ins


def ssm2_loads(R, sagg, swc):
    E = Prog()
    E(f"""
    v_lshrrev_b32 v{T0}, 4, v0
    v_lshlrev_b32 v{T0}, 3, v{T0}
    v_sub_u32 v{T0}, s{swc}, v{T0}
    v_and_b32 v{T1}, 15, v0
    v_lshlrev_b32 v{T1}, 4, v{T1}
    v_lshrrev_b32 v{VAG}, 4, v0
    v_lshlrev_b32 v{VAG}, 11, v{VAG}
    v_sub_u32 v{VAG}, v{T1}, v{VAG}
    v_add_u32 v{VAG}, s{sagg}, v{VAG}
    v_mov_b32 v{T1}, {WS_ZREC}
    """)
    for q in range(8):
        E(f"""
        v_cmp_lt_i32 vcc, {q}, v{T0}
        v_add_u32 v{TX}, {(-256*(q+1)) & 0xffffffff}, v{VAG}
        v_cndmask_b32 v{TX}, v{T1}, v{TX}, vcc
        buffer_load_dwordx4 v[{R+4*q}:{R+4*q+3}], v{TX}, s[20:23], 0 offen sc0 sc1
        """)
    return E.ins


def ssm2(U, R, shf, lab, scr):
    E = Prog()
    E(f"v_min_f32 v{TX}, v{R+2}, v{R+3}")
    for q in range(1, 8):
        E(f"v_min3_f32 v{TX}, v{TX}, v{R+4*q+2}, v{R+4*q+3}")
    E(f"v_cmp_gt_f32 vcc, 0.5, v{TX}")
    E("s_nop 4")
    E(f"s_cbranch_vccnz {lab}_SLOW", tag="keepall")
    E(f"{lab}_BACK:", tag="nop")
    emit_pow(E, 64, A2, REV, C8, C8 + 1, T0)
    for q in range(6, -1, -1):
        cfma(E, R + 4 * q, R + 4 * q + 1, C8, R + 4 * q + 4, R + 4 * q + 5, R + 4 * q, R + 4 * q + 1)
    E(f"v_mul_f32 v{TX}, {f2u(512.0)}, v{VG}")
    emit_pow(E, f"v{TX}", A2, REV, C8, C8 + 1, T0)
    cmul(E, CO, C8, R)
    for pl in ("v_permlane16_swap_b32", "v_permlane32_swap_b32"):
        E(f"""
        v_mov_b32 v{T0}, v{CO}
        v_mov_b32 v{T1}, v{CO+1}
        {pl} v{CO}, v{T0}
        {pl} v{CO+1}, v{T1}
        v_add_f32 v{CO}, v{CO}, v{T0}
        v_add_f32 v{CO+1}, v{CO+1}, v{T1}
        """)
    E(f"""
    s_lshl_b32 s77, s53, 11
    s_add_u32 s77, s77, {scr}
    v_and_b32 v{VW}, 15, v0
    v_lshlrev_b32 v{VW}, 6, v{VW}
    v_bfe_u32 v{T0}, v0, 4, 1
    v_lshl_add_u32 v{VW}, v{T0}, 5, v{VW}
    v_lshrrev_b32 v{T1}, 5, v0
    v_lshl_add_u32 v{VW}, v{T1}, 3, v{VW}
    v_add_u32 v{VW}, s77, v{VW}
    v_lshlrev_b32 v{VR}, 3, v{T1}
    v_bfe_u32 v{T1}, v0, 2, 2
    v_add_u32 v{VR}, v{VR}, v{T1}
    v_lshlrev_b32 v{VR}, 6, v{VR}
    v_lshl_add_u32 v{VR}, v{T0}, 5, v{VR}
    v_and_b32 v{T1}, 3, v0
    v_lshl_add_u32 v{VR}, v{T1}, 3, v{VR}
    v_add_u32 v{VR}, s77, v{VR}
    """)
    for j in range(2):
        b = U + 16 * j
        E(f"v_mov_b32 v{TX}, {f2u(32.0*j)}")
        E(f"v_fmac_f32 v{TX}, {f2u(8.0)}, v{VG}")
        emit_pow(E, f"v{TX}", A2, REV, C8, C8 + 1, T0)
        e = ES + 2 * j
        cfma(E, e, e + 1, C8, CO, CO + 1, e, e + 1)
        pre, pim = e, e + 1
        for k in range(8):
            cfma(E, b + k, b + 8 + k, L1, pre, pim, b + k, b + 8 + k)
            pre, pim = b + k, b + 8 + k
        for k in range(4):
            E(f"v_cvt_pk_bf16_f32 v{b+k}, v{b+2*k}, v{b+2*k+1}")
        for k in range(4):
            E(f"v_cvt_pk_bf16_f32 v{b+8+k}, -v{b+8+2*k}, -v{b+8+2*k+1}")
        E(f"""
        ds_write_b64 v{VW}, v[{b}:{b+1}]
        ds_write_b64 v{VW}, v[{b+2}:{b+3}] offset:16
        ds_write_b64 v{VW}, v[{b+8}:{b+9}] offset:1024
        ds_write_b64 v{VW}, v[{b+10}:{b+11}] offset:1040
        ds_read_b64_tr_b16 v[{b+4}:{b+5}], v{VR}
        ds_read_b64_tr_b16 v[{b+6}:{b+7}], v{VR} offset:256
        ds_read_b64_tr_b16 v[{b+12}:{b+13}], v{VR} offset:1024
        ds_read_b64_tr_b16 v[{b+14}:{b+15}], v{VR} offset:1280
        s_add_u32 s77, s{shf+j}, {36*1024}
        """)
        E(f"""
        buffer_store_dwordx4 v[{b+4}:{b+7}], v{V_LANE16}, s[20:23], s{shf+j} offen sc1
        buffer_store_dwordx4 v[{b+12}:{b+15}], v{V_LANE16}, s[20:23], s77 offen sc1
        """, tag="fx")
    return E.ins


def ssm2_slow(P, R, sagg, swc, lab):
    P(f"{lab}_SLOW:")
    P("s_mov_b32 s78, 0")
    P(f"{lab}_SPIN:")
    P("s_sleep 4")
    P.extend(ssm2_loads(R, sagg, swc))
    P(f"v_min_f32 v{TX}, v{R+2}, v{R+3}")
    for q in range(1, 8):
        P(f"v_min3_f32 v{TX}, v{TX}, v{R+4*q+2}, v{R+4*q+3}")
    P(f"""
    v_cmp_gt_f32 vcc, 0.5, v{TX}
    s_add_u32 s78, s78, 1
    s_nop 4
    s_cbranch_vccz {lab}_BACK
    s_cmp_lt_u32 s78, 100000
    s_cbranch_scc1 {lab}_SPIN
    s_branch {lab}_BACK
    """)


def N0():
    return tuple(int(x) for x in os.environ.get("N0", "2,0,0").split(","))


def ln_phase(P, dma4, dmaU, xloads, ROT, PRE):
    P("s_load_dwordx2 s[82:83], s[0:1], 0") if False else None
    P(f"""
    s_lshr_b32 s57, s2, 5
    s_bfe_u32 s58, s2, 0x20003
    s_lshl_b32 s58, s58, 1
    s_add_u32 s57, s57, s58
    s_cmp_ge_u32 s57, 9
    s_cselect_b32 s58, 9, 0
    s_sub_u32 s57, s57, s58
    s_mul_i32 s57, s57, {1 if ROT else 0}
    s_sub_u32 s3, 9, s57
    s_mul_i32 s58, s57, {64*9216}
    s_add_u32 s56, s56, s58
    s_add_u32 s72, s72, s58
    s_sub_u32 s4, s56, {9*64*9216}
    s_sub_u32 s5, s72, {9*64*9216}
    s_lshl_b32 s58, s57, 7
    s_add_u32 s63, s63, s58
    s_sub_u32 s6, s63, {9*128}
    s_lshl_b32 s58, s57, 12
    s_add_u32 s64, s64, s58
    s_add_u32 s65, s65, s58
    s_sub_u32 s7, s64, {9*4096}
    s_sub_u32 s78, s65, {9*4096}
    """)
    P("s_load_dwordx2 s[48:49], s[0:1], 112")
    first = []
    for kb in range(2):
        first += dma4(0, kb)
    rest = []
    na, nb, nu = N0()
    for kb in range(2, na):
        rest += dma4(0, kb)
    for kb in range(4):
        rest += (dma4(1, kb) if kb < nb else []) + (dmaU(kb) if kb < nu else [])
    P("s_waitcnt lgkmcnt(0)")
    srd(P, 36, 48, 49, 256)
    P("s_cmp_lg_u32 s53, 0")
    P("s_cbranch_scc1 K2_NOLN")
    R, F, S, Z = ACC, ACC + 40, ACC + 120, ACC + 136
    allw = first + rest
    P(f"""
    v_mov_b32 v{Z}, 0
    v_mov_b32 v{Z+1}, 0
    v_mov_b32 v{Z+2}, 0
    v_mov_b32 v{Z+3}, 0
    v_mov_b32 v{Z+4}, 0
    v_mov_b32 v{Z+5}, 0
    v_mov_b32 v{Z+6}, 1.0
    v_mov_b32 v{Z+7}, 1.0
    s_mul_i32 s58, s2, {5*CNT_STRIDE}
    s_add_u32 s58, s58, {WS_CNT}
    v_mul_u32_u24 v{Z+8}, {CNT_STRIDE}, v0
    v_cmp_gt_u32 vcc, 5, v0
    v_cndmask_b32 v{Z+8}, 2.0, v{Z+8}, vcc
    buffer_store_dword v{Z}, v{Z+8}, s[20:23], s58 offen sc0 sc1
    s_mul_i32 s58, s2, {72*16}
    s_add_u32 s58, s58, {WS_AGG}
    v_cmp_gt_u32 vcc, 8, v0
    v_cndmask_b32 v{Z+8}, 2.0, v{V_LANE16}, vcc
    buffer_store_dwordx4 v[{Z}:{Z+3}], v{V_LANE16}, s[20:23], s58 offen sc0 sc1
    buffer_store_dwordx4 v[{Z}:{Z+3}], v{Z+8}, s[20:23], s58 offen offset:1024 sc0 sc1
    s_lshl_b32 s57, s51, 5
    s_add_u32 s57, s57, s50
    s_lshl_b32 s42, s57, 7
    s_add_u32 s42, s42, {WS_MBX}
    buffer_store_dword v{Z}, v{SGO}, s[20:23], s42 offen sc0 sc1
    s_cmp_eq_u32 s2, 0
    s_cselect_b32 s58, 0, 0x40000000
    s_add_u32 s58, s58, {WS_ZREC}
    buffer_store_dwordx4 v[{Z+4}:{Z+7}], v{SGO}, s[20:23], s58 offen sc0 sc1
    """)
    for ins, _ in allw:
        P.extend(ins)
    P(f"""
    s_and_b32 s58, s50, 3
    s_lshl_b32 s58, s58, 3
    v_lshrrev_b32 v{S+10}, 3, v0
    v_add_u32 v{S+10}, s58, v{S+10}
    v_lshrrev_b32 v{S+8}, 1, v{S+9}
    v_lshlrev_b32 v{S+8}, 10, v{S+8}
    v_and_b32 v{S+11}, 1, v{S+9}
    v_lshl_add_u32 v{S+8}, v{S+11}, 9, v{S+8}
    v_lshl_add_u32 v{S+8}, v{S+10}, 4, v{S+8}
    s_lshr_b32 s58, s57, 2
    s_mul_i32 s58, s58, 36864
    """)

    def reduce8():
        P(f"""
        v_add_f32 v{S}, v{S}, v{S+1}
        v_add_f32_dpp v{S}, v{S}, v{S} quad_perm:[1,0,3,2] row_mask:0xf bank_mask:0xf
        v_add_f32_dpp v{S}, v{S}, v{S} quad_perm:[2,3,0,1] row_mask:0xf bank_mask:0xf
        v_add_f32_dpp v{S}, v{S}, v{S} row_half_mirror row_mask:0xf bank_mask:0xf
        """)
    for d in range(36):
        P(f"v_lshlrev_b32 v{F+2*d}, 16, v{R+d}")
        P(f"v_and_b32 v{F+2*d+1}, 0xffff0000, v{R+d}")
        if d == 1:
            P(f"v_pk_add_f32 v[{S}:{S+1}], v[{F}:{F+1}], v[{F+2}:{F+3}]")
        elif d > 1:
            P(f"v_pk_add_f32 v[{S}:{S+1}], v[{S}:{S+1}], v[{F+2*d}:{F+2*d+1}]")
    reduce8()
    if os.environ.get("PROST"): P.stamp(8)
    P(f"v_mul_f32 v{S+2}, {f2u(-1.0/576)}, v{S}")
    for d in range(36):
        P(f"v_pk_add_f32 v[{S+4}:{S+5}], v[{F+2*d}:{F+2*d+1}], v[{S+2}:{S+3}] op_sel_hi:[1,0]")
        if d == 0:
            P(f"v_pk_mul_f32 v[{S}:{S+1}], v[{S+4}:{S+5}], v[{S+4}:{S+5}]")
        else:
            P(f"v_pk_fma_f32 v[{S}:{S+1}], v[{S+4}:{S+5}], v[{S+4}:{S+5}], v[{S}:{S+1}]")
    reduce8()
    P(f"v_mul_f32 v{S+6}, {f2u(1.0/576)}, v{S}")
    bf16r(P, S + 2, S + 2)
    bf16r(P, S + 6, S + 6)
    P(f"v_add_f32 v{S+6}, {f2u(1e-5)}, v{S+6}")
    bf16r(P, S + 6, S + 6)
    P(f"v_sqrt_f32 v{S+6}, v{S+6}")
    bf16r(P, S + 6, S + 6)
    P(f"v_rcp_f32 v{S+6}, v{S+6}")
    for j in range(9):
        for d in range(4 * j, 4 * j + 4):
            a_, b_ = F + 2 * d, F + 2 * d + 1
            P(f"""
            v_pk_add_f32 v[{a_}:{b_}], v[{a_}:{b_}], v[{S+2}:{S+3}] op_sel_hi:[1,0]
            v_cvt_pk_bf16_f32 v{b_}, v{a_}, v{b_}
            v_lshlrev_b32 v{a_}, 16, v{b_}
            v_and_b32 v{b_}, 0xffff0000, v{b_}
            v_pk_mul_f32 v[{a_}:{b_}], v[{a_}:{b_}], v[{S+6}:{S+7}] op_sel_hi:[1,0]
            v_cvt_pk_bf16_f32 v{R+d}, v{a_}, v{b_}
            """)
        P(f"s_add_u32 s59, s58, {WS_XNF + 4096*j}")
        P(f"buffer_store_dwordx4 v[{R+4*j}:{R+4*j+3}], v{S+8}, s[20:23], s59 offen sc1")
    if os.environ.get("PROST"): P.stamp(9)
    P("s_waitcnt vmcnt(0)")
    if os.environ.get("PROST"): P.stamp(10)
    P(f"""
    s_lshl_b32 s58, s51, 5
    v_mov_b32 v{S}, 1
    buffer_atomic_add v{S}, v{SGO}, s[36:39], s58 offen sc0 sc1
    s_lshl_b32 s58, s51, 12
    s_add_u32 s58, s58, {WS_MBX}
    v_lshlrev_b32 v{S+1}, 7, v0
    v_cmp_gt_u32 vcc, 32, v0
    v_cndmask_b32 v{S+1}, 2.0, v{S+1}, vcc
    v_readfirstlane_b32 s59, v{S}
    s_cmp_eq_u32 s59, 31
    s_cselect_b32 s58, s58, 0x40000000
    buffer_store_dword v{SGD}, v{S+1}, s[20:23], s58 offen sc0 sc1
    """)
    if os.environ.get("PROST"): P.stamp(11)
    P(f"v_mov_b32 v{Z+8}, 0")
    P("s_mov_b32 s58, 0")
    P("K2_XPOLL:")
    P(f"""
    buffer_load_dword v{Z+9}, v{Z+8}, s[20:23], s42 offen sc0 sc1
    s_waitcnt vmcnt(0)
    v_cmp_ne_u32 vcc, 1, v{Z+9}
    s_add_u32 s58, s58, 1
    s_nop 4
    s_cbranch_vccz K2_LNJOIN
    s_sleep {os.environ.get("XSLEEP", "2")}
    s_cmp_lt_u32 s58, 100000
    s_cbranch_scc1 K2_XPOLL
    s_branch K2_LNJOIN
    """)
    P("K2_NOLN:")
    P("s_lshr_b32 s57, s2, 3\ns_cmp_eq_u32 s53, 2\ns_cselect_b32 s57, s57, 4096")
    code_touch(P, "K2_PC0", "k2_kernel", "CODE_END", 92, Z + 10, 0, 57, True)
    for ins, _ in allw:
        P.extend(ins)
    WST = [x for x in os.environ.get("WARM", "A2,B0,A5").split(",") if x]
    WINF = int(os.environ.get("WINF", "8"))
    P(f"""
    s_mul_i32 s57, s53, {16*9216}
    v_subrev_u32 v{Z}, s57, v{V_D4}
    v_subrev_u32 v{Z+1}, s57, v{V_D4+1}
    """)
    k = 0
    for st_ in WST:
        grp, kb0 = (0 if st_[0] == "A" else 1), int(st_[1:])
        P(f"""
        s_add_u32 s57, s53, {kb0 - 1}
        s_cmp_ge_u32 s57, s3
        s_cselect_b32 s58, s4, s56
        s_mul_i32 s57, s57, {64*9216}
        s_add_u32 s58, s58, s57
        """)
        for m in range(2):
            for i in range(8):
                P(f"s_add_u32 s59, s58, {i*8*9216 + grp*128}")
                I = Ins(f"buffer_store_dword v{Z}, v{Z+m}, s[{8+4*m}:{11+4*m}], s59 offen")
                I.text = f"buffer_load_dwordx4 v[{Z+4}:{Z+7}], v{Z+m}, s[{8+4*m}:{11+4*m}], s59 offen"
                P.ins.append(I)
                k += 1
                if k > WINF:
                    P(f"s_waitcnt vmcnt({WINF})")
    P("K2_LNJOIN:")
    P("s_barrier")
    if os.environ.get("PROST"): P.stamp(12)
    for kb in range(PRE):
        for ins, _ in xloads(kb):
            P.extend(ins)
    P(f"s_waitcnt vmcnt({8*PRE})")


def gen_k2b(single=False):
    P = Prog()
    P("s_cmp_ge_u32 s2, 256")
    P("s_cbranch_scc1 K3_END")
    P.stamp(0, real=True)
    P.stamp(1)
    if single:
        S_ = ACC + 120
        P("s_load_dwordx2 s[88:89], s[0:1], 0")
        P(f"""
        s_and_b32 s57, s2, 4
        s_bfe_u32 s58, s2, 0x20003
        s_add_u32 s57, s57, s58
        s_lshl_b32 s57, s57, 3
        s_and_b32 s58, s2, 3
        s_lshl_b32 s58, s58, 1
        s_add_u32 s57, s57, s58
        s_lshr_b32 s58, s2, 7
        s_add_u32 s57, s57, s58
        s_lshl_b32 s57, s57, 5
        s_bfe_u32 s58, s2, 0x20005
        s_lshl_b32 s58, s58, 2
        s_add_u32 s57, s57, s58
        s_mul_i32 s58, s57, 1152
        v_bfe_u32 v{S_+8}, v0, 3, 2
        v_bfe_u32 v{S_+9}, v0, 5, 1
        v_lshl_add_u32 v{S_+8}, v{S_+9}, 4, v{S_+8}
        v_mul_u32_u24 v{S_+10}, 1152, v{S_+8}
        v_and_b32 v{S_+9}, 7, v0
        v_lshl_add_u32 v{S_+10}, v{S_+9}, 4, v{S_+10}
        v_cmp_gt_u32 vcc, 64, v0
        v_cndmask_b32 v{S_+10}, 2.0, v{S_+10}, vcc
        s_mov_b32 s90, {2048*1152}
        s_mov_b32 s91, 0x00020000
        s_waitcnt lgkmcnt(0)
        s_and_b32 s89, s89, 0xffff
        """)
        for j in range(9):
            P(f"buffer_load_dwordx4 v[{ACC+4*j}:{ACC+4*j+3}], v{S_+10}, s[88:91], s58 offen offset:{128*j}", tag="keep")
    P("s_load_dwordx4 s[36:39], s[0:1], 80")
    P("s_load_dwordx2 s[48:49], s[0:1], 120")
    P("s_load_dwordx4 s[40:43], s[0:1], 8")
    P("s_load_dwordx2 s[46:47], s[0:1], 56")
    P("s_load_dwordx2 s[100:101], s[0:1], 24")
    P("s_load_dwordx2 s[82:83], s[0:1], 32")
    P("""
    v_lshrrev_b32 v2, 6, v0
    v_and_b32 v0, 63, v0
    v_readfirstlane_b32 s53, v2
    s_and_b32 s52, s2, 3
    s_lshr_b32 s50, s2, 5
    s_lshl_b32 s51, s52, 3
    s_add_u32 s50, s50, s51
    s_and_b32 s51, s2, 4
    s_bfe_u32 s54, s2, 0x20003
    s_add_u32 s51, s51, s54
    s_mov_b32 s79, s53
    """)
    P(f"v_lshlrev_b32 v{V_LANE16}, 4, v0")
    P(f"""
    s_lshl_b32 s54, s51, 3
    s_lshl_b32 s55, s53, 1
    s_add_u32 s54, s54, s55
    s_mul_i32 s64, s54, 36864
    s_mul_i32 s55, s52, {0 if single else XNF_BYTES}
    s_add_u32 s64, s64, s55
    s_add_u32 s65, s64, 36864
    s_lshr_b32 s57, s50, 2
    s_and_b32 s58, s50, 3
    s_mul_i32 s66, s54, {360*1024}
    s_add_u32 s66, s66, {WS_HF}
    s_add_u32 s73, s66, {288*1024}
    s_mul_i32 s55, s57, {36*1024}
    s_add_u32 s66, s66, s55
    s_lshl_b32 s55, s58, 10
    s_add_u32 s68, s66, s55
    s_add_u32 s68, s68, {32*1024}
    s_add_u32 s69, s68, {360*1024}
    s_lshl_b32 s55, s58, 13
    s_add_u32 s66, s66, s55
    s_add_u32 s67, s66, {360*1024}
    s_mul_i32 s56, s57, 1152
    s_lshl_b32 s55, s58, 5
    s_add_u32 s72, s56, s55
    s_add_u32 s72, s72, 1024
    s_lshl_b32 s55, s58, 8
    s_add_u32 s56, s56, s55
    s_mov_b32 s70, {f2u(-2.0*math.sqrt(2.0/math.pi)*LOG2E*0.044715)}
    v_mov_b32 v{V_C0}, {f2u(-2.0*math.sqrt(2.0/math.pi)*LOG2E)}
    """)
    P(f"""
    v_lshrrev_b32 v14, 3, v0
    v_and_b32 v15, 2, v14
    v_bfe_u32 v{V_D4}, v0, 1, 2
    v_xor_b32 v{V_D4}, v{V_D4}, v15
    v_lshlrev_b32 v{V_D4}, 5, v{V_D4}
    v_and_b32 v15, 1, v0
    v_lshl_add_u32 v{V_D4}, v15, 4, v{V_D4}
    s_lshl_b32 s57, s53, 4
    v_add_u32 v14, s57, v14
    v_mul_u32_u24 v14, 9216, v14
    v_add_u32 v{V_D4}, v{V_D4}, v14
    v_xor_b32 v{V_D4+1}, 32, v{V_D4}
    v_lshrrev_b32 v14, 1, v0
    s_lshl_b32 s57, s53, 1
    s_and_b32 s57, s57, 4
    v_xor_b32 v14, s57, v14
    v_mul_u32_u24 v14, 9216, v14
    v_lshl_add_u32 v{V_DE}, v15, 4, v14
    s_lshl_b32 s61, s53, 11
    """)
    P("s_waitcnt lgkmcnt(0)")
    srd(P, 8, 36, 37, 576 * 9216)
    srd(P, 12, 38, 39, 576 * 9216)
    srd(P, 20, 48, 49, WS_BYTES)

    ROT = single and int(os.environ.get("ROT2", "1"))
    def rsel(D, dst, base, kb, const):
        if ROT and kb > 0:
            D(f"s_cmp_ge_u32 {kb}, s3")
            D(f"s_cselect_b32 s{dst}, s{HI[base]}, s{base}")
            D(f"s_add_u32 s{dst}, s{dst}, {const}")
        else:
            D(f"s_add_u32 s{dst}, s{base}, {const}")
    HI = {56: 4, 72: 5, 63: 6, 64: 7, 65: 78}
    slotA = [0, 1, 2, 3, 4, 0, 1, 2, 3]
    slotB = [5, 6, 7, 8, 4, 0, 1, 2, 3]
    freeB = [None, None, None, None, 4, 5, 6, 7, 8]

    def dma4(grp, kb):
        slot = (slotA if grp == 0 else slotB)[kb] * SLOT
        out = []
        for m in range(2):
            for i in range(2):
                D = Prog()
                D(f"s_add_u32 m0, s61, {slot + m*8192 + i*1024}")
                rsel(D, 59, 56, kb, (kb*64 + i*8)*9216 + grp*128)
                D(f"buffer_load_dwordx4 v{V_D4+m}, s[{8+4*m}:{11+4*m}], s59 offen lds", tag=("W", grp, kb))
                out.append((D.ins, 8))
        return out

    def dmaU(kb):
        D = Prog()
        D(f"s_add_u32 m0, s60, {(kb % 4)*4096}")
        rsel(D, 59, 63, kb, kb*128)
        D(f"buffer_load_dwordx4 v{V_DU}, s[44:47], s59 offen lds", tag=("W", 1, kb))
        return [(D.ins, 8)]

    def dmaE(kb):
        D = Prog()
        D(f"s_add_u32 m0, s60, {((9 + kb) % 4)*4096}")
        rsel(D, 59, 72, kb, kb*64*9216)
        D(f"buffer_load_dwordx4 v{V_DE}, s[16:19], s59 offen lds", tag=("W", 2, kb))
        return [(D.ins, 32)]

    def xloads(kb):
        out = []
        for s in range(4):
            for j in range(2):
                D = Prog()
                rsel(D, 62, 64 + j, kb, WS_XNF + kb*4096)
                D(f"buffer_load_dwordx4 {xreg(j, kb*4+s)}, v{V_LANE16}, s[20:23], s62 offen offset:{s*1024}" + (" sc1" if single else ""))
                out.append((D.ins, 8))
        return out

    PRE = int(os.environ.get("K2PRE", "2"))
    if not single:
        for kb in range(PRE):
            for ins, _ in dma4(0, kb) + xloads(kb):
                P.extend(ins)
    srd(P, 24, 40, 41, 1152)
    srd(P, 28, 42, 43, 1152)
    srd(P, 32, 46, 47, 1152)
    P(f"""
    s_cmp_lt_u32 s53, 2
    s_cselect_b32 s16, s8, s12
    s_cselect_b32 s17, s9, s13
    s_cselect_b32 s44, s100, s82
    s_cselect_b32 s45, s101, s83
    s_and_b32 s45, s45, 0xffff
    s_mov_b32 s46, {576*1152}
    s_mov_b32 s47, 0x00020000
    s_mov_b32 s18, {576*9216}
    s_mov_b32 s19, 0x00020000
    s_and_b32 s57, s53, 1
    s_mul_i32 s55, s57, {32*9216}
    s_add_u32 s72, s72, s55
    s_lshl_b32 s60, s53, 10
    s_add_u32 s60, s60, {E_BASE}
    s_mul_i32 s63, s50, {16*1152}
    """)
    P(f"""
    v_lshrrev_b32 v14, 3, v0
    v_lshrrev_b32 v15, 4, v0
    s_lshl_b32 s55, s57, 2
    v_add_u32 v15, s55, v15
    v_and_b32 v13, 7, v0
    v_xor_b32 v13, v13, v15
    s_lshl_b32 s55, s57, 3
    v_add_u32 v14, s55, v14
    v_mul_u32_u24 v14, 1152, v14
    v_lshl_add_u32 v{V_DU}, v13, 4, v14
    """)
    P(f"""
    v_and_b32 v14, 1, v0
    v_lshlrev_b32 v14, 4, v14
    v_bfe_u32 v15, v0, 1, 1
    v_lshl_add_u32 v14, v15, 3, v14
    v_lshrrev_b32 v15, 5, v0
    v_lshlrev_b32 v15, 3, v15
    v_bfe_u32 v{WF}, v0, 2, 2
    v_add_u32 v15, v15, v{WF}
    v_bfe_u32 v{WF+1}, v0, 4, 1
    v_and_b32 v{WF}, 2, v{WF}
    v_xor_b32 v{WF}, v{WF}, v{WF+1}
    v_lshl_add_u32 v{V_R4}, v15, 7, v14
    v_lshl_add_u32 v{V_R4}, v{WF+1}, 13, v{V_R4}
    v_lshl_add_u32 v{V_R4}, v{WF}, 5, v{V_R4}
    v_xor_b32 v{V_R4+1}, 32, v{V_R4}
    v_xor_b32 v{V_R4+2}, 64, v{V_R4}
    v_xor_b32 v{V_R4+3}, 96, v{V_R4}
    v_lshl_add_u32 v{V_RE}, v15, 5, v14
    v_lshl_add_u32 v{V_RE}, v{WF+1}, 11, v{V_RE}
    v_lshl_add_u32 v{V_RE}, v{WF+1}, 7, v{V_RE}
    v_add_u32 v{V_RE}, {E_BASE}, v{V_RE}
    v_xor_b32 v{V_RE2}, 128, v{V_RE}
    v_and_b32 v13, 31, v0
    v_bfe_u32 v{WF}, v13, 1, 3
    v_lshrrev_b32 v{WF+1}, 5, v0
    v_xor_b32 v{WF}, v{WF}, v{WF+1}
    v_lshlrev_b32 v{WF}, 4, v{WF}
    v_lshl_add_u32 v{V_UB}, v13, 7, v{WF}
    v_add_u32 v{V_UB}, {E_BASE}, v{V_UB}
    """)
    P(f"""
    s_lshl_b32 s76, s51, 2
    s_add_u32 s76, s76, s53
    s_lshl_b32 s75, s50, 5
    s_add_u32 s75, s75, s76
    s_lshl_b32 s75, s75, 8
    s_add_u32 s75, s75, {WS_AGG}
    s_lshl_b32 s55, s50, 10
    s_add_u32 s40, s73, s55
    s_add_u32 s41, s40, {360*1024}
    s_lshl_b32 s100, s76, 2
    s_add_u32 s100, s100, s52
    s_add_u32 s100, s100, 192
    s_mul_i32 s100, s100, {CNT_STRIDE}
    s_add_u32 s100, s100, {WS_CNT}
    s_add_u32 s83, s100, {160*CNT_STRIDE}
    s_lshr_b32 s101, s76, 1
    s_add_u32 s101, s101, 320
    s_mul_i32 s101, s101, {CNT_STRIDE}
    s_add_u32 s101, s101, {WS_CNT}
    v_cmp_eq_u32 vcc, 0, v0
    v_mov_b32 v{SGD}, 1
    v_cndmask_b32 v{SGO}, 2.0, v0, vcc
    """)
    NA0, NB0, NU0 = N0() if single else (PRE, 0, 0)
    if single:
        ln_phase(P, dma4, dmaU, xloads, ROT, PRE)
    pl_ld, pl_calc = ssm_params(50)
    phases = [
        [("A", 0, 0), ("A", 1, 1), ("A", 2, 2), ("A", 3, 3)],
        [("U", 0, 4), ("B", 0, 0)],
        [("E", 0, 1), ("B", 1, 2)],
        [("B", 2, 3)],
        [("B", 3, 0)],
    ]
    frags = []
    unit = 0
    for ph, tiles in enumerate(phases):
        for kb in range(9):
            order = [(s_, t) for s_ in range(4) for t in tiles]
            if (ph == 0 and kb == 8) or (ph == 1 and kb == 0):
                order = [(s_, tiles[0]) for s_ in range(4)] + [(s_, t) for s_ in range(4) for t in tiles[1:]]
            for s_, (buf, g, sl) in order:
                frags.append(dict(ph=ph, buf=buf, kb=kb, s=s_, g=g, slot=sl, ks=kb * 4 + s_, unit=unit))
            unit += 1
    bar_units = set(range(0, 27)) | {28}
    items = []
    for kb in range(PRE, 9):
        rel = -1 if kb < 5 else kb - 5 + 2
        for ins, ln in (dma4(0, kb) if kb >= NA0 else []):
            items.append([16 * kb - 1, rel, ins, ln])
        for ins, ln in xloads(kb):
            items.append([16 * kb, -1, ins, ln])
    for kb in range(9):
        rel = -1 if freeB[kb] is None else freeB[kb] + 2
        for ins, ln in (dma4(1, kb) if kb >= NB0 else []):
            items.append([144 + 8 * kb, rel, ins, ln])
        rel = -1 if kb < 4 else 9 + (kb - 4) + 2
        for ins, ln in (dmaU(kb) if kb >= NU0 else []):
            items.append([144 + 8 * kb - 1, rel, ins, ln])
        rel = 9 + (9 + kb - 4) + 2
        for ins, ln in dmaE(kb):
            items.append([216 + 8 * kb - 1, rel, ins, ln])
    items.sort(key=lambda x: x[0])
    released = [-1]
    seen = set()
    region = [0]

    def frag_read(M, n, part):
        f = frags[n]
        u = f["unit"]
        if u not in seen:
            seen.add(u)
            if u in bar_units:
                M.waitvm(("W", min(f["ph"], 2), f["kb"]))
                M("s_barrier")
                released[0] = u
                if u in (3, 6, 9, 12, 15, 18, 21, 24, 28) and not os.environ.get("PROST"):
                    M.stamp(2 + u // 3)
        b = WF + 4 * (n % NWF)
        if f["buf"] == "U":
            if part == 0:
                if f["s"]:
                    M(f"v_xor_b32 v{V_UT}, {32*f['s']}, v{V_UB}")
                M(f"ds_read_b128 v[{b}:{b+3}], v{V_UT if f['s'] else V_UB} offset:{(f['kb'] % 4)*4096}")
            return
        if f["buf"] == "E":
            off = ((9 + f["kb"]) % 4) * 4096 + f["s"] * 16 * 32
            base = V_RE if part == 0 else V_RE2
        else:
            sl = (slotA if f["buf"] == "A" else slotB)[f["kb"]]
            reg = sl // 3
            if reg != region[0]:
                d = (reg - region[0]) * 3 * SLOT
                for g in range(4):
                    M(f"v_add_u32 v{V_R4+g}, {d & 0xffffffff}, v{V_R4+g}")
                region[0] = reg
            base = V_R4 + f["g"]
            off = (sl % 3) * SLOT + f["s"] * 16 * 128 + part * 512
        M(f"ds_read_b64_tr_b16 v[{b+2*part}:{b+2*part+1}], v{base} offset:{off}")

    for n in range(DIST):
        frag_read(P, n, 0)
        frag_read(P, n, 1)
    P.stamp(2)
    CR0 = float(os.environ.get("CR0", "6.3"))
    CR1 = float(os.environ.get("CR1", "6.6"))
    credit = 0.0
    B = Prog()
    ph_start = {}
    nm_ = 0
    for n, f in enumerate(frags):
        ph_start.setdefault(f["ph"], nm_)
        b = WF + 4 * (n % NWF)
        credit = min(credit + (CR0 if f["ph"] == 0 else CR1), 16.0)
        for j in range(2):
            a = ACC + 32 * f["slot"] + 16 * j
            c = "0" if f["ks"] == 0 else f"v[{a}:{a+15}]"
            if f["buf"] == "U":
                B(f"v_mfma_f32_32x32x16_bf16 v[{a}:{a+15}], {xreg(j, f['ks'])}, v[{b}:{b+3}], {c}")
            else:
                B(f"v_mfma_f32_32x32x16_bf16 v[{a}:{a+15}], v[{b}:{b+3}], {xreg(j, f['ks'])}, {c}")
            nm_ += 1
            if n + DIST < len(frags):
                frag_read(B, n + DIST, j)
            assert not items or items[0][0] > n + DIST + 1, ("load issued too late", n, items[0][0])
            if j == 1 and (credit > 0 or (items and items[0][0] - n < 14)):
                for k, it in enumerate(items):
                    if it[1] <= released[0]:
                        B.extend(it[2])
                        credit -= it[3]
                        del items[k]
                        break
    assert not items, len(items)
    ph_start[5] = nm_
    A_ = lambda t, **k: epilogue(t, 66, 1024 * t, tag="early", **k)
    Bslot = [0, 2, 3, 0]
    B_ = lambda t, **k: epilogue(Bslot[t], 66, 4096 + 1024 * t, **k)
    E_ = lambda **k: epilogue(1, 68, 0, **k)
    U = ACC + 128
    RC = ACC + 32

    def sig(tag, sreg):
        Qp = Prog()
        Qp.waitvm(tag)
        Qp(f"buffer_atomic_add v{SGD}, v{SGO}, s[20:23], s{sreg} offen sc1")
        return Qp.ins

    def spread(body, extra, width, lo=0.0, hi=1.0):
        groups = [extra[i:i + width] for i in range(0, len(extra), width)]
        n = len(body)
        pos = [int(n * (lo + (hi - lo) * (k + 0.5) / len(groups))) for k in range(len(groups))]
        out = []
        for i_, x in enumerate(body):
            while pos and i_ >= pos[0] and not any(y.text.startswith("s_add_u32 s71") for y in out[-3:]):
                out += groups.pop(0)
                pos.pop(0)
            out.append(x)
        for g_ in groups:
            out += g_
        return out

    PFp = Prog()
    PFp("s_load_dwordx2 s[36:37], s[0:1], 96")
    PFp("s_load_dwordx4 s[24:27], s[0:1], 40")
    PFp(f"""
    s_lshl_b32 s42, s2, 2
    s_add_u32 s42, s42, s53
    s_lshl_b32 s42, s42, 10
    s_waitcnt lgkmcnt(0)
    """)
    srd(PFp, 4, 36, 37, 4608 * 1152)
    srd(PFp, 28, 24, 25, 576 * 1152)
    srd(PFp, 32, 26, 27, 576 * 1152)
    pf = []
    for sd, i in [(4, 0), (4, 1), (28, 0), (4, 2), (4, 3), (32, 0), (4, 4), (4, 5)]:
        G = Prog()
        G(f"s_add_u32 s43, s42, {i*1024*1024}")
        I = Ins(f"buffer_store_dword v{V_LANE16}, v{V_LANE16}, s[{sd}:{sd+3}], s43 offen")
        I.text = f"buffer_load_dwordx4 v[{Q}:{Q+3}], v{V_LANE16}, s[{sd}:{sd+3}], s43 offen"
        G.ins.append(I)
        pf += G.ins
    if not int(os.environ.get("PF3B", "1")):
        pf = []
    L = B.ins
    p1, p2, p3, p4, p5 = (ph_start[k] for k in range(1, 6))
    ST = lambda t: A_(t, part="store")
    L = interleave2(L, pl_ld, start=8, end=24)
    if single:
        CK = Prog()
        CK(f"v_and_b32 v{VAG}, 7, v0")
        CK(f"v_lshlrev_b32 v{VAG}, 5, v{VAG}")
        CK(f"buffer_load_dword v{ES}, v{VAG}, s[36:39], 0 offen sc0 sc1")
        CK2 = Prog()
        CK2(f"v_cmp_ne_u32 vcc, 32, v{ES}")
        CK2("s_nop 4")
        CK2("s_cbranch_vccnz K2A_SLOW", tag="keepall")
        CK2("K2A_BACK:", tag="nop")
        L = interleave2(L, CK.ins, start=p1 - 70, end=p1 - 66)
        L = interleave2(L, CK2.ins, start=p1 - 28, end=p1 - 26)
    L = interleave2(L, pl_calc, start=110, end=p1 - 72)
    L = interleave2(L, A_(0), start=p1 - 23, end=p1 + 7)
    L = interleave2(L, A_(1, part="calc") + A_(2, part="calc") + A_(3, part="calc") + ST(1) + ST(2), start=p1 + 8, end=p2 - 1)
    L = interleave2(L, ssm1(U, 75) + B_(0, part="calc") + ST(3), start=p2 + 1, end=p3 - 1)
    idx = [k for k, i in enumerate(L) if i.kind == "mfma"]
    cut = idx[p3]
    P.extend(L[:cut])
    P.extend(PFp.ins)
    if int(os.environ.get("CPF3", "1")):
        P("s_lshr_b32 s77, s2, 3\ns_lshl_b32 s77, s77, 2\ns_add_u32 s77, s77, s53")
        code_touch(P, "K2_PC", "K3_GOON", "CODE_END", 24, Q + 4, 0, 77, False)
    L = L[cut:]
    n3, n4 = p4 - p3, p5 - p3
    f3 = spread(E_() + B_(0, part="store") + B_(1, part="calc"), pf, 2, 0.0, 0.6) + sig("early", 83) + ssm2_loads(RC, 75, 76) + B_(1, part="store")
    L = interleave2(L, f3, start=1, end=n3 + 8)
    L = interleave2(L, B_(2)[:60] + ssm2(U, RC, 40, "K2S", E_BASE) + B_(2)[60:], start=n3 + 9, end=n4 - 1)
    cnt = 0
    for i_ in L:
        P.ins.append(i_)
        if i_.kind == "mfma":
            cnt += 1
            if cnt == n3 and not os.environ.get("PROST"):
                P.stamp(12)
    P.stamp(13)
    P.extend(B_(3))
    P.stamp(14)
    P.stamp(15, real=True)
    P.dump_stamps(9, 20, WS_DBG + 0x10000, 14)
    P("s_mov_b64 exec, -1")
    return P


def tail_job(P, single=False):
    P("s_load_dwordx4 s[40:43], s[0:1], 8")
    P("s_load_dwordx2 s[36:37], s[0:1], 56")
    P(f"""
    s_lshr_b32 s50, s2, 5
    s_lshl_b32 s50, s50, 1
    s_add_u32 s50, s50, 20
    s_add_u32 s54, s50, 1
    s_mul_i32 s63, s50, {16*1152}
    s_lshl_b32 s60, s53, 10
    """)
    if single:
        P(f"""
        s_sub_u32 s58, 9, s3
        s_lshl_b32 s58, s58, 7
        s_add_u32 s63, s63, s58
        s_sub_u32 s58, s63, {9*128}
        """)
    for u in range(2):
        for kb in range(9):
            if single and kb > 0:
                P(f"s_cmp_ge_u32 {kb}, s3")
                P(f"s_cselect_b32 s59, s58, s63")
                P(f"s_add_u32 s59, s59, {u*16*1152 + kb*128}")
            else:
                P(f"s_add_u32 s59, s63, {u*16*1152 + kb*128}")
            P(f"s_add_u32 m0, s60, {(u*9 + kb)*4096}")
            P(f"buffer_load_dwordx4 v{V_DU}, s[44:47], s59 offen lds")
    P("s_waitcnt lgkmcnt(0)")
    srd(P, 24, 40, 41, 1152)
    srd(P, 28, 42, 43, 1152)
    srd(P, 32, 36, 37, 1152)
    P(f"""
    v_and_b32 v13, 31, v0
    v_bfe_u32 v5, v13, 1, 3
    v_lshrrev_b32 v6, 5, v0
    v_xor_b32 v5, v5, v6
    v_lshlrev_b32 v5, 4, v5
    v_lshl_add_u32 v5, v13, 7, v5
    v_xor_b32 v6, 32, v5
    v_xor_b32 v7, 64, v5
    v_xor_b32 v8, 96, v5
    v_add_u32 v9, {9*4096}, v5
    v_add_u32 v10, {9*4096}, v6
    v_add_u32 v11, {9*4096}, v7
    v_add_u32 v12, {9*4096}, v8
    s_lshl_b32 s75, s50, 5
    s_add_u32 s75, s75, s76
    s_lshl_b32 s75, s75, 8
    s_add_u32 s75, s75, {WS_AGG}
    s_add_u32 s74, s75, {32*256}
    s_lshl_b32 s55, s50, 10
    s_add_u32 s40, s73, s55
    s_add_u32 s41, s40, {360*1024}
    s_add_u32 s42, s40, 1024
    s_add_u32 s43, s41, 1024
    s_add_u32 s101, s101, {16*CNT_STRIDE}
    """)
    ld0, ca0 = ssm_params(50)
    ld1, ca1 = ssm_params(54)
    P.extend(ld0)
    P("s_waitcnt vmcnt(0)")
    P("s_barrier")
    M = Prog()
    fr = [(u, ks) for ks in range(36) for u in range(2)]
    FB = ACC + 96
    def rd(n):
        u, ks = fr[n]
        b = FB + 4 * (n % 8)
        M(f"ds_read_b128 v[{b}:{b+3}], v{5 + 4*u + (ks & 3)} offset:{(ks >> 2)*4096}")
    for n in range(6):
        rd(n)
    for n, (u, ks) in enumerate(fr):
        b = FB + 4 * (n % 8)
        for j in range(2):
            a = ACC + 32 * u + 16 * j
            c = "0" if ks == 0 else f"v[{a}:{a+15}]"
            M(f"v_mfma_f32_32x32x16_bf16 v[{a}:{a+15}], {xreg(j, ks)}, v[{b}:{b+3}], {c}")
            if j == 0 and n + 6 < len(fr):
                rd(n + 6)
    P.extend(interleave2(M.ins, ca0, start=4, end=60))
    SV = ACC + 128
    keep = [A2, REV, L1, L1 + 1, ES, ES + 1, ES + 2, ES + 3]
    P.extend(ssm1(ACC, 75))
    for k, r in enumerate(keep):
        P(f"v_mov_b32 v{SV+k}, v{r}")
    P.extend(ld1)
    P.extend(ca1)
    P.extend(ssm1(ACC + 32, 74))
    P("s_barrier")
    RC = ACC + 64
    for k, r in enumerate(keep):
        P(f"v_mov_b32 v{SV+8+k}, v{r}")
        P(f"v_mov_b32 v{r}, v{SV+k}")
    P.extend(ssm2_loads(RC, 75, 76))
    P.extend(ssm2(ACC, RC, 40, "K2T0", 0))
    for k, r in enumerate(keep):
        P(f"v_mov_b32 v{r}, v{SV+8+k}")
    P.extend(ssm2_loads(RC, 74, 76))
    P.extend(ssm2(ACC + 32, RC, 42, "K2T1", 0))
    P(f"""
    s_waitcnt vmcnt(0)
    v_mov_b32 v{SGD}, 2
    buffer_atomic_add v{SGD}, v{SGO}, s[20:23], s101 offen sc1
    s_branch K3_END
    """)
    ssm2_slow(P, RC, 75, 76, "K2T0")
    ssm2_slow(P, RC, 74, 76, "K2T1")
    ssm2_slow(P, ACC + 32, 75, 76, "K2S")
    if single:
        P("K2A_SLOW:")
        P("s_mov_b32 s71, 0")
        P("K2A_SPIN:")
        P(f"""
        s_sleep 8
        buffer_load_dword v{ES}, v{VAG}, s[36:39], 0 offen sc0 sc1
        s_waitcnt vmcnt(0)
        v_cmp_ne_u32 vcc, 32, v{ES}
        s_add_u32 s71, s71, 1
        s_nop 4
        s_cbranch_vccz K2A_BACK
        s_cmp_lt_u32 s71, 100000
        s_cbranch_scc1 K2A_SPIN
        s_branch K2A_BACK
        """)
```

```python
import os, math
from asmlib import *
from layout import *
from k1 import code_touch, srd, f2u, bf16r, emit_param_loads, emit_params, emit_pow, LOG2E
from k2 import (SLOT, E_BASE, V_LANE16, V_D4, V_DE, V_R4, V_RE, V_RE2, V_C0, V_T, XV, ACC, WF, NWF, DIST,
                xreg, epilogue, cfma)

T0, T1, A2, REV = 228, 229, 230, 231
SGO, SGD = 232, 233
L1, CO = 234, 236
C8 = 238
ES = 240
Q = 244
V_DU, VAG, VG, TX = 252, 253, 254, 255
V_UB, V_UT = 14, 13
VW, VR = 13, 14


def cmul(E, o, a, b):
    E(f"""
    v_mul_f32 v{o}, v{a}, v{b}
    v_mul_f32 v{o+1}, v{a}, v{b+1}
    v_fma_f32 v{o}, -v{a+1}, v{b+1}, v{o}
    v_fmac_f32 v{o+1}, v{a+1}, v{b}
    """)


def ssm_params(spt):
    L = Prog()
    L(f"""
    v_and_b32 v{TX}, 15, v0
    s_lshl_b32 s77, s{spt}, 4
    v_add_u32 v{TX}, s77, v{TX}
    v_lshlrev_b32 v{TX}, 1, v{TX}
    """)
    emit_param_loads(L, TX, T0, 24, 28, 32)
    C = Prog()
    emit_params(C, T0)
    emit_pow(C, 1, A2, REV, L1, L1 + 1, Q)
    C(f"""
    v_add_f32 v{Q}, -1.0, v{L1}
    v_mul_f32 v{Q+1}, v{T0}, v{T0}
    v_fmac_f32 v{Q+1}, v{T1}, v{T1}
    v_rcp_f32 v{Q+1}, v{Q+1}
    v_mul_f32 v{CO}, v{Q}, v{T0}
    v_add_f32 v{Q+1}, v{Q+1}, v{Q+1}
    v_fmac_f32 v{CO}, v{L1+1}, v{T1}
    v_mul_f32 v{CO+1}, v{L1+1}, v{T0}
    v_fma_f32 v{CO+1}, -v{Q}, v{T1}, v{CO+1}
    v_mul_f32 v{CO}, v{CO}, v{Q+1}
    v_mul_f32 v{CO+1}, v{CO+1}, v{Q+1}
    v_lshrrev_b32 v{VG}, 4, v0
    v_cvt_f32_u32 v{VG}, v{VG}
    """)
    return L.ins, C.ins


def ssm1(U, sagg):
    E = Prog()
    for j in range(2):
        a = U + 16 * j
        for k in range(8):
            E(f"v_permlane16_swap_b32 v{a+k}, v{a+8+k}")
        hp = None
        for k in range(8):
            re_, im_ = a + k, a + 8 + k
            E(f"""
            v_mul_f32 v{T0}, v{CO}, v{re_}
            v_mul_f32 v{T1}, v{CO+1}, v{re_}
            v_fma_f32 v{re_}, -v{CO+1}, v{im_}, v{T0}
            v_fma_f32 v{im_}, v{CO}, v{im_}, v{T1}
            """)
            if k == 0:
                hp = (re_, im_)
            else:
                o = (Q + 4 * j) + 2 * (k & 1)
                cfma(E, o, o + 1, L1, hp[0], hp[1], re_, im_)
                hp = (o, o + 1)
    emit_pow(E, 8, A2, REV, C8, C8 + 1, T0)
    E(f"v_bfe_u32 v{TX}, v0, 4, 1")
    E(f"v_cvt_f32_u32 v{TX}, v{TX}")
    for j in range(2):
        a, b = Q + 4 * j + 2, Q + 4 * j
        E(f"""
        v_mov_b32 v{b}, v{a}
        v_mov_b32 v{b+1}, v{a+1}
        v_permlane16_swap_b32 v{a}, v{b}
        v_permlane16_swap_b32 v{a+1}, v{b+1}
        v_mul_f32 v{ES+2*j}, v{TX}, v{a}
        v_mul_f32 v{ES+2*j+1}, v{TX}, v{a+1}
        """)
        cfma(E, b, b + 1, C8, a, a + 1, b, b + 1)
    E(f"v_mul_f32 v{TX}, {f2u(8.0)}, v{TX}")
    emit_pow(E, f"v{TX}", A2, REV, CO, CO + 1, T0)
    E(f"""
    v_lshrrev_b32 v{TX}, 5, v0
    v_cvt_f32_u32 v{TX}, v{TX}
    v_mul_f32 v{CO}, v{TX}, v{CO}
    v_mul_f32 v{CO+1}, v{TX}, v{CO+1}
    """)
    cmul(E, T0, C8, C8)
    for j in range(2):
        a, b = Q + 4 * j + 2, Q + 4 * j
        E(f"""
        v_mov_b32 v{a}, v{b}
        v_mov_b32 v{a+1}, v{b+1}
        v_permlane32_swap_b32 v{b}, v{a}
        v_permlane32_swap_b32 v{b+1}, v{a+1}
        """)
        cfma(E, ES + 2 * j, ES + 2 * j + 1, CO, b, b + 1, ES + 2 * j, ES + 2 * j + 1)
        cfma(E, a, a + 1, T0, b, b + 1, a, a + 1)
    cmul(E, C8, T0, T0)
    cfma(E, Q + 4, Q + 5, C8, Q + 2, Q + 3, Q + 6, Q + 7)
    E(f"""
    v_mov_b32 v{Q+6}, 1.0
    v_mov_b32 v{Q+7}, 1.0
    v_lshlrev_b32 v{TX}, 4, v0
    v_cmp_gt_u32 vcc, 16, v0
    v_cndmask_b32 v{TX}, 2.0, v{TX}, vcc
    buffer_store_dwordx4 v[{Q+4}:{Q+7}], v{TX}, s[20:23], s{sagg} offen sc0 sc1
    v_mul_f32 v{TX}, {f2u(8.0)}, v{VG}
    """)
    emit_pow(E, f"v{TX}", A2, REV, CO, CO + 1, T0)
    cfma(E, ES + 2, ES + 3, CO, Q + 2, Q + 3, ES + 2, ES + 3)
    return E.ins


def ssm2_loads(R, sagg, swc):
    E = Prog()
    E(f"""
    v_lshrrev_b32 v{T0}, 4, v0
    v_lshlrev_b32 v{T0}, 3, v{T0}
    v_sub_u32 v{T0}, s{swc}, v{T0}
    v_and_b32 v{T1}, 15, v0
    v_lshlrev_b32 v{T1}, 4, v{T1}
    v_lshrrev_b32 v{VAG}, 4, v0
    v_lshlrev_b32 v{VAG}, 11, v{VAG}
    v_sub_u32 v{VAG}, v{T1}, v{VAG}
    v_add_u32 v{VAG}, s{sagg}, v{VAG}
    v_mov_b32 v{T1}, {WS_ZREC}
    """)
    for q in range(8):
        E(f"""
        v_cmp_lt_i32 vcc, {q}, v{T0}
        v_add_u32 v{TX}, {(-256*(q+1)) & 0xffffffff}, v{VAG}
        v_cndmask_b32 v{TX}, v{T1}, v{TX}, vcc
        buffer_load_dwordx4 v[{R+4*q}:{R+4*q+3}], v{TX}, s[20:23], 0 offen sc0 sc1
        """)
    return E.ins


def ssm2(U, R, shf, lab, scr):
    E = Prog()
    E(f"v_min_f32 v{TX}, v{R+2}, v{R+3}")
    for q in range(1, 8):
        E(f"v_min3_f32 v{TX}, v{TX}, v{R+4*q+2}, v{R+4*q+3}")
    E(f"v_cmp_gt_f32 vcc, 0.5, v{TX}")
    E("s_nop 4")
    E(f"s_cbranch_vccnz {lab}_SLOW", tag="keepall")
    E(f"{lab}_BACK:", tag="nop")
    emit_pow(E, 64, A2, REV, C8, C8 + 1, T0)
    for q in range(6, -1, -1):
        cfma(E, R + 4 * q, R + 4 * q + 1, C8, R + 4 * q + 4, R + 4 * q + 5, R + 4 * q, R + 4 * q + 1)
    E(f"v_mul_f32 v{TX}, {f2u(512.0)}, v{VG}")
    emit_pow(E, f"v{TX}", A2, REV, C8, C8 + 1, T0)
    cmul(E, CO, C8, R)
    for pl in ("v_permlane16_swap_b32", "v_permlane32_swap_b32"):
        E(f"""
        v_mov_b32 v{T0}, v{CO}
        v_mov_b32 v{T1}, v{CO+1}
        {pl} v{CO}, v{T0}
        {pl} v{CO+1}, v{T1}
        v_add_f32 v{CO}, v{CO}, v{T0}
        v_add_f32 v{CO+1}, v{CO+1}, v{T1}
        """)
    E(f"""
    s_lshl_b32 s77, s53, 11
    s_add_u32 s77, s77, {scr}
    v_and_b32 v{VW}, 15, v0
    v_lshlrev_b32 v{VW}, 6, v{VW}
    v_bfe_u32 v{T0}, v0, 4, 1
    v_lshl_add_u32 v{VW}, v{T0}, 5, v{VW}
    v_lshrrev_b32 v{T1}, 5, v0
    v_lshl_add_u32 v{VW}, v{T1}, 3, v{VW}
    v_add_u32 v{VW}, s77, v{VW}
    v_lshlrev_b32 v{VR}, 3, v{T1}
    v_bfe_u32 v{T1}, v0, 2, 2
    v_add_u32 v{VR}, v{VR}, v{T1}
    v_lshlrev_b32 v{VR}, 6, v{VR}
    v_lshl_add_u32 v{VR}, v{T0}, 5, v{VR}
    v_and_b32 v{T1}, 3, v0
    v_lshl_add_u32 v{VR}, v{T1}, 3, v{VR}
    v_add_u32 v{VR}, s77, v{VR}
    """)
    for j in range(2):
        b = U + 16 * j
        E(f"v_mov_b32 v{TX}, {f2u(32.0*j)}")
        E(f"v_fmac_f32 v{TX}, {f2u(8.0)}, v{VG}")
        emit_pow(E, f"v{TX}", A2, REV, C8, C8 + 1, T0)
        e = ES + 2 * j
        cfma(E, e, e + 1, C8, CO, CO + 1, e, e + 1)
        pre, pim = e, e + 1
        for k in range(8):
            cfma(E, b + k, b + 8 + k, L1, pre, pim, b + k, b + 8 + k)
            pre, pim = b + k, b + 8 + k
        for k in range(4):
            E(f"v_cvt_pk_bf16_f32 v{b+k}, v{b+2*k}, v{b+2*k+1}")
        for k in range(4):
            E(f"v_cvt_pk_bf16_f32 v{b+8+k}, -v{b+8+2*k}, -v{b+8+2*k+1}")
        E(f"""
        ds_write_b64 v{VW}, v[{b}:{b+1}]
        ds_write_b64 v{VW}, v[{b+2}:{b+3}] offset:16
        ds_write_b64 v{VW}, v[{b+8}:{b+9}] offset:1024
        ds_write_b64 v{VW}, v[{b+10}:{b+11}] offset:1040
        ds_read_b64_tr_b16 v[{b+4}:{b+5}], v{VR}
        ds_read_b64_tr_b16 v[{b+6}:{b+7}], v{VR} offset:256
        ds_read_b64_tr_b16 v[{b+12}:{b+13}], v{VR} offset:1024
        ds_read_b64_tr_b16 v[{b+14}:{b+15}], v{VR} offset:1280
        s_add_u32 s77, s{shf+j}, {36*1024}
        """)
        E(f"""
        buffer_store_dwordx4 v[{b+4}:{b+7}], v{V_LANE16}, s[20:23], s{shf+j} offen sc1
        buffer_store_dwordx4 v[{b+12}:{b+15}], v{V_LANE16}, s[20:23], s77 offen sc1
        """, tag="fx")
    return E.ins


def ssm2_slow(P, R, sagg, swc, lab):
    P(f"{lab}_SLOW:")
    P("s_mov_b32 s78, 0")
    P(f"{lab}_SPIN:")
    P("s_sleep 4")
    P.extend(ssm2_loads(R, sagg, swc))
    P(f"v_min_f32 v{TX}, v{R+2}, v{R+3}")
    for q in range(1, 8):
        P(f"v_min3_f32 v{TX}, v{TX}, v{R+4*q+2}, v{R+4*q+3}")
    P(f"""
    v_cmp_gt_f32 vcc, 0.5, v{TX}
    s_add_u32 s78, s78, 1
    s_nop 4
    s_cbranch_vccz {lab}_BACK
    s_cmp_lt_u32 s78, 100000
    s_cbranch_scc1 {lab}_SPIN
    s_branch {lab}_BACK
    """)


def N0():
    return tuple(int(x) for x in os.environ.get("N0", "2,0,0").split(","))


def ln_phase(P, dma4, dmaU, xloads, ROT, PRE):
    P("s_load_dwordx2 s[82:83], s[0:1], 0") if False else None
    P(f"""
    s_lshr_b32 s57, s2, 5
    s_bfe_u32 s58, s2, 0x20003
    s_lshl_b32 s58, s58, 1
    s_add_u32 s57, s57, s58
    s_cmp_ge_u32 s57, 9
    s_cselect_b32 s58, 9, 0
    s_sub_u32 s57, s57, s58
    s_mul_i32 s57, s57, {1 if ROT else 0}
    s_sub_u32 s3, 9, s57
    s_mul_i32 s58, s57, {64*9216}
    s_add_u32 s56, s56, s58
    s_add_u32 s72, s72, s58
    s_sub_u32 s4, s56, {9*64*9216}
    s_sub_u32 s5, s72, {9*64*9216}
    s_lshl_b32 s58, s57, 7
    s_add_u32 s63, s63, s58
    s_sub_u32 s6, s63, {9*128}
    s_lshl_b32 s58, s57, 12
    s_add_u32 s64, s64, s58
    s_add_u32 s65, s65, s58
    s_sub_u32 s7, s64, {9*4096}
    s_sub_u32 s78, s65, {9*4096}
    """)
    P("s_load_dwordx2 s[48:49], s[0:1], 112")
    first = []
    for kb in range(2):
        first += dma4(0, kb)
    rest = []
    na, nb, nu = N0()
    for kb in range(2, na):
        rest += dma4(0, kb)
    for kb in range(4):
        rest += (dma4(1, kb) if kb < nb else []) + (dmaU(kb) if kb < nu else [])
    P("s_waitcnt lgkmcnt(0)")
    srd(P, 36, 48, 49, 256)
    P("s_cmp_lg_u32 s53, 0")
    P("s_cbranch_scc1 K2_NOLN")
    R, F, S, Z = ACC, ACC + 40, ACC + 120, ACC + 136
    allw = first + rest
    P(f"""
    v_mov_b32 v{Z}, 0
    v_mov_b32 v{Z+1}, 0
    v_mov_b32 v{Z+2}, 0
    v_mov_b32 v{Z+3}, 0
    v_mov_b32 v{Z+4}, 0
    v_mov_b32 v{Z+5}, 0
    v_mov_b32 v{Z+6}, 1.0
    v_mov_b32 v{Z+7}, 1.0
    s_mul_i32 s58, s2, {5*CNT_STRIDE}
    s_add_u32 s58, s58, {WS_CNT}
    v_mul_u32_u24 v{Z+8}, {CNT_STRIDE}, v0
    v_cmp_gt_u32 vcc, 5, v0
    v_cndmask_b32 v{Z+8}, 2.0, v{Z+8}, vcc
    buffer_store_dword v{Z}, v{Z+8}, s[20:23], s58 offen sc0 sc1
    s_mul_i32 s58, s2, {72*16}
    s_add_u32 s58, s58, {WS_AGG}
    v_cmp_gt_u32 vcc, 8, v0
    v_cndmask_b32 v{Z+8}, 2.0, v{V_LANE16}, vcc
    buffer_store_dwordx4 v[{Z}:{Z+3}], v{V_LANE16}, s[20:23], s58 offen sc0 sc1
    buffer_store_dwordx4 v[{Z}:{Z+3}], v{Z+8}, s[20:23], s58 offen offset:1024 sc0 sc1
    s_lshl_b32 s57, s51, 5
    s_add_u32 s57, s57, s50
    s_lshl_b32 s42, s57, 7
    s_add_u32 s42, s42, {WS_MBX}
    buffer_store_dword v{Z}, v{SGO}, s[20:23], s42 offen sc0 sc1
    s_cmp_eq_u32 s2, 0
    s_cselect_b32 s58, 0, 0x40000000
    s_add_u32 s58, s58, {WS_ZREC}
    buffer_store_dwordx4 v[{Z+4}:{Z+7}], v{SGO}, s[20:23], s58 offen sc0 sc1
    """)
    for ins, _ in allw:
        P.extend(ins)
    P(f"""
    s_and_b32 s58, s50, 3
    s_lshl_b32 s58, s58, 3
    v_lshrrev_b32 v{S+10}, 3, v0
    v_add_u32 v{S+10}, s58, v{S+10}
    v_lshrrev_b32 v{S+8}, 1, v{S+9}
    v_lshlrev_b32 v{S+8}, 10, v{S+8}
    v_and_b32 v{S+11}, 1, v{S+9}
    v_lshl_add_u32 v{S+8}, v{S+11}, 9, v{S+8}
    v_lshl_add_u32 v{S+8}, v{S+10}, 4, v{S+8}
    s_lshr_b32 s58, s57, 2
    s_mul_i32 s58, s58, 36864
    """)

    def reduce8():
        P(f"""
        v_add_f32 v{S}, v{S}, v{S+1}
        v_add_f32_dpp v{S}, v{S}, v{S} quad_perm:[1,0,3,2] row_mask:0xf bank_mask:0xf
        v_add_f32_dpp v{S}, v{S}, v{S} quad_perm:[2,3,0,1] row_mask:0xf bank_mask:0xf
        v_add_f32_dpp v{S}, v{S}, v{S} row_half_mirror row_mask:0xf bank_mask:0xf
        """)
    for d in range(36):
        P(f"v_lshlrev_b32 v{F+2*d}, 16, v{R+d}")
        P(f"v_and_b32 v{F+2*d+1}, 0xffff0000, v{R+d}")
        if d == 1:
            P(f"v_pk_add_f32 v[{S}:{S+1}], v[{F}:{F+1}], v[{F+2}:{F+3}]")
        elif d > 1:
            P(f"v_pk_add_f32 v[{S}:{S+1}], v[{S}:{S+1}], v[{F+2*d}:{F+2*d+1}]")
    reduce8()
    if os.environ.get("PROST"): P.stamp(8)
    P(f"v_mul_f32 v{S+2}, {f2u(-1.0/576)}, v{S}")
    for d in range(36):
        P(f"v_pk_add_f32 v[{S+4}:{S+5}], v[{F+2*d}:{F+2*d+1}], v[{S+2}:{S+3}] op_sel_hi:[1,0]")
        if d == 0:
            P(f"v_pk_mul_f32 v[{S}:{S+1}], v[{S+4}:{S+5}], v[{S+4}:{S+5}]")
        else:
            P(f"v_pk_fma_f32 v[{S}:{S+1}], v[{S+4}:{S+5}], v[{S+4}:{S+5}], v[{S}:{S+1}]")
    reduce8()
    P(f"v_mul_f32 v{S+6}, {f2u(1.0/576)}, v{S}")
    bf16r(P, S + 2, S + 2)
    bf16r(P, S + 6, S + 6)
    P(f"v_add_f32 v{S+6}, {f2u(1e-5)}, v{S+6}")
    bf16r(P, S + 6, S + 6)
    P(f"v_sqrt_f32 v{S+6}, v{S+6}")
    bf16r(P, S + 6, S + 6)
    P(f"v_rcp_f32 v{S+6}, v{S+6}")
    for j in range(9):
        for d in range(4 * j, 4 * j + 4):
            a_, b_ = F + 2 * d, F + 2 * d + 1
            P(f"""
            v_pk_add_f32 v[{a_}:{b_}], v[{a_}:{b_}], v[{S+2}:{S+3}] op_sel_hi:[1,0]
            v_cvt_pk_bf16_f32 v{b_}, v{a_}, v{b_}
            v_lshlrev_b32 v{a_}, 16, v{b_}
            v_and_b32 v{b_}, 0xffff0000, v{b_}
            v_pk_mul_f32 v[{a_}:{b_}], v[{a_}:{b_}], v[{S+6}:{S+7}] op_sel_hi:[1,0]
            v_cvt_pk_bf16_f32 v{R+d}, v{a_}, v{b_}
            """)
        P(f"s_add_u32 s59, s58, {WS_XNF + 4096*j}")
        P(f"buffer_store_dwordx4 v[{R+4*j}:{R+4*j+3}], v{S+8}, s[20:23], s59 offen sc1")
    if os.environ.get("PROST"): P.stamp(9)
    P("s_waitcnt vmcnt(0)")
    if os.environ.get("PROST"): P.stamp(10)
    P(f"""
    s_lshl_b32 s58, s51, 5
    v_mov_b32 v{S}, 1
    buffer_atomic_add v{S}, v{SGO}, s[36:39], s58 offen sc0 sc1
    s_lshl_b32 s58, s51, 12
    s_add_u32 s58, s58, {WS_MBX}
    v_lshlrev_b32 v{S+1}, 7, v0
    v_cmp_gt_u32 vcc, 32, v0
    v_cndmask_b32 v{S+1}, 2.0, v{S+1}, vcc
    v_readfirstlane_b32 s59, v{S}
    s_cmp_eq_u32 s59, 31
    s_cselect_b32 s58, s58, 0x40000000
    buffer_store_dword v{SGD}, v{S+1}, s[20:23], s58 offen sc0 sc1
    """)
    if os.environ.get("PROST"): P.stamp(11)
    P(f"v_mov_b32 v{Z+8}, 0")
    P("s_mov_b32 s58, 0")
    P("K2_XPOLL:")
    P(f"""
    buffer_load_dword v{Z+9}, v{Z+8}, s[20:23], s42 offen sc0 sc1
    s_waitcnt vmcnt(0)
    v_cmp_ne_u32 vcc, 1, v{Z+9}
    s_add_u32 s58, s58, 1
    s_nop 4
    s_cbranch_vccz K2_LNJOIN
    s_sleep {os.environ.get("XSLEEP", "2")}
    s_cmp_lt_u32 s58, 100000
    s_cbranch_scc1 K2_XPOLL
    s_branch K2_LNJOIN
    """)
    P("K2_NOLN:")
    if os.environ.get("CTOP", "1") != "1":
        P("s_lshr_b32 s57, s2, 3\ns_cmp_eq_u32 s53, 2\ns_cselect_b32 s57, s57, 4096")
        code_touch(P, "K2_PC0", "k2_kernel", "CODE_END", 92, Z + 10, 0, 57, True)
    for ins, _ in allw:
        P.extend(ins)
    WST = [x for x in os.environ.get("WARM", "").split(",") if x]
    WINF = int(os.environ.get("WINF", "8"))
    P(f"""
    s_mul_i32 s57, s53, {16*9216}
    v_subrev_u32 v{Z}, s57, v{V_D4}
    v_subrev_u32 v{Z+1}, s57, v{V_D4+1}
    """)
    k = 0
    for st_ in WST:
        grp, kb0 = (0 if st_[0] == "A" else 1), int(st_[1:])
        P(f"""
        s_add_u32 s57, s53, {kb0 - 1}
        s_cmp_ge_u32 s57, s3
        s_cselect_b32 s58, s4, s56
        s_mul_i32 s57, s57, {64*9216}
        s_add_u32 s58, s58, s57
        """)
        for m in range(2):
            for i in range(8):
                P(f"s_add_u32 s59, s58, {i*8*9216 + grp*128}")
                I = Ins(f"buffer_store_dword v{Z}, v{Z+m}, s[{8+4*m}:{11+4*m}], s59 offen")
                I.text = f"buffer_load_dwordx4 v[{Z+4}:{Z+7}], v{Z+m}, s[{8+4*m}:{11+4*m}], s59 offen"
                P.ins.append(I)
                k += 1
                if k > WINF:
                    P(f"s_waitcnt vmcnt({WINF})")
    P("K2_LNJOIN:")
    P("s_barrier")
    if os.environ.get("PROST"): P.stamp(12)
    for kb in range(PRE):
        for ins, _ in xloads(kb):
            P.extend(ins)
    P(f"s_waitcnt vmcnt({8*PRE})")


def gen_k2b(single=False):
    P = Prog()
    P("s_cmp_ge_u32 s2, 256")
    P("s_cbranch_scc1 K3_END")
    P.stamp(0, real=True)
    P.stamp(1)
    if single:
        S_ = ACC + 120
        P("s_load_dwordx2 s[88:89], s[0:1], 0")
        if os.environ.get("CTOP", "1") == "1":
            P("s_lshr_b32 s57, s2, 3")
            P("s_lshl_b32 s57, s57, 2")
            code_touch(P, "K2_PC0", "k2_kernel", "CODE_END", 92, ACC + 150, 0, 57, True)
        P(f"""
        s_and_b32 s57, s2, 4
        s_bfe_u32 s58, s2, 0x20003
        s_add_u32 s57, s57, s58
        s_lshl_b32 s57, s57, 3
        s_and_b32 s58, s2, 3
        s_lshl_b32 s58, s58, 1
        s_add_u32 s57, s57, s58
        s_lshr_b32 s58, s2, 7
        s_add_u32 s57, s57, s58
        s_lshl_b32 s57, s57, 5
        s_bfe_u32 s58, s2, 0x20005
        s_lshl_b32 s58, s58, 2
        s_add_u32 s57, s57, s58
        s_mul_i32 s58, s57, 1152
        v_bfe_u32 v{S_+8}, v0, 3, 2
        v_bfe_u32 v{S_+9}, v0, 5, 1
        v_lshl_add_u32 v{S_+8}, v{S_+9}, 4, v{S_+8}
        v_mul_u32_u24 v{S_+10}, 1152, v{S_+8}
        v_and_b32 v{S_+9}, 7, v0
        v_lshl_add_u32 v{S_+10}, v{S_+9}, 4, v{S_+10}
        v_cmp_gt_u32 vcc, 64, v0
        v_cndmask_b32 v{S_+10}, 2.0, v{S_+10}, vcc
        s_mov_b32 s90, {2048*1152}
        s_mov_b32 s91, 0x00020000
        s_waitcnt lgkmcnt(0)
        s_and_b32 s89, s89, 0xffff
        """)
        for j in range(9):
            P(f"buffer_load_dwordx4 v[{ACC+4*j}:{ACC+4*j+3}], v{S_+10}, s[88:91], s58 offen offset:{128*j}", tag="keep")
    P("s_load_dwordx4 s[36:39], s[0:1], 80")
    P("s_load_dwordx2 s[48:49], s[0:1], 120")
    P("s_load_dwordx4 s[40:43], s[0:1], 8")
    P("s_load_dwordx2 s[46:47], s[0:1], 56")
    P("s_load_dwordx2 s[100:101], s[0:1], 24")
    P("s_load_dwordx2 s[82:83], s[0:1], 32")
    P("""
    v_lshrrev_b32 v2, 6, v0
    v_and_b32 v0, 63, v0
    v_readfirstlane_b32 s53, v2
    s_and_b32 s52, s2, 3
    s_lshr_b32 s50, s2, 5
    s_lshl_b32 s51, s52, 3
    s_add_u32 s50, s50, s51
    s_and_b32 s51, s2, 4
    s_bfe_u32 s54, s2, 0x20003
    s_add_u32 s51, s51, s54
    s_mov_b32 s79, s53
    """)
    P(f"v_lshlrev_b32 v{V_LANE16}, 4, v0")
    P(f"""
    s_lshl_b32 s54, s51, 3
    s_lshl_b32 s55, s53, 1
    s_add_u32 s54, s54, s55
    s_mul_i32 s64, s54, 36864
    s_mul_i32 s55, s52, {0 if single else XNF_BYTES}
    s_add_u32 s64, s64, s55
    s_add_u32 s65, s64, 36864
    s_lshr_b32 s57, s50, 2
    s_and_b32 s58, s50, 3
    s_mul_i32 s66, s54, {360*1024}
    s_add_u32 s66, s66, {WS_HF}
    s_add_u32 s73, s66, {288*1024}
    s_mul_i32 s55, s57, {36*1024}
    s_add_u32 s66, s66, s55
    s_lshl_b32 s55, s58, 10
    s_add_u32 s68, s66, s55
    s_add_u32 s68, s68, {32*1024}
    s_add_u32 s69, s68, {360*1024}
    s_lshl_b32 s55, s58, 13
    s_add_u32 s66, s66, s55
    s_add_u32 s67, s66, {360*1024}
    s_mul_i32 s56, s57, 1152
    s_lshl_b32 s55, s58, 5
    s_add_u32 s72, s56, s55
    s_add_u32 s72, s72, 1024
    s_lshl_b32 s55, s58, 8
    s_add_u32 s56, s56, s55
    s_mov_b32 s70, {f2u(-2.0*math.sqrt(2.0/math.pi)*LOG2E*0.044715)}
    v_mov_b32 v{V_C0}, {f2u(-2.0*math.sqrt(2.0/math.pi)*LOG2E)}
    """)
    P(f"""
    v_lshrrev_b32 v14, 3, v0
    v_and_b32 v15, 2, v14
    v_bfe_u32 v{V_D4}, v0, 1, 2
    v_xor_b32 v{V_D4}, v{V_D4}, v15
    v_lshlrev_b32 v{V_D4}, 5, v{V_D4}
    v_and_b32 v15, 1, v0
    v_lshl_add_u32 v{V_D4}, v15, 4, v{V_D4}
    s_lshl_b32 s57, s53, 4
    v_add_u32 v14, s57, v14
    v_mul_u32_u24 v14, 9216, v14
    v_add_u32 v{V_D4}, v{V_D4}, v14
    v_xor_b32 v{V_D4+1}, 32, v{V_D4}
    v_lshrrev_b32 v14, 1, v0
    s_lshl_b32 s57, s53, 1
    s_and_b32 s57, s57, 4
    v_xor_b32 v14, s57, v14
    v_mul_u32_u24 v14, 9216, v14
    v_lshl_add_u32 v{V_DE}, v15, 4, v14
    s_lshl_b32 s61, s53, 11
    """)
    P("s_waitcnt lgkmcnt(0)")
    srd(P, 8, 36, 37, 576 * 9216)
    srd(P, 12, 38, 39, 576 * 9216)
    srd(P, 20, 48, 49, WS_BYTES)

    ROT = single and int(os.environ.get("ROT2", "1"))
    def rsel(D, dst, base, kb, const):
        if ROT and kb > 0:
            D(f"s_cmp_ge_u32 {kb}, s3")
            D(f"s_cselect_b32 s{dst}, s{HI[base]}, s{base}")
            D(f"s_add_u32 s{dst}, s{dst}, {const}")
        else:
            D(f"s_add_u32 s{dst}, s{base}, {const}")
    HI = {56: 4, 72: 5, 63: 6, 64: 7, 65: 78}
    slotA = [0, 1, 2, 3, 4, 0, 1, 2, 3]
    slotB = [5, 6, 7, 8, 4, 0, 1, 2, 3]
    freeB = [None, None, None, None, 4, 5, 6, 7, 8]

    def dma4(grp, kb):
        slot = (slotA if grp == 0 else slotB)[kb] * SLOT
        out = []
        for m in range(2):
            for i in range(2):
                D = Prog()
                D(f"s_add_u32 m0, s61, {slot + m*8192 + i*1024}")
                rsel(D, 59, 56, kb, (kb*64 + i*8)*9216 + grp*128)
                D(f"buffer_load_dwordx4 v{V_D4+m}, s[{8+4*m}:{11+4*m}], s59 offen lds", tag=("W", grp, kb))
                out.append((D.ins, 8))
        return out

    def dmaU(kb):
        D = Prog()
        D(f"s_add_u32 m0, s60, {(kb % 4)*4096}")
        rsel(D, 59, 63, kb, kb*128)
        D(f"buffer_load_dwordx4 v{V_DU}, s[44:47], s59 offen lds", tag=("W", 1, kb))
        return [(D.ins, 8)]

    def dmaE(kb):
        D = Prog()
        D(f"s_add_u32 m0, s60, {((9 + kb) % 4)*4096}")
        rsel(D, 59, 72, kb, kb*64*9216)
        D(f"buffer_load_dwordx4 v{V_DE}, s[16:19], s59 offen lds", tag=("W", 2, kb))
        return [(D.ins, 32)]

    def xloads(kb):
        out = []
        for s in range(4):
            for j in range(2):
                D = Prog()
                rsel(D, 62, 64 + j, kb, WS_XNF + kb*4096)
                D(f"buffer_load_dwordx4 {xreg(j, kb*4+s)}, v{V_LANE16}, s[20:23], s62 offen offset:{s*1024}" + (" sc1" if single else ""))
                out.append((D.ins, 8))
        return out

    PRE = int(os.environ.get("K2PRE", "2"))
    if not single:
        for kb in range(PRE):
            for ins, _ in dma4(0, kb) + xloads(kb):
                P.extend(ins)
    srd(P, 24, 40, 41, 1152)
    srd(P, 28, 42, 43, 1152)
    srd(P, 32, 46, 47, 1152)
    P(f"""
    s_cmp_lt_u32 s53, 2
    s_cselect_b32 s16, s8, s12
    s_cselect_b32 s17, s9, s13
    s_cselect_b32 s44, s100, s82
    s_cselect_b32 s45, s101, s83
    s_and_b32 s45, s45, 0xffff
    s_mov_b32 s46, {576*1152}
    s_mov_b32 s47, 0x00020000
    s_mov_b32 s18, {576*9216}
    s_mov_b32 s19, 0x00020000
    s_and_b32 s57, s53, 1
    s_mul_i32 s55, s57, {32*9216}
    s_add_u32 s72, s72, s55
    s_lshl_b32 s60, s53, 10
    s_add_u32 s60, s60, {E_BASE}
    s_mul_i32 s63, s50, {16*1152}
    """)
    P(f"""
    v_lshrrev_b32 v14, 3, v0
    v_lshrrev_b32 v15, 4, v0
    s_lshl_b32 s55, s57, 2
    v_add_u32 v15, s55, v15
    v_and_b32 v13, 7, v0
    v_xor_b32 v13, v13, v15
    s_lshl_b32 s55, s57, 3
    v_add_u32 v14, s55, v14
    v_mul_u32_u24 v14, 1152, v14
    v_lshl_add_u32 v{V_DU}, v13, 4, v14
    """)
    P(f"""
    v_and_b32 v14, 1, v0
    v_lshlrev_b32 v14, 4, v14
    v_bfe_u32 v15, v0, 1, 1
    v_lshl_add_u32 v14, v15, 3, v14
    v_lshrrev_b32 v15, 5, v0
    v_lshlrev_b32 v15, 3, v15
    v_bfe_u32 v{WF}, v0, 2, 2
    v_add_u32 v15, v15, v{WF}
    v_bfe_u32 v{WF+1}, v0, 4, 1
    v_and_b32 v{WF}, 2, v{WF}
    v_xor_b32 v{WF}, v{WF}, v{WF+1}
    v_lshl_add_u32 v{V_R4}, v15, 7, v14
    v_lshl_add_u32 v{V_R4}, v{WF+1}, 13, v{V_R4}
    v_lshl_add_u32 v{V_R4}, v{WF}, 5, v{V_R4}
    v_xor_b32 v{V_R4+1}, 32, v{V_R4}
    v_xor_b32 v{V_R4+2}, 64, v{V_R4}
    v_xor_b32 v{V_R4+3}, 96, v{V_R4}
    v_lshl_add_u32 v{V_RE}, v15, 5, v14
    v_lshl_add_u32 v{V_RE}, v{WF+1}, 11, v{V_RE}
    v_lshl_add_u32 v{V_RE}, v{WF+1}, 7, v{V_RE}
    v_add_u32 v{V_RE}, {E_BASE}, v{V_RE}
    v_xor_b32 v{V_RE2}, 128, v{V_RE}
    v_and_b32 v13, 31, v0
    v_bfe_u32 v{WF}, v13, 1, 3
    v_lshrrev_b32 v{WF+1}, 5, v0
    v_xor_b32 v{WF}, v{WF}, v{WF+1}
    v_lshlrev_b32 v{WF}, 4, v{WF}
    v_lshl_add_u32 v{V_UB}, v13, 7, v{WF}
    v_add_u32 v{V_UB}, {E_BASE}, v{V_UB}
    """)
    P(f"""
    s_lshl_b32 s76, s51, 2
    s_add_u32 s76, s76, s53
    s_lshl_b32 s75, s50, 5
    s_add_u32 s75, s75, s76
    s_lshl_b32 s75, s75, 8
    s_add_u32 s75, s75, {WS_AGG}
    s_lshl_b32 s55, s50, 10
    s_add_u32 s40, s73, s55
    s_add_u32 s41, s40, {360*1024}
    s_lshl_b32 s100, s76, 2
    s_add_u32 s100, s100, s52
    s_add_u32 s100, s100, 192
    s_mul_i32 s100, s100, {CNT_STRIDE}
    s_add_u32 s100, s100, {WS_CNT}
    s_add_u32 s83, s100, {160*CNT_STRIDE}
    s_lshr_b32 s101, s76, 1
    s_add_u32 s101, s101, 320
    s_mul_i32 s101, s101, {CNT_STRIDE}
    s_add_u32 s101, s101, {WS_CNT}
    v_cmp_eq_u32 vcc, 0, v0
    v_mov_b32 v{SGD}, 1
    v_cndmask_b32 v{SGO}, 2.0, v0, vcc
    """)
    NA0, NB0, NU0 = N0() if single else (PRE, 0, 0)
    if single:
        ln_phase(P, dma4, dmaU, xloads, ROT, PRE)
    pl_ld, pl_calc = ssm_params(50)
    phases = [
        [("A", 0, 0), ("A", 1, 1), ("A", 2, 2), ("A", 3, 3)],
        [("U", 0, 4), ("B", 0, 0)],
        [("E", 0, 1), ("B", 1, 2)],
        [("B", 2, 3)],
        [("B", 3, 0)],
    ]
    frags = []
    unit = 0
    for ph, tiles in enumerate(phases):
        for kb in range(9):
            order = [(s_, t) for s_ in range(4) for t in tiles]
            if (ph == 0 and kb == 8) or (ph == 1 and kb == 0):
                order = [(s_, tiles[0]) for s_ in range(4)] + [(s_, t) for s_ in range(4) for t in tiles[1:]]
            for s_, (buf, g, sl) in order:
                frags.append(dict(ph=ph, buf=buf, kb=kb, s=s_, g=g, slot=sl, ks=kb * 4 + s_, unit=unit))
            unit += 1
    bar_units = set(range(0, 27)) | {28}
    items = []
    for kb in range(PRE, 9):
        rel = -1 if kb < 5 else kb - 5 + 2
        for ins, ln in (dma4(0, kb) if kb >= NA0 else []):
            items.append([16 * kb - 1, rel, ins, ln])
        for ins, ln in xloads(kb):
            items.append([16 * kb, -1, ins, ln])
    for kb in range(9):
        rel = -1 if freeB[kb] is None else freeB[kb] + 2
        for ins, ln in (dma4(1, kb) if kb >= NB0 else []):
            items.append([144 + 8 * kb, rel, ins, ln])
        rel = -1 if kb < 4 else 9 + (kb - 4) + 2
        for ins, ln in (dmaU(kb) if kb >= NU0 else []):
            items.append([144 + 8 * kb - 1, rel, ins, ln])
        rel = 9 + (9 + kb - 4) + 2
        for ins, ln in dmaE(kb):
            items.append([216 + 8 * kb - 1, rel, ins, ln])
    items.sort(key=lambda x: x[0])
    released = [-1]
    seen = set()
    region = [0]

    def frag_read(M, n, part):
        f = frags[n]
        u = f["unit"]
        if u not in seen:
            seen.add(u)
            if u in bar_units:
                M.waitvm(("W", min(f["ph"], 2), f["kb"]))
                M("s_barrier")
                released[0] = u
                if u in (3, 6, 9, 12, 15, 18, 21, 24, 28) and not os.environ.get("PROST"):
                    M.stamp(2 + u // 3)
        b = WF + 4 * (n % NWF)
        if f["buf"] == "U":
            if part == 0:
                if f["s"]:
                    M(f"v_xor_b32 v{V_UT}, {32*f['s']}, v{V_UB}")
                M(f"ds_read_b128 v[{b}:{b+3}], v{V_UT if f['s'] else V_UB} offset:{(f['kb'] % 4)*4096}")
            return
        if f["buf"] == "E":
            off = ((9 + f["kb"]) % 4) * 4096 + f["s"] * 16 * 32
            base = V_RE if part == 0 else V_RE2
        else:
            sl = (slotA if f["buf"] == "A" else slotB)[f["kb"]]
            reg = sl // 3
            if reg != region[0]:
                d = (reg - region[0]) * 3 * SLOT
                for g in range(4):
                    M(f"v_add_u32 v{V_R4+g}, {d & 0xffffffff}, v{V_R4+g}")
                region[0] = reg
            base = V_R4 + f["g"]
            off = (sl % 3) * SLOT + f["s"] * 16 * 128 + part * 512
        M(f"ds_read_b64_tr_b16 v[{b+2*part}:{b+2*part+1}], v{base} offset:{off}")

    for n in range(DIST):
        frag_read(P, n, 0)
        frag_read(P, n, 1)
    P.stamp(2)
    CR0 = float(os.environ.get("CR0", "6.3"))
    CR1 = float(os.environ.get("CR1", "6.6"))
    credit = 0.0
    B = Prog()
    ph_start = {}
    nm_ = 0
    for n, f in enumerate(frags):
        ph_start.setdefault(f["ph"], nm_)
        b = WF + 4 * (n % NWF)
        credit = min(credit + (CR0 if f["ph"] == 0 else CR1), 16.0)
        for j in range(2):
            a = ACC + 32 * f["slot"] + 16 * j
            c = "0" if f["ks"] == 0 else f"v[{a}:{a+15}]"
            if f["buf"] == "U":
                B(f"v_mfma_f32_32x32x16_bf16 v[{a}:{a+15}], {xreg(j, f['ks'])}, v[{b}:{b+3}], {c}")
            else:
                B(f"v_mfma_f32_32x32x16_bf16 v[{a}:{a+15}], v[{b}:{b+3}], {xreg(j, f['ks'])}, {c}")
            nm_ += 1
            if n + DIST < len(frags):
                frag_read(B, n + DIST, j)
            assert not items or items[0][0] > n + DIST + 1, ("load issued too late", n, items[0][0])
            if j == 1 and (credit > 0 or (items and items[0][0] - n < 14)):
                for k, it in enumerate(items):
                    if it[1] <= released[0]:
                        B.extend(it[2])
                        credit -= it[3]
                        del items[k]
                        break
    assert not items, len(items)
    ph_start[5] = nm_
    A_ = lambda t, **k: epilogue(t, 66, 1024 * t, tag="early", **k)
    Bslot = [0, 2, 3, 0]
    B_ = lambda t, **k: epilogue(Bslot[t], 66, 4096 + 1024 * t, **k)
    E_ = lambda **k: epilogue(1, 68, 0, **k)
    U = ACC + 128
    RC = ACC + 32

    def sig(tag, sreg):
        Qp = Prog()
        Qp.waitvm(tag)
        Qp(f"buffer_atomic_add v{SGD}, v{SGO}, s[20:23], s{sreg} offen sc1")
        return Qp.ins

    def spread(body, extra, width, lo=0.0, hi=1.0):
        groups = [extra[i:i + width] for i in range(0, len(extra), width)]
        n = len(body)
        pos = [int(n * (lo + (hi - lo) * (k + 0.5) / len(groups))) for k in range(len(groups))]
        out = []
        for i_, x in enumerate(body):
            while pos and i_ >= pos[0] and not any(y.text.startswith("s_add_u32 s71") for y in out[-3:]):
                out += groups.pop(0)
                pos.pop(0)
            out.append(x)
        for g_ in groups:
            out += g_
        return out

    PFp = Prog()
    PFp("s_load_dwordx2 s[36:37], s[0:1], 96")
    PFp("s_load_dwordx4 s[24:27], s[0:1], 40")
    PFp(f"""
    s_lshl_b32 s42, s2, 2
    s_add_u32 s42, s42, s53
    s_lshl_b32 s42, s42, 10
    s_waitcnt lgkmcnt(0)
    """)
    srd(PFp, 4, 36, 37, 4608 * 1152)
    srd(PFp, 28, 24, 25, 576 * 1152)
    srd(PFp, 32, 26, 27, 576 * 1152)
    pf = []
    for sd, i in [(4, 0), (4, 1), (28, 0), (4, 2), (4, 3), (32, 0), (4, 4), (4, 5)]:
        G = Prog()
        G(f"s_add_u32 s43, s42, {i*1024*1024}")
        I = Ins(f"buffer_store_dword v{V_LANE16}, v{V_LANE16}, s[{sd}:{sd+3}], s43 offen")
        I.text = f"buffer_load_dwordx4 v[{Q}:{Q+3}], v{V_LANE16}, s[{sd}:{sd+3}], s43 offen"
        G.ins.append(I)
        pf += G.ins
    if not int(os.environ.get("PF3B", "1")):
        pf = []
    L = B.ins
    p1, p2, p3, p4, p5 = (ph_start[k] for k in range(1, 6))
    ST = lambda t: A_(t, part="store")
    L = interleave2(L, pl_ld, start=8, end=24)
    if single:
        CK = Prog()
        CK(f"v_and_b32 v{VAG}, 7, v0")
        CK(f"v_lshlrev_b32 v{VAG}, 5, v{VAG}")
        CK(f"buffer_load_dword v{ES}, v{VAG}, s[36:39], 0 offen sc0 sc1")
        CK2 = Prog()
        CK2(f"v_cmp_ne_u32 vcc, 32, v{ES}")
        CK2("s_nop 4")
        CK2("s_cbranch_vccnz K2A_SLOW", tag="keepall")
        CK2("K2A_BACK:", tag="nop")
        L = interleave2(L, CK.ins, start=p1 - 70, end=p1 - 66)
        L = interleave2(L, CK2.ins, start=p1 - 28, end=p1 - 26)
    L = interleave2(L, pl_calc, start=110, end=p1 - 72)
    L = interleave2(L, A_(0), start=p1 - 23, end=p1 + 7)
    L = interleave2(L, A_(1, part="calc") + A_(2, part="calc") + A_(3, part="calc") + ST(1) + ST(2), start=p1 + 8, end=p2 - 1)
    L = interleave2(L, ssm1(U, 75) + B_(0, part="calc") + ST(3), start=p2 + 1, end=p3 - 1)
    idx = [k for k, i in enumerate(L) if i.kind == "mfma"]
    cut = idx[p3]
    P.extend(L[:cut])
    P.extend(PFp.ins)
    if int(os.environ.get("CPF3", "1")):
        P("s_lshr_b32 s77, s2, 3\ns_lshl_b32 s77, s77, 2\ns_add_u32 s77, s77, s53")
        code_touch(P, "K2_PC", "K3_GOON", "CODE_END", 24, Q + 4, 0, 77, False)
    L = L[cut:]
    n3, n4 = p4 - p3, p5 - p3
    f3 = spread(E_() + B_(0, part="store") + B_(1, part="calc"), pf, 2, 0.0, 0.6) + sig("early", 83) + ssm2_loads(RC, 75, 76) + B_(1, part="store")
    L = interleave2(L, f3, start=1, end=n3 + 8)
    L = interleave2(L, B_(2)[:60] + ssm2(U, RC, 40, "K2S", E_BASE) + B_(2)[60:], start=n3 + 9, end=n4 - 1)
    cnt = 0
    for i_ in L:
        P.ins.append(i_)
        if i_.kind == "mfma":
            cnt += 1
            if cnt == n3 and not os.environ.get("PROST"):
                P.stamp(12)
    P.stamp(13)
    P.extend(B_(3))
    P.stamp(14)
    P.stamp(15, real=True)
    P.dump_stamps(9, 20, WS_DBG + 0x10000, 14)
    P("s_mov_b64 exec, -1")
    return P


def tail_job(P, single=False):
    P("s_load_dwordx4 s[40:43], s[0:1], 8")
    P("s_load_dwordx2 s[36:37], s[0:1], 56")
    P(f"""
    s_lshr_b32 s50, s2, 5
    s_lshl_b32 s50, s50, 1
    s_add_u32 s50, s50, 20
    s_add_u32 s54, s50, 1
    s_mul_i32 s63, s50, {16*1152}
    s_lshl_b32 s60, s53, 10
    """)
    if single:
        P(f"""
        s_sub_u32 s58, 9, s3
        s_lshl_b32 s58, s58, 7
        s_add_u32 s63, s63, s58
        s_sub_u32 s58, s63, {9*128}
        """)
    for u in range(2):
        for kb in range(9):
            if single and kb > 0:
                P(f"s_cmp_ge_u32 {kb}, s3")
                P(f"s_cselect_b32 s59, s58, s63")
                P(f"s_add_u32 s59, s59, {u*16*1152 + kb*128}")
            else:
                P(f"s_add_u32 s59, s63, {u*16*1152 + kb*128}")
            P(f"s_add_u32 m0, s60, {(u*9 + kb)*4096}")
            P(f"buffer_load_dwordx4 v{V_DU}, s[44:47], s59 offen lds")
    P("s_waitcnt lgkmcnt(0)")
    srd(P, 24, 40, 41, 1152)
    srd(P, 28, 42, 43, 1152)
    srd(P, 32, 36, 37, 1152)
    P(f"""
    v_and_b32 v13, 31, v0
    v_bfe_u32 v5, v13, 1, 3
    v_lshrrev_b32 v6, 5, v0
    v_xor_b32 v5, v5, v6
    v_lshlrev_b32 v5, 4, v5
    v_lshl_add_u32 v5, v13, 7, v5
    v_xor_b32 v6, 32, v5
    v_xor_b32 v7, 64, v5
    v_xor_b32 v8, 96, v5
    v_add_u32 v9, {9*4096}, v5
    v_add_u32 v10, {9*4096}, v6
    v_add_u32 v11, {9*4096}, v7
    v_add_u32 v12, {9*4096}, v8
    s_lshl_b32 s75, s50, 5
    s_add_u32 s75, s75, s76
    s_lshl_b32 s75, s75, 8
    s_add_u32 s75, s75, {WS_AGG}
    s_add_u32 s74, s75, {32*256}
    s_lshl_b32 s55, s50, 10
    s_add_u32 s40, s73, s55
    s_add_u32 s41, s40, {360*1024}
    s_add_u32 s42, s40, 1024
    s_add_u32 s43, s41, 1024
    s_add_u32 s101, s101, {16*CNT_STRIDE}
    """)
    ld0, ca0 = ssm_params(50)
    ld1, ca1 = ssm_params(54)
    P.extend(ld0)
    P("s_waitcnt vmcnt(0)")
    P("s_barrier")
    M = Prog()
    fr = [(u, ks) for ks in range(36) for u in range(2)]
    FB = ACC + 96
    def rd(n):
        u, ks = fr[n]
        b = FB + 4 * (n % 8)
        M(f"ds_read_b128 v[{b}:{b+3}], v{5 + 4*u + (ks & 3)} offset:{(ks >> 2)*4096}")
    for n in range(6):
        rd(n)
    for n, (u, ks) in enumerate(fr):
        b = FB + 4 * (n % 8)
        for j in range(2):
            a = ACC + 32 * u + 16 * j
            c = "0" if ks == 0 else f"v[{a}:{a+15}]"
            M(f"v_mfma_f32_32x32x16_bf16 v[{a}:{a+15}], {xreg(j, ks)}, v[{b}:{b+3}], {c}")
            if j == 0 and n + 6 < len(fr):
                rd(n + 6)
    P.extend(interleave2(M.ins, ca0, start=4, end=60))
    SV = ACC + 128
    keep = [A2, REV, L1, L1 + 1, ES, ES + 1, ES + 2, ES + 3]
    P.extend(ssm1(ACC, 75))
    for k, r in enumerate(keep):
        P(f"v_mov_b32 v{SV+k}, v{r}")
    P.extend(ld1)
    P.extend(ca1)
    P.extend(ssm1(ACC + 32, 74))
    P("s_barrier")
    RC = ACC + 64
    for k, r in enumerate(keep):
        P(f"v_mov_b32 v{SV+8+k}, v{r}")
        P(f"v_mov_b32 v{r}, v{SV+k}")
    P.extend(ssm2_loads(RC, 75, 76))
    P.extend(ssm2(ACC, RC, 40, "K2T0", 0))
    for k, r in enumerate(keep):
        P(f"v_mov_b32 v{r}, v{SV+8+k}")
    P.extend(ssm2_loads(RC, 74, 76))
    P.extend(ssm2(ACC + 32, RC, 42, "K2T1", 0))
    P(f"""
    s_waitcnt vmcnt(0)
    v_mov_b32 v{SGD}, 2
    buffer_atomic_add v{SGD}, v{SGO}, s[20:23], s101 offen sc1
    s_branch K3_END
    """)
    ssm2_slow(P, RC, 75, 76, "K2T0")
    ssm2_slow(P, RC, 74, 76, "K2T1")
    ssm2_slow(P, ACC + 32, 75, 76, "K2S")
    if single:
        P("K2A_SLOW:")
        P("s_mov_b32 s71, 0")
        P("K2A_SPIN:")
        P(f"""
        s_sleep 8
        buffer_load_dword v{ES}, v{VAG}, s[36:39], 0 offen sc0 sc1
        s_waitcnt vmcnt(0)
        v_cmp_ne_u32 vcc, 32, v{ES}
        s_add_u32 s71, s71, 1
        s_nop 4
        s_cbranch_vccz K2A_BACK
        s_cmp_lt_u32 s71, 100000
        s_cbranch_scc1 K2A_SPIN
        s_branch K2A_BACK
        """)
```

```python
import re

REG_RE = re.compile(r"\b([vas])(\d+)\b|\b([vas])\[(\d+):(\d+)\]|\b(vcc|exec|m0|scc)\b")
TRANS = ("v_exp_f32", "v_log_f32", "v_rcp_f32", "v_rsq_f32", "v_sqrt_f32", "v_sin_f32", "v_cos_f32")


def regs_of(tok):
    out = []
    for m in REG_RE.finditer(tok):
        if m.group(1):
            out.append((m.group(1), int(m.group(2))))
        elif m.group(3):
            out += [(m.group(3), i) for i in range(int(m.group(4)), int(m.group(5)) + 1)]
        else:
            out.append((m.group(6), 0))
    return out


def split_ops(s):
    ops, depth, cur = [], 0, ""
    for ch in s:
        if ch in "[(":
            depth += 1
        elif ch in "])":
            depth -= 1
        if ch == "," and depth == 0:
            ops.append(cur.strip())
            cur = ""
        else:
            cur += ch
    if cur.strip():
        ops.append(cur.strip())
    return ops


class Ins:
    __slots__ = ("text", "mn", "kind", "reads", "writes", "tag", "srcc", "srcab", "wide_store", "dpp", "opts")

    def __init__(self, text, tag=None):
        self.text = text
        self.tag = tag
        self.srcc = []
        self.srcab = []
        self.wide_store = False
        self.dpp = False
        t = text.split(";")[0].strip()
        if t.endswith(":") or t.startswith("."):
            self.mn, self.kind, self.reads, self.writes = t, "label", [], []
            return
        parts = t.split(None, 1)
        mn = parts[0]
        self.mn = mn
        rest = parts[1] if len(parts) > 1 else ""
        ops = split_ops(rest)
        R, W = [], []
        allr = lambda xs: [r for o in xs for r in regs_of(o)]
        if mn.startswith("v_mfma"):
            self.kind = "mfma"
            W = regs_of(ops[0])
            self.srcab = regs_of(ops[1]) + regs_of(ops[2])
            self.srcc = regs_of(ops[3])
            R = self.srcab + self.srcc
        elif mn.startswith("v_"):
            self.kind = "valu"
            base = mn.replace("_e32", "").replace("_e64", "")
            if base in TRANS:
                self.kind = "trans"
            if "_dpp" in mn or "quad_perm" in rest or "row_" in rest:
                self.dpp = True
            if mn.startswith("v_permlane"):
                self.kind = "permlane"
                W = allr(ops[:2])
                R = allr(ops[:2])
            elif mn.startswith("v_cmp"):
                W = regs_of(ops[0])
                R = allr(ops[1:])
            else:
                W = regs_of(ops[0])
                R = allr(ops[1:])
                if mn.startswith(("v_fmac", "v_dot2c", "v_pk_fmac")) or self.dpp:
                    R = R + W
                if mn.startswith("v_dot"):
                    self.kind = "dot"
            R = R + [("exec", 0)]
        elif mn.startswith("buffer_load"):
            if re.search(r"\blds\b", rest):
                self.kind = "dma"
                R = allr(ops) + [("m0", 0)]
            else:
                self.kind = "vload"
                W = regs_of(ops[0])
                R = allr(ops[1:])
        elif mn.startswith("buffer_store"):
            self.kind = "vstore"
            R = allr(ops)
            self.wide_store = mn.endswith(("x3", "x4"))
            self.srcc = regs_of(ops[0])
        elif mn.startswith("buffer_atomic"):
            if re.search(r"\bsc0\b", rest):
                self.kind = "vload"
                W = regs_of(ops[0])
            else:
                self.kind = "vstore"
            R = allr(ops)
        elif mn in ("buffer_inv", "buffer_wbl2"):
            self.kind = "vstore"
        elif mn.startswith(("ds_read", "ds_bpermute", "ds_permute", "ds_swizzle")):
            self.kind = "dsread"
            W = regs_of(ops[0])
            R = allr(ops[1:])
        elif mn.startswith("ds_"):
            self.kind = "dswrite"
            R = allr(ops)
        elif mn.startswith(("s_load", "s_memtime", "s_memrealtime")):
            self.kind = "smem"
            W = regs_of(ops[0])
            R = allr(ops[1:])
        elif mn == "s_waitcnt":
            self.kind = "waitcnt"
        elif mn == "s_nop":
            self.kind = "nop"
        elif mn in ("s_barrier", "s_sleep", "s_setprio", "s_endpgm"):
            self.kind = "other"
        elif mn.startswith(("s_cbranch", "s_branch")):
            self.kind = "branch"
        elif mn.startswith("s_cmp"):
            self.kind = "salu"
            R = allr(ops)
            W = [("scc", 0)]
        elif mn.startswith("s_"):
            self.kind = "salu"
            W = regs_of(ops[0])
            R = allr(ops[1:])
            if "saveexec" in mn:
                W = W + [("exec", 0)]
        elif mn == "@waitvm":
            self.kind = "waitvm"
        elif mn == "@waitlgkm":
            self.kind = "waitlgkm"
        else:
            raise ValueError("unknown instruction: " + text)
        self.reads, self.writes = R, W


class Prog:
    def __init__(self):
        self.ins = []

    def __call__(self, text, tag=None):
        for line in text.strip().split("\n"):
            line = line.strip()
            if line and not line.startswith(";"):
                self.ins.append(Ins(line, tag))

    def extend(self, lst):
        self.ins.extend(lst)

    def waitvm(self, tag):
        i = Ins("@waitvm")
        i.tag = tag
        self.ins.append(i)

    def waitlgkm(self, tag):
        i = Ins("@waitlgkm")
        i.tag = tag
        self.ins.append(i)

    _last = [None]
    def stamp(self, k, real=False):
        import os
        if not os.environ.get("STAMPS"):
            return
        if Prog._last[0] is not None:
            self(f"s_mov_b32 s{84 + Prog._last[0]}, s80")
        Prog._last[0] = k
        self(f"{'s_memrealtime' if real else 's_memtime'} s[80:81]")

    def dbgstamp(self, k, vtmp, real=False):
        import os
        if not os.environ.get("DBGOUT"):
            return
        wg = int(os.environ.get("DBGWG", "8"))
        self("s_load_dwordx2 s[84:85], s[0:1], 112")
        self(f"{'s_memrealtime' if real else 's_memtime'} s[88:89]")
        self("s_waitcnt lgkmcnt(0)")
        self("s_and_b32 s85, s85, 0xffff\ns_mov_b32 s86, 256\ns_mov_b32 s87, 0x00020000")
        self(f"s_lshl_b32 s89, s79, 10\ns_add_u32 s89, s89, s2\ns_cmp_eq_u32 s89, {wg}\ns_cselect_b32 s89, {4*k}, 0x1000")
        self(f"v_mov_b32 v{vtmp}, 0\nv_mov_b32 v{vtmp+1}, s88")
        self(f"buffer_store_dword v{vtmp+1}, v{vtmp}, s[84:87], s89 offen")

    def dump_stamps(self, n, srd, base, vtmp=0, keep=False):
        import os
        if not os.environ.get("STAMPS"):
            return
        self(f"s_mov_b32 s{84 + Prog._last[0]}, s80")
        Prog._last[0] = None
        self("s_mov_b64 exec, 1")
        self(f"s_lshl_b32 s78, s2, 2")
        self(f"s_add_u32 s78, s78, s79")
        self(f"s_lshl_b32 s78, s78, 6")
        self(f"s_add_u32 s78, s78, {base}")
        self(f"v_mov_b32 v{vtmp}, 0")
        for k in range(16):
            self(f"v_mov_b32 v{vtmp+1}, s{84 + k}")
            self(f"buffer_store_dword v{vtmp+1}, v{vtmp}, s[{srd}:{srd+3}], s78 offen offset:{4*k}")

    def finalize(self):
        out = self._waits(self.ins)
        out = self._hazards(out)
        return "\n".join(("" if i.kind == "label" else "    ") + i.text for i in out) + "\n"

    def _waits(self, ins):
        out = []
        vm = []
        lg = []

        def do_wait(nvm=None, nlg=None):
            s = "s_waitcnt"
            if nvm is not None:
                nvm = min(nvm, 63)
                s += " vmcnt(%d)" % nvm
                del vm[: max(0, len(vm) - nvm)]
            if nlg is not None:
                nlg = min(nlg, 15)
                s += " lgkmcnt(%d)" % nlg
                del lg[: max(0, len(lg) - nlg)]
            out.append(Ins(s))

        for i in ins:
            if i.kind == "branch" and i.tag == "keepall":
                snap = (list(vm), list(lg))
                out.append(i)
                continue
            if i.kind == "label" and i.tag == "nop":
                out.append(i)
                continue
            if i.kind == "label" and i.tag == "restore":
                vm[:] = snap[0]
                lg[:] = snap[1]
                out.append(i)
                continue
            if i.kind in ("label", "branch"):
                pend_vm = any(e[0] and e[1] != "keep" for e in vm)
                pend_lg = any(e[0] for e in lg)
                if pend_vm or pend_lg:
                    do_wait(0 if pend_vm else None, 0 if pend_lg else None)
                if i.kind == "label" and not i.text.startswith("."):
                    vm.clear()
                    lg.clear()
                out.append(i)
                continue
            if i.kind == "waitvm":
                idx = max((k for k, e in enumerate(vm) if e[1] == i.tag), default=-1)
                if idx >= 0:
                    do_wait(nvm=len(vm) - 1 - idx)
                continue
            if i.kind == "waitlgkm":
                idx = max((k for k, e in enumerate(lg) if e[1] == i.tag), default=-1)
                if idx >= 0:
                    if any(e[2] for e in lg):
                        do_wait(nlg=0)
                    else:
                        do_wait(nlg=len(lg) - 1 - idx)
                continue
            if i.kind == "waitcnt":
                m = re.search(r"vmcnt\((\d+)\)", i.text)
                if m:
                    del vm[: max(0, len(vm) - int(m.group(1)))]
                m = re.search(r"lgkmcnt\((\d+)\)", i.text)
                if m:
                    n = int(m.group(1))
                    if n == 0 or not any(e[2] for e in lg):
                        del lg[: max(0, len(lg) - n)]
                out.append(i)
                continue
            touched = set(i.reads) | set(i.writes)
            nvm = nlg = None
            idx = max((k for k, e in enumerate(vm) if e[0] & touched), default=-1)
            if idx >= 0:
                nvm = len(vm) - 1 - idx
            idx = max((k for k, e in enumerate(lg) if e[0] & touched), default=-1)
            if idx >= 0:
                nlg = 0 if any(e[2] for e in lg) else len(lg) - 1 - idx
            if i.kind in ("vload", "vstore", "dma") and len(vm) >= 63:
                nvm = 62 if nvm is None else min(nvm, 62)
            if nvm is not None or nlg is not None:
                do_wait(nvm, nlg)
            out.append(i)
            if i.kind == "vload":
                vm.append((set(i.writes), i.tag))
            elif i.kind in ("vstore", "dma"):
                vm.append((set(), i.tag))
            elif i.kind == "dsread":
                lg.append((set(i.writes), i.tag, False))
            elif i.kind == "dswrite":
                lg.append((set(), i.tag, False))
            elif i.kind == "smem":
                lg.append((set(i.writes), i.tag, True))
            if len(vm) > 63:
                raise ValueError("more than 63 vector-memory ops outstanding at: " + i.text)
        return out

    def _hazards(self, ins):
        out = []
        pos = 0
        valu_w = {}
        trans_w = {}
        dot_w = {}
        mfma_w = {}
        mfma_c = {}
        store_d = {}
        m0_w = -100
        VAL = ("valu", "trans", "dot", "permlane")
        for i in ins:
            if i.kind == "label":
                if i.tag == "restore":
                    pos, m0_w = hs[0], hs[1]
                    for d, sv in zip((valu_w, trans_w, dot_w, mfma_w, mfma_c, store_d), hs[2]):
                        d.clear()
                        d.update(sv)
                out.append(i)
                continue
            if i.kind == "branch" and i.tag == "keepall":
                hs = (pos + 1, m0_w, [dict(d) for d in (valu_w, trans_w, dot_w, mfma_w, mfma_c, store_d)])
            need = 0

            def req(p, ws):
                nonlocal need
                need = max(need, ws - (pos - p - 1))

            if i.kind == "mfma":
                for r in i.reads:
                    if r in valu_w:
                        req(valu_w[r], 2)
                    if r in dot_w:
                        req(dot_w[r][0], 3)
                for r in i.srcab:
                    if r in mfma_w:
                        req(mfma_w[r][0], 12)
                for r in i.srcc:
                    if r in mfma_w and mfma_w[r][1] != tuple(i.srcc):
                        req(mfma_w[r][0], 10)
                if not i.srcc:
                    for r in i.writes:
                        if r in mfma_w:
                            req(mfma_w[r][0], 12)
                if ("exec", 0) in valu_w:
                    req(valu_w[("exec", 0)], 4)
            elif i.kind in VAL:
                for r in list(i.reads) + list(i.writes):
                    if r in mfma_w:
                        req(mfma_w[r][0], 12)
                for r in i.writes:
                    if r in mfma_c:
                        req(mfma_c[r], 7)
                    if r in store_d:
                        req(store_d[r], 2)
                for r in i.reads:
                    if r in trans_w and i.kind != "trans":
                        req(trans_w[r], 1)
                    if r[0] in ("s", "vcc") and r in valu_w:
                        req(valu_w[r], 4 if i.mn.startswith(("v_readlane", "v_writelane")) else 2)
                    if (i.kind == "permlane" or i.dpp) and r in valu_w and r[0] == "v":
                        req(valu_w[r], 2)
                    if i.mn.startswith(("v_readfirstlane", "v_readlane")) and r in valu_w and r[0] == "v":
                        req(valu_w[r], 1)
                for r in list(i.reads) + list(i.writes):
                    if r in dot_w:
                        p, mn = dot_w[r]
                        same_acc = (mn == i.mn and r in i.writes)
                        if not same_acc:
                            req(p, 3)
            elif i.kind in ("vload", "vstore", "dma", "dsread", "dswrite"):
                for r in list(i.reads) + list(i.writes):
                    if r in mfma_w:
                        req(mfma_w[r][0], 12)
                    if r in dot_w:
                        req(dot_w[r][0], 3)
                for r in i.reads:
                    if r[0] == "s" and r in valu_w:
                        req(valu_w[r], 5)
                    if r in trans_w:
                        req(trans_w[r], 1)
                for r in i.writes:
                    if r in store_d:
                        req(store_d[r], 1)
                    if r in mfma_c:
                        req(mfma_c[r], 7)
                if i.kind == "dma":
                    req(m0_w, 1)
            elif i.kind in ("salu", "smem", "branch"):
                for r in i.reads:
                    if r in valu_w:
                        req(valu_w[r], 2)
            while need > 0:
                n = min(need, 16)
                out.append(Ins("s_nop %d" % (n - 1)))
                pos += n
                need -= n
            out.append(i)
            if i.kind == "mfma":
                for r in i.writes:
                    mfma_w[r] = (pos, tuple(i.writes))
                for r in i.srcc:
                    mfma_c[r] = pos
            elif i.kind in VAL:
                for r in i.writes:
                    valu_w[r] = pos
                    mfma_w.pop(r, None)
                    if i.kind == "trans":
                        trans_w[r] = pos
                    else:
                        trans_w.pop(r, None)
                    if i.kind == "dot":
                        dot_w[r] = (pos, i.mn)
                    else:
                        dot_w.pop(r, None)
            elif i.kind == "vstore" and i.wide_store:
                for r in i.srcc:
                    store_d[r] = pos
            elif i.kind == "salu":
                for r in i.writes:
                    if r == ("m0", 0):
                        m0_w = pos
                    valu_w.pop(r, None)
            if i.kind == "nop":
                pos += int(i.text.split()[1]) + 1
            else:
                pos += 1
        return out


def interleave(main, fill, start=0, end=None, per=None):
    idx = [k for k, i in enumerate(main) if i.kind == "mfma"]
    if end is None:
        end = len(idx)
    slots = idx[start:end]
    n = len(slots)
    out = []
    fi = 0
    slot_of = {k: j for j, k in enumerate(slots)}
    for k, i in enumerate(main):
        out.append(i)
        if k in slot_of:
            j = slot_of[k]
            if per is None:
                tgt = (len(fill) * (j + 1) + n - 1) // n
            else:
                tgt = min(len(fill), per * (j + 1))
            if j == n - 1:
                tgt = len(fill)
            while fi < tgt:
                out.append(fill[fi])
                fi += 1
    assert fi == len(fill)
    return out


def icost(i):
    if i.kind in ("trans", "permlane"):
        return 8
    if i.kind in ("waitvm", "waitlgkm", "label"):
        return 0 if i.kind == "label" else 4
    return 4


def interleave2(main, fill, start=0, end=None, budget=24):
    idx = [k for k, i in enumerate(main) if i.kind == "mfma"]
    if end is None:
        end = len(idx)
    gaps = []
    for j in range(start, end):
        lo = idx[j]
        hi = idx[j + 1] if j + 1 < len(idx) else len(main)
        used = sum(icost(i) for i in main[lo + 1:hi])
        gaps.append((hi, max(2, budget - used)))
    total_slack = sum(g[1] for g in gaps)
    total_fill = sum(icost(i) for i in fill)
    ins_at = {}
    fi = 0
    cum_s = 0
    cum_f = 0
    for n, (hi, sl) in enumerate(gaps):
        cum_s += sl
        tgt = total_fill * cum_s / total_slack
        L = []
        while fi < len(fill) and (cum_f + icost(fill[fi]) / 2 <= tgt or n == len(gaps) - 1):
            L.append(fill[fi])
            cum_f += icost(fill[fi])
            fi += 1
        ins_at[hi] = L
    out = []
    for k, i in enumerate(main):
        if k in ins_at:
            out += ins_at[k]
        out.append(i)
    if len(main) in ins_at:
        out += ins_at[len(main)]
    assert fi == len(fill)
    return out


def kernel_text(name, body, vgpr, agpr=0, sgpr=96):
    acc = (vgpr + 3) // 4 * 4
    total = acc + agpr if agpr else vgpr
    return f"""
.text
.globl {name}
.p2align 8
.type {name},@function
{name}:
{body}
.section .rodata,"a"
.p2align 6
.amdhsa_kernel {name}
  .amdhsa_next_free_vgpr {total}
  .amdhsa_next_free_sgpr {sgpr}
  .amdhsa_accum_offset {acc}
  .amdhsa_group_segment_fixed_size 0
  .amdhsa_kernarg_size 128
  .amdhsa_user_sgpr_count 2
  .amdhsa_user_sgpr_kernarg_segment_ptr 1
  .amdhsa_system_sgpr_workgroup_id_x 1
  .amdhsa_float_denorm_mode_32 3
.end_amdhsa_kernel
"""
```

```python
import os, math
from asmlib import *
from layout import *
from k1 import code_touch, srd, f2u, bf16r, emit_param_loads, emit_params, emit_pow, LOG2E
from k2 import (SLOT, E_BASE, V_LANE16, V_D4, V_DE, V_R4, V_RE, V_RE2, V_C0, V_T, XV, ACC, WF, NWF, DIST,
                xreg, epilogue, cfma)

T0, T1, A2, REV = 228, 229, 230, 231
SGO, SGD = 232, 233
L1, CO = 234, 236
C8 = 238
ES = 240
Q = 244
V_DU, VAG, VG, TX = 252, 253, 254, 255
V_UB, V_UT = 14, 13
VW, VR = 13, 14
RG0 = (VAG, VG, TX, VW, VR, 77, 78)
RG3 = (244, 245, 246, 208, 209, 3, 70)


def cmul(E, o, a, b):
    E(f"""
    v_mul_f32 v{o}, v{a}, v{b}
    v_mul_f32 v{o+1}, v{a}, v{b+1}
    v_fma_f32 v{o}, -v{a+1}, v{b+1}, v{o}
    v_fmac_f32 v{o+1}, v{a+1}, v{b}
    """)


def ssm_params(spt):
    L = Prog()
    L(f"""
    v_and_b32 v{TX}, 15, v0
    s_lshl_b32 s77, s{spt}, 4
    v_add_u32 v{TX}, s77, v{TX}
    v_lshlrev_b32 v{TX}, 1, v{TX}
    """)
    emit_param_loads(L, TX, T0, 24, 28, 32)
    C = Prog()
    emit_params(C, T0)
    emit_pow(C, 1, A2, REV, L1, L1 + 1, Q)
    C(f"""
    v_add_f32 v{Q}, -1.0, v{L1}
    v_mul_f32 v{Q+1}, v{T0}, v{T0}
    v_fmac_f32 v{Q+1}, v{T1}, v{T1}
    v_rcp_f32 v{Q+1}, v{Q+1}
    v_mul_f32 v{CO}, v{Q}, v{T0}
    v_add_f32 v{Q+1}, v{Q+1}, v{Q+1}
    v_fmac_f32 v{CO}, v{L1+1}, v{T1}
    v_mul_f32 v{CO+1}, v{L1+1}, v{T0}
    v_fma_f32 v{CO+1}, -v{Q}, v{T1}, v{CO+1}
    v_mul_f32 v{CO}, v{CO}, v{Q+1}
    v_mul_f32 v{CO+1}, v{CO+1}, v{Q+1}
    v_lshrrev_b32 v{VG}, 4, v0
    v_cvt_f32_u32 v{VG}, v{VG}
    """)
    return L.ins, C.ins


def ssm1(U, sagg):
    E = Prog()
    for j in range(2):
        a = U + 16 * j
        for k in range(8):
            E(f"v_permlane16_swap_b32 v{a+k}, v{a+8+k}")
        hp = None
        for k in range(8):
            re_, im_ = a + k, a + 8 + k
            E(f"""
            v_mul_f32 v{T0}, v{CO}, v{re_}
            v_mul_f32 v{T1}, v{CO+1}, v{re_}
            v_fma_f32 v{re_}, -v{CO+1}, v{im_}, v{T0}
            v_fma_f32 v{im_}, v{CO}, v{im_}, v{T1}
            """)
            if k == 0:
                hp = (re_, im_)
            else:
                o = (Q + 4 * j) + 2 * (k & 1)
                cfma(E, o, o + 1, L1, hp[0], hp[1], re_, im_)
                hp = (o, o + 1)
    emit_pow(E, 8, A2, REV, C8, C8 + 1, T0)
    E(f"v_bfe_u32 v{TX}, v0, 4, 1")
    E(f"v_cvt_f32_u32 v{TX}, v{TX}")
    for j in range(2):
        a, b = Q + 4 * j + 2, Q + 4 * j
        E(f"""
        v_mov_b32 v{b}, v{a}
        v_mov_b32 v{b+1}, v{a+1}
        v_permlane16_swap_b32 v{a}, v{b}
        v_permlane16_swap_b32 v{a+1}, v{b+1}
        v_mul_f32 v{ES+2*j}, v{TX}, v{a}
        v_mul_f32 v{ES+2*j+1}, v{TX}, v{a+1}
        """)
        cfma(E, b, b + 1, C8, a, a + 1, b, b + 1)
    E(f"v_mul_f32 v{TX}, {f2u(8.0)}, v{TX}")
    emit_pow(E, f"v{TX}", A2, REV, CO, CO + 1, T0)
    E(f"""
    v_lshrrev_b32 v{TX}, 5, v0
    v_cvt_f32_u32 v{TX}, v{TX}
    v_mul_f32 v{CO}, v{TX}, v{CO}
    v_mul_f32 v{CO+1}, v{TX}, v{CO+1}
    """)
    cmul(E, T0, C8, C8)
    for j in range(2):
        a, b = Q + 4 * j + 2, Q + 4 * j
        E(f"""
        v_mov_b32 v{a}, v{b}
        v_mov_b32 v{a+1}, v{b+1}
        v_permlane32_swap_b32 v{b}, v{a}
        v_permlane32_swap_b32 v{b+1}, v{a+1}
        """)
        cfma(E, ES + 2 * j, ES + 2 * j + 1, CO, b, b + 1, ES + 2 * j, ES + 2 * j + 1)
        cfma(E, a, a + 1, T0, b, b + 1, a, a + 1)
    cmul(E, C8, T0, T0)
    cfma(E, Q + 4, Q + 5, C8, Q + 2, Q + 3, Q + 6, Q + 7)
    E(f"""
    v_mov_b32 v{Q+6}, 1.0
    v_mov_b32 v{Q+7}, 1.0
    v_lshlrev_b32 v{TX}, 4, v0
    v_cmp_gt_u32 vcc, 16, v0
    v_cndmask_b32 v{TX}, 2.0, v{TX}, vcc
    buffer_store_dwordx4 v[{Q+4}:{Q+7}], v{TX}, s[20:23], s{sagg} offen sc0 sc1
    v_mul_f32 v{TX}, {f2u(8.0)}, v{VG}
    """)
    emit_pow(E, f"v{TX}", A2, REV, CO, CO + 1, T0)
    cfma(E, ES + 2, ES + 3, CO, Q + 2, Q + 3, ES + 2, ES + 3)
    return E.ins


def ssm2_loads(R, sagg, swc, rg=None):
    VAG, VG, TX, VW, VR, ST_, SC_ = rg or RG0
    E = Prog()
    E(f"""
    v_lshrrev_b32 v{T0}, 4, v0
    v_lshlrev_b32 v{T0}, 3, v{T0}
    v_sub_u32 v{T0}, s{swc}, v{T0}
    v_and_b32 v{T1}, 15, v0
    v_lshlrev_b32 v{T1}, 4, v{T1}
    v_lshrrev_b32 v{VAG}, 4, v0
    v_lshlrev_b32 v{VAG}, 11, v{VAG}
    v_sub_u32 v{VAG}, v{T1}, v{VAG}
    v_add_u32 v{VAG}, s{sagg}, v{VAG}
    v_mov_b32 v{T1}, {WS_ZREC}
    """)
    for q in range(8):
        E(f"""
        v_cmp_lt_i32 vcc, {q}, v{T0}
        v_add_u32 v{TX}, {(-256*(q+1)) & 0xffffffff}, v{VAG}
        v_cndmask_b32 v{TX}, v{T1}, v{TX}, vcc
        buffer_load_dwordx4 v[{R+4*q}:{R+4*q+3}], v{TX}, s[20:23], 0 offen sc0 sc1
        """)
    return E.ins


def ssm2(U, R, shf, lab, scr, rg=None):
    VAG, VG, TX, VW, VR, ST_, SC_ = rg or RG0
    E = Prog()
    E(f"v_min_f32 v{TX}, v{R+2}, v{R+3}")
    for q in range(1, 8):
        E(f"v_min3_f32 v{TX}, v{TX}, v{R+4*q+2}, v{R+4*q+3}")
    E(f"v_cmp_gt_f32 vcc, 0.5, v{TX}")
    E("s_nop 4")
    E(f"s_cbranch_vccnz {lab}_SLOW", tag="keepall")
    E(f"{lab}_BACK:", tag="nop")
    emit_pow(E, 64, A2, REV, C8, C8 + 1, T0)
    for q in range(6, -1, -1):
        cfma(E, R + 4 * q, R + 4 * q + 1, C8, R + 4 * q + 4, R + 4 * q + 5, R + 4 * q, R + 4 * q + 1)
    E(f"v_mul_f32 v{TX}, {f2u(512.0)}, v{VG}")
    emit_pow(E, f"v{TX}", A2, REV, C8, C8 + 1, T0)
    cmul(E, CO, C8, R)
    for pl in ("v_permlane16_swap_b32", "v_permlane32_swap_b32"):
        E(f"""
        v_mov_b32 v{T0}, v{CO}
        v_mov_b32 v{T1}, v{CO+1}
        {pl} v{CO}, v{T0}
        {pl} v{CO+1}, v{T1}
        v_add_f32 v{CO}, v{CO}, v{T0}
        v_add_f32 v{CO+1}, v{CO+1}, v{T1}
        """)
    E(f"""
    s_lshl_b32 s{ST_}, s53, 11
    s_add_u32 s{ST_}, s{ST_}, {scr}
    v_and_b32 v{VW}, 15, v0
    v_lshlrev_b32 v{VW}, 6, v{VW}
    v_bfe_u32 v{T0}, v0, 4, 1
    v_lshl_add_u32 v{VW}, v{T0}, 5, v{VW}
    v_lshrrev_b32 v{T1}, 5, v0
    v_lshl_add_u32 v{VW}, v{T1}, 3, v{VW}
    v_add_u32 v{VW}, s{ST_}, v{VW}
    v_lshlrev_b32 v{VR}, 3, v{T1}
    v_bfe_u32 v{T1}, v0, 2, 2
    v_add_u32 v{VR}, v{VR}, v{T1}
    v_lshlrev_b32 v{VR}, 6, v{VR}
    v_lshl_add_u32 v{VR}, v{T0}, 5, v{VR}
    v_and_b32 v{T1}, 3, v0
    v_lshl_add_u32 v{VR}, v{T1}, 3, v{VR}
    v_add_u32 v{VR}, s{ST_}, v{VR}
    """)
    for j in range(2):
        b = U + 16 * j
        E(f"v_mov_b32 v{TX}, {f2u(32.0*j)}")
        E(f"v_fmac_f32 v{TX}, {f2u(8.0)}, v{VG}")
        emit_pow(E, f"v{TX}", A2, REV, C8, C8 + 1, T0)
        e = ES + 2 * j
        cfma(E, e, e + 1, C8, CO, CO + 1, e, e + 1)
        pre, pim = e, e + 1
        for k in range(8):
            cfma(E, b + k, b + 8 + k, L1, pre, pim, b + k, b + 8 + k)
            pre, pim = b + k, b + 8 + k
        for k in range(4):
            E(f"v_cvt_pk_bf16_f32 v{b+k}, v{b+2*k}, v{b+2*k+1}")
        for k in range(4):
            E(f"v_cvt_pk_bf16_f32 v{b+8+k}, -v{b+8+2*k}, -v{b+8+2*k+1}")
        E(f"""
        ds_write_b64 v{VW}, v[{b}:{b+1}]
        ds_write_b64 v{VW}, v[{b+2}:{b+3}] offset:16
        ds_write_b64 v{VW}, v[{b+8}:{b+9}] offset:1024
        ds_write_b64 v{VW}, v[{b+10}:{b+11}] offset:1040
        ds_read_b64_tr_b16 v[{b+4}:{b+5}], v{VR}
        ds_read_b64_tr_b16 v[{b+6}:{b+7}], v{VR} offset:256
        ds_read_b64_tr_b16 v[{b+12}:{b+13}], v{VR} offset:1024
        ds_read_b64_tr_b16 v[{b+14}:{b+15}], v{VR} offset:1280
        s_add_u32 s{ST_}, s{shf+j}, {36*1024}
        """)
        E(f"""
        buffer_store_dwordx4 v[{b+4}:{b+7}], v{V_LANE16}, s[20:23], s{shf+j} offen sc1
        buffer_store_dwordx4 v[{b+12}:{b+15}], v{V_LANE16}, s[20:23], s{ST_} offen sc1
        """, tag="fx")
    return E.ins


def ssm2_slow(P, R, sagg, swc, lab, rg=None):
    VAG, VG, TX, VW, VR, ST_, SC_ = rg or RG0
    P(f"{lab}_SLOW:")
    P(f"s_mov_b32 s{SC_}, 0")
    P(f"{lab}_SPIN:")
    P("s_sleep 4")
    P.extend(ssm2_loads(R, sagg, swc, rg))
    P(f"v_min_f32 v{TX}, v{R+2}, v{R+3}")
    for q in range(1, 8):
        P(f"v_min3_f32 v{TX}, v{TX}, v{R+4*q+2}, v{R+4*q+3}")
    P(f"""
    v_cmp_gt_f32 vcc, 0.5, v{TX}
    s_add_u32 s{SC_}, s{SC_}, 1
    s_nop 4
    s_cbranch_vccz {lab}_BACK
    s_cmp_lt_u32 s{SC_}, 100000
    s_cbranch_scc1 {lab}_SPIN
    s_branch {lab}_BACK
    """)


def N0():
    return tuple(int(x) for x in os.environ.get("N0", "2,0,0").split(","))


def ln_phase(P, dma4, dmaU, xloads, ROT, PRE):
    P("s_load_dwordx2 s[82:83], s[0:1], 0") if False else None
    P(f"""
    s_lshr_b32 s57, s2, 5
    s_bfe_u32 s58, s2, 0x20003
    s_lshl_b32 s58, s58, 1
    s_add_u32 s57, s57, s58
    s_cmp_ge_u32 s57, 9
    s_cselect_b32 s58, 9, 0
    s_sub_u32 s57, s57, s58
    s_mul_i32 s57, s57, {1 if ROT else 0}
    s_sub_u32 s3, 9, s57
    s_mul_i32 s58, s57, {64*9216}
    s_add_u32 s56, s56, s58
    s_add_u32 s72, s72, s58
    s_sub_u32 s4, s56, {9*64*9216}
    s_sub_u32 s5, s72, {9*64*9216}
    s_lshl_b32 s58, s57, 7
    s_add_u32 s63, s63, s58
    s_sub_u32 s6, s63, {9*128}
    s_lshl_b32 s58, s57, 12
    s_add_u32 s64, s64, s58
    s_add_u32 s65, s65, s58
    s_sub_u32 s7, s64, {9*4096}
    s_sub_u32 s78, s65, {9*4096}
    """)
    P("s_load_dwordx2 s[48:49], s[0:1], 112")
    first = []
    for kb in range(2):
        first += dma4(0, kb)
    rest = []
    na, nb, nu = N0()
    for kb in range(2, na):
        rest += dma4(0, kb)
    for kb in range(4):
        rest += (dma4(1, kb) if kb < nb else []) + (dmaU(kb) if kb < nu else [])
    P("s_waitcnt lgkmcnt(0)")
    srd(P, 36, 48, 49, 256)
    P("s_cmp_lg_u32 s53, 0")
    P("s_cbranch_scc1 K2_NOLN")
    R, F, S, Z = ACC, ACC + 40, ACC + 120, ACC + 136
    allw = first + rest
    P(f"""
    v_mov_b32 v{Z}, 0
    v_mov_b32 v{Z+1}, 0
    v_mov_b32 v{Z+2}, 0
    v_mov_b32 v{Z+3}, 0
    v_mov_b32 v{Z+4}, 0
    v_mov_b32 v{Z+5}, 0
    v_mov_b32 v{Z+6}, 1.0
    v_mov_b32 v{Z+7}, 1.0
    s_mul_i32 s58, s2, {5*CNT_STRIDE}
    s_add_u32 s58, s58, {WS_CNT}
    v_mul_u32_u24 v{Z+8}, {CNT_STRIDE}, v0
    v_cmp_gt_u32 vcc, 5, v0
    v_cndmask_b32 v{Z+8}, 2.0, v{Z+8}, vcc
    buffer_store_dword v{Z}, v{Z+8}, s[20:23], s58 offen sc0 sc1
    s_mul_i32 s58, s2, {72*16}
    s_add_u32 s58, s58, {WS_AGG}
    v_cmp_gt_u32 vcc, 8, v0
    v_cndmask_b32 v{Z+8}, 2.0, v{V_LANE16}, vcc
    buffer_store_dwordx4 v[{Z}:{Z+3}], v{V_LANE16}, s[20:23], s58 offen sc0 sc1
    buffer_store_dwordx4 v[{Z}:{Z+3}], v{Z+8}, s[20:23], s58 offen offset:1024 sc0 sc1
    s_lshl_b32 s57, s51, 5
    s_add_u32 s57, s57, s50
    s_lshl_b32 s42, s57, 7
    s_add_u32 s42, s42, {WS_MBX}
    buffer_store_dword v{Z}, v{SGO}, s[20:23], s42 offen sc0 sc1
    s_cmp_eq_u32 s2, 0
    s_cselect_b32 s58, 0, 0x40000000
    s_add_u32 s58, s58, {WS_ZREC}
    buffer_store_dwordx4 v[{Z+4}:{Z+7}], v{SGO}, s[20:23], s58 offen sc0 sc1
    """)
    for ins, _ in allw:
        P.extend(ins)
    P(f"""
    s_and_b32 s58, s50, 3
    s_lshl_b32 s58, s58, 3
    v_lshrrev_b32 v{S+10}, 3, v0
    v_add_u32 v{S+10}, s58, v{S+10}
    v_lshrrev_b32 v{S+8}, 1, v{S+9}
    v_lshlrev_b32 v{S+8}, 10, v{S+8}
    v_and_b32 v{S+11}, 1, v{S+9}
    v_lshl_add_u32 v{S+8}, v{S+11}, 9, v{S+8}
    v_lshl_add_u32 v{S+8}, v{S+10}, 4, v{S+8}
    s_lshr_b32 s58, s57, 2
    s_mul_i32 s58, s58, 36864
    """)

    def reduce8():
        P(f"""
        v_add_f32 v{S}, v{S}, v{S+1}
        v_add_f32_dpp v{S}, v{S}, v{S} quad_perm:[1,0,3,2] row_mask:0xf bank_mask:0xf
        v_add_f32_dpp v{S}, v{S}, v{S} quad_perm:[2,3,0,1] row_mask:0xf bank_mask:0xf
        v_add_f32_dpp v{S}, v{S}, v{S} row_half_mirror row_mask:0xf bank_mask:0xf
        """)
    for d in range(36):
        P(f"v_lshlrev_b32 v{F+2*d}, 16, v{R+d}")
        P(f"v_and_b32 v{F+2*d+1}, 0xffff0000, v{R+d}")
        if d == 1:
            P(f"v_pk_add_f32 v[{S}:{S+1}], v[{F}:{F+1}], v[{F+2}:{F+3}]")
        elif d > 1:
            P(f"v_pk_add_f32 v[{S}:{S+1}], v[{S}:{S+1}], v[{F+2*d}:{F+2*d+1}]")
    reduce8()
    if os.environ.get("PROST"): P.stamp(8)
    P(f"v_mul_f32 v{S+2}, {f2u(-1.0/576)}, v{S}")
    for d in range(36):
        P(f"v_pk_add_f32 v[{S+4}:{S+5}], v[{F+2*d}:{F+2*d+1}], v[{S+2}:{S+3}] op_sel_hi:[1,0]")
        if d == 0:
            P(f"v_pk_mul_f32 v[{S}:{S+1}], v[{S+4}:{S+5}], v[{S+4}:{S+5}]")
        else:
            P(f"v_pk_fma_f32 v[{S}:{S+1}], v[{S+4}:{S+5}], v[{S+4}:{S+5}], v[{S}:{S+1}]")
    reduce8()
    P(f"v_mul_f32 v{S+6}, {f2u(1.0/576)}, v{S}")
    bf16r(P, S + 2, S + 2)
    bf16r(P, S + 6, S + 6)
    P(f"v_add_f32 v{S+6}, {f2u(1e-5)}, v{S+6}")
    bf16r(P, S + 6, S + 6)
    P(f"v_sqrt_f32 v{S+6}, v{S+6}")
    bf16r(P, S + 6, S + 6)
    P(f"v_rcp_f32 v{S+6}, v{S+6}")
    for j in range(9):
        for d in range(4 * j, 4 * j + 4):
            a_, b_ = F + 2 * d, F + 2 * d + 1
            P(f"""
            v_pk_add_f32 v[{a_}:{b_}], v[{a_}:{b_}], v[{S+2}:{S+3}] op_sel_hi:[1,0]
            v_cvt_pk_bf16_f32 v{b_}, v{a_}, v{b_}
            v_lshlrev_b32 v{a_}, 16, v{b_}
            v_and_b32 v{b_}, 0xffff0000, v{b_}
            v_pk_mul_f32 v[{a_}:{b_}], v[{a_}:{b_}], v[{S+6}:{S+7}] op_sel_hi:[1,0]
            v_cvt_pk_bf16_f32 v{R+d}, v{a_}, v{b_}
            """)
        P(f"s_add_u32 s59, s58, {WS_XNF + 4096*j}")
        P(f"buffer_store_dwordx4 v[{R+4*j}:{R+4*j+3}], v{S+8}, s[20:23], s59 offen sc1")
    if os.environ.get("PROST"): P.stamp(9)
    P("s_waitcnt vmcnt(0)")
    if os.environ.get("PROST"): P.stamp(10)
    P(f"""
    s_lshl_b32 s58, s51, 5
    v_mov_b32 v{S}, 1
    buffer_atomic_add v{S}, v{SGO}, s[36:39], s58 offen sc0 sc1
    s_lshl_b32 s58, s51, 12
    s_add_u32 s58, s58, {WS_MBX}
    v_lshlrev_b32 v{S+1}, 7, v0
    v_cmp_gt_u32 vcc, 32, v0
    v_cndmask_b32 v{S+1}, 2.0, v{S+1}, vcc
    v_readfirstlane_b32 s59, v{S}
    s_and_b32 s59, s59, 31
    s_cmp_eq_u32 s59, 31
    s_cselect_b32 s58, s58, 0x40000000
    buffer_store_dword v{SGD}, v{S+1}, s[20:23], s58 offen sc0 sc1
    """)
    if os.environ.get("PROST"): P.stamp(11)
    P(f"v_mov_b32 v{Z+8}, 0")
    P("s_mov_b32 s58, 0")
    P("K2_XPOLL:")
    P(f"""
    buffer_load_dword v{Z+9}, v{Z+8}, s[20:23], s42 offen sc0 sc1
    s_waitcnt vmcnt(0)
    v_cmp_ne_u32 vcc, 1, v{Z+9}
    s_add_u32 s58, s58, 1
    s_nop 4
    s_cbranch_vccz K2_LNJOIN
    s_sleep {os.environ.get("XSLEEP", "2")}
    s_cmp_lt_u32 s58, 100000
    s_cbranch_scc1 K2_XPOLL
    s_branch K2_LNJOIN
    """)
    P("K2_NOLN:")
    if os.environ.get("CTOP", "1") != "1":
        P("s_lshr_b32 s57, s2, 3\ns_cmp_eq_u32 s53, 2\ns_cselect_b32 s57, s57, 4096")
        code_touch(P, "K2_PC0", "k2_kernel", "CODE_END", 92, Z + 10, 0, 57, True)
    for ins, _ in allw:
        P.extend(ins)
    WST = [x for x in os.environ.get("WARM", "").split(",") if x]
    WINF = int(os.environ.get("WINF", "8"))
    P(f"""
    s_mul_i32 s57, s53, {16*9216}
    v_subrev_u32 v{Z}, s57, v{V_D4}
    v_subrev_u32 v{Z+1}, s57, v{V_D4+1}
    """)
    k = 0
    for st_ in WST:
        grp, kb0 = (0 if st_[0] == "A" else 1), int(st_[1:])
        P(f"""
        s_add_u32 s57, s53, {kb0 - 1}
        s_cmp_ge_u32 s57, s3
        s_cselect_b32 s58, s4, s56
        s_mul_i32 s57, s57, {64*9216}
        s_add_u32 s58, s58, s57
        """)
        for m in range(2):
            for i in range(8):
                P(f"s_add_u32 s59, s58, {i*8*9216 + grp*128}")
                I = Ins(f"buffer_store_dword v{Z}, v{Z+m}, s[{8+4*m}:{11+4*m}], s59 offen")
                I.text = f"buffer_load_dwordx4 v[{Z+4}:{Z+7}], v{Z+m}, s[{8+4*m}:{11+4*m}], s59 offen"
                P.ins.append(I)
                k += 1
                if k > WINF:
                    P(f"s_waitcnt vmcnt({WINF})")
    P("K2_LNJOIN:")
    P("s_barrier")
    if os.environ.get("PROST"): P.stamp(12)
    for kb in range(PRE):
        for ins, _ in xloads(kb):
            P.extend(ins)
    P(f"s_waitcnt vmcnt({8*PRE})")


def gen_k2b(single=False):
    P = Prog()
    P("s_cmp_ge_u32 s2, 256")
    P("s_cbranch_scc1 K3_END")
    P.stamp(0, real=True)
    P.stamp(1)
    if single:
        S_ = ACC + 120
        P("s_load_dwordx2 s[88:89], s[0:1], 0")
        if os.environ.get("CTOP", "1") == "1":
            P("s_lshr_b32 s57, s2, 3")
            P("s_lshl_b32 s57, s57, 2")
            code_touch(P, "K2_PC0", "k2_kernel", "CODE_END", 92, ACC + 150, 0, 57, True)
        P(f"""
        s_and_b32 s57, s2, 4
        s_bfe_u32 s58, s2, 0x20003
        s_add_u32 s57, s57, s58
        s_lshl_b32 s57, s57, 3
        s_and_b32 s58, s2, 3
        s_lshl_b32 s58, s58, 1
        s_add_u32 s57, s57, s58
        s_lshr_b32 s58, s2, 7
        s_add_u32 s57, s57, s58
        s_lshl_b32 s57, s57, 5
        s_bfe_u32 s58, s2, 0x20005
        s_lshl_b32 s58, s58, 2
        s_add_u32 s57, s57, s58
        s_mul_i32 s58, s57, 1152
        v_bfe_u32 v{S_+8}, v0, 3, 2
        v_bfe_u32 v{S_+9}, v0, 5, 1
        v_lshl_add_u32 v{S_+8}, v{S_+9}, 4, v{S_+8}
        v_mul_u32_u24 v{S_+10}, 1152, v{S_+8}
        v_and_b32 v{S_+9}, 7, v0
        v_lshl_add_u32 v{S_+10}, v{S_+9}, 4, v{S_+10}
        v_cmp_gt_u32 vcc, 64, v0
        v_cndmask_b32 v{S_+10}, 2.0, v{S_+10}, vcc
        s_mov_b32 s90, {2048*1152}
        s_mov_b32 s91, 0x00020000
        s_waitcnt lgkmcnt(0)
        s_and_b32 s89, s89, 0xffff
        """)
        for j in range(9):
            P(f"buffer_load_dwordx4 v[{ACC+4*j}:{ACC+4*j+3}], v{S_+10}, s[88:91], s58 offen offset:{128*j}", tag="keep")
    P("s_load_dwordx4 s[36:39], s[0:1], 80")
    P("s_load_dwordx2 s[48:49], s[0:1], 120")
    P("s_load_dwordx4 s[40:43], s[0:1], 8")
    P("s_load_dwordx2 s[46:47], s[0:1], 56")
    P("s_load_dwordx2 s[100:101], s[0:1], 24")
    P("s_load_dwordx2 s[82:83], s[0:1], 32")
    P("""
    v_lshrrev_b32 v2, 6, v0
    v_and_b32 v0, 63, v0
    v_readfirstlane_b32 s53, v2
    s_and_b32 s52, s2, 3
    s_lshr_b32 s50, s2, 5
    s_lshl_b32 s51, s52, 3
    s_add_u32 s50, s50, s51
    s_and_b32 s51, s2, 4
    s_bfe_u32 s54, s2, 0x20003
    s_add_u32 s51, s51, s54
    s_mov_b32 s79, s53
    """)
    P.dbgstamp(1, 226, real=True)
    P.dbgstamp(2, 226)
    P(f"v_lshlrev_b32 v{V_LANE16}, 4, v0")
    P(f"""
    s_lshl_b32 s54, s51, 3
    s_lshl_b32 s55, s53, 1
    s_add_u32 s54, s54, s55
    s_mul_i32 s64, s54, 36864
    s_mul_i32 s55, s52, {0 if single else XNF_BYTES}
    s_add_u32 s64, s64, s55
    s_add_u32 s65, s64, 36864
    s_lshr_b32 s57, s50, 2
    s_and_b32 s58, s50, 3
    s_mul_i32 s66, s54, {360*1024}
    s_add_u32 s66, s66, {WS_HF}
    s_add_u32 s73, s66, {288*1024}
    s_mul_i32 s55, s57, {36*1024}
    s_add_u32 s66, s66, s55
    s_lshl_b32 s55, s58, 10
    s_add_u32 s68, s66, s55
    s_add_u32 s68, s68, {32*1024}
    s_add_u32 s69, s68, {360*1024}
    s_lshl_b32 s55, s58, 13
    s_add_u32 s66, s66, s55
    s_add_u32 s67, s66, {360*1024}
    s_mul_i32 s56, s57, 1152
    s_lshl_b32 s55, s58, 5
    s_add_u32 s72, s56, s55
    s_add_u32 s72, s72, 1024
    s_lshl_b32 s55, s58, 8
    s_add_u32 s56, s56, s55
    s_mov_b32 s70, {f2u(-2.0*math.sqrt(2.0/math.pi)*LOG2E*0.044715)}
    v_mov_b32 v{V_C0}, {f2u(-2.0*math.sqrt(2.0/math.pi)*LOG2E)}
    """)
    P(f"""
    v_lshrrev_b32 v14, 3, v0
    v_and_b32 v15, 2, v14
    v_bfe_u32 v{V_D4}, v0, 1, 2
    v_xor_b32 v{V_D4}, v{V_D4}, v15
    v_lshlrev_b32 v{V_D4}, 5, v{V_D4}
    v_and_b32 v15, 1, v0
    v_lshl_add_u32 v{V_D4}, v15, 4, v{V_D4}
    s_lshl_b32 s57, s53, 4
    v_add_u32 v14, s57, v14
    v_mul_u32_u24 v14, 9216, v14
    v_add_u32 v{V_D4}, v{V_D4}, v14
    v_xor_b32 v{V_D4+1}, 32, v{V_D4}
    v_lshrrev_b32 v14, 1, v0
    s_lshl_b32 s57, s53, 1
    s_and_b32 s57, s57, 4
    v_xor_b32 v14, s57, v14
    v_mul_u32_u24 v14, 9216, v14
    v_lshl_add_u32 v{V_DE}, v15, 4, v14
    s_lshl_b32 s61, s53, 11
    """)
    P("s_waitcnt lgkmcnt(0)")
    srd(P, 8, 36, 37, 576 * 9216)
    srd(P, 12, 38, 39, 576 * 9216)
    srd(P, 20, 48, 49, WS_BYTES)

    ROT = single and int(os.environ.get("ROT2", "1"))
    def rsel(D, dst, base, kb, const):
        if ROT and kb > 0:
            D(f"s_cmp_ge_u32 {kb}, s3")
            D(f"s_cselect_b32 s{dst}, s{HI[base]}, s{base}")
            D(f"s_add_u32 s{dst}, s{dst}, {const}")
        else:
            D(f"s_add_u32 s{dst}, s{base}, {const}")
    HI = {56: 4, 72: 5, 63: 6, 64: 7, 65: 78}
    slotA = [0, 1, 2, 3, 4, 0, 1, 2, 3]
    slotB = [5, 6, 7, 8, 4, 0, 1, 2, 3]
    freeB = [None, None, None, None, 4, 5, 6, 7, 8]

    def dma4(grp, kb):
        slot = (slotA if grp == 0 else slotB)[kb] * SLOT
        out = []
        for m in range(2):
            for i in range(2):
                D = Prog()
                D(f"s_add_u32 m0, s61, {slot + m*8192 + i*1024}")
                rsel(D, 59, 56, kb, (kb*64 + i*8)*9216 + grp*128)
                D(f"buffer_load_dwordx4 v{V_D4+m}, s[{8+4*m}:{11+4*m}], s59 offen lds", tag=("W", grp, kb))
                out.append((D.ins, 8))
        return out

    def dmaU(kb):
        D = Prog()
        D(f"s_add_u32 m0, s60, {(kb % 4)*4096}")
        rsel(D, 59, 63, kb, kb*128)
        D(f"buffer_load_dwordx4 v{V_DU}, s[44:47], s59 offen lds", tag=("W", 1, kb))
        return [(D.ins, 8)]

    def dmaE(kb):
        D = Prog()
        D(f"s_add_u32 m0, s60, {((9 + kb) % 4)*4096}")
        rsel(D, 59, 72, kb, kb*64*9216)
        D(f"buffer_load_dwordx4 v{V_DE}, s[16:19], s59 offen lds", tag=("W", 2, kb))
        return [(D.ins, 32)]

    def xloads(kb):
        out = []
        for s in range(4):
            for j in range(2):
                D = Prog()
                rsel(D, 62, 64 + j, kb, WS_XNF + kb*4096)
                D(f"buffer_load_dwordx4 {xreg(j, kb*4+s)}, v{V_LANE16}, s[20:23], s62 offen offset:{s*1024}" + (" sc1" if single else ""))
                out.append((D.ins, 8))
        return out

    PRE = int(os.environ.get("K2PRE", "2"))
    if not single:
        for kb in range(PRE):
            for ins, _ in dma4(0, kb) + xloads(kb):
                P.extend(ins)
    srd(P, 24, 40, 41, 1152)
    srd(P, 28, 42, 43, 1152)
    srd(P, 32, 46, 47, 1152)
    P(f"""
    s_cmp_lt_u32 s53, 2
    s_cselect_b32 s16, s8, s12
    s_cselect_b32 s17, s9, s13
    s_cselect_b32 s44, s100, s82
    s_cselect_b32 s45, s101, s83
    s_and_b32 s45, s45, 0xffff
    s_mov_b32 s46, {576*1152}
    s_mov_b32 s47, 0x00020000
    s_mov_b32 s18, {576*9216}
    s_mov_b32 s19, 0x00020000
    s_and_b32 s57, s53, 1
    s_mul_i32 s55, s57, {32*9216}
    s_add_u32 s72, s72, s55
    s_lshl_b32 s60, s53, 10
    s_add_u32 s60, s60, {E_BASE}
    s_mul_i32 s63, s50, {16*1152}
    """)
    P(f"""
    v_lshrrev_b32 v14, 3, v0
    v_lshrrev_b32 v15, 4, v0
    s_lshl_b32 s55, s57, 2
    v_add_u32 v15, s55, v15
    v_and_b32 v13, 7, v0
    v_xor_b32 v13, v13, v15
    s_lshl_b32 s55, s57, 3
    v_add_u32 v14, s55, v14
    v_mul_u32_u24 v14, 1152, v14
    v_lshl_add_u32 v{V_DU}, v13, 4, v14
    """)
    P(f"""
    v_and_b32 v14, 1, v0
    v_lshlrev_b32 v14, 4, v14
    v_bfe_u32 v15, v0, 1, 1
    v_lshl_add_u32 v14, v15, 3, v14
    v_lshrrev_b32 v15, 5, v0
    v_lshlrev_b32 v15, 3, v15
    v_bfe_u32 v{WF}, v0, 2, 2
    v_add_u32 v15, v15, v{WF}
    v_bfe_u32 v{WF+1}, v0, 4, 1
    v_and_b32 v{WF}, 2, v{WF}
    v_xor_b32 v{WF}, v{WF}, v{WF+1}
    v_lshl_add_u32 v{V_R4}, v15, 7, v14
    v_lshl_add_u32 v{V_R4}, v{WF+1}, 13, v{V_R4}
    v_lshl_add_u32 v{V_R4}, v{WF}, 5, v{V_R4}
    v_xor_b32 v{V_R4+1}, 32, v{V_R4}
    v_xor_b32 v{V_R4+2}, 64, v{V_R4}
    v_xor_b32 v{V_R4+3}, 96, v{V_R4}
    v_lshl_add_u32 v{V_RE}, v15, 5, v14
    v_lshl_add_u32 v{V_RE}, v{WF+1}, 11, v{V_RE}
    v_lshl_add_u32 v{V_RE}, v{WF+1}, 7, v{V_RE}
    v_add_u32 v{V_RE}, {E_BASE}, v{V_RE}
    v_xor_b32 v{V_RE2}, 128, v{V_RE}
    v_and_b32 v13, 31, v0
    v_bfe_u32 v{WF}, v13, 1, 3
    v_lshrrev_b32 v{WF+1}, 5, v0
    v_xor_b32 v{WF}, v{WF}, v{WF+1}
    v_lshlrev_b32 v{WF}, 4, v{WF}
    v_lshl_add_u32 v{V_UB}, v13, 7, v{WF}
    v_add_u32 v{V_UB}, {E_BASE}, v{V_UB}
    """)
    P(f"""
    s_lshl_b32 s76, s51, 2
    s_add_u32 s76, s76, s53
    s_lshl_b32 s75, s50, 5
    s_add_u32 s75, s75, s76
    s_lshl_b32 s75, s75, 8
    s_add_u32 s75, s75, {WS_AGG}
    s_lshl_b32 s55, s50, 10
    s_add_u32 s40, s73, s55
    s_add_u32 s41, s40, {360*1024}
    s_lshl_b32 s100, s76, 2
    s_add_u32 s100, s100, s52
    s_add_u32 s100, s100, 192
    s_mul_i32 s100, s100, {CNT_STRIDE}
    s_add_u32 s100, s100, {WS_CNT}
    s_add_u32 s83, s100, {160*CNT_STRIDE}
    s_lshr_b32 s101, s76, 1
    s_add_u32 s101, s101, 320
    s_mul_i32 s101, s101, {CNT_STRIDE}
    s_add_u32 s101, s101, {WS_CNT}
    v_cmp_eq_u32 vcc, 0, v0
    v_mov_b32 v{SGD}, 1
    v_cndmask_b32 v{SGO}, 2.0, v0, vcc
    """)
    NA0, NB0, NU0 = N0() if single else (PRE, 0, 0)
    if single:
        ln_phase(P, dma4, dmaU, xloads, ROT, PRE)
    pl_ld, pl_calc = ssm_params(50)
    phases = [
        [("A", 0, 0), ("A", 1, 1), ("A", 2, 2), ("A", 3, 3)],
        [("U", 0, 4), ("B", 0, 0)],
        [("E", 0, 1), ("B", 1, 2)],
        [("B", 2, 3)],
        [("B", 3, 0)],
    ]
    frags = []
    unit = 0
    for ph, tiles in enumerate(phases):
        for kb in range(9):
            order = [(s_, t) for s_ in range(4) for t in tiles]
            if (ph == 0 and kb == 8) or (ph == 1 and kb == 0):
                order = [(s_, tiles[0]) for s_ in range(4)] + [(s_, t) for s_ in range(4) for t in tiles[1:]]
            for s_, (buf, g, sl) in order:
                frags.append(dict(ph=ph, buf=buf, kb=kb, s=s_, g=g, slot=sl, ks=kb * 4 + s_, unit=unit))
            unit += 1
    bar_units = set(range(0, 27)) | {28}
    items = []
    for kb in range(PRE, 9):
        rel = -1 if kb < 5 else kb - 5 + 2
        for ins, ln in (dma4(0, kb) if kb >= NA0 else []):
            items.append([16 * kb - 1, rel, ins, ln])
        for ins, ln in xloads(kb):
            items.append([16 * kb, -1, ins, ln])
    for kb in range(9):
        rel = -1 if freeB[kb] is None else freeB[kb] + 2
        for ins, ln in (dma4(1, kb) if kb >= NB0 else []):
            items.append([144 + 8 * kb, rel, ins, ln])
        rel = -1 if kb < 4 else 9 + (kb - 4) + 2
        for ins, ln in (dmaU(kb) if kb >= NU0 else []):
            items.append([144 + 8 * kb - 1, rel, ins, ln])
        rel = 9 + (9 + kb - 4) + 2
        for ins, ln in dmaE(kb):
            items.append([216 + 8 * kb - 1, rel, ins, ln])
    items.sort(key=lambda x: x[0])
    released = [-1]
    seen = set()
    region = [0]

    def frag_read(M, n, part):
        f = frags[n]
        u = f["unit"]
        if u not in seen:
            seen.add(u)
            if u in bar_units:
                M.waitvm(("W", min(f["ph"], 2), f["kb"]))
                M("s_barrier")
                released[0] = u
                if u in (3, 6, 9, 12, 15, 18, 21, 24, 28) and not os.environ.get("PROST"):
                    M.stamp(2 + u // 3)
        b = WF + 4 * (n % NWF)
        if f["buf"] == "U":
            if part == 0:
                if f["s"]:
                    M(f"v_xor_b32 v{V_UT}, {32*f['s']}, v{V_UB}")
                M(f"ds_read_b128 v[{b}:{b+3}], v{V_UT if f['s'] else V_UB} offset:{(f['kb'] % 4)*4096}")
            return
        if f["buf"] == "E":
            off = ((9 + f["kb"]) % 4) * 4096 + f["s"] * 16 * 32
            base = V_RE if part == 0 else V_RE2
        else:
            sl = (slotA if f["buf"] == "A" else slotB)[f["kb"]]
            reg = sl // 3
            if reg != region[0]:
                d = (reg - region[0]) * 3 * SLOT
                for g in range(4):
                    M(f"v_add_u32 v{V_R4+g}, {d & 0xffffffff}, v{V_R4+g}")
                region[0] = reg
            base = V_R4 + f["g"]
            off = (sl % 3) * SLOT + f["s"] * 16 * 128 + part * 512
        M(f"ds_read_b64_tr_b16 v[{b+2*part}:{b+2*part+1}], v{base} offset:{off}")

    P.dbgstamp(3, 226)
    P.dbgstamp(9, 226, real=True)
    for n in range(DIST):
        frag_read(P, n, 0)
        frag_read(P, n, 1)
    P.stamp(2)
    CR0 = float(os.environ.get("CR0", "6.3"))
    CR1 = float(os.environ.get("CR1", "6.6"))
    credit = 0.0
    B = Prog()
    ph_start = {}
    nm_ = 0
    for n, f in enumerate(frags):
        ph_start.setdefault(f["ph"], nm_)
        b = WF + 4 * (n % NWF)
        credit = min(credit + (CR0 if f["ph"] == 0 else CR1), 16.0)
        for j in range(2):
            a = ACC + 32 * f["slot"] + 16 * j
            c = "0" if f["ks"] == 0 else f"v[{a}:{a+15}]"
            if f["buf"] == "U":
                B(f"v_mfma_f32_32x32x16_bf16 v[{a}:{a+15}], {xreg(j, f['ks'])}, v[{b}:{b+3}], {c}")
            else:
                B(f"v_mfma_f32_32x32x16_bf16 v[{a}:{a+15}], v[{b}:{b+3}], {xreg(j, f['ks'])}, {c}")
            nm_ += 1
            if n + DIST < len(frags):
                frag_read(B, n + DIST, j)
            assert not items or items[0][0] > n + DIST + 1, ("load issued too late", n, items[0][0])
            if j == 1 and (credit > 0 or (items and items[0][0] - n < 14)):
                for k, it in enumerate(items):
                    if it[1] <= released[0]:
                        B.extend(it[2])
                        credit -= it[3]
                        del items[k]
                        break
    assert not items, len(items)
    ph_start[5] = nm_
    A_ = lambda t, **k: epilogue(t, 66, 1024 * t, tag="early", **k)
    Bslot = [0, 2, 3, 0]
    B_ = lambda t, **k: epilogue(Bslot[t], 66, 4096 + 1024 * t, **k)
    E_ = lambda **k: epilogue(1, 68, 0, **k)
    U = ACC + 128
    RC = ACC + 32

    def sig(tag, sreg):
        Qp = Prog()
        Qp.waitvm(tag)
        Qp(f"buffer_atomic_add v{SGD}, v{SGO}, s[20:23], s{sreg} offen sc1")
        return Qp.ins

    def spread(body, extra, width, lo=0.0, hi=1.0):
        groups = [extra[i:i + width] for i in range(0, len(extra), width)]
        n = len(body)
        pos = [int(n * (lo + (hi - lo) * (k + 0.5) / len(groups))) for k in range(len(groups))]
        out = []
        for i_, x in enumerate(body):
            while pos and i_ >= pos[0] and not any(y.text.startswith("s_add_u32 s71") for y in out[-3:]):
                out += groups.pop(0)
                pos.pop(0)
            out.append(x)
        for g_ in groups:
            out += g_
        return out

    PFp = Prog()
    PFp("s_load_dwordx2 s[36:37], s[0:1], 96")
    PFp("s_load_dwordx4 s[24:27], s[0:1], 40")
    PFp(f"""
    s_lshl_b32 s42, s2, 2
    s_add_u32 s42, s42, s53
    s_lshl_b32 s42, s42, 10
    s_waitcnt lgkmcnt(0)
    """)
    srd(PFp, 4, 36, 37, 4608 * 1152)
    srd(PFp, 28, 24, 25, 576 * 1152)
    srd(PFp, 32, 26, 27, 576 * 1152)
    pf = []
    for sd, i in [(4, 0), (4, 1), (28, 0), (4, 2), (4, 3), (32, 0), (4, 4), (4, 5)]:
        G = Prog()
        G(f"s_add_u32 s43, s42, {i*1024*1024}")
        I = Ins(f"buffer_store_dword v{V_LANE16}, v{V_LANE16}, s[{sd}:{sd+3}], s43 offen")
        I.text = f"buffer_load_dwordx4 v[{Q}:{Q+3}], v{V_LANE16}, s[{sd}:{sd+3}], s43 offen"
        G.ins.append(I)
        pf += G.ins
    if not int(os.environ.get("PF3B", "1")):
        pf = []
    L = B.ins
    p1, p2, p3, p4, p5 = (ph_start[k] for k in range(1, 6))
    ST = lambda t: A_(t, part="store")
    L = interleave2(L, pl_ld, start=8, end=24)
    if single:
        CK = Prog()
        CK(f"v_and_b32 v{VAG}, 7, v0")
        CK(f"v_lshlrev_b32 v{VAG}, 5, v{VAG}")
        CK(f"buffer_load_dword v{ES}, v{VAG}, s[36:39], 0 offen sc0 sc1")
        CK2 = Prog()
        CK2(f"v_max_u32 v{ES}, 1, v{ES}")
        CK2(f"v_and_b32 v{ES}, 31, v{ES}")
        CK2(f"v_cmp_ne_u32 vcc, 0, v{ES}")
        CK2("s_nop 4")
        CK2("s_cbranch_vccnz K2A_SLOW", tag="keepall")
        CK2("K2A_BACK:", tag="nop")
        L = interleave2(L, CK.ins, start=p1 - 70, end=p1 - 66)
        L = interleave2(L, CK2.ins, start=p1 - 28, end=p1 - 26)
    L = interleave2(L, pl_calc, start=110, end=p1 - 72)
    L = interleave2(L, A_(0), start=p1 - 23, end=p1 + 7)
    L = interleave2(L, A_(1, part="calc") + A_(2, part="calc") + A_(3, part="calc") + ST(1) + ST(2), start=p1 + 8, end=p2 - 1)
    L = interleave2(L, ssm1(U, 75) + B_(0, part="calc") + ST(3), start=p2 + 1, end=p3 - 1)
    idx = [k for k, i in enumerate(L) if i.kind == "mfma"]
    cut = idx[p3]
    P.extend(L[:cut])
    P.extend(PFp.ins)
    if int(os.environ.get("CPF3", "1")):
        P("s_lshr_b32 s77, s2, 3\ns_lshl_b32 s77, s77, 2\ns_add_u32 s77, s77, s53")
        code_touch(P, "K2_PC", "K3_GOON", "CODE_END", 24, Q + 4, 0, 77, False)
    L = L[cut:]
    n3, n4 = p4 - p3, p5 - p3
    if os.environ.get("S2LATE", "1") == "1" and single:
        f3 = spread(B_(0, part="store") + E_() + B_(1)[:30], pf, 2, 0.0, 0.8) + sig("early", 83)
        L = interleave2(L, f3, start=1, end=n3 - 1)
        extra = ssm2_loads(RC, 75, 76) if os.environ.get("S2LATE", "1") == "1" and os.environ.get("S2PRO", "0") == "1" else []
        for i_ in extra:
            if i_.kind == "vload":
                i_.tag = "keep"
        L = interleave2(L, B_(1)[30:] + B_(2)[:70] + extra + B_(2)[70:], start=n3 + 1, end=n4 - 1)
    else:
        f3 = spread(E_() + B_(0, part="store") + B_(1, part="calc"), pf, 2, 0.0, 0.6) + sig("early", 83) + ssm2_loads(RC, 75, 76) + B_(1, part="store")
        L = interleave2(L, f3, start=1, end=n3 + 8)
        L = interleave2(L, B_(2)[:60] + ssm2(U, RC, 40, "K2S", E_BASE) + B_(2)[60:], start=n3 + 9, end=n4 - 1)
    cnt = 0
    for i_ in L:
        P.ins.append(i_)
        if i_.kind == "mfma":
            cnt += 1
            if cnt == n3 and not os.environ.get("PROST"):
                P.stamp(12)
    P.stamp(13)
    P.extend(B_(3))
    P.stamp(14)
    P.stamp(15, real=True)
    P.dump_stamps(9, 20, WS_DBG + 0x10000, 14)
    P("s_mov_b64 exec, -1")
    return P


def tail_job(P, single=False):
    late2 = os.environ.get("S2LATE", "1") == "1" and single
    P("s_load_dwordx4 s[8:11], s[0:1], 8")
    P("s_load_dwordx2 s[36:37], s[0:1], 56")
    P(f"""
    s_lshr_b32 s50, s2, 5
    s_lshl_b32 s50, s50, 1
    s_add_u32 s50, s50, 20
    s_add_u32 s54, s50, 1
    s_mul_i32 s63, s50, {16*1152}
    s_lshl_b32 s60, s53, 10
    """)
    if single:
        P(f"""
        s_sub_u32 s58, 9, s3
        s_lshl_b32 s58, s58, 7
        s_add_u32 s63, s63, s58
        s_sub_u32 s58, s63, {9*128}
        """)
    for u in range(2):
        for kb in range(9):
            P(f"s_add_u32 m0, s60, {(u*9 + kb)*4096}")
            if single and kb > 0:
                P(f"s_cmp_ge_u32 {kb}, s3")
                P(f"s_cselect_b32 s59, s58, s63")
                P(f"s_add_u32 s59, s59, {u*16*1152 + kb*128}")
            else:
                P(f"s_add_u32 s59, s63, {u*16*1152 + kb*128}")
            P(f"buffer_load_dwordx4 v{V_DU}, s[44:47], s59 offen lds")
    P("s_waitcnt vmcnt(18)")
    P(f"buffer_atomic_add v{SGD}, v{SGO}, s[20:23], s100 offen sc1")
    P("s_waitcnt lgkmcnt(0)")
    srd(P, 24, 8, 9, 1152)
    srd(P, 28, 10, 11, 1152)
    srd(P, 32, 36, 37, 1152)
    PRW = ACC + 64
    P(f"""
    v_and_b32 v5, 15, v0
    s_lshl_b32 s77, s50, 4
    v_add_u32 v5, s77, v5
    v_lshlrev_b32 v5, 1, v5
    v_add_u32 v6, 32, v5
    """)
    emit_param_loads(P, 5, PRW, 24, 28, 32)
    emit_param_loads(P, 6, PRW + 4, 24, 28, 32)
    P.ins[-1].tag = "dmas"
    if late2:
        if os.environ.get("S2PRO", "0") != "1":
            P.extend(ssm2_loads(ACC + 32, 75, 76))
        P.extend(ssm2(ACC + 128, ACC + 32, 40, "K2S", E_BASE))
    _, ca0 = ssm_params(50)
    _, ca1 = ssm_params(54)
    def mv(k):
        Qm = Prog()
        for i in range(3):
            Qm(f"v_mov_b32 v{T0+i}, v{PRW+4*k+i}")
        return Qm.ins
    ca0 = mv(0) + ca0
    ca1 = mv(1) + ca1
    P(f"""
    v_and_b32 v13, 31, v0
    v_bfe_u32 v5, v13, 1, 3
    v_lshrrev_b32 v6, 5, v0
    v_xor_b32 v5, v5, v6
    v_lshlrev_b32 v5, 4, v5
    v_lshl_add_u32 v5, v13, 7, v5
    v_xor_b32 v6, 32, v5
    v_xor_b32 v7, 64, v5
    v_xor_b32 v8, 96, v5
    v_add_u32 v9, {9*4096}, v5
    v_add_u32 v10, {9*4096}, v6
    v_add_u32 v11, {9*4096}, v7
    v_add_u32 v12, {9*4096}, v8
    s_lshl_b32 s56, s50, 5
    s_add_u32 s56, s56, s76
    s_lshl_b32 s56, s56, 8
    s_add_u32 s56, s56, {WS_AGG}
    s_add_u32 s74, s56, {32*256}
    s_lshl_b32 s55, s50, 10
    s_add_u32 s64, s73, s55
    s_add_u32 s65, s64, {360*1024}
    s_add_u32 s66, s64, 1024
    s_add_u32 s67, s65, 1024
    s_add_u32 s68, s101, {16*CNT_STRIDE}
    """)
    P.waitvm("dmas")
    P("s_barrier")
    SG1 = Prog()
    if late2:
        SG1.waitvm("fx")
        SG1(f"buffer_atomic_add v{SGD}, v{SGO}, s[20:23], s101 offen sc1")
    M = Prog()
    fr = [(u, ks) for u in range(2) for ks in range(36)]
    FB = ACC + 96
    def rd(n):
        u, ks = fr[n]
        b = FB + 4 * (n % 8)
        M(f"ds_read_b128 v[{b}:{b+3}], v{5 + 4*u + (ks & 3)} offset:{(ks >> 2)*4096}")
    for n in range(6):
        rd(n)
    for n, (u, ks) in enumerate(fr):
        b = FB + 4 * (n % 8)
        for j in range(2):
            a = ACC + 32 * u + 16 * j
            c = "0" if ks == 0 else f"v[{a}:{a+15}]"
            M(f"v_mfma_f32_32x32x16_bf16 v[{a}:{a+15}], {xreg(j, ks)}, v[{b}:{b+3}], {c}")
            if j == 0 and n + 6 < len(fr):
                rd(n + 6)
    SV = ACC + 128
    keep = [A2, REV, L1, L1 + 1, ES, ES + 1, ES + 2, ES + 3]
    SVp = Prog()
    for k, r in enumerate(keep):
        SVp(f"v_mov_b32 v{SV+k}, v{r}")
    L = interleave2(M.ins, ca0, start=2, end=40)
    L = interleave2(L, SG1.ins, start=50, end=52)
    L = interleave2(L, ssm1(ACC, 56) + SVp.ins + ca1, start=74, end=143)
    P.extend(L)
    P.extend(ssm1(ACC + 32, 74))
    RC, RC1 = ACC + 64, ACC + 96
    for k, r in enumerate(keep):
        P(f"v_mov_b32 v{SV+8+k}, v{r}")
        P(f"v_mov_b32 v{r}, v{SV+k}")
    P.extend(ssm2_loads(RC, 56, 76))
    s20 = ssm2(ACC, RC, 64, "K2T0", E_BASE)
    h_ = next(k for k, i_ in enumerate(s20) if i_.text.startswith("ds_write"))
    P.extend(s20[:h_])
    P.extend(ssm2_loads(RC1, 74, 76))
    P.extend(s20[h_:])
    for k, r in enumerate(keep):
        P(f"v_mov_b32 v{r}, v{SV+8+k}")
    P.extend(ssm2(ACC + 32, RC1, 66, "K2T1", E_BASE))
    P(f"""
    s_waitcnt vmcnt(0)
    v_mov_b32 v{SGD}, 2
    buffer_atomic_add v{SGD}, v{SGO}, s[20:23], s68 offen sc1
    s_branch K3_END
    """)
    ssm2_slow(P, RC, 56, 76, "K2T0")
    ssm2_slow(P, RC1, 74, 76, "K2T1")
    ssm2_slow(P, ACC + 32, 75, 76, "K2S")
    if single:
        P("K2A_SLOW:")
        P("s_mov_b32 s71, 0")
        P("K2A_SPIN:")
        P(f"""
        s_sleep 8
        buffer_load_dword v{ES}, v{VAG}, s[36:39], 0 offen sc0 sc1
        s_waitcnt vmcnt(0)
        v_max_u32 v{ES}, 1, v{ES}
        v_and_b32 v{ES}, 31, v{ES}
        v_cmp_ne_u32 vcc, 0, v{ES}
        s_add_u32 s71, s71, 1
        s_nop 4
        s_cbranch_vccz K2A_BACK
        s_cmp_lt_u32 s71, 100000
        s_cbranch_scc1 K2A_SPIN
        s_branch K2A_BACK
        """)
```

```python
import os
from asmlib import *
from layout import *
from k1 import srd
from k3 import (STG, NS, V_LANE16, V_D, V_RB, V_OUT, RR0, RR1, ACC, WF, NWF, DIST, PB, hreg, publish, resid_calc)

V_DS = 3
V_DS1 = 252
V_SB = 248
V_G4, V_GD = 254, 253
LATE2 = os.environ.get("S2LATE", "1") == "1"


def main_loop(P, typ):
    S = typ == "S"
    if S:
        blocks = [("F", q, l) for l in (0, 2, 1, 3) for q in range(4)] + [("S", b) for b in (8, 17)]
        gates = [(8, 77, 8), (16, 78, 8)]
    else:
        blocks = [("F", 0, l) for l in (4, 6, 9, 11, 13, 15, 8, 17, 5, 7, 10, 12, 14, 16)] + [("S", r) for r in range(4)]
        gates = [(6, 77, 8), (14, 74, 64)]

    def dma(kb):
        slot = (kb % NS) * STG
        bl = blocks[kb]
        out = []
        for i in range(6):
            D = Prog()
            if bl[0] == "F":
                D(f"s_add_u32 m0, s61, {slot + (i >> 1)*8192 + (i & 1)*1024}")
                D(f"s_add_u32 s59, s56, {((bl[1]*18 + bl[2])*64 + (i & 1)*8)*1152 + (i >> 1)*128}")
                D(f"buffer_load_dwordx4 v{V_D}, s[8:11], s59 offen lds", tag=("W", kb))
            else:
                srdn = 12 if (not S or bl[1] < 9) else 40
                D(f"s_add_u32 m0, s60, {slot + i*1024}")
                D(f"s_add_u32 s59, s{92+i}, {(bl[1] % 9)*128}")
                D(f"buffer_load_dwordx4 v{V_DS1 if i & 1 else V_DS}, s[{srdn}:{srdn+3}], s59 offen lds", tag=("W", kb))
            out.append((D.ins, 8))
        return out

    def hloads(kb):
        bl = blocks[kb]
        out = []
        for s in range(4):
            D = Prog()
            if bl[0] == "F":
                D(f"s_add_u32 s62, s64, {(bl[1]*18 + bl[2])*4096}")
            else:
                D(f"s_add_u32 s62, s72, {bl[1]*4096}")
            D(f"buffer_load_dwordx4 {hreg(kb*4+s)}, v{V_LANE16}, s[20:23], s62 offen offset:{s*1024} sc1")
            out.append((D.ins, 8))
        return out

    PRE = int(os.environ.get("K3PRE", "2"))
    PREW = int(os.environ.get("K3PREW", "4"))
    for kb in range(PREW):
        for ins, _ in dma(kb):
            P.extend(ins)
    P(f"""
    s_waitcnt vmcnt({6*PREW})
    buffer_atomic_add v233, v232, s[20:23], s100 offen sc1
    s_mov_b32 s70, 0
    """)
    if not LATE2:
        P("buffer_atomic_add v233, v232, s[20:23], s101 offen sc1")
    P.stamp(2)
    PRO = LATE2 and os.environ.get("S2PRO", "0") == "1"
    slow = []
    part2 = []
    if PRO:
        from k2b import ssm2, RG3
        P(f"buffer_load_dword v{V_GD}, v{V_G4}, s[20:23], s29 offen sc0 sc1")
        P("v_lshrrev_b32 v245, 4, v0")
        P("v_cvt_f32_u32 v245, v245")
        full = ssm2(176, 80, 82, f"K3S{typ}", NS * STG, RG3)
        cutp = int(len(full) * float(os.environ.get("S2CUT", "0.5")))
        P.extend(full[:cutp])
        part2 = full[cutp:]
        slow.append(("ssm", f"K3S{typ}", 80, 0))
        P(f"""
        v_cmp_gt_u32 vcc, 8, v{V_GD}
        s_nop 4
        s_cbranch_vccz K3_HG{typ}
        """)
    P(f"K3_HP{typ}:")
    P(f"""
    buffer_load_dword v{V_GD}, v{V_G4}, s[20:23], s29 offen sc0 sc1
    s_waitcnt vmcnt(0)
    v_cmp_gt_u32 vcc, 8, v{V_GD}
    s_add_u32 s70, s70, 1
    s_nop 4
    s_cbranch_vccz K3_HG{typ}
    s_sleep 2
    s_cmp_lt_u32 s70, 200000
    s_cbranch_scc1 K3_HP{typ}
    """)
    P(f"K3_HG{typ}:")
    P.dbgstamp(4, 10)
    P.dbgstamp(10, 10, real=True)
    if not PRO:
        P("v_lshrrev_b32 v245, 4, v0")
        P("v_cvt_f32_u32 v245, v245")
    for kb in range(PRE):
        for ins, _ in hloads(kb):
            P.extend(ins)
    P.extend(part2)
    NT = 1
    frags = [dict(kb=kb, s=s, g=g) for kb in range(18 - NT) for s in range(4) for g in range(6)]
    frags += [dict(kb=kb, s=s, g=g) for g in range(6) for kb in range(18 - NT, 18) for s in range(4)]
    items = []
    for kb in range(PRE, 18):
        rel = -1 if kb < NS else kb - NS + 2
        first = min(n for n, f in enumerate(frags) if f["kb"] == kb)
        for ins, ln in (dma(kb) if kb >= PREW else []):
            items.append([first - DIST - 1, rel, ins, ln])
        gi = sum(1 for g_ in gates if kb >= g_[0])
        for ins, ln in hloads(kb):
            items.append([first, ("gate", gi), ins, ln])
    for R, sd, sx in ((RR0, "s30", "s31"), (RR1, "s75", "s76")):
        for txt, ln in ((f"buffer_load_dwordx4 v[{R}:{R+3}], v13, s[4:7], {sd} offen", 32),
                        (f"buffer_load_dwordx4 v[{R+4}:{R+7}], v13, s[4:7], {sd} offen offset:16", 8),
                        (f"buffer_load_dwordx4 v[{R+8}:{R+11}], v15, s[20:23], {sx} offen sc1", 8),
                        (f"buffer_load_dwordx4 v[{R+12}:{R+15}], v15, s[20:23], {sx} offen offset:512 sc1", 8),
                        (f"buffer_load_dwordx4 v[{R+16}:{R+19}], v14, s[32:35], {sd} offen", 2),
                        (f"buffer_load_dwordx4 v[{R+20}:{R+23}], v14, s[32:35], {sd} offen offset:16", 2)):
            D = Prog()
            D(txt)
            items.append([len(frags) - 6, -1, D.ins, ln])
    items.sort(key=lambda x: x[0])
    seen = set()
    released = [-1]
    region = {"F": 0, "S": 0}

    def frag_read(M, n):
        f = frags[n]
        kb = f["kb"]
        if kb not in seen:
            seen.add(kb)
            M.waitvm(("W", kb))
            M("s_barrier")
            released[0] = kb
            if kb in (5, 9, 13, 17):
                M.stamp(3 + (kb - 5) // 4)
        ty = blocks[kb][0]
        sl = kb % NS
        reg = sl // 2
        if reg != region[ty]:
            d = (reg - region[ty]) * 2 * STG
            for r in (range(V_RB, V_RB + 6) if ty == "F" else range(V_SB, V_SB + 4)):
                M(f"v_add_u32 v{r}, {d & 0xffffffff}, v{r}")
            region[ty] = reg
        b = WF + 4 * (n % NWF)
        off = (sl % 2) * STG
        if ty == "F":
            off += f["s"] * 16 * 128
            M(f"ds_read_b64_tr_b16 v[{b}:{b+1}], v{V_RB+f['g']} offset:{off}")
            M(f"ds_read_b64_tr_b16 v[{b+2}:{b+3}], v{V_RB+f['g']} offset:{off+512}")
        else:
            M(f"ds_read_b128 v[{b}:{b+3}], v{V_SB+f['s']} offset:{off + f['g']*4096}")

    for n in range(DIST):
        frag_read(P, n)
    CR = float(os.environ.get("CR3", "3.4"))
    credit = 0.0
    P0 = P
    P = Prog()
    MINLEAD = int(os.environ.get("K3LEAD", "40"))
    GD = int(os.environ.get("LATED", "40"))
    open_gates = [0]
    for n, f in enumerate(frags):
        b = WF + 4 * (n % NWF)
        a = ACC + 16 * f["g"]
        ks = f["kb"] * 4 + f["s"]
        c = "0" if ks == 0 else f"v[{a}:{a+15}]"
        P(f"v_mfma_f32_32x32x16_bf16 v[{a}:{a+15}], v[{b}:{b+3}], {hreg(ks)}, {c}")
        if n + DIST < len(frags):
            frag_read(P, n + DIST)
        for gi, (gkb, sreg, tgt) in enumerate(gates):
            vo = V_G4 if (sreg == 77) else 12
            if n == 24 * gkb - GD - 40:
                P(f"buffer_load_dword v{V_GD}, v{vo}, s[20:23], s{sreg} offen sc0 sc1")
            if n == 24 * gkb - GD:
                P(f"v_cmp_gt_u32 vcc, {tgt}, v{V_GD}")
                P("s_nop 4")
                P(f"s_cbranch_vccnz K3_GS{typ}{gi}", tag="keepall")
                P(f"K3_GB{typ}{gi}:", tag="nop")
                open_gates[0] = gi + 1
                slow.append((f"{typ}{gi}", vo, sreg, tgt))
        credit = min(credit + CR, 12.0)
        assert not items or items[0][0] > n + 1, ("load issued too late", n, items[0][0])
        if credit > 0 or (items and items[0][0] - n < MINLEAD):
            for k, it in enumerate(items):
                if (it[1][1] <= open_gates[0] if isinstance(it[1], tuple) else it[1] <= released[0]):
                    P.extend(it[2])
                    credit -= it[3]
                    del items[k]
                    break
    assert not items
    L = P.ins
    nm = len(frags)
    if PRO:
        SG = Prog()
        SG.waitvm("fx")
        SG("buffer_atomic_add v233, v232, s[20:23], s101 offen sc1")
        s3 = int(os.environ.get("S2E", "60"))
        L = interleave2(L, SG.ins, start=s3, end=s3 + 2)
    elif LATE2:
        from k2b import ssm2_loads, ssm2, RG3
        s0 = int(os.environ.get("S2A", "52")); s1 = int(os.environ.get("S2B", "100")); s2 = int(os.environ.get("S2C", "170")); s3 = int(os.environ.get("S2D", "215"))
        assert s3 + 4 < 24 * 14 - GD - 40, "own h signal must precede the gate on the h counter"
        SG = Prog()
        SG.waitvm("fx")
        SG("buffer_atomic_add v233, v232, s[20:23], s101 offen sc1")
        L = interleave2(L, ssm2_loads(16, 48, 49, RG3), start=s0, end=s0 + 20)
        L = interleave2(L, ssm2(176, 16, 82, f"K3S{typ}", NS * STG, RG3), start=s1, end=s2)
        L = interleave2(L, SG.ins, start=s3, end=s3 + 2)
        slow.append(("ssm", f"K3S{typ}", 0, 0))
    T = 4 * NT
    for g in range(5):
        e = nm - (5 - g) * T
        L = interleave2(L, publish(g), start=e + 1, end=min(e + T, nm) - 1)
    P0.extend(L)
    P0("s_waitcnt vmcnt(0)")
    return slow


def slow_paths(P, slow):
    for name, vo, sreg, tgt in slow:
        if name == "ssm":
            from k2b import ssm2_slow, RG3
            ssm2_slow(P, sreg or 16, 48, 49, vo, RG3)
            continue
        P(f"K3_GS{name}:")
        P("s_mov_b32 s70, 0")
        P(f"K3_GP{name}:")
        P(f"""
        s_sleep 2
        buffer_load_dword v{V_GD}, v{vo}, s[20:23], s{sreg} offen sc0 sc1
        s_waitcnt vmcnt(0)
        v_cmp_gt_u32 vcc, {tgt}, v{V_GD}
        s_add_u32 s70, s70, 1
        s_nop 4
        s_cbranch_vccz K3_GB{name}
        s_cmp_lt_u32 s70, 200000
        s_cbranch_scc1 K3_GP{name}
        s_branch K3_GB{name}
        """)


def gen_k3m(P):
    from k2b import tail_job
    P("s_barrier")
    P("""
    s_lshr_b32 s57, s2, 3
    s_and_b32 s58, s57, 27
    s_sub_u32 s58, s58, s52
    s_cmp_lg_u32 s58, 24
    s_cbranch_scc1 K3_GOON
    """)
    assert LATE2
    tail_job(P, True)
    P("K3_GOON:")
    if LATE2:
        P("""
        s_mov_b32 s48, s75
        s_mov_b32 s49, s76
        s_mov_b32 s82, s40
        s_mov_b32 s83, s41
        """)
    P.stamp(0, real=True)
    P.stamp(1)
    P("s_load_dwordx4 s[36:39], s[0:1], 96")
    P("s_load_dwordx4 s[40:43], s[0:1], 40")
    P("s_load_dwordx2 s[44:45], s[0:1], 0")
    P("s_load_dwordx2 s[46:47], s[0:1], 64")
    P("""
    s_lshr_b32 s54, s2, 3
    s_and_b32 s55, s2, 7
    s_and_b32 s57, s2, 3
    s_add_u32 s57, s57, 28
    s_cmp_gt_u32 s54, s57
    s_cselect_b32 s58, 1, 0
    s_sub_u32 s57, s57, 4
    s_cmp_gt_u32 s54, s57
    s_subb_u32 s54, s54, s58
    s_and_b32 s50, s55, 4
    s_lshl_b32 s50, s50, 1
    s_and_b32 s57, s54, 7
    s_add_u32 s50, s50, s57
    s_and_b32 s51, s55, 3
    s_lshr_b32 s52, s54, 3
    s_lshl_b32 s57, s55, 1
    s_and_b32 s58, s54, 1
    s_add_u32 s57, s57, s58
    s_bfe_u32 s58, s54, 0x20001
    s_cmp_ge_u32 s54, 24
    s_cselect_b32 s50, s57, s50
    s_cselect_b32 s51, 4, s51
    s_cselect_b32 s52, s58, s52
    s_and_b32 s55, s51, 3
    """)
    P(f"""
    s_lshl_b32 s63, s50, 2
    s_add_u32 s63, s63, s53
    s_mul_i32 s64, s63, {360*1024}
    s_add_u32 s64, s64, {WS_HF}
    s_lshr_b32 s57, s55, 1
    s_mul_i32 s57, s57, 9
    s_and_b32 s58, s55, 1
    s_mul_i32 s58, s58, 4
    s_add_u32 s57, s57, s58
    s_lshl_b32 s57, s57, 12
    s_add_u32 s72, s64, s57
    s_add_u32 s72, s72, {288*1024}
    s_lshl_b32 s71, s58, 7
    s_mul_i32 s57, s55, {72*1024}
    s_add_u32 s64, s64, s57
    s_lshr_b32 s77, s63, 1
    s_lshl_b32 s77, s77, 2
    s_add_u32 s77, s77, s55
    s_add_u32 s77, s77, 192
    s_mul_i32 s77, s77, {CNT_STRIDE}
    s_add_u32 s77, s77, {WS_CNT}
    s_add_u32 s29, s77, {160*CNT_STRIDE}
    s_add_u32 s74, s50, 320
    s_mul_i32 s74, s74, {CNT_STRIDE}
    s_add_u32 s74, s74, {WS_CNT}
    s_add_u32 s78, s74, {16*CNT_STRIDE}
    v_and_b32 v{V_G4}, 3, v0
    v_mul_u32_u24 v{V_G4}, {CNT_STRIDE}, v{V_G4}
    s_cmp_eq_u32 s51, 4
    s_cselect_b32 s57, -1, 0
    v_and_b32 v{V_G4}, s57, v{V_G4}
    """)
    P(f"""
    s_mul_i32 s54, s50, 3
    s_add_u32 s54, s54, s52
    s_mul_i32 s65, s54, {6*5*8192}
    s_lshl_b32 s57, s53, 11
    s_add_u32 s65, s65, s57
    s_add_u32 s65, s65, {WS_PART}
    s_lshl_b32 s66, s51, 13
    s_add_u32 s66, s66, s65
    s_add_u32 s24, s66, {5*5*8192}
    s_lshl_b32 s57, s54, 2
    s_add_u32 s57, s57, s53
    s_mul_i32 s69, s57, {CNT_STRIDE}
    s_add_u32 s69, s69, {WS_CNT}
    """)
    P(f"""
    v_lshrrev_b32 v10, 3, v0
    v_bfe_u32 v11, v0, 4, 1
    v_lshlrev_b32 v11, 2, v11
    v_and_b32 v12, 7, v0
    v_xor_b32 v12, v12, v11
    s_lshl_b32 s57, s53, 4
    v_add_u32 v11, s57, v10
    v_mul_u32_u24 v11, 1152, v11
    v_lshl_add_u32 v{V_D}, v12, 4, v11
    v_lshrrev_b32 v11, 1, v10
    v_and_b32 v12, 7, v0
    v_xor_b32 v12, v12, v11
    v_mul_u32_u24 v10, 1152, v10
    v_lshl_add_u32 v{V_DS}, v12, 4, v10
    v_xor_b32 v{V_DS1}, 64, v{V_DS}
    s_mul_i32 s56, s55, {1152*1152}
    s_mul_i32 s67, s52, 384
    s_add_u32 s56, s56, s67
    s_lshl_b32 s61, s53, 11
    s_mul_i32 s60, s53, 6144
    v_and_b32 v10, 31, v0
    v_bfe_u32 v11, v10, 2, 1
    v_lshlrev_b32 v11, 4, v11
    v_lshrrev_b32 v12, 3, v10
    v_lshl_add_u32 v11, v12, 2, v11
    v_and_b32 v12, 3, v10
    v_add_u32 v11, v11, v12
    v_bfe_u32 v12, v11, 1, 3
    v_lshrrev_b32 v13, 5, v0
    v_xor_b32 v12, v12, v13
    v_lshlrev_b32 v12, 4, v12
    v_lshl_add_u32 v{V_SB}, v11, 7, v12
    v_xor_b32 v{V_SB+1}, 32, v{V_SB}
    v_xor_b32 v{V_SB+2}, 64, v{V_SB}
    v_xor_b32 v{V_SB+3}, 96, v{V_SB}
    s_lshl_b32 s57, s63, 5
    v_add_u32 v11, s57, v11
    v_lshlrev_b32 v15, 4, v10
    v_lshl_add_u32 v15, v13, 10, v15
    v_lshlrev_b32 v14, 5, v13
    v_mul_u32_u24 v11, 1152, v11
    v_lshl_add_u32 v13, v13, 5, v11
    v_lshlrev_b32 v{V_OUT}, 1, v13
    """)
    P(f"""
    v_lshrrev_b32 v10, 5, v0
    v_lshlrev_b32 v10, 3, v10
    v_bfe_u32 v11, v0, 2, 2
    v_add_u32 v10, v10, v11
    v_lshlrev_b32 v10, 7, v10
    v_bfe_u32 v11, v0, 3, 1
    v_lshl_add_u32 v10, v11, 6, v10
    v_and_b32 v11, 1, v0
    v_lshl_add_u32 v10, v11, 5, v10
    v_bfe_u32 v11, v0, 4, 1
    v_lshl_add_u32 v10, v11, 4, v10
    v_bfe_u32 v11, v0, 1, 1
    v_lshl_add_u32 v10, v11, 3, v10
    v_xor_b32 v{V_RB}, 64, v10
    v_add_u32 v{V_RB}, 16384, v{V_RB}
    """)
    for L in range(1, 6):
        P(f"""
        s_add_u32 s57, s51, {L}
        s_cmp_ge_u32 s57, 5
        s_cselect_b32 s58, 5, 0
        s_sub_u32 s57, s57, s58
        """)
        if L < 5:
            P(f"s_mul_i32 s58, s57, {5*8192}\ns_add_u32 s{24+L}, s58, s66")
        P(f"""
        s_and_b32 s58, s57, 1
        s_lshl_b32 s58, s58, 6
        s_lshr_b32 s57, s57, 1
        s_lshl_b32 s57, s57, 13
        v_xor_b32 v{V_RB+L}, s58, v10
        v_add_u32 v{V_RB+L}, s57, v{V_RB+L}
        """)
    for i in range(6):
        P(f"""
        s_mul_i32 s57, s53, 48
        s_add_u32 s57, s57, {8*i}
        s_lshr_b32 s58, s57, 5
        s_and_b32 s57, s57, 31
        s_add_u32 s59, s58, s51
        s_cmp_ge_u32 s59, 5
        s_cselect_b32 s62, 5, 0
        s_sub_u32 s59, s59, s62
        s_cmp_eq_u32 s58, 0
        s_cselect_b32 s59, 5, s59
        s_lshl_b32 s59, s59, 5
        s_add_u32 s57, s57, s59
        s_mul_i32 s58, s52, 192
        s_add_u32 s57, s57, s58
        s_mul_i32 s57, s57, 1152
        s_add_u32 s{92+i}, s57, s71
        """)
    P("v_mov_b32 v12, 0")
    P("s_waitcnt lgkmcnt(0)")
    srd(P, 8, 36, 37, 4608 * 1152)
    srd(P, 16, 38, 39, 2048 * 576 * 4)
    srd(P, 4, 44, 45, 2048 * 1152)
    srd(P, 32, 46, 47, 1152)
    P(f"""
    s_cmp_eq_u32 s55, 2
    s_cselect_b32 s57, 1, 0
    s_cmp_eq_u32 s55, 3
    s_cselect_b32 s57, 1, s57
    s_cmp_eq_u32 s57, 1
    s_cselect_b32 s12, s42, s40
    s_cselect_b32 s13, s43, s41
    s_and_b32 s13, s13, 0xffff
    s_mov_b32 s14, {576*1152}
    s_mov_b32 s15, 0x00020000
    s_mov_b32 s40, s42
    s_and_b32 s41, s43, 0xffff
    s_mov_b32 s42, {576*1152}
    s_mov_b32 s43, 0x00020000
    s_mul_i32 s68, s63, 36864
    s_mul_i32 s57, s52, {12*1024}
    s_add_u32 s68, s68, s57
    s_add_u32 s68, s68, {WS_XNF}
    s_cmp_eq_u32 s51, s53
    s_cselect_b32 s73, 0, 0x40000000
    s_lshl_b32 s30, s51, 6
    s_add_u32 s30, s30, s67
    s_lshl_b32 s31, s51, 11
    s_add_u32 s31, s31, s68
    s_add_u32 s75, s67, {5*64}
    s_add_u32 s75, s75, s73
    s_add_u32 s76, s68, {5*2048}
    s_add_u32 s76, s76, s73
    s_cmp_eq_u32 s51, 4
    s_cbranch_scc1 K3_SR
    """)
    slow = main_loop(P, "F")
    P("s_branch K3_RED")
    slow_paths(P, slow)
    P("K3_SR:")
    Prog._last[0] = 1
    slow2 = main_loop(P, "S")
    P("K3_RED:")
    P.dbgstamp(5, 10)
    P.dbgstamp(11, 10, real=True)
    P.stamp(7)
    P(f"""
    v_mov_b32 v{V_GD}, 1
    v_cmp_eq_u32 vcc, 0, v0
    v_cndmask_b32 v{V_G4}, 2.0, v0, vcc
    buffer_atomic_add v{V_GD}, v{V_G4}, s[20:23], s69 offen sc1
    s_mov_b32 s70, 0
    """)
    resid_calc(P)
    P.stamp(13)
    P("s_waitcnt lgkmcnt(0)")
    P("K3_POLL:")
    P(f"""
    buffer_load_dword v11, v12, s[20:23], s69 offen sc0 sc1
    s_waitcnt vmcnt(0)
    v_readfirstlane_b32 s71, v11
    s_add_u32 s70, s70, 1
    s_cmp_ge_u32 s71, 5
    s_cbranch_scc1 K3_GO
    s_sleep 1
    s_cmp_lt_u32 s70, 200000
    s_cbranch_scc1 K3_POLL
    """)
    P("K3_GO:")
    P.stamp(14)
    P(f"""
    s_mul_i32 s72, s51, {5*8192}
    s_add_u32 s72, s72, s65
    s_add_u32 s74, s65, {5*5*8192}
    s_add_u32 s74, s74, s73
    """)
    for i in range(1, 5):
        P(f"""
        s_add_u32 s57, s51, {i}
        s_cmp_ge_u32 s57, 5
        s_cselect_b32 s58, 5, 0
        s_sub_u32 s57, s57, s58
        s_lshl_b32 s57, s57, 13
        s_add_u32 s{23+i}, s57, s74
        s_add_u32 s57, s57, s72
        """)
        for q in range(2):
            r = WF + 8 * (i - 1) + 4 * q
            P(f"buffer_load_dwordx4 v[{r}:{r+3}], v{V_LANE16}, s[20:23], s57 offen offset:{1024*q} sc0 sc1")
    for i in range(1, 5):
        for q in range(2):
            r = PB + 40 + 8 * (i - 1) + 4 * q
            P(f"buffer_load_dwordx4 v[{r}:{r+3}], v{V_LANE16}, s[20:23], s{23+i} offen offset:{1024*q} sc0 sc1")
    P(f"""
    s_lshl_b32 s57, s51, 7
    s_lshl_b32 s58, s67, 1
    s_add_u32 s57, s57, s58
    s_add_u32 s58, s58, {5*128}
    s_add_u32 s58, s58, s73
    """)
    for a_, R0, so in ((ACC + 80, WF, "s57"), (ACC, PB + 40, "s58")):
        for i in range(4):
            for k in range(8):
                r = R0 + 8 * i + k
                P(f"""
                v_lshlrev_b32 v10, 16, v{r}
                v_and_b32 v{r}, 0xffff0000, v{r}
                v_add_f32 v{a_+2*k}, v{a_+2*k}, v10
                v_add_f32 v{a_+2*k+1}, v{a_+2*k+1}, v{r}
                """)
        for q in range(4):
            P(f"buffer_store_dwordx4 v[{a_+4*q}:{a_+4*q+3}], v{V_OUT}, s[16:19], {so} offen offset:{16*q}")
    P.dbgstamp(6, 10)
    P.dbgstamp(7, 10, real=True)
    P.stamp(15, real=True)
    P.dump_stamps(9, 20, WS_DBG, 10)
    P("s_branch K3_END")
    slow_paths(P, slow2)
    P("K3_END:")
    P("s_endpgm")
    P("CODE_END:")
    name = os.environ.get("KNAME", "k2_kernel")
    return kernel_text(name, P.finalize().replace("k2_kernel", name), vgpr=256, agpr=256, sgpr=102), 163840
```

```python
import os, math
from asmlib import *
from layout import *
from k1 import code_touch, srd, f2u, bf16r, emit_param_loads, emit_params, emit_pow, LOG2E
from k2 import (SLOT, E_BASE, V_LANE16, V_D4, V_DE, V_R4, V_RE, V_RE2, V_C0, V_T, XV, ACC, WF, NWF, DIST,
                xreg, epilogue, cfma)

T0, T1, A2, REV = 228, 229, 230, 231
SGO, SGD = 232, 233
L1, CO = 234, 236
C8 = 238
ES = 240
Q = 244
V_DU, VAG, VG, TX = 252, 253, 254, 255
V_UB, V_UT = 14, 13
VW, VR = 13, 14
RG0 = (VAG, VG, TX, VW, VR, 77, 78)
RG3 = (244, 245, 246, 208, 209, 3, 70)


def cmul(E, o, a, b):
    E(f"""
    v_mul_f32 v{o}, v{a}, v{b}
    v_mul_f32 v{o+1}, v{a}, v{b+1}
    v_fma_f32 v{o}, -v{a+1}, v{b+1}, v{o}
    v_fmac_f32 v{o+1}, v{a+1}, v{b}
    """)


def ssm_params(spt):
    L = Prog()
    L(f"""
    v_and_b32 v{TX}, 15, v0
    s_lshl_b32 s77, s{spt}, 4
    v_add_u32 v{TX}, s77, v{TX}
    v_lshlrev_b32 v{TX}, 1, v{TX}
    """)
    emit_param_loads(L, TX, T0, 24, 28, 32)
    C = Prog()
    emit_params(C, T0)
    emit_pow(C, 1, A2, REV, L1, L1 + 1, Q)
    C(f"""
    v_add_f32 v{Q}, -1.0, v{L1}
    v_mul_f32 v{Q+1}, v{T0}, v{T0}
    v_fmac_f32 v{Q+1}, v{T1}, v{T1}
    v_rcp_f32 v{Q+1}, v{Q+1}
    v_mul_f32 v{CO}, v{Q}, v{T0}
    v_add_f32 v{Q+1}, v{Q+1}, v{Q+1}
    v_fmac_f32 v{CO}, v{L1+1}, v{T1}
    v_mul_f32 v{CO+1}, v{L1+1}, v{T0}
    v_fma_f32 v{CO+1}, -v{Q}, v{T1}, v{CO+1}
    v_mul_f32 v{CO}, v{CO}, v{Q+1}
    v_mul_f32 v{CO+1}, v{CO+1}, v{Q+1}
    v_lshrrev_b32 v{VG}, 4, v0
    v_cvt_f32_u32 v{VG}, v{VG}
    """)
    return L.ins, C.ins


def ssm1(U, sagg):
    E = Prog()
    for j in range(2):
        a = U + 16 * j
        for k in range(8):
            E(f"v_permlane16_swap_b32 v{a+k}, v{a+8+k}")
        hp = None
        for k in range(8):
            re_, im_ = a + k, a + 8 + k
            E(f"""
            v_mul_f32 v{T0}, v{CO}, v{re_}
            v_mul_f32 v{T1}, v{CO+1}, v{re_}
            v_fma_f32 v{re_}, -v{CO+1}, v{im_}, v{T0}
            v_fma_f32 v{im_}, v{CO}, v{im_}, v{T1}
            """)
            if k == 0:
                hp = (re_, im_)
            else:
                o = (Q + 4 * j) + 2 * (k & 1)
                cfma(E, o, o + 1, L1, hp[0], hp[1], re_, im_)
                hp = (o, o + 1)
    emit_pow(E, 8, A2, REV, C8, C8 + 1, T0)
    E(f"v_bfe_u32 v{TX}, v0, 4, 1")
    E(f"v_cvt_f32_u32 v{TX}, v{TX}")
    for j in range(2):
        a, b = Q + 4 * j + 2, Q + 4 * j
        E(f"""
        v_mov_b32 v{b}, v{a}
        v_mov_b32 v{b+1}, v{a+1}
        v_permlane16_swap_b32 v{a}, v{b}
        v_permlane16_swap_b32 v{a+1}, v{b+1}
        v_mul_f32 v{ES+2*j}, v{TX}, v{a}
        v_mul_f32 v{ES+2*j+1}, v{TX}, v{a+1}
        """)
        cfma(E, b, b + 1, C8, a, a + 1, b, b + 1)
    E(f"v_mul_f32 v{TX}, {f2u(8.0)}, v{TX}")
    emit_pow(E, f"v{TX}", A2, REV, CO, CO + 1, T0)
    E(f"""
    v_lshrrev_b32 v{TX}, 5, v0
    v_cvt_f32_u32 v{TX}, v{TX}
    v_mul_f32 v{CO}, v{TX}, v{CO}
    v_mul_f32 v{CO+1}, v{TX}, v{CO+1}
    """)
    cmul(E, T0, C8, C8)
    for j in range(2):
        a, b = Q + 4 * j + 2, Q + 4 * j
        E(f"""
        v_mov_b32 v{a}, v{b}
        v_mov_b32 v{a+1}, v{b+1}
        v_permlane32_swap_b32 v{b}, v{a}
        v_permlane32_swap_b32 v{b+1}, v{a+1}
        """)
        cfma(E, ES + 2 * j, ES + 2 * j + 1, CO, b, b + 1, ES + 2 * j, ES + 2 * j + 1)
        cfma(E, a, a + 1, T0, b, b + 1, a, a + 1)
    cmul(E, C8, T0, T0)
    cfma(E, Q + 4, Q + 5, C8, Q + 2, Q + 3, Q + 6, Q + 7)
    E(f"""
    v_mov_b32 v{Q+6}, 1.0
    v_mov_b32 v{Q+7}, 1.0
    v_lshlrev_b32 v{TX}, 4, v0
    v_cmp_gt_u32 vcc, 16, v0
    v_cndmask_b32 v{TX}, 2.0, v{TX}, vcc
    buffer_store_dwordx4 v[{Q+4}:{Q+7}], v{TX}, s[20:23], s{sagg} offen sc0 sc1
    v_mul_f32 v{TX}, {f2u(8.0)}, v{VG}
    """)
    emit_pow(E, f"v{TX}", A2, REV, CO, CO + 1, T0)
    cfma(E, ES + 2, ES + 3, CO, Q + 2, Q + 3, ES + 2, ES + 3)
    return E.ins


def ssm2_loads(R, sagg, swc, rg=None):
    VAG, VG, TX, VW, VR, ST_, SC_ = rg or RG0
    E = Prog()
    E(f"""
    v_lshrrev_b32 v{T0}, 4, v0
    v_lshlrev_b32 v{T0}, 3, v{T0}
    v_sub_u32 v{T0}, s{swc}, v{T0}
    v_and_b32 v{T1}, 15, v0
    v_lshlrev_b32 v{T1}, 4, v{T1}
    v_lshrrev_b32 v{VAG}, 4, v0
    v_lshlrev_b32 v{VAG}, 11, v{VAG}
    v_sub_u32 v{VAG}, v{T1}, v{VAG}
    v_add_u32 v{VAG}, s{sagg}, v{VAG}
    v_mov_b32 v{T1}, {WS_ZREC}
    """)
    for q in range(8):
        E(f"""
        v_cmp_lt_i32 vcc, {q}, v{T0}
        v_add_u32 v{TX}, {(-256*(q+1)) & 0xffffffff}, v{VAG}
        v_cndmask_b32 v{TX}, v{T1}, v{TX}, vcc
        buffer_load_dwordx4 v[{R+4*q}:{R+4*q+3}], v{TX}, s[20:23], 0 offen sc0 sc1
        """)
    return E.ins


def ssm2(U, R, shf, lab, scr, rg=None):
    VAG, VG, TX, VW, VR, ST_, SC_ = rg or RG0
    E = Prog()
    E(f"v_min_f32 v{TX}, v{R+2}, v{R+3}")
    for q in range(1, 8):
        E(f"v_min3_f32 v{TX}, v{TX}, v{R+4*q+2}, v{R+4*q+3}")
    E(f"v_cmp_gt_f32 vcc, 0.5, v{TX}")
    E("s_nop 4")
    E(f"s_cbranch_vccnz {lab}_SLOW", tag="keepall")
    E(f"{lab}_BACK:", tag="nop")
    emit_pow(E, 64, A2, REV, C8, C8 + 1, T0)
    for q in range(6, -1, -1):
        cfma(E, R + 4 * q, R + 4 * q + 1, C8, R + 4 * q + 4, R + 4 * q + 5, R + 4 * q, R + 4 * q + 1)
    E(f"v_mul_f32 v{TX}, {f2u(512.0)}, v{VG}")
    emit_pow(E, f"v{TX}", A2, REV, C8, C8 + 1, T0)
    cmul(E, CO, C8, R)
    for pl in ("v_permlane16_swap_b32", "v_permlane32_swap_b32"):
        E(f"""
        v_mov_b32 v{T0}, v{CO}
        v_mov_b32 v{T1}, v{CO+1}
        {pl} v{CO}, v{T0}
        {pl} v{CO+1}, v{T1}
        v_add_f32 v{CO}, v{CO}, v{T0}
        v_add_f32 v{CO+1}, v{CO+1}, v{T1}
        """)
    E(f"""
    s_lshl_b32 s{ST_}, s53, 11
    s_add_u32 s{ST_}, s{ST_}, {scr}
    v_and_b32 v{VW}, 15, v0
    v_lshlrev_b32 v{VW}, 6, v{VW}
    v_bfe_u32 v{T0}, v0, 4, 1
    v_lshl_add_u32 v{VW}, v{T0}, 5, v{VW}
    v_lshrrev_b32 v{T1}, 5, v0
    v_lshl_add_u32 v{VW}, v{T1}, 3, v{VW}
    v_add_u32 v{VW}, s{ST_}, v{VW}
    v_lshlrev_b32 v{VR}, 3, v{T1}
    v_bfe_u32 v{T1}, v0, 2, 2
    v_add_u32 v{VR}, v{VR}, v{T1}
    v_lshlrev_b32 v{VR}, 6, v{VR}
    v_lshl_add_u32 v{VR}, v{T0}, 5, v{VR}
    v_and_b32 v{T1}, 3, v0
    v_lshl_add_u32 v{VR}, v{T1}, 3, v{VR}
    v_add_u32 v{VR}, s{ST_}, v{VR}
    """)
    for j in range(2):
        b = U + 16 * j
        E(f"v_mov_b32 v{TX}, {f2u(32.0*j)}")
        E(f"v_fmac_f32 v{TX}, {f2u(8.0)}, v{VG}")
        emit_pow(E, f"v{TX}", A2, REV, C8, C8 + 1, T0)
        e = ES + 2 * j
        cfma(E, e, e + 1, C8, CO, CO + 1, e, e + 1)
        pre, pim = e, e + 1
        for k in range(8):
            cfma(E, b + k, b + 8 + k, L1, pre, pim, b + k, b + 8 + k)
            pre, pim = b + k, b + 8 + k
        for k in range(4):
            E(f"v_cvt_pk_bf16_f32 v{b+k}, v{b+2*k}, v{b+2*k+1}")
        for k in range(4):
            E(f"v_cvt_pk_bf16_f32 v{b+8+k}, -v{b+8+2*k}, -v{b+8+2*k+1}")
        E(f"""
        ds_write_b64 v{VW}, v[{b}:{b+1}]
        ds_write_b64 v{VW}, v[{b+2}:{b+3}] offset:16
        ds_write_b64 v{VW}, v[{b+8}:{b+9}] offset:1024
        ds_write_b64 v{VW}, v[{b+10}:{b+11}] offset:1040
        ds_read_b64_tr_b16 v[{b+4}:{b+5}], v{VR}
        ds_read_b64_tr_b16 v[{b+6}:{b+7}], v{VR} offset:256
        ds_read_b64_tr_b16 v[{b+12}:{b+13}], v{VR} offset:1024
        ds_read_b64_tr_b16 v[{b+14}:{b+15}], v{VR} offset:1280
        s_add_u32 s{ST_}, s{shf+j}, {36*1024}
        """)
        E(f"""
        buffer_store_dwordx4 v[{b+4}:{b+7}], v{V_LANE16}, s[20:23], s{shf+j} offen sc1
        buffer_store_dwordx4 v[{b+12}:{b+15}], v{V_LANE16}, s[20:23], s{ST_} offen sc1
        """, tag="fx")
    return E.ins


def ssm2_slow(P, R, sagg, swc, lab, rg=None):
    VAG, VG, TX, VW, VR, ST_, SC_ = rg or RG0
    P(f"{lab}_SLOW:")
    P(f"s_mov_b32 s{SC_}, 0")
    P(f"{lab}_SPIN:")
    P("s_sleep 4")
    P.extend(ssm2_loads(R, sagg, swc, rg))
    P(f"v_min_f32 v{TX}, v{R+2}, v{R+3}")
    for q in range(1, 8):
        P(f"v_min3_f32 v{TX}, v{TX}, v{R+4*q+2}, v{R+4*q+3}")
    P(f"""
    v_cmp_gt_f32 vcc, 0.5, v{TX}
    s_add_u32 s{SC_}, s{SC_}, 1
    s_nop 4
    s_cbranch_vccz {lab}_BACK
    s_cmp_lt_u32 s{SC_}, 100000
    s_cbranch_scc1 {lab}_SPIN
    s_branch {lab}_BACK
    """)


def N0():
    return tuple(int(x) for x in os.environ.get("N0", "2,0,0").split(","))


def ln_phase(P, dma4, dmaU, xloads, ROT, PRE):
    P("s_load_dwordx2 s[82:83], s[0:1], 0") if False else None
    P(f"""
    s_lshr_b32 s57, s2, 5
    s_bfe_u32 s58, s2, 0x20003
    s_lshl_b32 s58, s58, 1
    s_add_u32 s57, s57, s58
    s_cmp_ge_u32 s57, 9
    s_cselect_b32 s58, 9, 0
    s_sub_u32 s57, s57, s58
    s_mul_i32 s57, s57, {1 if ROT else 0}
    s_sub_u32 s3, 9, s57
    s_mul_i32 s58, s57, {64*9216}
    s_add_u32 s56, s56, s58
    s_add_u32 s72, s72, s58
    s_sub_u32 s4, s56, {9*64*9216}
    s_sub_u32 s5, s72, {9*64*9216}
    s_lshl_b32 s58, s57, 7
    s_add_u32 s63, s63, s58
    s_sub_u32 s6, s63, {9*128}
    s_lshl_b32 s58, s57, 12
    s_add_u32 s64, s64, s58
    s_add_u32 s65, s65, s58
    s_sub_u32 s7, s64, {9*4096}
    s_sub_u32 s78, s65, {9*4096}
    """)
    P("s_load_dwordx2 s[48:49], s[0:1], 112")
    first = []
    for kb in range(2):
        first += dma4(0, kb)
    rest = []
    na, nb, nu = N0()
    for kb in range(2, na):
        rest += dma4(0, kb)
    for kb in range(4):
        rest += (dma4(1, kb) if kb < nb else []) + (dmaU(kb) if kb < nu else [])
    P("s_waitcnt lgkmcnt(0)")
    srd(P, 36, 48, 49, 256)
    P("s_cmp_lg_u32 s53, 0")
    P("s_cbranch_scc1 K2_NOLN")
    R, F, S, Z = ACC, ACC + 40, ACC + 120, ACC + 136
    allw = first + rest
    P(f"""
    v_mov_b32 v{Z}, 0
    v_mov_b32 v{Z+1}, 0
    v_mov_b32 v{Z+2}, 0
    v_mov_b32 v{Z+3}, 0
    v_mov_b32 v{Z+4}, 0
    v_mov_b32 v{Z+5}, 0
    v_mov_b32 v{Z+6}, 1.0
    v_mov_b32 v{Z+7}, 1.0
    s_mul_i32 s58, s2, {5*CNT_STRIDE}
    s_add_u32 s58, s58, {WS_CNT}
    v_mul_u32_u24 v{Z+8}, {CNT_STRIDE}, v0
    v_cmp_gt_u32 vcc, 5, v0
    v_cndmask_b32 v{Z+8}, 2.0, v{Z+8}, vcc
    buffer_store_dword v{Z}, v{Z+8}, s[20:23], s58 offen sc0 sc1
    s_mul_i32 s58, s2, {72*16}
    s_add_u32 s58, s58, {WS_AGG}
    v_cmp_gt_u32 vcc, 8, v0
    v_cndmask_b32 v{Z+8}, 2.0, v{V_LANE16}, vcc
    buffer_store_dwordx4 v[{Z}:{Z+3}], v{V_LANE16}, s[20:23], s58 offen sc0 sc1
    buffer_store_dwordx4 v[{Z}:{Z+3}], v{Z+8}, s[20:23], s58 offen offset:1024 sc0 sc1
    s_lshl_b32 s57, s51, 5
    s_add_u32 s57, s57, s50
    s_lshl_b32 s42, s57, 7
    s_add_u32 s42, s42, {WS_MBX}
    buffer_store_dword v{Z}, v{SGO}, s[20:23], s42 offen sc0 sc1
    s_cmp_eq_u32 s2, 0
    s_cselect_b32 s58, 0, 0x40000000
    s_add_u32 s58, s58, {WS_ZREC}
    buffer_store_dwordx4 v[{Z+4}:{Z+7}], v{SGO}, s[20:23], s58 offen sc0 sc1
    """)
    FD = os.environ.get("FD", "2")
    if FD == "0":
        for ins, _ in allw:
            P.extend(ins)
    P(f"""
    s_and_b32 s58, s50, 3
    s_lshl_b32 s58, s58, 3
    v_lshrrev_b32 v{S+10}, 3, v0
    v_add_u32 v{S+10}, s58, v{S+10}
    v_lshrrev_b32 v{S+8}, 1, v{S+9}
    v_lshlrev_b32 v{S+8}, 10, v{S+8}
    v_and_b32 v{S+11}, 1, v{S+9}
    v_lshl_add_u32 v{S+8}, v{S+11}, 9, v{S+8}
    v_lshl_add_u32 v{S+8}, v{S+10}, 4, v{S+8}
    s_lshr_b32 s58, s57, 2
    s_mul_i32 s58, s58, 36864
    """)

    def reduce8():
        P(f"""
        v_add_f32 v{S}, v{S}, v{S+1}
        v_add_f32_dpp v{S}, v{S}, v{S} quad_perm:[1,0,3,2] row_mask:0xf bank_mask:0xf
        v_add_f32_dpp v{S}, v{S}, v{S} quad_perm:[2,3,0,1] row_mask:0xf bank_mask:0xf
        v_add_f32_dpp v{S}, v{S}, v{S} row_half_mirror row_mask:0xf bank_mask:0xf
        """)
    for d in range(36):
        P(f"v_lshlrev_b32 v{F+2*d}, 16, v{R+d}")
        P(f"v_and_b32 v{F+2*d+1}, 0xffff0000, v{R+d}")
        if d == 1:
            P(f"v_pk_add_f32 v[{S}:{S+1}], v[{F}:{F+1}], v[{F+2}:{F+3}]")
        elif d > 1:
            P(f"v_pk_add_f32 v[{S}:{S+1}], v[{S}:{S+1}], v[{F+2*d}:{F+2*d+1}]")
    reduce8()
    if os.environ.get("PROST"): P.stamp(8)
    P(f"v_mul_f32 v{S+2}, {f2u(-1.0/576)}, v{S}")
    for d in range(36):
        P(f"v_pk_add_f32 v[{S+4}:{S+5}], v[{F+2*d}:{F+2*d+1}], v[{S+2}:{S+3}] op_sel_hi:[1,0]")
        if d == 0:
            P(f"v_pk_mul_f32 v[{S}:{S+1}], v[{S+4}:{S+5}], v[{S+4}:{S+5}]")
        else:
            P(f"v_pk_fma_f32 v[{S}:{S+1}], v[{S+4}:{S+5}], v[{S+4}:{S+5}], v[{S}:{S+1}]")
    reduce8()
    P(f"v_mul_f32 v{S+6}, {f2u(1.0/576)}, v{S}")
    bf16r(P, S + 2, S + 2)
    bf16r(P, S + 6, S + 6)
    P(f"v_add_f32 v{S+6}, {f2u(1e-5)}, v{S+6}")
    bf16r(P, S + 6, S + 6)
    P(f"v_sqrt_f32 v{S+6}, v{S+6}")
    bf16r(P, S + 6, S + 6)
    P(f"v_rcp_f32 v{S+6}, v{S+6}")
    for j in range(9):
        for d in range(4 * j, 4 * j + 4):
            a_, b_ = F + 2 * d, F + 2 * d + 1
            P(f"""
            v_pk_add_f32 v[{a_}:{b_}], v[{a_}:{b_}], v[{S+2}:{S+3}] op_sel_hi:[1,0]
            v_cvt_pk_bf16_f32 v{b_}, v{a_}, v{b_}
            v_lshlrev_b32 v{a_}, 16, v{b_}
            v_and_b32 v{b_}, 0xffff0000, v{b_}
            v_pk_mul_f32 v[{a_}:{b_}], v[{a_}:{b_}], v[{S+6}:{S+7}] op_sel_hi:[1,0]
            v_cvt_pk_bf16_f32 v{R+d}, v{a_}, v{b_}
            """)
        P(f"s_add_u32 s59, s58, {WS_XNF + 4096*j}")
        P(f"buffer_store_dwordx4 v[{R+4*j}:{R+4*j+3}], v{S+8}, s[20:23], s59 offen sc1")
    if os.environ.get("PROST"): P.stamp(9)
    P("s_waitcnt vmcnt(0)")
    if os.environ.get("PROST"): P.stamp(10)
    P(f"""
    s_lshl_b32 s58, s51, 5
    v_mov_b32 v{S}, 1
    buffer_atomic_add v{S}, v{SGO}, s[36:39], s58 offen sc0 sc1
    s_lshl_b32 s58, s51, 12
    s_add_u32 s58, s58, {WS_MBX}
    v_lshlrev_b32 v{S+1}, 7, v0
    v_cmp_gt_u32 vcc, 32, v0
    v_cndmask_b32 v{S+1}, 2.0, v{S+1}, vcc
    v_readfirstlane_b32 s59, v{S}
    s_and_b32 s59, s59, 31
    s_cmp_eq_u32 s59, 31
    s_cselect_b32 s58, s58, 0x40000000
    buffer_store_dword v{SGD}, v{S+1}, s[20:23], s58 offen sc0 sc1
    """)
    if FD != "0":
        for ins, _ in allw:
            P.extend(ins)
    if os.environ.get("PROST"): P.stamp(11)
    P(f"v_mov_b32 v{Z+8}, 0")
    P("s_mov_b32 s58, 0")
    P("K2_XPOLL:")
    P(f"""
    buffer_load_dword v{Z+9}, v{Z+8}, s[20:23], s42 offen sc0 sc1
    s_waitcnt vmcnt(0)
    v_cmp_ne_u32 vcc, 1, v{Z+9}
    s_add_u32 s58, s58, 1
    s_nop 4
    s_cbranch_vccz K2_LNJOIN
    s_sleep {os.environ.get("XSLEEP", "2")}
    s_cmp_lt_u32 s58, 100000
    s_cbranch_scc1 K2_XPOLL
    s_branch K2_LNJOIN
    """)
    P("K2_NOLN:")
    if os.environ.get("CTOP", "1") != "1":
        P("s_lshr_b32 s57, s2, 3\ns_cmp_eq_u32 s53, 2\ns_cselect_b32 s57, s57, 4096")
        code_touch(P, "K2_PC0", "k2_kernel", "CODE_END", 92, Z + 10, 0, 57, True)
    if FD == "2":
        P("s_waitcnt vmcnt(0)")
    for ins, _ in allw:
        P.extend(ins)
    if os.environ.get("TLBW", "0") == "1":
        PG = int(os.environ.get("TLBPG", str(2 << 20)))
        P("s_load_dwordx4 s[84:87], s[0:1], 96")
        P("s_load_dwordx4 s[88:91], s[0:1], 40")
        P(f"v_mul_u32_u24 v{Z+8}, {PG >> 4}, v0")
        P(f"v_lshlrev_b32 v{Z+8}, 4, v{Z+8}")
        from k1 import touch
        touch(P, Z + 9, Z + 8, 20)
        P("s_waitcnt lgkmcnt(0)")
        for lo, nb in ((84, 4608 * 1152), (86, 2048 * 576 * 4), (88, 576 * 1152), (90, 576 * 1152)):
            srd(P, 92, lo, lo + 1, nb)
            touch(P, Z + 9, Z + 8, 92)
        touch(P, Z + 9, Z + 8, 8)
        touch(P, Z + 9, Z + 8, 12)
        touch(P, Z + 9, Z + 8, 44)
    NCS = int(os.environ.get("NCS", "0")); CINF = int(os.environ.get("CINF", "6"))
    if NCS:
        P(f"""
        s_mul_i32 s57, s2, 3
        s_add_u32 s57, s57, s53
        s_sub_u32 s57, s57, 1
        s_lshl_b32 s57, s57, 10
        """)
        k = 0
        for i in range(NCS):
            for m in range(2):
                P(f"s_add_u32 s59, s57, {i*768*1024}")
                I = Ins(f"buffer_store_dword v{Z}, v{V_LANE16}, s[{8+4*m}:{11+4*m}], s59 offen")
                I.text = f"buffer_load_dwordx4 v[{Z+4}:{Z+7}], v{V_LANE16}, s[{8+4*m}:{11+4*m}], s59 offen"
                P.ins.append(I)
                k += 1
                if k > CINF:
                    P(f"s_waitcnt vmcnt({CINF})")
    WST = [x for x in os.environ.get("WARM", "").split(",") if x]
    WINF = int(os.environ.get("WINF", "8"))
    P(f"""
    s_mul_i32 s57, s53, {16*9216}
    v_subrev_u32 v{Z}, s57, v{V_D4}
    v_subrev_u32 v{Z+1}, s57, v{V_D4+1}
    """)
    k = 0
    for st_ in WST:
        grp, kb0 = (0 if st_[0] == "A" else 1), int(st_[1:])
        P(f"""
        s_add_u32 s57, s53, {kb0 - 1}
        s_cmp_ge_u32 s57, s3
        s_cselect_b32 s58, s4, s56
        s_mul_i32 s57, s57, {64*9216}
        s_add_u32 s58, s58, s57
        """)
        for m in range(2):
            for i in range(8):
                P(f"s_add_u32 s59, s58, {i*8*9216 + grp*128}")
                I = Ins(f"buffer_store_dword v{Z}, v{Z+m}, s[{8+4*m}:{11+4*m}], s59 offen")
                I.text = f"buffer_load_dwordx4 v[{Z+4}:{Z+7}], v{Z+m}, s[{8+4*m}:{11+4*m}], s59 offen"
                P.ins.append(I)
                k += 1
                if k > WINF:
                    P(f"s_waitcnt vmcnt({WINF})")
    P("K2_LNJOIN:")
    P("s_barrier")
    if os.environ.get("PROST"): P.stamp(12)
    for kb in range(PRE):
        for ins, _ in xloads(kb):
            P.extend(ins)
    P(f"s_waitcnt vmcnt({8*PRE})")


def gen_k2b(single=False):
    P = Prog()
    P("s_cmp_ge_u32 s2, 256")
    P("s_cbranch_scc1 K3_END")
    P.stamp(0, real=True)
    P.stamp(1)
    if single:
        S_ = ACC + 120
        P("s_load_dwordx2 s[88:89], s[0:1], 0")
        if os.environ.get("CTOP", "1") == "1":
            P("s_lshr_b32 s57, s2, 3")
            P("s_lshl_b32 s57, s57, 2")
            code_touch(P, "K2_PC0", "k2_kernel", "CODE_END", 92, ACC + 150, 0, 57, True)
        P(f"""
        s_and_b32 s57, s2, 4
        s_bfe_u32 s58, s2, 0x20003
        s_add_u32 s57, s57, s58
        s_lshl_b32 s57, s57, 3
        s_and_b32 s58, s2, 3
        s_lshl_b32 s58, s58, 1
        s_add_u32 s57, s57, s58
        s_lshr_b32 s58, s2, 7
        s_add_u32 s57, s57, s58
        s_lshl_b32 s57, s57, 5
        s_bfe_u32 s58, s2, 0x20005
        s_lshl_b32 s58, s58, 2
        s_add_u32 s57, s57, s58
        s_mul_i32 s58, s57, 1152
        v_bfe_u32 v{S_+8}, v0, 3, 2
        v_bfe_u32 v{S_+9}, v0, 5, 1
        v_lshl_add_u32 v{S_+8}, v{S_+9}, 4, v{S_+8}
        v_mul_u32_u24 v{S_+10}, 1152, v{S_+8}
        v_and_b32 v{S_+9}, 7, v0
        v_lshl_add_u32 v{S_+10}, v{S_+9}, 4, v{S_+10}
        v_cmp_gt_u32 vcc, 64, v0
        v_cndmask_b32 v{S_+10}, 2.0, v{S_+10}, vcc
        s_mov_b32 s90, {2048*1152}
        s_mov_b32 s91, 0x00020000
        s_waitcnt lgkmcnt(0)
        s_and_b32 s89, s89, 0xffff
        """)
        for j in range(9):
            P(f"buffer_load_dwordx4 v[{ACC+4*j}:{ACC+4*j+3}], v{S_+10}, s[88:91], s58 offen offset:{128*j}", tag="keep")
    P("s_load_dwordx4 s[36:39], s[0:1], 80")
    P("s_load_dwordx2 s[48:49], s[0:1], 120")
    P("s_load_dwordx4 s[40:43], s[0:1], 8")
    P("s_load_dwordx2 s[46:47], s[0:1], 56")
    P("s_load_dwordx2 s[100:101], s[0:1], 24")
    P("s_load_dwordx2 s[82:83], s[0:1], 32")
    P("""
    v_lshrrev_b32 v2, 6, v0
    v_and_b32 v0, 63, v0
    v_readfirstlane_b32 s53, v2
    s_and_b32 s52, s2, 3
    s_lshr_b32 s50, s2, 5
    s_lshl_b32 s51, s52, 3
    s_add_u32 s50, s50, s51
    s_and_b32 s51, s2, 4
    s_bfe_u32 s54, s2, 0x20003
    s_add_u32 s51, s51, s54
    s_mov_b32 s79, s53
    """)
    P.dbgstamp(1, 226, real=True)
    P.dbgstamp(2, 226)
    P(f"v_lshlrev_b32 v{V_LANE16}, 4, v0")
    P(f"""
    s_lshl_b32 s54, s51, 3
    s_lshl_b32 s55, s53, 1
    s_add_u32 s54, s54, s55
    s_mul_i32 s64, s54, 36864
    s_mul_i32 s55, s52, {0 if single else XNF_BYTES}
    s_add_u32 s64, s64, s55
    s_add_u32 s65, s64, 36864
    s_lshr_b32 s57, s50, 2
    s_and_b32 s58, s50, 3
    s_mul_i32 s66, s54, {360*1024}
    s_add_u32 s66, s66, {WS_HF}
    s_add_u32 s73, s66, {288*1024}
    s_mul_i32 s55, s57, {36*1024}
    s_add_u32 s66, s66, s55
    s_lshl_b32 s55, s58, 10
    s_add_u32 s68, s66, s55
    s_add_u32 s68, s68, {32*1024}
    s_add_u32 s69, s68, {360*1024}
    s_lshl_b32 s55, s58, 13
    s_add_u32 s66, s66, s55
    s_add_u32 s67, s66, {360*1024}
    s_mul_i32 s56, s57, 1152
    s_lshl_b32 s55, s58, 5
    s_add_u32 s72, s56, s55
    s_add_u32 s72, s72, 1024
    s_lshl_b32 s55, s58, 8
    s_add_u32 s56, s56, s55
    s_mov_b32 s70, {f2u(-2.0*math.sqrt(2.0/math.pi)*LOG2E*0.044715)}
    v_mov_b32 v{V_C0}, {f2u(-2.0*math.sqrt(2.0/math.pi)*LOG2E)}
    """)
    P(f"""
    v_lshrrev_b32 v14, 3, v0
    v_and_b32 v15, 2, v14
    v_bfe_u32 v{V_D4}, v0, 1, 2
    v_xor_b32 v{V_D4}, v{V_D4}, v15
    v_lshlrev_b32 v{V_D4}, 5, v{V_D4}
    v_and_b32 v15, 1, v0
    v_lshl_add_u32 v{V_D4}, v15, 4, v{V_D4}
    s_lshl_b32 s57, s53, 4
    v_add_u32 v14, s57, v14
    v_mul_u32_u24 v14, 9216, v14
    v_add_u32 v{V_D4}, v{V_D4}, v14
    v_xor_b32 v{V_D4+1}, 32, v{V_D4}
    v_lshrrev_b32 v14, 1, v0
    s_lshl_b32 s57, s53, 1
    s_and_b32 s57, s57, 4
    v_xor_b32 v14, s57, v14
    v_mul_u32_u24 v14, 9216, v14
    v_lshl_add_u32 v{V_DE}, v15, 4, v14
    s_lshl_b32 s61, s53, 11
    """)
    P("s_waitcnt lgkmcnt(0)")
    srd(P, 8, 36, 37, 576 * 9216)
    srd(P, 12, 38, 39, 576 * 9216)
    srd(P, 20, 48, 49, WS_BYTES)

    ROT = single and int(os.environ.get("ROT2", "1"))
    def rsel(D, dst, base, kb, const):
        if ROT and kb > 0:
            D(f"s_cmp_ge_u32 {kb}, s3")
            D(f"s_cselect_b32 s{dst}, s{HI[base]}, s{base}")
            D(f"s_add_u32 s{dst}, s{dst}, {const}")
        else:
            D(f"s_add_u32 s{dst}, s{base}, {const}")
    HI = {56: 4, 72: 5, 63: 6, 64: 7, 65: 78}
    slotA = [0, 1, 2, 3, 4, 0, 1, 2, 3]
    slotB = [5, 6, 7, 8, 4, 0, 1, 2, 3]
    freeB = [None, None, None, None, 4, 5, 6, 7, 8]

    def dma4(grp, kb):
        slot = (slotA if grp == 0 else slotB)[kb] * SLOT
        out = []
        for m in range(2):
            for i in range(2):
                D = Prog()
                D(f"s_add_u32 m0, s61, {slot + m*8192 + i*1024}")
                rsel(D, 59, 56, kb, (kb*64 + i*8)*9216 + grp*128)
                D(f"buffer_load_dwordx4 v{V_D4+m}, s[{8+4*m}:{11+4*m}], s59 offen lds", tag=("W", grp, kb))
                out.append((D.ins, 8))
        return out

    def dmaU(kb):
        D = Prog()
        D(f"s_add_u32 m0, s60, {(kb % 4)*4096}")
        rsel(D, 59, 63, kb, kb*128)
        D(f"buffer_load_dwordx4 v{V_DU}, s[44:47], s59 offen lds", tag=("W", 1, kb))
        return [(D.ins, 8)]

    def dmaE(kb):
        D = Prog()
        D(f"s_add_u32 m0, s60, {((9 + kb) % 4)*4096}")
        rsel(D, 59, 72, kb, kb*64*9216)
        D(f"buffer_load_dwordx4 v{V_DE}, s[16:19], s59 offen lds", tag=("W", 2, kb))
        return [(D.ins, 32)]

    def xloads(kb):
        out = []
        for s in range(4):
            for j in range(2):
                D = Prog()
                rsel(D, 62, 64 + j, kb, WS_XNF + kb*4096)
                D(f"buffer_load_dwordx4 {xreg(j, kb*4+s)}, v{V_LANE16}, s[20:23], s62 offen offset:{s*1024}" + (" sc1" if single else ""))
                out.append((D.ins, 8))
        return out

    PRE = int(os.environ.get("K2PRE", "2"))
    if not single:
        for kb in range(PRE):
            for ins, _ in dma4(0, kb) + xloads(kb):
                P.extend(ins)
    srd(P, 24, 40, 41, 1152)
    srd(P, 28, 42, 43, 1152)
    srd(P, 32, 46, 47, 1152)
    P(f"""
    s_cmp_lt_u32 s53, 2
    s_cselect_b32 s16, s8, s12
    s_cselect_b32 s17, s9, s13
    s_cselect_b32 s44, s100, s82
    s_cselect_b32 s45, s101, s83
    s_and_b32 s45, s45, 0xffff
    s_mov_b32 s46, {576*1152}
    s_mov_b32 s47, 0x00020000
    s_mov_b32 s18, {576*9216}
    s_mov_b32 s19, 0x00020000
    s_and_b32 s57, s53, 1
    s_mul_i32 s55, s57, {32*9216}
    s_add_u32 s72, s72, s55
    s_lshl_b32 s60, s53, 10
    s_add_u32 s60, s60, {E_BASE}
    s_mul_i32 s63, s50, {16*1152}
    """)
    P(f"""
    v_lshrrev_b32 v14, 3, v0
    v_lshrrev_b32 v15, 4, v0
    s_lshl_b32 s55, s57, 2
    v_add_u32 v15, s55, v15
    v_and_b32 v13, 7, v0
    v_xor_b32 v13, v13, v15
    s_lshl_b32 s55, s57, 3
    v_add_u32 v14, s55, v14
    v_mul_u32_u24 v14, 1152, v14
    v_lshl_add_u32 v{V_DU}, v13, 4, v14
    """)
    P(f"""
    v_and_b32 v14, 1, v0
    v_lshlrev_b32 v14, 4, v14
    v_bfe_u32 v15, v0, 1, 1
    v_lshl_add_u32 v14, v15, 3, v14
    v_lshrrev_b32 v15, 5, v0
    v_lshlrev_b32 v15, 3, v15
    v_bfe_u32 v{WF}, v0, 2, 2
    v_add_u32 v15, v15, v{WF}
    v_bfe_u32 v{WF+1}, v0, 4, 1
    v_and_b32 v{WF}, 2, v{WF}
    v_xor_b32 v{WF}, v{WF}, v{WF+1}
    v_lshl_add_u32 v{V_R4}, v15, 7, v14
    v_lshl_add_u32 v{V_R4}, v{WF+1}, 13, v{V_R4}
    v_lshl_add_u32 v{V_R4}, v{WF}, 5, v{V_R4}
    v_xor_b32 v{V_R4+1}, 32, v{V_R4}
    v_xor_b32 v{V_R4+2}, 64, v{V_R4}
    v_xor_b32 v{V_R4+3}, 96, v{V_R4}
    v_lshl_add_u32 v{V_RE}, v15, 5, v14
    v_lshl_add_u32 v{V_RE}, v{WF+1}, 11, v{V_RE}
    v_lshl_add_u32 v{V_RE}, v{WF+1}, 7, v{V_RE}
    v_add_u32 v{V_RE}, {E_BASE}, v{V_RE}
    v_xor_b32 v{V_RE2}, 128, v{V_RE}
    v_and_b32 v13, 31, v0
    v_bfe_u32 v{WF}, v13, 1, 3
    v_lshrrev_b32 v{WF+1}, 5, v0
    v_xor_b32 v{WF}, v{WF}, v{WF+1}
    v_lshlrev_b32 v{WF}, 4, v{WF}
    v_lshl_add_u32 v{V_UB}, v13, 7, v{WF}
    v_add_u32 v{V_UB}, {E_BASE}, v{V_UB}
    """)
    P(f"""
    s_lshl_b32 s76, s51, 2
    s_add_u32 s76, s76, s53
    s_lshl_b32 s75, s50, 5
    s_add_u32 s75, s75, s76
    s_lshl_b32 s75, s75, 8
    s_add_u32 s75, s75, {WS_AGG}
    s_lshl_b32 s55, s50, 10
    s_add_u32 s40, s73, s55
    s_add_u32 s41, s40, {360*1024}
    s_lshl_b32 s100, s76, 2
    s_add_u32 s100, s100, s52
    s_add_u32 s100, s100, 192
    s_mul_i32 s100, s100, {CNT_STRIDE}
    s_add_u32 s100, s100, {WS_CNT}
    s_add_u32 s83, s100, {160*CNT_STRIDE}
    s_lshr_b32 s101, s76, 1
    s_add_u32 s101, s101, 320
    s_mul_i32 s101, s101, {CNT_STRIDE}
    s_add_u32 s101, s101, {WS_CNT}
    v_cmp_eq_u32 vcc, 0, v0
    v_mov_b32 v{SGD}, 1
    v_cndmask_b32 v{SGO}, 2.0, v0, vcc
    """)
    NA0, NB0, NU0 = N0() if single else (PRE, 0, 0)
    if single:
        ln_phase(P, dma4, dmaU, xloads, ROT, PRE)
    pl_ld, pl_calc = ssm_params(50)
    phases = [
        [("A", 0, 0), ("A", 1, 1), ("A", 2, 2), ("A", 3, 3)],
        [("U", 0, 4), ("B", 0, 0)],
        [("E", 0, 1), ("B", 1, 2)],
        [("B", 2, 3)],
        [("B", 3, 0)],
    ]
    frags = []
    unit = 0
    for ph, tiles in enumerate(phases):
        for kb in range(9):
            order = [(s_, t) for s_ in range(4) for t in tiles]
            if (ph == 0 and kb == 8) or (ph == 1 and kb == 0):
                order = [(s_, tiles[0]) for s_ in range(4)] + [(s_, t) for s_ in range(4) for t in tiles[1:]]
            for s_, (buf, g, sl) in order:
                frags.append(dict(ph=ph, buf=buf, kb=kb, s=s_, g=g, slot=sl, ks=kb * 4 + s_, unit=unit))
            unit += 1
    bar_units = set(range(0, 27)) | {28}
    items = []
    for kb in range(PRE, 9):
        rel = -1 if kb < 5 else kb - 5 + 2
        for ins, ln in (dma4(0, kb) if kb >= NA0 else []):
            items.append([16 * kb - 1, rel, ins, ln])
        for ins, ln in xloads(kb):
            items.append([16 * kb, -1, ins, ln])
    for kb in range(9):
        rel = -1 if freeB[kb] is None else freeB[kb] + 2
        for ins, ln in (dma4(1, kb) if kb >= NB0 else []):
            items.append([144 + 8 * kb, rel, ins, ln])
        rel = -1 if kb < 4 else 9 + (kb - 4) + 2
        for ins, ln in (dmaU(kb) if kb >= NU0 else []):
            items.append([144 + 8 * kb - 1, rel, ins, ln])
        rel = 9 + (9 + kb - 4) + 2
        for ins, ln in dmaE(kb):
            items.append([216 + 8 * kb - 1, rel, ins, ln])
    WD = int(os.environ.get("WD", "0"))
    items.sort(key=lambda x: x[0] - (WD if x[2][-1].kind == "dma" else 0))
    released = [-1]
    seen = set()
    region = [0]

    def frag_read(M, n, part):
        f = frags[n]
        u = f["unit"]
        if u not in seen:
            seen.add(u)
            if u in bar_units:
                M.waitvm(("W", min(f["ph"], 2), f["kb"]))
                M("s_barrier")
                released[0] = u
                if u in (3, 6, 9, 12, 15, 18, 21, 24, 28) and not os.environ.get("PROST"):
                    M.stamp(2 + u // 3)
        b = WF + 4 * (n % NWF)
        if f["buf"] == "U":
            if part == 0:
                if f["s"]:
                    M(f"v_xor_b32 v{V_UT}, {32*f['s']}, v{V_UB}")
                M(f"ds_read_b128 v[{b}:{b+3}], v{V_UT if f['s'] else V_UB} offset:{(f['kb'] % 4)*4096}")
            return
        if f["buf"] == "E":
            off = ((9 + f["kb"]) % 4) * 4096 + f["s"] * 16 * 32
            base = V_RE if part == 0 else V_RE2
        else:
            sl = (slotA if f["buf"] == "A" else slotB)[f["kb"]]
            reg = sl // 3
            if reg != region[0]:
                d = (reg - region[0]) * 3 * SLOT
                for g in range(4):
                    M(f"v_add_u32 v{V_R4+g}, {d & 0xffffffff}, v{V_R4+g}")
                region[0] = reg
            base = V_R4 + f["g"]
            off = (sl % 3) * SLOT + f["s"] * 16 * 128 + part * 512
        M(f"ds_read_b64_tr_b16 v[{b+2*part}:{b+2*part+1}], v{base} offset:{off}")

    P.dbgstamp(3, 226)
    P.dbgstamp(9, 226, real=True)
    for n in range(DIST):
        frag_read(P, n, 0)
        frag_read(P, n, 1)
    P.stamp(2)
    CR0 = float(os.environ.get("CR0", "6.3"))
    CR1 = float(os.environ.get("CR1", "6.6"))
    credit = 0.0
    B = Prog()
    ph_start = {}
    nm_ = 0
    for n, f in enumerate(frags):
        ph_start.setdefault(f["ph"], nm_)
        b = WF + 4 * (n % NWF)
        credit = min(credit + (CR0 if f["ph"] == 0 else CR1), 16.0)
        for j in range(2):
            a = ACC + 32 * f["slot"] + 16 * j
            c = "0" if f["ks"] == 0 else f"v[{a}:{a+15}]"
            if f["buf"] == "U":
                B(f"v_mfma_f32_32x32x16_bf16 v[{a}:{a+15}], {xreg(j, f['ks'])}, v[{b}:{b+3}], {c}")
            else:
                B(f"v_mfma_f32_32x32x16_bf16 v[{a}:{a+15}], v[{b}:{b+3}], {xreg(j, f['ks'])}, {c}")
            nm_ += 1
            if n + DIST < len(frags):
                frag_read(B, n + DIST, j)
            mind = min((it[0] for it in items), default=10**9)
            assert mind > n + DIST + 1, ("load issued too late", n, mind)
            if j == 1 and mind - n < int(os.environ.get("URG", "14")):
                k = min(range(len(items)), key=lambda q: items[q][0])
                if items[k][1] <= released[0]:
                    items.insert(0, items.pop(k))
            if j == 1 and (credit > 0 or mind - n < int(os.environ.get("URG", "14"))):
                for k, it in enumerate(items):
                    if it[1] <= released[0]:
                        B.extend(it[2])
                        credit -= it[3]
                        del items[k]
                        break
    assert not items, len(items)
    ph_start[5] = nm_
    A_ = lambda t, **k: epilogue(t, 66, 1024 * t, tag="early", **k)
    Bslot = [0, 2, 3, 0]
    B_ = lambda t, **k: epilogue(Bslot[t], 66, 4096 + 1024 * t, **k)
    E_ = lambda **k: epilogue(1, 68, 0, **k)
    U = ACC + 128
    RC = ACC + 32

    def sig(tag, sreg):
        Qp = Prog()
        Qp.waitvm(tag)
        Qp(f"buffer_atomic_add v{SGD}, v{SGO}, s[20:23], s{sreg} offen sc1")
        return Qp.ins

    def spread(body, extra, width, lo=0.0, hi=1.0):
        groups = [extra[i:i + width] for i in range(0, len(extra), width)]
        n = len(body)
        pos = [int(n * (lo + (hi - lo) * (k + 0.5) / len(groups))) for k in range(len(groups))]
        out = []
        for i_, x in enumerate(body):
            while pos and i_ >= pos[0] and not any(y.text.startswith("s_add_u32 s71") for y in out[-3:]):
                out += groups.pop(0)
                pos.pop(0)
            out.append(x)
        for g_ in groups:
            out += g_
        return out

    PFp = Prog()
    PFp("s_load_dwordx2 s[36:37], s[0:1], 96")
    PFp("s_load_dwordx4 s[24:27], s[0:1], 40")
    PFp(f"""
    s_lshl_b32 s42, s2, 2
    s_add_u32 s42, s42, s53
    s_lshl_b32 s42, s42, 10
    s_waitcnt lgkmcnt(0)
    """)
    srd(PFp, 4, 36, 37, 4608 * 1152)
    srd(PFp, 28, 24, 25, 576 * 1152)
    srd(PFp, 32, 26, 27, 576 * 1152)
    pf = []
    for sd, i in [(4, 0), (4, 1), (28, 0), (4, 2), (4, 3), (32, 0), (4, 4), (4, 5)]:
        G = Prog()
        G(f"s_add_u32 s43, s42, {i*1024*1024}")
        I = Ins(f"buffer_store_dword v{V_LANE16}, v{V_LANE16}, s[{sd}:{sd+3}], s43 offen")
        I.text = f"buffer_load_dwordx4 v[{Q}:{Q+3}], v{V_LANE16}, s[{sd}:{sd+3}], s43 offen"
        G.ins.append(I)
        pf += G.ins
    if not int(os.environ.get("PF3B", "1")):
        pf = []
    L = B.ins
    p1, p2, p3, p4, p5 = (ph_start[k] for k in range(1, 6))
    ST = lambda t: A_(t, part="store")
    L = interleave2(L, pl_ld, start=8, end=24)
    if single:
        CK = Prog()
        CK(f"v_and_b32 v{VAG}, 7, v0")
        CK(f"v_lshlrev_b32 v{VAG}, 5, v{VAG}")
        CK(f"buffer_load_dword v{ES}, v{VAG}, s[36:39], 0 offen sc0 sc1")
        CK2 = Prog()
        CK2(f"v_max_u32 v{ES}, 1, v{ES}")
        CK2(f"v_and_b32 v{ES}, 31, v{ES}")
        CK2(f"v_cmp_ne_u32 vcc, 0, v{ES}")
        CK2("s_nop 4")
        CK2("s_cbranch_vccnz K2A_SLOW", tag="keepall")
        CK2("K2A_BACK:", tag="nop")
        L = interleave2(L, CK.ins, start=p1 - 70, end=p1 - 66)
        L = interleave2(L, CK2.ins, start=p1 - 28, end=p1 - 26)
    L = interleave2(L, pl_calc, start=110, end=p1 - 72)
    L = interleave2(L, A_(0), start=p1 - 23, end=p1 + 7)
    L = interleave2(L, A_(1, part="calc") + A_(2, part="calc") + A_(3, part="calc") + ST(1) + ST(2), start=p1 + 8, end=p2 - 1)
    L = interleave2(L, ssm1(U, 75) + B_(0, part="calc") + ST(3), start=p2 + 1, end=p3 - 1)
    idx = [k for k, i in enumerate(L) if i.kind == "mfma"]
    cut = idx[p3]
    P.extend(L[:cut])
    P.extend(PFp.ins)
    if int(os.environ.get("CPF3", "1")):
        P("s_lshr_b32 s77, s2, 3\ns_lshl_b32 s77, s77, 2\ns_add_u32 s77, s77, s53")
        code_touch(P, "K2_PC", "K3_GOON", "CODE_END", 24, Q + 4, 0, 77, False)
    L = L[cut:]
    n3, n4 = p4 - p3, p5 - p3
    if os.environ.get("S2LATE", "1") == "1" and single:
        f3 = spread(B_(0, part="store") + E_() + B_(1)[:30], pf, 2, 0.0, 0.8) + sig("early", 83)
        L = interleave2(L, f3, start=1, end=n3 - 1)
        extra = ssm2_loads(RC, 75, 76) if os.environ.get("S2LATE", "1") == "1" and os.environ.get("S2PRO", "0") == "1" else []
        for i_ in extra:
            if i_.kind == "vload":
                i_.tag = "keep"
        L = interleave2(L, B_(1)[30:] + B_(2)[:70] + extra + B_(2)[70:], start=n3 + 1, end=n4 - 1)
    else:
        f3 = spread(E_() + B_(0, part="store") + B_(1, part="calc"), pf, 2, 0.0, 0.6) + sig("early", 83) + ssm2_loads(RC, 75, 76) + B_(1, part="store")
        L = interleave2(L, f3, start=1, end=n3 + 8)
        L = interleave2(L, B_(2)[:60] + ssm2(U, RC, 40, "K2S", E_BASE) + B_(2)[60:], start=n3 + 9, end=n4 - 1)
    cnt = 0
    for i_ in L:
        P.ins.append(i_)
        if i_.kind == "mfma":
            cnt += 1
            if cnt == n3 and not os.environ.get("PROST"):
                P.stamp(12)
    P.stamp(13)
    P.extend(B_(3))
    P.stamp(14)
    P.stamp(15, real=True)
    P.dump_stamps(9, 20, WS_DBG + 0x10000, 14)
    P("s_mov_b64 exec, -1")
    return P


def tail_job(P, single=False):
    late2 = os.environ.get("S2LATE", "1") == "1" and single
    P("s_load_dwordx4 s[8:11], s[0:1], 8")
    P("s_load_dwordx2 s[36:37], s[0:1], 56")
    P(f"""
    s_lshr_b32 s50, s2, 5
    s_lshl_b32 s50, s50, 1
    s_add_u32 s50, s50, 20
    s_add_u32 s54, s50, 1
    s_mul_i32 s63, s50, {16*1152}
    s_lshl_b32 s60, s53, 10
    """)
    if single:
        P(f"""
        s_sub_u32 s58, 9, s3
        s_lshl_b32 s58, s58, 7
        s_add_u32 s63, s63, s58
        s_sub_u32 s58, s63, {9*128}
        """)
    for u in range(2):
        for kb in range(9):
            P(f"s_add_u32 m0, s60, {(u*9 + kb)*4096}")
            if single and kb > 0:
                P(f"s_cmp_ge_u32 {kb}, s3")
                P(f"s_cselect_b32 s59, s58, s63")
                P(f"s_add_u32 s59, s59, {u*16*1152 + kb*128}")
            else:
                P(f"s_add_u32 s59, s63, {u*16*1152 + kb*128}")
            P(f"buffer_load_dwordx4 v{V_DU}, s[44:47], s59 offen lds")
    P("s_waitcnt vmcnt(18)")
    P(f"buffer_atomic_add v{SGD}, v{SGO}, s[20:23], s100 offen sc1")
    P("s_waitcnt lgkmcnt(0)")
    srd(P, 24, 8, 9, 1152)
    srd(P, 28, 10, 11, 1152)
    srd(P, 32, 36, 37, 1152)
    PRW = ACC + 64
    P(f"""
    v_and_b32 v5, 15, v0
    s_lshl_b32 s77, s50, 4
    v_add_u32 v5, s77, v5
    v_lshlrev_b32 v5, 1, v5
    v_add_u32 v6, 32, v5
    """)
    emit_param_loads(P, 5, PRW, 24, 28, 32)
    emit_param_loads(P, 6, PRW + 4, 24, 28, 32)
    P.ins[-1].tag = "dmas"
    if late2:
        if os.environ.get("S2PRO", "0") != "1":
            P.extend(ssm2_loads(ACC + 32, 75, 76))
        P.extend(ssm2(ACC + 128, ACC + 32, 40, "K2S", E_BASE))
    _, ca0 = ssm_params(50)
    _, ca1 = ssm_params(54)
    def mv(k):
        Qm = Prog()
        for i in range(3):
            Qm(f"v_mov_b32 v{T0+i}, v{PRW+4*k+i}")
        return Qm.ins
    ca0 = mv(0) + ca0
    ca1 = mv(1) + ca1
    P(f"""
    v_and_b32 v13, 31, v0
    v_bfe_u32 v5, v13, 1, 3
    v_lshrrev_b32 v6, 5, v0
    v_xor_b32 v5, v5, v6
    v_lshlrev_b32 v5, 4, v5
    v_lshl_add_u32 v5, v13, 7, v5
    v_xor_b32 v6, 32, v5
    v_xor_b32 v7, 64, v5
    v_xor_b32 v8, 96, v5
    v_add_u32 v9, {9*4096}, v5
    v_add_u32 v10, {9*4096}, v6
    v_add_u32 v11, {9*4096}, v7
    v_add_u32 v12, {9*4096}, v8
    s_lshl_b32 s56, s50, 5
    s_add_u32 s56, s56, s76
    s_lshl_b32 s56, s56, 8
    s_add_u32 s56, s56, {WS_AGG}
    s_add_u32 s74, s56, {32*256}
    s_lshl_b32 s55, s50, 10
    s_add_u32 s64, s73, s55
    s_add_u32 s65, s64, {360*1024}
    s_add_u32 s66, s64, 1024
    s_add_u32 s67, s65, 1024
    s_add_u32 s68, s101, {16*CNT_STRIDE}
    """)
    P.waitvm("dmas")
    P("s_barrier")
    SG1 = Prog()
    if late2:
        SG1.waitvm("fx")
        SG1(f"buffer_atomic_add v{SGD}, v{SGO}, s[20:23], s101 offen sc1")
    M = Prog()
    fr = [(u, ks) for u in range(2) for ks in range(36)]
    FB = ACC + 96
    def rd(n):
        u, ks = fr[n]
        b = FB + 4 * (n % 8)
        M(f"ds_read_b128 v[{b}:{b+3}], v{5 + 4*u + (ks & 3)} offset:{(ks >> 2)*4096}")
    for n in range(6):
        rd(n)
    for n, (u, ks) in enumerate(fr):
        b = FB + 4 * (n % 8)
        for j in range(2):
            a = ACC + 32 * u + 16 * j
            c = "0" if ks == 0 else f"v[{a}:{a+15}]"
            M(f"v_mfma_f32_32x32x16_bf16 v[{a}:{a+15}], {xreg(j, ks)}, v[{b}:{b+3}], {c}")
            if j == 0 and n + 6 < len(fr):
                rd(n + 6)
    SV = ACC + 128
    keep = [A2, REV, L1, L1 + 1, ES, ES + 1, ES + 2, ES + 3]
    SVp = Prog()
    for k, r in enumerate(keep):
        SVp(f"v_mov_b32 v{SV+k}, v{r}")
    L = interleave2(M.ins, ca0, start=2, end=40)
    L = interleave2(L, SG1.ins, start=50, end=52)
    L = interleave2(L, ssm1(ACC, 56) + SVp.ins + ca1, start=74, end=143)
    P.extend(L)
    P.extend(ssm1(ACC + 32, 74))
    RC, RC1 = ACC + 64, ACC + 96
    for k, r in enumerate(keep):
        P(f"v_mov_b32 v{SV+8+k}, v{r}")
        P(f"v_mov_b32 v{r}, v{SV+k}")
    P.extend(ssm2_loads(RC, 56, 76))
    s20 = ssm2(ACC, RC, 64, "K2T0", E_BASE)
    h_ = next(k for k, i_ in enumerate(s20) if i_.text.startswith("ds_write"))
    P.extend(s20[:h_])
    P.extend(ssm2_loads(RC1, 74, 76))
    P.extend(s20[h_:])
    for k, r in enumerate(keep):
        P(f"v_mov_b32 v{r}, v{SV+8+k}")
    P.extend(ssm2(ACC + 32, RC1, 66, "K2T1", E_BASE))
    P(f"""
    s_waitcnt vmcnt(0)
    v_mov_b32 v{SGD}, 2
    buffer_atomic_add v{SGD}, v{SGO}, s[20:23], s68 offen sc1
    s_branch K3_END
    """)
    ssm2_slow(P, RC, 56, 76, "K2T0")
    ssm2_slow(P, RC1, 74, 76, "K2T1")
    ssm2_slow(P, ACC + 32, 75, 76, "K2S")
    if single:
        P("K2A_SLOW:")
        P("s_mov_b32 s71, 0")
        P("K2A_SPIN:")
        P(f"""
        s_sleep 8
        buffer_load_dword v{ES}, v{VAG}, s[36:39], 0 offen sc0 sc1
        s_waitcnt vmcnt(0)
        v_max_u32 v{ES}, 1, v{ES}
        v_and_b32 v{ES}, 31, v{ES}
        v_cmp_ne_u32 vcc, 0, v{ES}
        s_add_u32 s71, s71, 1
        s_nop 4
        s_cbranch_vccz K2A_BACK
        s_cmp_lt_u32 s71, 100000
        s_cbranch_scc1 K2A_SPIN
        s_branch K2A_BACK
        """)
```

```python
import os
from asmlib import *
from layout import *
from k1 import srd
from k3 import (STG, NS, V_LANE16, V_D, V_RB, V_OUT, RR0, RR1, ACC, WF, NWF, DIST, PB, hreg, publish, resid_calc)

V_DS = 3
V_DS1 = 252
V_SB = 248
V_G4, V_GD = 254, 253
LATE2 = os.environ.get("S2LATE", "1") == "1"


def main_loop(P, typ):
    S = typ == "S"
    if S:
        blocks = [("F", q, l) for l in (0, 2, 1, 3) for q in range(4)] + [("S", b) for b in (8, 17)]
        gates = [(8, 77, 8), (16, 78, 8)]
    else:
        blocks = [("F", 0, l) for l in (4, 6, 9, 11, 13, 15, 8, 17, 5, 7, 10, 12, 14, 16)] + [("S", r) for r in range(4)]
        gates = [(6, 77, 8), (14, 74, 64)]

    def dma(kb):
        slot = (kb % NS) * STG
        bl = blocks[kb]
        out = []
        for i in range(6):
            D = Prog()
            if bl[0] == "F":
                D(f"s_add_u32 m0, s61, {slot + (i >> 1)*8192 + (i & 1)*1024}")
                D(f"s_add_u32 s59, s56, {((bl[1]*18 + bl[2])*64 + (i & 1)*8)*1152 + (i >> 1)*128}")
                D(f"buffer_load_dwordx4 v{V_D}, s[8:11], s59 offen lds", tag=("W", kb))
            else:
                srdn = 12 if (not S or bl[1] < 9) else 40
                D(f"s_add_u32 m0, s60, {slot + i*1024}")
                D(f"s_add_u32 s59, s{92+i}, {(bl[1] % 9)*128}")
                D(f"buffer_load_dwordx4 v{V_DS1 if i & 1 else V_DS}, s[{srdn}:{srdn+3}], s59 offen lds", tag=("W", kb))
            out.append((D.ins, 8))
        return out

    def hloads(kb):
        bl = blocks[kb]
        out = []
        for s in range(4):
            D = Prog()
            if bl[0] == "F":
                D(f"s_add_u32 s62, s64, {(bl[1]*18 + bl[2])*4096}")
            else:
                D(f"s_add_u32 s62, s72, {bl[1]*4096}")
            D(f"buffer_load_dwordx4 {hreg(kb*4+s)}, v{V_LANE16}, s[20:23], s62 offen offset:{s*1024} sc1")
            out.append((D.ins, 8))
        return out

    PRE = int(os.environ.get("K3PRE", "2"))
    PREW = int(os.environ.get("K3PREW", "4"))
    for kb in range(PREW):
        for ins, _ in dma(kb):
            P.extend(ins)
    P(f"""
    s_waitcnt vmcnt({6*PREW})
    buffer_atomic_add v233, v232, s[20:23], s100 offen sc1
    s_mov_b32 s70, 0
    """)
    if not LATE2:
        P("buffer_atomic_add v233, v232, s[20:23], s101 offen sc1")
    P.stamp(2)
    PRO = LATE2 and os.environ.get("S2PRO", "0") == "1"
    slow = []
    part2 = []
    if PRO:
        from k2b import ssm2, RG3
        P(f"buffer_load_dword v{V_GD}, v{V_G4}, s[20:23], s29 offen sc0 sc1")
        P("v_lshrrev_b32 v245, 4, v0")
        P("v_cvt_f32_u32 v245, v245")
        full = ssm2(176, 80, 82, f"K3S{typ}", NS * STG, RG3)
        cutp = int(len(full) * float(os.environ.get("S2CUT", "0.5")))
        P.extend(full[:cutp])
        part2 = full[cutp:]
        slow.append(("ssm", f"K3S{typ}", 80, 0))
        P(f"""
        v_cmp_gt_u32 vcc, 8, v{V_GD}
        s_nop 4
        s_cbranch_vccz K3_HG{typ}
        """)
    P(f"K3_HP{typ}:")
    P(f"""
    buffer_load_dword v{V_GD}, v{V_G4}, s[20:23], s29 offen sc0 sc1
    s_waitcnt vmcnt(0)
    v_cmp_gt_u32 vcc, 8, v{V_GD}
    s_add_u32 s70, s70, 1
    s_nop 4
    s_cbranch_vccz K3_HG{typ}
    s_sleep 2
    s_cmp_lt_u32 s70, 200000
    s_cbranch_scc1 K3_HP{typ}
    """)
    P(f"K3_HG{typ}:")
    P.dbgstamp(4, 10)
    P.dbgstamp(10, 10, real=True)
    if not PRO:
        P("v_lshrrev_b32 v245, 4, v0")
        P("v_cvt_f32_u32 v245, v245")
    for kb in range(PRE):
        for ins, _ in hloads(kb):
            P.extend(ins)
    P.extend(part2)
    NT = 1
    frags = [dict(kb=kb, s=s, g=g) for kb in range(18 - NT) for s in range(4) for g in range(6)]
    frags += [dict(kb=kb, s=s, g=g) for g in range(6) for kb in range(18 - NT, 18) for s in range(4)]
    items = []
    for kb in range(PRE, 18):
        rel = -1 if kb < NS else kb - NS + 2
        first = min(n for n, f in enumerate(frags) if f["kb"] == kb)
        for ins, ln in (dma(kb) if kb >= PREW else []):
            items.append([first - DIST - 1, rel, ins, ln])
        gi = sum(1 for g_ in gates if kb >= g_[0])
        for ins, ln in hloads(kb):
            items.append([first, ("gate", gi), ins, ln])
    for R, sd, sx in ((RR0, "s30", "s31"), (RR1, "s75", "s76")):
        for txt, ln in ((f"buffer_load_dwordx4 v[{R}:{R+3}], v13, s[4:7], {sd} offen", 32),
                        (f"buffer_load_dwordx4 v[{R+4}:{R+7}], v13, s[4:7], {sd} offen offset:16", 8),
                        (f"buffer_load_dwordx4 v[{R+8}:{R+11}], v15, s[20:23], {sx} offen sc1", 8),
                        (f"buffer_load_dwordx4 v[{R+12}:{R+15}], v15, s[20:23], {sx} offen offset:512 sc1", 8),
                        (f"buffer_load_dwordx4 v[{R+16}:{R+19}], v14, s[32:35], {sd} offen", 2),
                        (f"buffer_load_dwordx4 v[{R+20}:{R+23}], v14, s[32:35], {sd} offen offset:16", 2)):
            D = Prog()
            D(txt)
            items.append([len(frags) - 6, -1, D.ins, ln])
    items.sort(key=lambda x: x[0])
    seen = set()
    released = [-1]
    region = {"F": 0, "S": 0}

    def frag_read(M, n):
        f = frags[n]
        kb = f["kb"]
        if kb not in seen:
            seen.add(kb)
            M.waitvm(("W", kb))
            M("s_barrier")
            released[0] = kb
            if kb in (5, 9, 13, 17):
                M.stamp(3 + (kb - 5) // 4)
        ty = blocks[kb][0]
        sl = kb % NS
        reg = sl // 2
        if reg != region[ty]:
            d = (reg - region[ty]) * 2 * STG
            for r in (range(V_RB, V_RB + 6) if ty == "F" else range(V_SB, V_SB + 4)):
                M(f"v_add_u32 v{r}, {d & 0xffffffff}, v{r}")
            region[ty] = reg
        b = WF + 4 * (n % NWF)
        off = (sl % 2) * STG
        if ty == "F":
            off += f["s"] * 16 * 128
            M(f"ds_read_b64_tr_b16 v[{b}:{b+1}], v{V_RB+f['g']} offset:{off}")
            M(f"ds_read_b64_tr_b16 v[{b+2}:{b+3}], v{V_RB+f['g']} offset:{off+512}")
        else:
            M(f"ds_read_b128 v[{b}:{b+3}], v{V_SB+f['s']} offset:{off + f['g']*4096}")

    for n in range(DIST):
        frag_read(P, n)
    CR = float(os.environ.get("CR3", "3.4"))
    credit = 0.0
    P0 = P
    P = Prog()
    MINLEAD = int(os.environ.get("K3LEAD", "40"))
    GD = int(os.environ.get("LATED", "40"))
    open_gates = [0]
    for n, f in enumerate(frags):
        b = WF + 4 * (n % NWF)
        a = ACC + 16 * f["g"]
        ks = f["kb"] * 4 + f["s"]
        c = "0" if ks == 0 else f"v[{a}:{a+15}]"
        P(f"v_mfma_f32_32x32x16_bf16 v[{a}:{a+15}], v[{b}:{b+3}], {hreg(ks)}, {c}")
        if n + DIST < len(frags):
            frag_read(P, n + DIST)
        for gi, (gkb, sreg, tgt) in enumerate(gates):
            vo = V_G4 if (sreg == 77) else 12
            if n == 24 * gkb - GD - 40:
                P(f"buffer_load_dword v{V_GD}, v{vo}, s[20:23], s{sreg} offen sc0 sc1")
            if n == 24 * gkb - GD:
                P(f"v_cmp_gt_u32 vcc, {tgt}, v{V_GD}")
                P("s_nop 4")
                P(f"s_cbranch_vccnz K3_GS{typ}{gi}", tag="keepall")
                P(f"K3_GB{typ}{gi}:", tag="nop")
                open_gates[0] = gi + 1
                slow.append((f"{typ}{gi}", vo, sreg, tgt))
        credit = min(credit + CR, 12.0)
        assert not items or items[0][0] > n + 1, ("load issued too late", n, items[0][0])
        if credit > 0 or (items and items[0][0] - n < MINLEAD):
            for k, it in enumerate(items):
                if (it[1][1] <= open_gates[0] if isinstance(it[1], tuple) else it[1] <= released[0]):
                    P.extend(it[2])
                    credit -= it[3]
                    del items[k]
                    break
    assert not items
    L = P.ins
    nm = len(frags)
    if PRO:
        SG = Prog()
        SG.waitvm("fx")
        SG("buffer_atomic_add v233, v232, s[20:23], s101 offen sc1")
        s3 = int(os.environ.get("S2E", "60"))
        L = interleave2(L, SG.ins, start=s3, end=s3 + 2)
    elif LATE2:
        from k2b import ssm2_loads, ssm2, RG3
        s0 = int(os.environ.get("S2A", "52")); s1 = int(os.environ.get("S2B", "100")); s2 = int(os.environ.get("S2C", "170")); s3 = int(os.environ.get("S2D", "215"))
        assert s3 + 4 < 24 * 14 - GD - 40, "own h signal must precede the gate on the h counter"
        SG = Prog()
        SG.waitvm("fx")
        SG("buffer_atomic_add v233, v232, s[20:23], s101 offen sc1")
        L = interleave2(L, ssm2_loads(16, 48, 49, RG3), start=s0, end=s0 + 20)
        L = interleave2(L, ssm2(176, 16, 82, f"K3S{typ}", NS * STG, RG3), start=s1, end=s2)
        L = interleave2(L, SG.ins, start=s3, end=s3 + 2)
        slow.append(("ssm", f"K3S{typ}", 0, 0))
    T = 4 * NT
    for g in range(5):
        e = nm - (5 - g) * T
        L = interleave2(L, publish(g), start=e + 1, end=min(e + T, nm) - 1)
    P0.extend(L)
    P0("s_waitcnt vmcnt(0)")
    return slow


def slow_paths(P, slow):
    for name, vo, sreg, tgt in slow:
        if name == "ssm":
            from k2b import ssm2_slow, RG3
            ssm2_slow(P, sreg or 16, 48, 49, vo, RG3)
            continue
        P(f"K3_GS{name}:")
        P("s_mov_b32 s70, 0")
        P(f"K3_GP{name}:")
        P(f"""
        s_sleep 2
        buffer_load_dword v{V_GD}, v{vo}, s[20:23], s{sreg} offen sc0 sc1
        s_waitcnt vmcnt(0)
        v_cmp_gt_u32 vcc, {tgt}, v{V_GD}
        s_add_u32 s70, s70, 1
        s_nop 4
        s_cbranch_vccz K3_GB{name}
        s_cmp_lt_u32 s70, 200000
        s_cbranch_scc1 K3_GP{name}
        s_branch K3_GB{name}
        """)


def gen_k3m(P):
    from k2b import tail_job
    P("s_barrier")
    P("""
    s_lshr_b32 s57, s2, 3
    s_and_b32 s58, s57, 27
    s_sub_u32 s58, s58, s52
    s_cmp_lg_u32 s58, 24
    s_cbranch_scc1 K3_GOON
    """)
    assert LATE2
    tail_job(P, True)
    P("K3_GOON:")
    if LATE2:
        P("""
        s_mov_b32 s48, s75
        s_mov_b32 s49, s76
        s_mov_b32 s82, s40
        s_mov_b32 s83, s41
        """)
    P.stamp(0, real=True)
    P.stamp(1)
    P("s_load_dwordx4 s[36:39], s[0:1], 96")
    P("s_load_dwordx4 s[40:43], s[0:1], 40")
    P("s_load_dwordx2 s[44:45], s[0:1], 0")
    P("s_load_dwordx2 s[46:47], s[0:1], 64")
    P("""
    s_lshr_b32 s54, s2, 3
    s_and_b32 s55, s2, 7
    s_and_b32 s57, s2, 3
    s_add_u32 s57, s57, 28
    s_cmp_gt_u32 s54, s57
    s_cselect_b32 s58, 1, 0
    s_sub_u32 s57, s57, 4
    s_cmp_gt_u32 s54, s57
    s_subb_u32 s54, s54, s58
    s_and_b32 s50, s55, 4
    s_lshl_b32 s50, s50, 1
    s_and_b32 s57, s54, 7
    s_add_u32 s50, s50, s57
    s_and_b32 s51, s55, 3
    s_lshr_b32 s52, s54, 3
    s_lshl_b32 s57, s55, 1
    s_and_b32 s58, s54, 1
    s_add_u32 s57, s57, s58
    s_bfe_u32 s58, s54, 0x20001
    s_cmp_ge_u32 s54, 24
    s_cselect_b32 s50, s57, s50
    s_cselect_b32 s51, 4, s51
    s_cselect_b32 s52, s58, s52
    s_and_b32 s55, s51, 3
    """)
    P(f"""
    s_lshl_b32 s63, s50, 2
    s_add_u32 s63, s63, s53
    s_mul_i32 s64, s63, {360*1024}
    s_add_u32 s64, s64, {WS_HF}
    s_lshr_b32 s57, s55, 1
    s_mul_i32 s57, s57, 9
    s_and_b32 s58, s55, 1
    s_mul_i32 s58, s58, 4
    s_add_u32 s57, s57, s58
    s_lshl_b32 s57, s57, 12
    s_add_u32 s72, s64, s57
    s_add_u32 s72, s72, {288*1024}
    s_lshl_b32 s71, s58, 7
    s_mul_i32 s57, s55, {72*1024}
    s_add_u32 s64, s64, s57
    s_lshr_b32 s77, s63, 1
    s_lshl_b32 s77, s77, 2
    s_add_u32 s77, s77, s55
    s_add_u32 s77, s77, 192
    s_mul_i32 s77, s77, {CNT_STRIDE}
    s_add_u32 s77, s77, {WS_CNT}
    s_add_u32 s29, s77, {160*CNT_STRIDE}
    s_add_u32 s74, s50, 320
    s_mul_i32 s74, s74, {CNT_STRIDE}
    s_add_u32 s74, s74, {WS_CNT}
    s_add_u32 s78, s74, {16*CNT_STRIDE}
    v_and_b32 v{V_G4}, 3, v0
    v_mul_u32_u24 v{V_G4}, {CNT_STRIDE}, v{V_G4}
    s_cmp_eq_u32 s51, 4
    s_cselect_b32 s57, -1, 0
    v_and_b32 v{V_G4}, s57, v{V_G4}
    """)
    P(f"""
    s_mul_i32 s54, s50, 3
    s_add_u32 s54, s54, s52
    s_mul_i32 s65, s54, {6*5*8192}
    s_lshl_b32 s57, s53, 11
    s_add_u32 s65, s65, s57
    s_add_u32 s65, s65, {WS_PART}
    s_lshl_b32 s66, s51, 13
    s_add_u32 s66, s66, s65
    s_add_u32 s24, s66, {5*5*8192}
    s_lshl_b32 s57, s54, 2
    s_add_u32 s57, s57, s53
    s_mul_i32 s69, s57, {CNT_STRIDE}
    s_add_u32 s69, s69, {WS_CNT}
    """)
    P(f"""
    v_lshrrev_b32 v10, 3, v0
    v_bfe_u32 v11, v0, 4, 1
    v_lshlrev_b32 v11, 2, v11
    v_and_b32 v12, 7, v0
    v_xor_b32 v12, v12, v11
    s_lshl_b32 s57, s53, 4
    v_add_u32 v11, s57, v10
    v_mul_u32_u24 v11, 1152, v11
    v_lshl_add_u32 v{V_D}, v12, 4, v11
    v_lshrrev_b32 v11, 1, v10
    v_and_b32 v12, 7, v0
    v_xor_b32 v12, v12, v11
    v_mul_u32_u24 v10, 1152, v10
    v_lshl_add_u32 v{V_DS}, v12, 4, v10
    v_xor_b32 v{V_DS1}, 64, v{V_DS}
    s_mul_i32 s56, s55, {1152*1152}
    s_mul_i32 s67, s52, 384
    s_add_u32 s56, s56, s67
    s_lshl_b32 s61, s53, 11
    s_mul_i32 s60, s53, 6144
    v_and_b32 v10, 31, v0
    v_bfe_u32 v11, v10, 2, 1
    v_lshlrev_b32 v11, 4, v11
    v_lshrrev_b32 v12, 3, v10
    v_lshl_add_u32 v11, v12, 2, v11
    v_and_b32 v12, 3, v10
    v_add_u32 v11, v11, v12
    v_bfe_u32 v12, v11, 1, 3
    v_lshrrev_b32 v13, 5, v0
    v_xor_b32 v12, v12, v13
    v_lshlrev_b32 v12, 4, v12
    v_lshl_add_u32 v{V_SB}, v11, 7, v12
    v_xor_b32 v{V_SB+1}, 32, v{V_SB}
    v_xor_b32 v{V_SB+2}, 64, v{V_SB}
    v_xor_b32 v{V_SB+3}, 96, v{V_SB}
    s_lshl_b32 s57, s63, 5
    v_add_u32 v11, s57, v11
    v_lshlrev_b32 v15, 4, v10
    v_lshl_add_u32 v15, v13, 10, v15
    v_lshlrev_b32 v14, 5, v13
    v_mul_u32_u24 v11, 1152, v11
    v_lshl_add_u32 v13, v13, 5, v11
    v_lshlrev_b32 v{V_OUT}, 1, v13
    """)
    P(f"""
    v_lshrrev_b32 v10, 5, v0
    v_lshlrev_b32 v10, 3, v10
    v_bfe_u32 v11, v0, 2, 2
    v_add_u32 v10, v10, v11
    v_lshlrev_b32 v10, 7, v10
    v_bfe_u32 v11, v0, 3, 1
    v_lshl_add_u32 v10, v11, 6, v10
    v_and_b32 v11, 1, v0
    v_lshl_add_u32 v10, v11, 5, v10
    v_bfe_u32 v11, v0, 4, 1
    v_lshl_add_u32 v10, v11, 4, v10
    v_bfe_u32 v11, v0, 1, 1
    v_lshl_add_u32 v10, v11, 3, v10
    v_xor_b32 v{V_RB}, 64, v10
    v_add_u32 v{V_RB}, 16384, v{V_RB}
    """)
    for L in range(1, 6):
        P(f"""
        s_add_u32 s57, s51, {L}
        s_cmp_ge_u32 s57, 5
        s_cselect_b32 s58, 5, 0
        s_sub_u32 s57, s57, s58
        """)
        if L < 5:
            P(f"s_mul_i32 s58, s57, {5*8192}\ns_add_u32 s{24+L}, s58, s66")
        P(f"""
        s_and_b32 s58, s57, 1
        s_lshl_b32 s58, s58, 6
        s_lshr_b32 s57, s57, 1
        s_lshl_b32 s57, s57, 13
        v_xor_b32 v{V_RB+L}, s58, v10
        v_add_u32 v{V_RB+L}, s57, v{V_RB+L}
        """)
    for i in range(6):
        P(f"""
        s_mul_i32 s57, s53, 48
        s_add_u32 s57, s57, {8*i}
        s_lshr_b32 s58, s57, 5
        s_and_b32 s57, s57, 31
        s_add_u32 s59, s58, s51
        s_cmp_ge_u32 s59, 5
        s_cselect_b32 s62, 5, 0
        s_sub_u32 s59, s59, s62
        s_cmp_eq_u32 s58, 0
        s_cselect_b32 s59, 5, s59
        s_lshl_b32 s59, s59, 5
        s_add_u32 s57, s57, s59
        s_mul_i32 s58, s52, 192
        s_add_u32 s57, s57, s58
        s_mul_i32 s57, s57, 1152
        s_add_u32 s{92+i}, s57, s71
        """)
    P("v_mov_b32 v12, 0")
    P("s_waitcnt lgkmcnt(0)")
    srd(P, 8, 36, 37, 4608 * 1152)
    srd(P, 16, 38, 39, 2048 * 576 * 4)
    srd(P, 4, 44, 45, 2048 * 1152)
    srd(P, 32, 46, 47, 1152)
    P(f"""
    s_cmp_eq_u32 s55, 2
    s_cselect_b32 s57, 1, 0
    s_cmp_eq_u32 s55, 3
    s_cselect_b32 s57, 1, s57
    s_cmp_eq_u32 s57, 1
    s_cselect_b32 s12, s42, s40
    s_cselect_b32 s13, s43, s41
    s_and_b32 s13, s13, 0xffff
    s_mov_b32 s14, {576*1152}
    s_mov_b32 s15, 0x00020000
    s_mov_b32 s40, s42
    s_and_b32 s41, s43, 0xffff
    s_mov_b32 s42, {576*1152}
    s_mov_b32 s43, 0x00020000
    s_mul_i32 s68, s63, 36864
    s_mul_i32 s57, s52, {12*1024}
    s_add_u32 s68, s68, s57
    s_add_u32 s68, s68, {WS_XNF}
    s_cmp_eq_u32 s51, s53
    s_cselect_b32 s73, 0, 0x40000000
    s_lshl_b32 s30, s51, 6
    s_add_u32 s30, s30, s67
    s_lshl_b32 s31, s51, 11
    s_add_u32 s31, s31, s68
    s_add_u32 s75, s67, {5*64}
    s_add_u32 s75, s75, s73
    s_add_u32 s76, s68, {5*2048}
    s_add_u32 s76, s76, s73
    s_cmp_eq_u32 s51, 4
    s_cbranch_scc1 K3_SR
    """)
    slow = main_loop(P, "F")
    P("s_branch K3_RED")
    slow_paths(P, slow)
    P("K3_SR:")
    Prog._last[0] = 1
    slow2 = main_loop(P, "S")
    P("K3_RED:")
    P.dbgstamp(5, 10)
    P.dbgstamp(11, 10, real=True)
    P.stamp(7)
    P(f"""
    v_mov_b32 v{V_GD}, 1
    v_cmp_eq_u32 vcc, 0, v0
    v_cndmask_b32 v{V_G4}, 2.0, v0, vcc
    buffer_atomic_add v{V_GD}, v{V_G4}, s[20:23], s69 offen sc1
    s_mov_b32 s70, 0
    """)
    resid_calc(P)
    P(f"""
    s_lshl_b32 s57, s53, 12
    s_add_u32 s57, s57, {NS*STG}
    v_and_b32 v10, 31, v0
    v_lshrrev_b32 v11, 5, v0
    v_lshlrev_b32 v11, 2, v11
    v_and_b32 v9, 7, v0
    v_xor_b32 v11, v11, v9
    v_lshlrev_b32 v11, 4, v11
    v_lshl_add_u32 v4, v10, 7, v11
    v_add_u32 v4, s57, v4
    v_xor_b32 v5, 16, v4
    v_xor_b32 v6, 32, v4
    v_xor_b32 v7, 48, v4
    v_lshrrev_b32 v10, 3, v0
    v_xor_b32 v11, v9, v10
    v_lshlrev_b32 v11, 4, v11
    v_lshl_add_u32 v8, v10, 7, v11
    v_add_u32 v8, s57, v8
    v_and_b32 v11, 3, v10
    v_lshrrev_b32 v10, 2, v10
    v_lshl_add_u32 v11, v10, 4, v11
    s_lshl_b32 s57, s63, 5
    v_add_u32 v11, s57, v11
    v_mul_u32_u24 v11, 2304, v11
    v_lshl_add_u32 v248, v9, 4, v11
    v_add_u32 v249, {4*2304}, v248
    v_add_u32 v250, {8*2304}, v248
    v_add_u32 v251, {12*2304}, v248
    """)
    P.stamp(13)
    P("s_waitcnt lgkmcnt(0)")
    P("K3_POLL:")
    P(f"""
    buffer_load_dword v11, v12, s[20:23], s69 offen sc0 sc1
    s_waitcnt vmcnt(0)
    v_readfirstlane_b32 s71, v11
    s_add_u32 s70, s70, 1
    s_cmp_ge_u32 s71, 5
    s_cbranch_scc1 K3_GO
    s_sleep 1
    s_cmp_lt_u32 s70, 200000
    s_cbranch_scc1 K3_POLL
    """)
    P("K3_GO:")
    P.stamp(14)
    P(f"""
    s_mul_i32 s72, s51, {5*8192}
    s_add_u32 s72, s72, s65
    s_add_u32 s74, s65, {5*5*8192}
    s_add_u32 s74, s74, s73
    """)
    for i in range(1, 5):
        P(f"""
        s_add_u32 s57, s51, {i}
        s_cmp_ge_u32 s57, 5
        s_cselect_b32 s58, 5, 0
        s_sub_u32 s57, s57, s58
        s_lshl_b32 s57, s57, 13
        s_add_u32 s{23+i}, s57, s74
        s_add_u32 s57, s57, s72
        """)
        for q in range(2):
            r = WF + 8 * (i - 1) + 4 * q
            P(f"buffer_load_dwordx4 v[{r}:{r+3}], v{V_LANE16}, s[20:23], s57 offen offset:{1024*q} sc0 sc1")
    for i in range(1, 5):
        for q in range(2):
            r = PB + 40 + 8 * (i - 1) + 4 * q
            P(f"buffer_load_dwordx4 v[{r}:{r+3}], v{V_LANE16}, s[20:23], s{23+i} offen offset:{1024*q} sc0 sc1")
    P(f"""
    s_lshl_b32 s57, s51, 7
    s_lshl_b32 s58, s67, 1
    s_add_u32 s57, s57, s58
    s_add_u32 s58, s58, {5*128}
    s_add_u32 s58, s58, s73
    """)
    for a_, R0, so in ((ACC + 80, WF, "s57"), (ACC, PB + 40, "s58")):
        for i in range(4):
            for k in range(8):
                r = R0 + 8 * i + k
                P(f"""
                v_lshlrev_b32 v10, 16, v{r}
                v_and_b32 v{r}, 0xffff0000, v{r}
                v_add_f32 v{a_+2*k}, v{a_+2*k}, v10
                v_add_f32 v{a_+2*k+1}, v{a_+2*k+1}, v{r}
                """)
        if os.environ.get("OTR", "1") == "1":
            for q in range(4):
                P(f"ds_write_b128 v{4+q}, v[{a_+4*q}:{a_+4*q+3}]")
            for q in range(4):
                P(f"ds_read_b128 v[{a_+4*q}:{a_+4*q+3}], v8 offset:{1024*q}")
            for q in range(4):
                P(f"buffer_store_dwordx4 v[{a_+4*q}:{a_+4*q+3}], v{13 if q < 2 else 14}, s[16:19], {so} offen offset:{0}" if False else
                  f"buffer_store_dwordx4 v[{a_+4*q}:{a_+4*q+3}], v{248+q}, s[16:19], {so} offen")
        else:
            for q in range(4):
                P(f"buffer_store_dwordx4 v[{a_+4*q}:{a_+4*q+3}], v{V_OUT}, s[16:19], {so} offen offset:{16*q}")
    P.dbgstamp(6, 10)
    P.dbgstamp(7, 10, real=True)
    P.stamp(15, real=True)
    P.dump_stamps(9, 20, WS_DBG, 10)
    P("s_branch K3_END")
    slow_paths(P, slow2)
    P("K3_END:")
    P("s_endpgm")
    P("CODE_END:")
    name = os.environ.get("KNAME", "k2_kernel")
    return kernel_text(name, P.finalize().replace("k2_kernel", name), vgpr=256, agpr=256, sgpr=102), 163840
```

```python
import os, math
from asmlib import *
from layout import *
from k1 import code_touch, srd, f2u, bf16r, emit_param_loads, emit_params, emit_pow, LOG2E
from k2 import (SLOT, E_BASE, V_LANE16, V_D4, V_DE, V_R4, V_RE, V_RE2, V_C0, V_T, XV, ACC, WF, NWF, DIST,
                xreg, epilogue, cfma)

T0, T1, A2, REV = 228, 229, 230, 231
SGO, SGD = 232, 233
L1, CO = 234, 236
C8 = 238
ES = 240
Q = 244
V_DU, VAG, VG, TX = 252, 253, 254, 255
V_UB, V_UT = 14, 13
VW, VR = 13, 14
RG0 = (VAG, VG, TX, VW, VR, 77, 78)
RG3 = (244, 245, 246, 208, 209, 3, 70)


def cmul(E, o, a, b):
    E(f"""
    v_mul_f32 v{o}, v{a}, v{b}
    v_mul_f32 v{o+1}, v{a}, v{b+1}
    v_fma_f32 v{o}, -v{a+1}, v{b+1}, v{o}
    v_fmac_f32 v{o+1}, v{a+1}, v{b}
    """)


def ssm_params(spt):
    L = Prog()
    L(f"""
    v_and_b32 v{TX}, 15, v0
    s_lshl_b32 s77, s{spt}, 4
    v_add_u32 v{TX}, s77, v{TX}
    v_lshlrev_b32 v{TX}, 1, v{TX}
    """)
    emit_param_loads(L, TX, T0, 24, 28, 32)
    C = Prog()
    emit_params(C, T0)
    emit_pow(C, 1, A2, REV, L1, L1 + 1, Q)
    C(f"""
    v_add_f32 v{Q}, -1.0, v{L1}
    v_mul_f32 v{Q+1}, v{T0}, v{T0}
    v_fmac_f32 v{Q+1}, v{T1}, v{T1}
    v_rcp_f32 v{Q+1}, v{Q+1}
    v_mul_f32 v{CO}, v{Q}, v{T0}
    v_add_f32 v{Q+1}, v{Q+1}, v{Q+1}
    v_fmac_f32 v{CO}, v{L1+1}, v{T1}
    v_mul_f32 v{CO+1}, v{L1+1}, v{T0}
    v_fma_f32 v{CO+1}, -v{Q}, v{T1}, v{CO+1}
    v_mul_f32 v{CO}, v{CO}, v{Q+1}
    v_mul_f32 v{CO+1}, v{CO+1}, v{Q+1}
    v_lshrrev_b32 v{VG}, 4, v0
    v_cvt_f32_u32 v{VG}, v{VG}
    """)
    return L.ins, C.ins


def ssm1(U, sagg):
    E = Prog()
    for j in range(2):
        a = U + 16 * j
        for k in range(8):
            E(f"v_permlane16_swap_b32 v{a+k}, v{a+8+k}")
        hp = None
        for k in range(8):
            re_, im_ = a + k, a + 8 + k
            E(f"""
            v_mul_f32 v{T0}, v{CO}, v{re_}
            v_mul_f32 v{T1}, v{CO+1}, v{re_}
            v_fma_f32 v{re_}, -v{CO+1}, v{im_}, v{T0}
            v_fma_f32 v{im_}, v{CO}, v{im_}, v{T1}
            """)
            if k == 0:
                hp = (re_, im_)
            else:
                o = (Q + 4 * j) + 2 * (k & 1)
                cfma(E, o, o + 1, L1, hp[0], hp[1], re_, im_)
                hp = (o, o + 1)
    emit_pow(E, 8, A2, REV, C8, C8 + 1, T0)
    E(f"v_bfe_u32 v{TX}, v0, 4, 1")
    E(f"v_cvt_f32_u32 v{TX}, v{TX}")
    for j in range(2):
        a, b = Q + 4 * j + 2, Q + 4 * j
        E(f"""
        v_mov_b32 v{b}, v{a}
        v_mov_b32 v{b+1}, v{a+1}
        v_permlane16_swap_b32 v{a}, v{b}
        v_permlane16_swap_b32 v{a+1}, v{b+1}
        v_mul_f32 v{ES+2*j}, v{TX}, v{a}
        v_mul_f32 v{ES+2*j+1}, v{TX}, v{a+1}
        """)
        cfma(E, b, b + 1, C8, a, a + 1, b, b + 1)
    E(f"v_mul_f32 v{TX}, {f2u(8.0)}, v{TX}")
    emit_pow(E, f"v{TX}", A2, REV, CO, CO + 1, T0)
    E(f"""
    v_lshrrev_b32 v{TX}, 5, v0
    v_cvt_f32_u32 v{TX}, v{TX}
    v_mul_f32 v{CO}, v{TX}, v{CO}
    v_mul_f32 v{CO+1}, v{TX}, v{CO+1}
    """)
    cmul(E, T0, C8, C8)
    for j in range(2):
        a, b = Q + 4 * j + 2, Q + 4 * j
        E(f"""
        v_mov_b32 v{a}, v{b}
        v_mov_b32 v{a+1}, v{b+1}
        v_permlane32_swap_b32 v{b}, v{a}
        v_permlane32_swap_b32 v{b+1}, v{a+1}
        """)
        cfma(E, ES + 2 * j, ES + 2 * j + 1, CO, b, b + 1, ES + 2 * j, ES + 2 * j + 1)
        cfma(E, a, a + 1, T0, b, b + 1, a, a + 1)
    cmul(E, C8, T0, T0)
    cfma(E, Q + 4, Q + 5, C8, Q + 2, Q + 3, Q + 6, Q + 7)
    E(f"""
    v_mov_b32 v{Q+6}, 1.0
    v_mov_b32 v{Q+7}, 1.0
    v_lshlrev_b32 v{TX}, 4, v0
    v_cmp_gt_u32 vcc, 16, v0
    v_cndmask_b32 v{TX}, 2.0, v{TX}, vcc
    buffer_store_dwordx4 v[{Q+4}:{Q+7}], v{TX}, s[20:23], s{sagg} offen sc0 sc1
    v_mul_f32 v{TX}, {f2u(8.0)}, v{VG}
    """)
    emit_pow(E, f"v{TX}", A2, REV, CO, CO + 1, T0)
    cfma(E, ES + 2, ES + 3, CO, Q + 2, Q + 3, ES + 2, ES + 3)
    return E.ins


def ssm2_loads(R, sagg, swc, rg=None):
    VAG, VG, TX, VW, VR, ST_, SC_ = rg or RG0
    E = Prog()
    E(f"""
    v_lshrrev_b32 v{T0}, 4, v0
    v_lshlrev_b32 v{T0}, 3, v{T0}
    v_sub_u32 v{T0}, s{swc}, v{T0}
    v_and_b32 v{T1}, 15, v0
    v_lshlrev_b32 v{T1}, 4, v{T1}
    v_lshrrev_b32 v{VAG}, 4, v0
    v_lshlrev_b32 v{VAG}, 11, v{VAG}
    v_sub_u32 v{VAG}, v{T1}, v{VAG}
    v_add_u32 v{VAG}, s{sagg}, v{VAG}
    v_mov_b32 v{T1}, {WS_ZREC}
    """)
    for q in range(8):
        E(f"""
        v_cmp_lt_i32 vcc, {q}, v{T0}
        v_add_u32 v{TX}, {(-256*(q+1)) & 0xffffffff}, v{VAG}
        v_cndmask_b32 v{TX}, v{T1}, v{TX}, vcc
        buffer_load_dwordx4 v[{R+4*q}:{R+4*q+3}], v{TX}, s[20:23], 0 offen sc0 sc1
        """)
    return E.ins


def ssm2(U, R, shf, lab, scr, rg=None):
    VAG, VG, TX, VW, VR, ST_, SC_ = rg or RG0
    E = Prog()
    E(f"v_min_f32 v{TX}, v{R+2}, v{R+3}")
    for q in range(1, 8):
        E(f"v_min3_f32 v{TX}, v{TX}, v{R+4*q+2}, v{R+4*q+3}")
    E(f"v_cmp_gt_f32 vcc, 0.5, v{TX}")
    E("s_nop 4")
    E(f"s_cbranch_vccnz {lab}_SLOW", tag="keepall")
    E(f"{lab}_BACK:", tag="nop")
    emit_pow(E, 64, A2, REV, C8, C8 + 1, T0)
    for q in range(6, -1, -1):
        cfma(E, R + 4 * q, R + 4 * q + 1, C8, R + 4 * q + 4, R + 4 * q + 5, R + 4 * q, R + 4 * q + 1)
    E(f"v_mul_f32 v{TX}, {f2u(512.0)}, v{VG}")
    emit_pow(E, f"v{TX}", A2, REV, C8, C8 + 1, T0)
    cmul(E, CO, C8, R)
    for pl in ("v_permlane16_swap_b32", "v_permlane32_swap_b32"):
        E(f"""
        v_mov_b32 v{T0}, v{CO}
        v_mov_b32 v{T1}, v{CO+1}
        {pl} v{CO}, v{T0}
        {pl} v{CO+1}, v{T1}
        v_add_f32 v{CO}, v{CO}, v{T0}
        v_add_f32 v{CO+1}, v{CO+1}, v{T1}
        """)
    E(f"""
    s_lshl_b32 s{ST_}, s53, 11
    s_add_u32 s{ST_}, s{ST_}, {scr}
    v_and_b32 v{VW}, 15, v0
    v_lshlrev_b32 v{VW}, 6, v{VW}
    v_bfe_u32 v{T0}, v0, 4, 1
    v_lshl_add_u32 v{VW}, v{T0}, 5, v{VW}
    v_lshrrev_b32 v{T1}, 5, v0
    v_lshl_add_u32 v{VW}, v{T1}, 3, v{VW}
    v_add_u32 v{VW}, s{ST_}, v{VW}
    v_lshlrev_b32 v{VR}, 3, v{T1}
    v_bfe_u32 v{T1}, v0, 2, 2
    v_add_u32 v{VR}, v{VR}, v{T1}
    v_lshlrev_b32 v{VR}, 6, v{VR}
    v_lshl_add_u32 v{VR}, v{T0}, 5, v{VR}
    v_and_b32 v{T1}, 3, v0
    v_lshl_add_u32 v{VR}, v{T1}, 3, v{VR}
    v_add_u32 v{VR}, s{ST_}, v{VR}
    """)
    for j in range(2):
        b = U + 16 * j
        E(f"v_mov_b32 v{TX}, {f2u(32.0*j)}")
        E(f"v_fmac_f32 v{TX}, {f2u(8.0)}, v{VG}")
        emit_pow(E, f"v{TX}", A2, REV, C8, C8 + 1, T0)
        e = ES + 2 * j
        cfma(E, e, e + 1, C8, CO, CO + 1, e, e + 1)
        pre, pim = e, e + 1
        for k in range(8):
            cfma(E, b + k, b + 8 + k, L1, pre, pim, b + k, b + 8 + k)
            pre, pim = b + k, b + 8 + k
        for k in range(4):
            E(f"v_cvt_pk_bf16_f32 v{b+k}, v{b+2*k}, v{b+2*k+1}")
        for k in range(4):
            E(f"v_cvt_pk_bf16_f32 v{b+8+k}, -v{b+8+2*k}, -v{b+8+2*k+1}")
        E(f"""
        ds_write_b64 v{VW}, v[{b}:{b+1}]
        ds_write_b64 v{VW}, v[{b+2}:{b+3}] offset:16
        ds_write_b64 v{VW}, v[{b+8}:{b+9}] offset:1024
        ds_write_b64 v{VW}, v[{b+10}:{b+11}] offset:1040
        ds_read_b64_tr_b16 v[{b+4}:{b+5}], v{VR}
        ds_read_b64_tr_b16 v[{b+6}:{b+7}], v{VR} offset:256
        ds_read_b64_tr_b16 v[{b+12}:{b+13}], v{VR} offset:1024
        ds_read_b64_tr_b16 v[{b+14}:{b+15}], v{VR} offset:1280
        s_add_u32 s{ST_}, s{shf+j}, {36*1024}
        """)
        E(f"""
        buffer_store_dwordx4 v[{b+4}:{b+7}], v{V_LANE16}, s[20:23], s{shf+j} offen sc1
        buffer_store_dwordx4 v[{b+12}:{b+15}], v{V_LANE16}, s[20:23], s{ST_} offen sc1
        """, tag="fx")
    return E.ins


def ssm2_slow(P, R, sagg, swc, lab, rg=None):
    VAG, VG, TX, VW, VR, ST_, SC_ = rg or RG0
    P(f"{lab}_SLOW:")
    P(f"s_mov_b32 s{SC_}, 0")
    P(f"{lab}_SPIN:")
    P("s_sleep 4")
    P.extend(ssm2_loads(R, sagg, swc, rg))
    P(f"v_min_f32 v{TX}, v{R+2}, v{R+3}")
    for q in range(1, 8):
        P(f"v_min3_f32 v{TX}, v{TX}, v{R+4*q+2}, v{R+4*q+3}")
    P(f"""
    v_cmp_gt_f32 vcc, 0.5, v{TX}
    s_add_u32 s{SC_}, s{SC_}, 1
    s_nop 4
    s_cbranch_vccz {lab}_BACK
    s_cmp_lt_u32 s{SC_}, 100000
    s_cbranch_scc1 {lab}_SPIN
    s_branch {lab}_BACK
    """)


def N0():
    return tuple(int(x) for x in os.environ.get("N0", "2,0,0").split(","))


def ln_phase(P, dma4, dmaU, xloads, ROT, PRE):
    P("s_load_dwordx2 s[82:83], s[0:1], 0") if False else None
    P(f"""
    s_lshr_b32 s57, s2, 5
    s_bfe_u32 s58, s2, 0x20003
    s_lshl_b32 s58, s58, 1
    s_add_u32 s57, s57, s58
    s_cmp_ge_u32 s57, 9
    s_cselect_b32 s58, 9, 0
    s_sub_u32 s57, s57, s58
    s_mul_i32 s57, s57, {1 if ROT else 0}
    s_sub_u32 s3, 9, s57
    s_mul_i32 s58, s57, {64*9216}
    s_add_u32 s56, s56, s58
    s_add_u32 s72, s72, s58
    s_sub_u32 s4, s56, {9*64*9216}
    s_sub_u32 s5, s72, {9*64*9216}
    s_lshl_b32 s58, s57, 7
    s_add_u32 s63, s63, s58
    s_sub_u32 s6, s63, {9*128}
    s_lshl_b32 s58, s57, 12
    s_add_u32 s64, s64, s58
    s_add_u32 s65, s65, s58
    s_sub_u32 s7, s64, {9*4096}
    s_sub_u32 s78, s65, {9*4096}
    """)
    P("s_load_dwordx2 s[48:49], s[0:1], 112")
    first = []
    for kb in range(2):
        first += dma4(0, kb)
    rest = []
    na, nb, nu = N0()
    for kb in range(2, na):
        rest += dma4(0, kb)
    for kb in range(4):
        rest += (dma4(1, kb) if kb < nb else []) + (dmaU(kb) if kb < nu else [])
    P("s_waitcnt lgkmcnt(0)")
    srd(P, 36, 48, 49, 256)
    P("s_cmp_lg_u32 s53, 0")
    P("s_cbranch_scc1 K2_NOLN")
    R, F, S, Z = ACC, ACC + 40, ACC + 120, ACC + 136
    allw = first + rest
    P(f"""
    v_mov_b32 v{Z}, 0
    v_mov_b32 v{Z+1}, 0
    v_mov_b32 v{Z+2}, 0
    v_mov_b32 v{Z+3}, 0
    v_mov_b32 v{Z+4}, 0
    v_mov_b32 v{Z+5}, 0
    v_mov_b32 v{Z+6}, 1.0
    v_mov_b32 v{Z+7}, 1.0
    s_mul_i32 s58, s2, {5*CNT_STRIDE}
    s_add_u32 s58, s58, {WS_CNT}
    v_mul_u32_u24 v{Z+8}, {CNT_STRIDE}, v0
    v_cmp_gt_u32 vcc, 5, v0
    v_cndmask_b32 v{Z+8}, 2.0, v{Z+8}, vcc
    buffer_store_dword v{Z}, v{Z+8}, s[20:23], s58 offen sc0 sc1
    s_mul_i32 s58, s2, {72*16}
    s_add_u32 s58, s58, {WS_AGG}
    v_cmp_gt_u32 vcc, 8, v0
    v_cndmask_b32 v{Z+8}, 2.0, v{V_LANE16}, vcc
    buffer_store_dwordx4 v[{Z}:{Z+3}], v{V_LANE16}, s[20:23], s58 offen sc0 sc1
    buffer_store_dwordx4 v[{Z}:{Z+3}], v{Z+8}, s[20:23], s58 offen offset:1024 sc0 sc1
    s_lshl_b32 s57, s51, 5
    s_add_u32 s57, s57, s50
    s_lshl_b32 s42, s57, 7
    s_add_u32 s42, s42, {WS_MBX}
    buffer_store_dword v{Z}, v{SGO}, s[20:23], s42 offen sc0 sc1
    s_cmp_eq_u32 s2, 0
    s_cselect_b32 s58, 0, 0x40000000
    s_add_u32 s58, s58, {WS_ZREC}
    buffer_store_dwordx4 v[{Z+4}:{Z+7}], v{SGO}, s[20:23], s58 offen sc0 sc1
    """)
    for ins, _ in allw:
        P.extend(ins)
    P(f"""
    s_and_b32 s58, s50, 3
    s_lshl_b32 s58, s58, 3
    v_lshrrev_b32 v{S+10}, 3, v0
    v_add_u32 v{S+10}, s58, v{S+10}
    v_lshrrev_b32 v{S+8}, 1, v{S+9}
    v_lshlrev_b32 v{S+8}, 10, v{S+8}
    v_and_b32 v{S+11}, 1, v{S+9}
    v_lshl_add_u32 v{S+8}, v{S+11}, 9, v{S+8}
    v_lshl_add_u32 v{S+8}, v{S+10}, 4, v{S+8}
    s_lshr_b32 s58, s57, 2
    s_mul_i32 s58, s58, 36864
    """)

    def reduce8():
        P(f"""
        v_add_f32 v{S}, v{S}, v{S+1}
        v_add_f32_dpp v{S}, v{S}, v{S} quad_perm:[1,0,3,2] row_mask:0xf bank_mask:0xf
        v_add_f32_dpp v{S}, v{S}, v{S} quad_perm:[2,3,0,1] row_mask:0xf bank_mask:0xf
        v_add_f32_dpp v{S}, v{S}, v{S} row_half_mirror row_mask:0xf bank_mask:0xf
        """)
    for d in range(36):
        P(f"v_lshlrev_b32 v{F+2*d}, 16, v{R+d}")
        P(f"v_and_b32 v{F+2*d+1}, 0xffff0000, v{R+d}")
        if d == 1:
            P(f"v_pk_add_f32 v[{S}:{S+1}], v[{F}:{F+1}], v[{F+2}:{F+3}]")
        elif d > 1:
            P(f"v_pk_add_f32 v[{S}:{S+1}], v[{S}:{S+1}], v[{F+2*d}:{F+2*d+1}]")
    reduce8()
    if os.environ.get("PROST"): P.stamp(8)
    P(f"v_mul_f32 v{S+2}, {f2u(-1.0/576)}, v{S}")
    for d in range(36):
        P(f"v_pk_add_f32 v[{S+4}:{S+5}], v[{F+2*d}:{F+2*d+1}], v[{S+2}:{S+3}] op_sel_hi:[1,0]")
        if d == 0:
            P(f"v_pk_mul_f32 v[{S}:{S+1}], v[{S+4}:{S+5}], v[{S+4}:{S+5}]")
        else:
            P(f"v_pk_fma_f32 v[{S}:{S+1}], v[{S+4}:{S+5}], v[{S+4}:{S+5}], v[{S}:{S+1}]")
    reduce8()
    P(f"v_mul_f32 v{S+6}, {f2u(1.0/576)}, v{S}")
    bf16r(P, S + 2, S + 2)
    bf16r(P, S + 6, S + 6)
    P(f"v_add_f32 v{S+6}, {f2u(1e-5)}, v{S+6}")
    bf16r(P, S + 6, S + 6)
    P(f"v_sqrt_f32 v{S+6}, v{S+6}")
    bf16r(P, S + 6, S + 6)
    P(f"v_rcp_f32 v{S+6}, v{S+6}")
    for j in range(9):
        for d in range(4 * j, 4 * j + 4):
            a_, b_ = F + 2 * d, F + 2 * d + 1
            P(f"""
            v_pk_add_f32 v[{a_}:{b_}], v[{a_}:{b_}], v[{S+2}:{S+3}] op_sel_hi:[1,0]
            v_cvt_pk_bf16_f32 v{b_}, v{a_}, v{b_}
            v_lshlrev_b32 v{a_}, 16, v{b_}
            v_and_b32 v{b_}, 0xffff0000, v{b_}
            v_pk_mul_f32 v[{a_}:{b_}], v[{a_}:{b_}], v[{S+6}:{S+7}] op_sel_hi:[1,0]
            v_cvt_pk_bf16_f32 v{R+d}, v{a_}, v{b_}
            """)
        P(f"s_add_u32 s59, s58, {WS_XNF + 4096*j}")
        P(f"buffer_store_dwordx4 v[{R+4*j}:{R+4*j+3}], v{S+8}, s[20:23], s59 offen sc1")
    if os.environ.get("PROST"): P.stamp(9)
    P("s_waitcnt vmcnt(0)")
    if os.environ.get("PROST"): P.stamp(10)
    P(f"""
    s_lshl_b32 s58, s51, 5
    v_mov_b32 v{S}, 1
    buffer_atomic_add v{S}, v{SGO}, s[36:39], s58 offen sc0 sc1
    s_lshl_b32 s58, s51, 12
    s_add_u32 s58, s58, {WS_MBX}
    v_lshlrev_b32 v{S+1}, 7, v0
    v_cmp_gt_u32 vcc, 32, v0
    v_cndmask_b32 v{S+1}, 2.0, v{S+1}, vcc
    v_readfirstlane_b32 s59, v{S}
    s_and_b32 s59, s59, 31
    s_cmp_eq_u32 s59, 31
    s_cselect_b32 s58, s58, 0x40000000
    buffer_store_dword v{SGD}, v{S+1}, s[20:23], s58 offen sc0 sc1
    """)
    if os.environ.get("PROST"): P.stamp(11)
    P(f"v_mov_b32 v{Z+8}, 0")
    P("s_mov_b32 s58, 0")
    P("K2_XPOLL:")
    P(f"""
    buffer_load_dword v{Z+9}, v{Z+8}, s[20:23], s42 offen sc0 sc1
    s_waitcnt vmcnt(0)
    v_cmp_ne_u32 vcc, 1, v{Z+9}
    s_add_u32 s58, s58, 1
    s_nop 4
    s_cbranch_vccz K2_LNJOIN
    s_sleep {os.environ.get("XSLEEP", "2")}
    s_cmp_lt_u32 s58, 100000
    s_cbranch_scc1 K2_XPOLL
    s_branch K2_LNJOIN
    """)
    P("K2_NOLN:")
    if os.environ.get("CTOP", "1") != "1":
        P("s_lshr_b32 s57, s2, 3\ns_cmp_eq_u32 s53, 2\ns_cselect_b32 s57, s57, 4096")
        code_touch(P, "K2_PC0", "k2_kernel", "CODE_END", 92, Z + 10, 0, 57, True)
    for ins, _ in allw:
        P.extend(ins)
    if os.environ.get("TLBW", "0") == "1":
        PG = int(os.environ.get("TLBPG", str(2 << 20)))
        P("s_load_dwordx4 s[84:87], s[0:1], 96")
        P("s_load_dwordx4 s[88:91], s[0:1], 40")
        P(f"v_mul_u32_u24 v{Z+8}, {PG >> 4}, v0")
        P(f"v_lshlrev_b32 v{Z+8}, 4, v{Z+8}")
        from k1 import touch
        touch(P, Z + 9, Z + 8, 20)
        P("s_waitcnt lgkmcnt(0)")
        for lo, nb in ((84, 4608 * 1152), (86, 2048 * 576 * 4), (88, 576 * 1152), (90, 576 * 1152)):
            srd(P, 92, lo, lo + 1, nb)
            touch(P, Z + 9, Z + 8, 92)
        touch(P, Z + 9, Z + 8, 8)
        touch(P, Z + 9, Z + 8, 12)
        touch(P, Z + 9, Z + 8, 44)
    WST = [x for x in os.environ.get("WARM", "").split(",") if x]
    WINF = int(os.environ.get("WINF", "8"))
    P(f"""
    s_mul_i32 s57, s53, {16*9216}
    v_subrev_u32 v{Z}, s57, v{V_D4}
    v_subrev_u32 v{Z+1}, s57, v{V_D4+1}
    """)
    k = 0
    for st_ in WST:
        grp, kb0 = (0 if st_[0] == "A" else 1), int(st_[1:])
        P(f"""
        s_add_u32 s57, s53, {kb0 - 1}
        s_cmp_ge_u32 s57, s3
        s_cselect_b32 s58, s4, s56
        s_mul_i32 s57, s57, {64*9216}
        s_add_u32 s58, s58, s57
        """)
        for m in range(2):
            for i in range(8):
                P(f"s_add_u32 s59, s58, {i*8*9216 + grp*128}")
                I = Ins(f"buffer_store_dword v{Z}, v{Z+m}, s[{8+4*m}:{11+4*m}], s59 offen")
                I.text = f"buffer_load_dwordx4 v[{Z+4}:{Z+7}], v{Z+m}, s[{8+4*m}:{11+4*m}], s59 offen"
                P.ins.append(I)
                k += 1
                if k > WINF:
                    P(f"s_waitcnt vmcnt({WINF})")
    P("K2_LNJOIN:")
    P("s_barrier")
    if os.environ.get("PROST"): P.stamp(12)
    for kb in range(PRE):
        for ins, _ in xloads(kb):
            P.extend(ins)
    P(f"s_waitcnt vmcnt({8*PRE})")


def gen_k2b(single=False):
    P = Prog()
    P("s_cmp_ge_u32 s2, 256")
    P("s_cbranch_scc1 K3_END")
    P.stamp(0, real=True)
    P.stamp(1)
    if single:
        S_ = ACC + 120
        P("s_load_dwordx2 s[88:89], s[0:1], 0")
        if os.environ.get("CTOP", "1") == "1":
            P("s_lshr_b32 s57, s2, 3")
            P("s_lshl_b32 s57, s57, 2")
            code_touch(P, "K2_PC0", "k2_kernel", "CODE_END", 92, ACC + 150, 0, 57, True)
        P(f"""
        s_and_b32 s57, s2, 4
        s_bfe_u32 s58, s2, 0x20003
        s_add_u32 s57, s57, s58
        s_lshl_b32 s57, s57, 3
        s_and_b32 s58, s2, 3
        s_lshl_b32 s58, s58, 1
        s_add_u32 s57, s57, s58
        s_lshr_b32 s58, s2, 7
        s_add_u32 s57, s57, s58
        s_lshl_b32 s57, s57, 5
        s_bfe_u32 s58, s2, 0x20005
        s_lshl_b32 s58, s58, 2
        s_add_u32 s57, s57, s58
        s_mul_i32 s58, s57, 1152
        v_bfe_u32 v{S_+8}, v0, 3, 2
        v_bfe_u32 v{S_+9}, v0, 5, 1
        v_lshl_add_u32 v{S_+8}, v{S_+9}, 4, v{S_+8}
        v_mul_u32_u24 v{S_+10}, 1152, v{S_+8}
        v_and_b32 v{S_+9}, 7, v0
        v_lshl_add_u32 v{S_+10}, v{S_+9}, 4, v{S_+10}
        v_cmp_gt_u32 vcc, 64, v0
        v_cndmask_b32 v{S_+10}, 2.0, v{S_+10}, vcc
        s_mov_b32 s90, {2048*1152}
        s_mov_b32 s91, 0x00020000
        s_waitcnt lgkmcnt(0)
        s_and_b32 s89, s89, 0xffff
        """)
        for j in range(9):
            P(f"buffer_load_dwordx4 v[{ACC+4*j}:{ACC+4*j+3}], v{S_+10}, s[88:91], s58 offen offset:{128*j}", tag="keep")
    P("s_load_dwordx4 s[36:39], s[0:1], 80")
    P("s_load_dwordx2 s[48:49], s[0:1], 120")
    P("s_load_dwordx4 s[40:43], s[0:1], 8")
    P("s_load_dwordx2 s[46:47], s[0:1], 56")
    P("s_load_dwordx2 s[100:101], s[0:1], 24")
    P("s_load_dwordx2 s[82:83], s[0:1], 32")
    P("""
    v_lshrrev_b32 v2, 6, v0
    v_and_b32 v0, 63, v0
    v_readfirstlane_b32 s53, v2
    s_and_b32 s52, s2, 3
    s_lshr_b32 s50, s2, 5
    s_lshl_b32 s51, s52, 3
    s_add_u32 s50, s50, s51
    s_and_b32 s51, s2, 4
    s_bfe_u32 s54, s2, 0x20003
    s_add_u32 s51, s51, s54
    s_mov_b32 s79, s53
    """)
    P.dbgstamp(1, 226, real=True)
    P.dbgstamp(2, 226)
    P(f"v_lshlrev_b32 v{V_LANE16}, 4, v0")
    P(f"""
    s_lshl_b32 s54, s51, 3
    s_lshl_b32 s55, s53, 1
    s_add_u32 s54, s54, s55
    s_mul_i32 s64, s54, 36864
    s_mul_i32 s55, s52, {0 if single else XNF_BYTES}
    s_add_u32 s64, s64, s55
    s_add_u32 s65, s64, 36864
    s_lshr_b32 s57, s50, 2
    s_and_b32 s58, s50, 3
    s_mul_i32 s66, s54, {360*1024}
    s_add_u32 s66, s66, {WS_HF}
    s_add_u32 s73, s66, {288*1024}
    s_mul_i32 s55, s57, {36*1024}
    s_add_u32 s66, s66, s55
    s_lshl_b32 s55, s58, 10
    s_add_u32 s68, s66, s55
    s_add_u32 s68, s68, {32*1024}
    s_add_u32 s69, s68, {360*1024}
    s_lshl_b32 s55, s58, 13
    s_add_u32 s66, s66, s55
    s_add_u32 s67, s66, {360*1024}
    s_mul_i32 s56, s57, 1152
    s_lshl_b32 s55, s58, 5
    s_add_u32 s72, s56, s55
    s_add_u32 s72, s72, 1024
    s_lshl_b32 s55, s58, 8
    s_add_u32 s56, s56, s55
    s_mov_b32 s70, {f2u(-2.0*math.sqrt(2.0/math.pi)*LOG2E*0.044715)}
    v_mov_b32 v{V_C0}, {f2u(-2.0*math.sqrt(2.0/math.pi)*LOG2E)}
    """)
    P(f"""
    v_lshrrev_b32 v14, 3, v0
    v_and_b32 v15, 2, v14
    v_bfe_u32 v{V_D4}, v0, 1, 2
    v_xor_b32 v{V_D4}, v{V_D4}, v15
    v_lshlrev_b32 v{V_D4}, 5, v{V_D4}
    v_and_b32 v15, 1, v0
    v_lshl_add_u32 v{V_D4}, v15, 4, v{V_D4}
    s_lshl_b32 s57, s53, 4
    v_add_u32 v14, s57, v14
    v_mul_u32_u24 v14, 9216, v14
    v_add_u32 v{V_D4}, v{V_D4}, v14
    v_xor_b32 v{V_D4+1}, 32, v{V_D4}
    v_lshrrev_b32 v14, 1, v0
    s_lshl_b32 s57, s53, 1
    s_and_b32 s57, s57, 4
    v_xor_b32 v14, s57, v14
    v_mul_u32_u24 v14, 9216, v14
    v_lshl_add_u32 v{V_DE}, v15, 4, v14
    s_lshl_b32 s61, s53, 11
    """)
    P("s_waitcnt lgkmcnt(0)")
    srd(P, 8, 36, 37, 576 * 9216)
    srd(P, 12, 38, 39, 576 * 9216)
    srd(P, 20, 48, 49, WS_BYTES)

    ROT = single and int(os.environ.get("ROT2", "1"))
    def rsel(D, dst, base, kb, const):
        if ROT and kb > 0:
            D(f"s_cmp_ge_u32 {kb}, s3")
            D(f"s_cselect_b32 s{dst}, s{HI[base]}, s{base}")
            D(f"s_add_u32 s{dst}, s{dst}, {const}")
        else:
            D(f"s_add_u32 s{dst}, s{base}, {const}")
    HI = {56: 4, 72: 5, 63: 6, 64: 7, 65: 78}
    slotA = [0, 1, 2, 3, 4, 0, 1, 2, 3]
    slotB = [5, 6, 7, 8, 4, 0, 1, 2, 3]
    freeB = [None, None, None, None, 4, 5, 6, 7, 8]

    def dma4(grp, kb):
        slot = (slotA if grp == 0 else slotB)[kb] * SLOT
        out = []
        for m in range(2):
            for i in range(2):
                D = Prog()
                D(f"s_add_u32 m0, s61, {slot + m*8192 + i*1024}")
                rsel(D, 59, 56, kb, (kb*64 + i*8)*9216 + grp*128)
                D(f"buffer_load_dwordx4 v{V_D4+m}, s[{8+4*m}:{11+4*m}], s59 offen lds", tag=("W", grp, kb))
                out.append((D.ins, 8))
        return out

    def dmaU(kb):
        D = Prog()
        D(f"s_add_u32 m0, s60, {(kb % 4)*4096}")
        rsel(D, 59, 63, kb, kb*128)
        D(f"buffer_load_dwordx4 v{V_DU}, s[44:47], s59 offen lds", tag=("W", 1, kb))
        return [(D.ins, 8)]

    def dmaE(kb):
        D = Prog()
        D(f"s_add_u32 m0, s60, {((9 + kb) % 4)*4096}")
        rsel(D, 59, 72, kb, kb*64*9216)
        D(f"buffer_load_dwordx4 v{V_DE}, s[16:19], s59 offen lds", tag=("W", 2, kb))
        return [(D.ins, 32)]

    def xloads(kb):
        out = []
        for s in range(4):
            for j in range(2):
                D = Prog()
                rsel(D, 62, 64 + j, kb, WS_XNF + kb*4096)
                D(f"buffer_load_dwordx4 {xreg(j, kb*4+s)}, v{V_LANE16}, s[20:23], s62 offen offset:{s*1024}" + (" sc1" if single else ""))
                out.append((D.ins, 8))
        return out

    PRE = int(os.environ.get("K2PRE", "2"))
    if not single:
        for kb in range(PRE):
            for ins, _ in dma4(0, kb) + xloads(kb):
                P.extend(ins)
    srd(P, 24, 40, 41, 1152)
    srd(P, 28, 42, 43, 1152)
    srd(P, 32, 46, 47, 1152)
    P(f"""
    s_cmp_lt_u32 s53, 2
    s_cselect_b32 s16, s8, s12
    s_cselect_b32 s17, s9, s13
    s_cselect_b32 s44, s100, s82
    s_cselect_b32 s45, s101, s83
    s_and_b32 s45, s45, 0xffff
    s_mov_b32 s46, {576*1152}
    s_mov_b32 s47, 0x00020000
    s_mov_b32 s18, {576*9216}
    s_mov_b32 s19, 0x00020000
    s_and_b32 s57, s53, 1
    s_mul_i32 s55, s57, {32*9216}
    s_add_u32 s72, s72, s55
    s_lshl_b32 s60, s53, 10
    s_add_u32 s60, s60, {E_BASE}
    s_mul_i32 s63, s50, {16*1152}
    """)
    P(f"""
    v_lshrrev_b32 v14, 3, v0
    v_lshrrev_b32 v15, 4, v0
    s_lshl_b32 s55, s57, 2
    v_add_u32 v15, s55, v15
    v_and_b32 v13, 7, v0
    v_xor_b32 v13, v13, v15
    s_lshl_b32 s55, s57, 3
    v_add_u32 v14, s55, v14
    v_mul_u32_u24 v14, 1152, v14
    v_lshl_add_u32 v{V_DU}, v13, 4, v14
    """)
    P(f"""
    v_and_b32 v14, 1, v0
    v_lshlrev_b32 v14, 4, v14
    v_bfe_u32 v15, v0, 1, 1
    v_lshl_add_u32 v14, v15, 3, v14
    v_lshrrev_b32 v15, 5, v0
    v_lshlrev_b32 v15, 3, v15
    v_bfe_u32 v{WF}, v0, 2, 2
    v_add_u32 v15, v15, v{WF}
    v_bfe_u32 v{WF+1}, v0, 4, 1
    v_and_b32 v{WF}, 2, v{WF}
    v_xor_b32 v{WF}, v{WF}, v{WF+1}
    v_lshl_add_u32 v{V_R4}, v15, 7, v14
    v_lshl_add_u32 v{V_R4}, v{WF+1}, 13, v{V_R4}
    v_lshl_add_u32 v{V_R4}, v{WF}, 5, v{V_R4}
    v_xor_b32 v{V_R4+1}, 32, v{V_R4}
    v_xor_b32 v{V_R4+2}, 64, v{V_R4}
    v_xor_b32 v{V_R4+3}, 96, v{V_R4}
    v_lshl_add_u32 v{V_RE}, v15, 5, v14
    v_lshl_add_u32 v{V_RE}, v{WF+1}, 11, v{V_RE}
    v_lshl_add_u32 v{V_RE}, v{WF+1}, 7, v{V_RE}
    v_add_u32 v{V_RE}, {E_BASE}, v{V_RE}
    v_xor_b32 v{V_RE2}, 128, v{V_RE}
    v_and_b32 v13, 31, v0
    v_bfe_u32 v{WF}, v13, 1, 3
    v_lshrrev_b32 v{WF+1}, 5, v0
    v_xor_b32 v{WF}, v{WF}, v{WF+1}
    v_lshlrev_b32 v{WF}, 4, v{WF}
    v_lshl_add_u32 v{V_UB}, v13, 7, v{WF}
    v_add_u32 v{V_UB}, {E_BASE}, v{V_UB}
    """)
    P(f"""
    s_lshl_b32 s76, s51, 2
    s_add_u32 s76, s76, s53
    s_lshl_b32 s75, s50, 5
    s_add_u32 s75, s75, s76
    s_lshl_b32 s75, s75, 8
    s_add_u32 s75, s75, {WS_AGG}
    s_lshl_b32 s55, s50, 10
    s_add_u32 s40, s73, s55
    s_add_u32 s41, s40, {360*1024}
    s_lshl_b32 s100, s76, 2
    s_add_u32 s100, s100, s52
    s_add_u32 s100, s100, 192
    s_mul_i32 s100, s100, {CNT_STRIDE}
    s_add_u32 s100, s100, {WS_CNT}
    s_add_u32 s83, s100, {160*CNT_STRIDE}
    s_lshr_b32 s101, s76, 1
    s_add_u32 s101, s101, 320
    s_mul_i32 s101, s101, {CNT_STRIDE}
    s_add_u32 s101, s101, {WS_CNT}
    v_cmp_eq_u32 vcc, 0, v0
    v_mov_b32 v{SGD}, 1
    v_cndmask_b32 v{SGO}, 2.0, v0, vcc
    """)
    NA0, NB0, NU0 = N0() if single else (PRE, 0, 0)
    if single:
        ln_phase(P, dma4, dmaU, xloads, ROT, PRE)
    pl_ld, pl_calc = ssm_params(50)
    phases = [
        [("A", 0, 0), ("A", 1, 1), ("A", 2, 2), ("A", 3, 3)],
        [("U", 0, 4), ("B", 0, 0)],
        [("E", 0, 1), ("B", 1, 2)],
        [("B", 2, 3)],
        [("B", 3, 0)],
    ]
    frags = []
    unit = 0
    for ph, tiles in enumerate(phases):
        for kb in range(9):
            order = [(s_, t) for s_ in range(4) for t in tiles]
            if (ph == 0 and kb == 8) or (ph == 1 and kb == 0):
                order = [(s_, tiles[0]) for s_ in range(4)] + [(s_, t) for s_ in range(4) for t in tiles[1:]]
            for s_, (buf, g, sl) in order:
                frags.append(dict(ph=ph, buf=buf, kb=kb, s=s_, g=g, slot=sl, ks=kb * 4 + s_, unit=unit))
            unit += 1
    bar_units = set(range(0, 27)) | {28}
    items = []
    for kb in range(PRE, 9):
        rel = -1 if kb < 5 else kb - 5 + 2
        for ins, ln in (dma4(0, kb) if kb >= NA0 else []):
            items.append([16 * kb - 1, rel, ins, ln])
        for ins, ln in xloads(kb):
            items.append([16 * kb, -1, ins, ln])
    for kb in range(9):
        rel = -1 if freeB[kb] is None else freeB[kb] + 2
        for ins, ln in (dma4(1, kb) if kb >= NB0 else []):
            items.append([144 + 8 * kb, rel, ins, ln])
        rel = -1 if kb < 4 else 9 + (kb - 4) + 2
        for ins, ln in (dmaU(kb) if kb >= NU0 else []):
            items.append([144 + 8 * kb - 1, rel, ins, ln])
        rel = 9 + (9 + kb - 4) + 2
        for ins, ln in dmaE(kb):
            items.append([216 + 8 * kb - 1, rel, ins, ln])
    WD = int(os.environ.get("WD", "0"))
    items.sort(key=lambda x: x[0] - (WD if x[2][-1].kind == "dma" else 0))
    released = [-1]
    seen = set()
    region = [0]

    def frag_read(M, n, part):
        f = frags[n]
        u = f["unit"]
        if u not in seen:
            seen.add(u)
            if u in bar_units:
                M.waitvm(("W", min(f["ph"], 2), f["kb"]))
                M("s_barrier")
                released[0] = u
                if u in (3, 6, 9, 12, 15, 18, 21, 24, 28) and not os.environ.get("PROST"):
                    M.stamp(2 + u // 3)
        b = WF + 4 * (n % NWF)
        if f["buf"] == "U":
            if part == 0:
                if f["s"]:
                    M(f"v_xor_b32 v{V_UT}, {32*f['s']}, v{V_UB}")
                M(f"ds_read_b128 v[{b}:{b+3}], v{V_UT if f['s'] else V_UB} offset:{(f['kb'] % 4)*4096}")
            return
        if f["buf"] == "E":
            off = ((9 + f["kb"]) % 4) * 4096 + f["s"] * 16 * 32
            base = V_RE if part == 0 else V_RE2
        else:
            sl = (slotA if f["buf"] == "A" else slotB)[f["kb"]]
            reg = sl // 3
            if reg != region[0]:
                d = (reg - region[0]) * 3 * SLOT
                for g in range(4):
                    M(f"v_add_u32 v{V_R4+g}, {d & 0xffffffff}, v{V_R4+g}")
                region[0] = reg
            base = V_R4 + f["g"]
            off = (sl % 3) * SLOT + f["s"] * 16 * 128 + part * 512
        M(f"ds_read_b64_tr_b16 v[{b+2*part}:{b+2*part+1}], v{base} offset:{off}")

    P.dbgstamp(3, 226)
    P.dbgstamp(9, 226, real=True)
    for n in range(DIST):
        frag_read(P, n, 0)
        frag_read(P, n, 1)
    P.stamp(2)
    CR0 = float(os.environ.get("CR0", "6.3"))
    CR1 = float(os.environ.get("CR1", "6.6"))
    credit = 0.0
    B = Prog()
    ph_start = {}
    nm_ = 0
    for n, f in enumerate(frags):
        ph_start.setdefault(f["ph"], nm_)
        b = WF + 4 * (n % NWF)
        credit = min(credit + (CR0 if f["ph"] == 0 else CR1), 16.0)
        for j in range(2):
            a = ACC + 32 * f["slot"] + 16 * j
            c = "0" if f["ks"] == 0 else f"v[{a}:{a+15}]"
            if f["buf"] == "U":
                B(f"v_mfma_f32_32x32x16_bf16 v[{a}:{a+15}], {xreg(j, f['ks'])}, v[{b}:{b+3}], {c}")
            else:
                B(f"v_mfma_f32_32x32x16_bf16 v[{a}:{a+15}], v[{b}:{b+3}], {xreg(j, f['ks'])}, {c}")
            nm_ += 1
            if n + DIST < len(frags):
                frag_read(B, n + DIST, j)
            mind = min((it[0] for it in items), default=10**9)
            assert mind > n + DIST + 1, ("load issued too late", n, mind)
            if j == 1 and mind - n < int(os.environ.get("URG", "14")):
                k = min(range(len(items)), key=lambda q: items[q][0])
                if items[k][1] <= released[0]:
                    items.insert(0, items.pop(k))
            if j == 1 and (credit > 0 or mind - n < int(os.environ.get("URG", "14"))):
                for k, it in enumerate(items):
                    if it[1] <= released[0]:
                        B.extend(it[2])
                        credit -= it[3]
                        del items[k]
                        break
    assert not items, len(items)
    ph_start[5] = nm_
    A_ = lambda t, **k: epilogue(t, 66, 1024 * t, tag="early", **k)
    Bslot = [0, 2, 3, 0]
    B_ = lambda t, **k: epilogue(Bslot[t], 66, 4096 + 1024 * t, **k)
    E_ = lambda **k: epilogue(1, 68, 0, **k)
    U = ACC + 128
    RC = ACC + 32

    def sig(tag, sreg):
        Qp = Prog()
        Qp.waitvm(tag)
        Qp(f"buffer_atomic_add v{SGD}, v{SGO}, s[20:23], s{sreg} offen sc1")
        return Qp.ins

    def spread(body, extra, width, lo=0.0, hi=1.0):
        groups = [extra[i:i + width] for i in range(0, len(extra), width)]
        n = len(body)
        pos = [int(n * (lo + (hi - lo) * (k + 0.5) / len(groups))) for k in range(len(groups))]
        out = []
        for i_, x in enumerate(body):
            while pos and i_ >= pos[0] and not any(y.text.startswith("s_add_u32 s71") for y in out[-3:]):
                out += groups.pop(0)
                pos.pop(0)
            out.append(x)
        for g_ in groups:
            out += g_
        return out

    PFp = Prog()
    PFp("s_load_dwordx2 s[36:37], s[0:1], 96")
    PFp("s_load_dwordx4 s[24:27], s[0:1], 40")
    PFp(f"""
    s_lshl_b32 s42, s2, 2
    s_add_u32 s42, s42, s53
    s_lshl_b32 s42, s42, 10
    s_waitcnt lgkmcnt(0)
    """)
    srd(PFp, 4, 36, 37, 4608 * 1152)
    srd(PFp, 28, 24, 25, 576 * 1152)
    srd(PFp, 32, 26, 27, 576 * 1152)
    pf = []
    for sd, i in [(4, 0), (4, 1), (28, 0), (4, 2), (4, 3), (32, 0), (4, 4), (4, 5)]:
        G = Prog()
        G(f"s_add_u32 s43, s42, {i*1024*1024}")
        I = Ins(f"buffer_store_dword v{V_LANE16}, v{V_LANE16}, s[{sd}:{sd+3}], s43 offen")
        I.text = f"buffer_load_dwordx4 v[{Q}:{Q+3}], v{V_LANE16}, s[{sd}:{sd+3}], s43 offen"
        G.ins.append(I)
        pf += G.ins
    if not int(os.environ.get("PF3B", "1")):
        pf = []
    L = B.ins
    p1, p2, p3, p4, p5 = (ph_start[k] for k in range(1, 6))
    ST = lambda t: A_(t, part="store")
    L = interleave2(L, pl_ld, start=8, end=24)
    if single:
        CK = Prog()
        CK(f"v_and_b32 v{VAG}, 7, v0")
        CK(f"v_lshlrev_b32 v{VAG}, 5, v{VAG}")
        CK(f"buffer_load_dword v{ES}, v{VAG}, s[36:39], 0 offen sc0 sc1")
        CK2 = Prog()
        CK2(f"v_max_u32 v{ES}, 1, v{ES}")
        CK2(f"v_and_b32 v{ES}, 31, v{ES}")
        CK2(f"v_cmp_ne_u32 vcc, 0, v{ES}")
        CK2("s_nop 4")
        CK2("s_cbranch_vccnz K2A_SLOW", tag="keepall")
        CK2("K2A_BACK:", tag="nop")
        L = interleave2(L, CK.ins, start=p1 - 70, end=p1 - 66)
        L = interleave2(L, CK2.ins, start=p1 - 28, end=p1 - 26)
    L = interleave2(L, pl_calc, start=110, end=p1 - 72)
    L = interleave2(L, A_(0), start=p1 - 23, end=p1 + 7)
    L = interleave2(L, A_(1, part="calc") + A_(2, part="calc") + A_(3, part="calc") + ST(1) + ST(2), start=p1 + 8, end=p2 - 1)
    L = interleave2(L, ssm1(U, 75) + B_(0, part="calc") + ST(3), start=p2 + 1, end=p3 - 1)
    idx = [k for k, i in enumerate(L) if i.kind == "mfma"]
    cut = idx[p3]
    P.extend(L[:cut])
    P.extend(PFp.ins)
    if int(os.environ.get("CPF3", "1")):
        P("s_lshr_b32 s77, s2, 3\ns_lshl_b32 s77, s77, 2\ns_add_u32 s77, s77, s53")
        code_touch(P, "K2_PC", "K3_GOON", "CODE_END", 24, Q + 4, 0, 77, False)
    L = L[cut:]
    n3, n4 = p4 - p3, p5 - p3
    if os.environ.get("S2LATE", "1") == "1" and single:
        f3 = spread(B_(0, part="store") + E_() + B_(1)[:30], pf, 2, 0.0, 0.8) + sig("early", 83)
        L = interleave2(L, f3, start=1, end=n3 - 1)
        extra = ssm2_loads(RC, 75, 76) if os.environ.get("S2LATE", "1") == "1" and os.environ.get("S2PRO", "0") == "1" else []
        for i_ in extra:
            if i_.kind == "vload":
                i_.tag = "keep"
        L = interleave2(L, B_(1)[30:] + B_(2)[:70] + extra + B_(2)[70:], start=n3 + 1, end=n4 - 1)
    else:
        f3 = spread(E_() + B_(0, part="store") + B_(1, part="calc"), pf, 2, 0.0, 0.6) + sig("early", 83) + ssm2_loads(RC, 75, 76) + B_(1, part="store")
        L = interleave2(L, f3, start=1, end=n3 + 8)
        L = interleave2(L, B_(2)[:60] + ssm2(U, RC, 40, "K2S", E_BASE) + B_(2)[60:], start=n3 + 9, end=n4 - 1)
    cnt = 0
    for i_ in L:
        P.ins.append(i_)
        if i_.kind == "mfma":
            cnt += 1
            if cnt == n3 and not os.environ.get("PROST"):
                P.stamp(12)
    P.stamp(13)
    P.extend(B_(3))
    P.stamp(14)
    P.stamp(15, real=True)
    P.dump_stamps(9, 20, WS_DBG + 0x10000, 14)
    P("s_mov_b64 exec, -1")
    return P


def tail_job(P, single=False):
    late2 = os.environ.get("S2LATE", "1") == "1" and single
    P("s_load_dwordx4 s[8:11], s[0:1], 8")
    P("s_load_dwordx2 s[36:37], s[0:1], 56")
    P(f"""
    s_lshr_b32 s50, s2, 5
    s_lshl_b32 s50, s50, 1
    s_add_u32 s50, s50, 20
    s_add_u32 s54, s50, 1
    s_mul_i32 s63, s50, {16*1152}
    s_lshl_b32 s60, s53, 10
    """)
    if single:
        P(f"""
        s_sub_u32 s58, 9, s3
        s_lshl_b32 s58, s58, 7
        s_add_u32 s63, s63, s58
        s_sub_u32 s58, s63, {9*128}
        """)
    for u in range(2):
        for kb in range(9):
            P(f"s_add_u32 m0, s60, {(u*9 + kb)*4096}")
            if single and kb > 0:
                P(f"s_cmp_ge_u32 {kb}, s3")
                P(f"s_cselect_b32 s59, s58, s63")
                P(f"s_add_u32 s59, s59, {u*16*1152 + kb*128}")
            else:
                P(f"s_add_u32 s59, s63, {u*16*1152 + kb*128}")
            P(f"buffer_load_dwordx4 v{V_DU}, s[44:47], s59 offen lds")
    P("s_waitcnt vmcnt(18)")
    P(f"buffer_atomic_add v{SGD}, v{SGO}, s[20:23], s100 offen sc1")
    P("s_waitcnt lgkmcnt(0)")
    srd(P, 24, 8, 9, 1152)
    srd(P, 28, 10, 11, 1152)
    srd(P, 32, 36, 37, 1152)
    PRW = ACC + 64
    P(f"""
    v_and_b32 v5, 15, v0
    s_lshl_b32 s77, s50, 4
    v_add_u32 v5, s77, v5
    v_lshlrev_b32 v5, 1, v5
    v_add_u32 v6, 32, v5
    """)
    emit_param_loads(P, 5, PRW, 24, 28, 32)
    emit_param_loads(P, 6, PRW + 4, 24, 28, 32)
    P.ins[-1].tag = "dmas"
    if late2:
        if os.environ.get("S2PRO", "0") != "1":
            P.extend(ssm2_loads(ACC + 32, 75, 76))
        P.extend(ssm2(ACC + 128, ACC + 32, 40, "K2S", E_BASE))
    _, ca0 = ssm_params(50)
    _, ca1 = ssm_params(54)
    def mv(k):
        Qm = Prog()
        for i in range(3):
            Qm(f"v_mov_b32 v{T0+i}, v{PRW+4*k+i}")
        return Qm.ins
    ca0 = mv(0) + ca0
    ca1 = mv(1) + ca1
    P(f"""
    v_and_b32 v13, 31, v0
    v_bfe_u32 v5, v13, 1, 3
    v_lshrrev_b32 v6, 5, v0
    v_xor_b32 v5, v5, v6
    v_lshlrev_b32 v5, 4, v5
    v_lshl_add_u32 v5, v13, 7, v5
    v_xor_b32 v6, 32, v5
    v_xor_b32 v7, 64, v5
    v_xor_b32 v8, 96, v5
    v_add_u32 v9, {9*4096}, v5
    v_add_u32 v10, {9*4096}, v6
    v_add_u32 v11, {9*4096}, v7
    v_add_u32 v12, {9*4096}, v8
    s_lshl_b32 s56, s50, 5
    s_add_u32 s56, s56, s76
    s_lshl_b32 s56, s56, 8
    s_add_u32 s56, s56, {WS_AGG}
    s_add_u32 s74, s56, {32*256}
    s_lshl_b32 s55, s50, 10
    s_add_u32 s64, s73, s55
    s_add_u32 s65, s64, {360*1024}
    s_add_u32 s66, s64, 1024
    s_add_u32 s67, s65, 1024
    s_add_u32 s68, s101, {16*CNT_STRIDE}
    """)
    P.waitvm("dmas")
    P("s_barrier")
    SG1 = Prog()
    if late2:
        SG1.waitvm("fx")
        SG1(f"buffer_atomic_add v{SGD}, v{SGO}, s[20:23], s101 offen sc1")
    M = Prog()
    fr = [(u, ks) for u in range(2) for ks in range(36)]
    FB = ACC + 96
    def rd(n):
        u, ks = fr[n]
        b = FB + 4 * (n % 8)
        M(f"ds_read_b128 v[{b}:{b+3}], v{5 + 4*u + (ks & 3)} offset:{(ks >> 2)*4096}")
    for n in range(6):
        rd(n)
    for n, (u, ks) in enumerate(fr):
        b = FB + 4 * (n % 8)
        for j in range(2):
            a = ACC + 32 * u + 16 * j
            c = "0" if ks == 0 else f"v[{a}:{a+15}]"
            M(f"v_mfma_f32_32x32x16_bf16 v[{a}:{a+15}], {xreg(j, ks)}, v[{b}:{b+3}], {c}")
            if j == 0 and n + 6 < len(fr):
                rd(n + 6)
    SV = ACC + 128
    keep = [A2, REV, L1, L1 + 1, ES, ES + 1, ES + 2, ES + 3]
    SVp = Prog()
    for k, r in enumerate(keep):
        SVp(f"v_mov_b32 v{SV+k}, v{r}")
    L = interleave2(M.ins, ca0, start=2, end=40)
    L = interleave2(L, SG1.ins, start=50, end=52)
    L = interleave2(L, ssm1(ACC, 56) + SVp.ins + ca1, start=74, end=143)
    P.extend(L)
    P.extend(ssm1(ACC + 32, 74))
    RC, RC1 = ACC + 64, ACC + 96
    for k, r in enumerate(keep):
        P(f"v_mov_b32 v{SV+8+k}, v{r}")
        P(f"v_mov_b32 v{r}, v{SV+k}")
    P.extend(ssm2_loads(RC, 56, 76))
    s20 = ssm2(ACC, RC, 64, "K2T0", E_BASE)
    h_ = next(k for k, i_ in enumerate(s20) if i_.text.startswith("ds_write"))
    P.extend(s20[:h_])
    P.extend(ssm2_loads(RC1, 74, 76))
    P.extend(s20[h_:])
    for k, r in enumerate(keep):
        P(f"v_mov_b32 v{r}, v{SV+8+k}")
    P.extend(ssm2(ACC + 32, RC1, 66, "K2T1", E_BASE))
    P(f"""
    s_waitcnt vmcnt(0)
    v_mov_b32 v{SGD}, 2
    buffer_atomic_add v{SGD}, v{SGO}, s[20:23], s68 offen sc1
    s_branch K3_END
    """)
    ssm2_slow(P, RC, 56, 76, "K2T0")
    ssm2_slow(P, RC1, 74, 76, "K2T1")
    ssm2_slow(P, ACC + 32, 75, 76, "K2S")
    if single:
        P("K2A_SLOW:")
        P("s_mov_b32 s71, 0")
        P("K2A_SPIN:")
        P(f"""
        s_sleep 8
        buffer_load_dword v{ES}, v{VAG}, s[36:39], 0 offen sc0 sc1
        s_waitcnt vmcnt(0)
        v_max_u32 v{ES}, 1, v{ES}
        v_and_b32 v{ES}, 31, v{ES}
        v_cmp_ne_u32 vcc, 0, v{ES}
        s_add_u32 s71, s71, 1
        s_nop 4
        s_cbranch_vccz K2A_BACK
        s_cmp_lt_u32 s71, 100000
        s_cbranch_scc1 K2A_SPIN
        s_branch K2A_BACK
        """)
```
